```python
import torch

def _softmax(x, axis=-1):
    return torch.softmax(x, dim=axis)
def _gelu(x):
    return torch.nn.functional.gelu(x, approximate="tanh")
def _silu(x):
    return torch.nn.functional.silu(x)
def _sigmoid(x):
    return torch.sigmoid(x)
def _layernorm(x, axis=-1, eps=1e-5):
    m = x.mean(dim=axis, keepdim=True)
    v = x.var(dim=axis, keepdim=True, unbiased=False)
    return (x - m) / torch.sqrt(v + eps)
def _scatter_add(tgt, idx, src, axis=0):
    return tgt.clone().index_add_(axis, idx, src)
def _segment_sum(src, seg, n):
    out = torch.zeros((n,) + src.shape[1:], dtype=src.dtype)
    return out.index_add_(0, seg, src)
def _pad(x, pw):
    flat = tuple(v for pair in reversed(pw) for v in pair)
    return torch.nn.functional.pad(x, flat)

kernel_name = 'interleave_layers__sliding_block_cached__glu_gated_bilinear__decode'

def setup_inputs():

    _w = (lambda a: (lambda t: t.to(torch.bfloat16) if t.is_floating_point() else t)(torch.as_tensor(a)))
    def _A_setup():
        B, Sq, D = 1, 1, 512
        Hq, Hkv, Sk, Dh = 32, 8, 65536, 128
        assert Hq % Hkv == 0, (Hq, Hkv)
        return {
            "x": _w((lambda *s: torch.randn(*s, dtype=torch.bfloat16) * 0.05)(B, Sq, D)),
            "k_cache": _w((lambda *s: torch.randn(*s, dtype=torch.bfloat16) * 0.8)(B, Hkv, Sk, Dh)),
            "v_cache": _w((lambda *s: torch.randn(*s, dtype=torch.bfloat16) * 0.8)(B, Hkv, Sk, Dh)),
            "wq": _w((lambda *s: torch.randn(*s, dtype=torch.bfloat16) * 0.8)(D, Hq * Dh) * (D ** -0.5)),
            "wo": _w((lambda *s: torch.randn(*s, dtype=torch.bfloat16) * 0.8)(Hq * Dh, D) * ((Hq * Dh) ** -0.5)),
        }
    _A_in = _A_setup()

    def _B_setup():
        B, S, D, F = 1, 1, 512, 1792
        return {
            "x": _w((lambda *s: torch.randn(*s, dtype=torch.bfloat16) * 0.05)(B, S, D)),
            "w_gate": _w((lambda *s: torch.randn(*s, dtype=torch.bfloat16) * 0.2)(D, F) * (D ** -0.5)),
            "w_up": _w((lambda *s: torch.randn(*s, dtype=torch.bfloat16) * 0.2)(D, F) * (D ** -0.5)),
            "w_down": _w((lambda *s: torch.randn(*s, dtype=torch.bfloat16) * 0.2)(F, D) * (F ** -0.5)),
        }
    _B_in = _B_setup()

    return {
        "A_x": _A_in["x"],
        "A_k_cache": _A_in["k_cache"],
        "A_v_cache": _A_in["v_cache"],
        "A_wq": _A_in["wq"],
        "A_wo": _A_in["wo"],
        "B_x": _B_in["x"],
        "B_w_gate": _B_in["w_gate"],
        "B_w_up": _B_in["w_up"],
        "B_w_down": _B_in["w_down"],
    }

def reference(A_x, A_k_cache, A_v_cache, A_wq, A_wo, B_x, B_w_gate, B_w_up, B_w_down):
    def _A_ref(x, k_cache, v_cache, wq, wo):
        B, Sq, D = x.shape
        Hq, Dh = 32, 128
        Hkv, Sk = k_cache.shape[1], k_cache.shape[2]
        W = min(4096, max(256, Sk // 4))
        rep = Hq // Hkv
        q = (lambda x, *d: x.permute(*d))((x @ wq).reshape(B, Sq, Hq, Dh), 0, 2, 1, 3)
        k = (lambda x, n, axis: torch.repeat_interleave(x, n, dim=axis))(k_cache[:, :, Sk - W:, :], rep, axis=1)
        v = (lambda x, n, axis: torch.repeat_interleave(x, n, dim=axis))(v_cache[:, :, Sk - W:, :], rep, axis=1)
        scores = torch.einsum("bhqd,bhkd->bhqk", q, k) * (Dh ** -0.5)
        p = _softmax(scores, axis=-1)
        o = torch.einsum("bhqk,bhkd->bhqd", p, v)
        return (lambda x, *d: x.permute(*d))(o, 0, 2, 1, 3).reshape(B, Sq, Hq * Dh) @ wo

    def _B_ref(x, w_gate, w_up, w_down):
        g = torch.einsum("bsd,df->bsf", x, w_gate)
        u = torch.einsum("bsd,df->bsf", x, w_up)
        h = g * u
        return torch.einsum("bsf,fd->bsd", h, w_down)

    x = A_x
    x = x + _A_ref(_layernorm(x, axis=-1), A_k_cache, A_v_cache, A_wq, A_wo)
    x = x + _B_ref(_layernorm(x, axis=-1), B_w_gate, B_w_up, B_w_down)
    x = x + _A_ref(_layernorm(x, axis=-1), A_k_cache, A_v_cache, A_wq, A_wo)
    x = x + _B_ref(_layernorm(x, axis=-1), B_w_gate, B_w_up, B_w_down)
    return x
```

```python
import re

TRANS = ("v_exp_f32", "v_log_f32", "v_rcp_f32", "v_rsq_f32", "v_sqrt_f32", "v_sin_f32", "v_cos_f32")

def _regs(tok):
    tok = tok.strip()
    neg = tok.lstrip("-")
    if neg.startswith("abs(") or neg.startswith("|"):
        neg = neg.replace("abs(", "").replace(")", "").replace("|", "")
    m = re.fullmatch(r"([vs])(\d+)", neg)
    if m: return [(m.group(1), int(m.group(2)))]
    m = re.fullmatch(r"([vs])\[(\d+):(\d+)\]", neg)
    if m: return [(m.group(1), i) for i in range(int(m.group(2)), int(m.group(3)) + 1)]
    if neg == "vcc": return [("s", "vcc")]
    if neg == "exec": return [("s", "exec")]
    if neg == "m0": return [("s", "m0")]
    return []

class I:
    def __init__(self, text):
        self.text = text
        t = text.split(";")[0].strip()
        self.label = t.endswith(":")
        self.directive = t.startswith(".")
        self.op = ""
        self.w = set(); self.r = set()
        self.kind = "none"
        if self.label or self.directive or not t: return
        parts = t.split(None, 1)
        op = self.op = parts[0]
        rest = parts[1] if len(parts) > 1 else ""
        toks = [x.strip() for x in re.split(r",\s*(?![^\[]*\])", rest)] if rest else []
        if toks:
            last = toks[-1].split()
            toks[-1] = last[0] if last else ""
            self.mods = " ".join(last[1:])
        else:
            self.mods = ""
        self.toks = toks
        R = lambda ts: set(x for tk in ts for x in _regs(tk))
        self.dpp = "_dpp" in op
        self.sdwa = "_sdwa" in op
        if op.startswith("v_mfma"):
            self.kind = "mfma"; self.w = R(toks[:1]); self.r = R(toks[1:]); self.srcc = R(toks[3:4]); self.ab = R(toks[1:3])
            self.passes = 8 if "32x32" in op else (2 if "4x4x4" in op else 4)
        elif op.startswith("v_"):
            self.kind = "valu"
            if op.startswith("v_cmp"):
                self.w = R(toks[:1]); self.r = R(toks[1:])
            elif op.startswith("v_permlane"):
                self.w = R(toks[:2]); self.r = R(toks[:2])
            elif op.startswith(("v_readlane", "v_readfirstlane")):
                self.w = R(toks[:1]); self.r = R(toks[1:])
            elif op.startswith(("v_add_co", "v_addc_co", "v_sub_co")):
                self.w = R(toks[:2]); self.r = R(toks[2:])
            else:
                self.w = R(toks[:1]); self.r = R(toks[1:])
                if op.startswith(("v_fmac", "v_dot2c", "v_writelane")) or "UNUSED_PRESERVE" in self.mods or (self.dpp):
                    self.r |= self.w
                if op.startswith("v_cndmask") and len(toks) == 3: self.r.add(("s", "vcc"))
            self.dppsrc = R(toks[1:2]) if self.dpp else set()
            self.trans = any(op.startswith(x) for x in TRANS)
            self.dot = op.startswith("v_dot")
        elif op.startswith(("global_", "buffer_")):
            self.kind = "vmem"
            if "load" in op and "lds" not in op:
                self.w = R(toks[:1]); self.r = R(toks[1:])
            else:
                self.r = R(toks)
            self.lds = "lds" in op or " lds" in (" " + self.mods)
            self.widestore = "store" in op and ("x4" in op or "x3" in op)
            self.sdata = R(toks[1:2]) if op.startswith("global_store") else set()
        elif op.startswith("ds_"):
            self.kind = "ds"
            if op.startswith(("ds_read", "ds_bpermute", "ds_swizzle", "ds_permute")):
                self.w = R(toks[:1]); self.r = R(toks[1:])
            else:
                self.r = R(toks)
        elif op.startswith("s_"):
            self.kind = "salu"
            if op == "s_nop":
                self.nop = int(toks[0], 0) + 1
            elif op.startswith(("s_cmp", "s_cbranch", "s_branch", "s_waitcnt", "s_barrier", "s_endpgm", "s_sleep", "s_setprio")):
                self.r = R(toks)
            else:
                self.w = R(toks[:1]); self.r = R(toks[1:])
    def states(self):
        if self.label or self.directive or not self.op: return 0
        if self.op == "s_nop": return self.nop
        return 1

def V(s): return set(x for x in s if x[0] == "v")
def S(s): return set(x for x in s if x[0] == "s")

def need(p, c):
    n = 0
    pv = V(p.w); ps = S(p.w)
    if p.kind == "valu":
        if c.kind == "valu":
            if c.dpp and (pv & c.dppsrc): n = max(n, 2)
            if c.op.startswith("v_permlane") and (pv & c.r): n = max(n, 2)
            if c.op.startswith(("v_readlane", "v_readfirstlane")) and (pv & c.r): n = max(n, 1)
            if p.trans and not c.trans and (pv & c.r): n = max(n, 1)
            if p.trans and c.trans and (pv & c.r): n = max(n, 1)
            if ps & c.r: n = max(n, 4 if c.op.startswith(("v_readlane", "v_writelane")) and False else 2)
            if (p.sdwa and "dst_sel" in p.mods and "dst_sel:DWORD" not in p.mods) and (pv & (c.r | c.w)): n = max(n, 1)
            if p.dot and (pv & (c.r | c.w)):
                same = c.op.replace("_dpp", "").replace("_e32", "") == p.op.replace("_dpp", "").replace("_e32", "")
                if same:
                    srcab = set(x for tk in c.toks[1:3] for x in _regs(tk))
                    if pv & srcab: n = max(n, 3)
                else: n = max(n, 3)
        if c.kind == "mfma" and (pv & c.r): n = max(n, 2)
        if c.kind in ("vmem", "ds"):
            if ps & c.r: n = max(n, 5)
            if p.dot and (pv & c.r): n = max(n, 3)
            if p.trans and (pv & c.r): n = max(n, 1)
        if c.kind == "salu" and (ps & c.r): n = max(n, 1 if ("s", "vcc") in (ps & c.r) and c.op.startswith("s_cbranch") else 2)
    if p.kind == "mfma":
        t = {2: (5, 4, 1), 4: (8, 6, 3), 8: (12, 10, 7)}[p.passes]
        if c.kind == "mfma":
            if pv & c.ab: n = max(n, t[0])
            if pv & c.srcc and not (pv == c.srcc and c.passes == p.passes): n = max(n, t[1])
            if pv & c.srcc and pv == c.srcc and p.passes == 2: n = max(n, 2)
            if pv & c.w and not (pv & c.srcc): n = max(n, t[0])
        elif c.kind in ("valu", "vmem", "ds"):
            if pv & (c.r | c.w): n = max(n, t[0])
            if c.kind == "valu" and (p.srcc & c.w): n = max(n, t[2])
    if p.kind == "vmem" and p.widestore and c.kind in ("valu", "mfma") and (p.sdata & c.w): n = max(n, 2)
    if p.kind == "vmem" and p.widestore and c.kind in ("vmem", "ds") and (p.sdata & c.w): n = max(n, 1)
    if p.kind == "salu" and ("s", "m0") in p.w and c.kind == "vmem" and c.lds: n = max(n, 1)
    return n

class Asm:
    def __init__(self):
        self.ins = []
        self.npad = 0
    def __call__(self, text):
        for line in text.split("\n"):
            line = line.strip()
            if not line or line.startswith(";"): continue
            self.add(line)
    def add(self, line):
        c = I(line)
        if c.op:
            dist = 0; pad = 0
            for p in reversed(self.ins):
                if dist >= 20: break
                if p.op:
                    k = need(p, c) - dist
                    if k > pad: pad = k
                dist += p.states()
            if pad > 0:
                self.ins.append(I(f"s_nop {pad-1}")); self.npad += pad
        self.ins.append(c)
    def text(self):
        return "\n".join(("" if (i.label or i.directive) else "  ") + i.text for i in self.ins) + "\n"
```

```python
import sys, struct
from asmlib import Asm

KNAME = "interleave_layers__sliding_block_cached__glu_gated_bilinear__decode_kernel"

def f2u(x): return struct.unpack("<I", struct.pack("<f", x))[0]

class Cfg:
    debug = False
    nt = " nt"
    win = 7
    limit = 60000
    limit1 = 64
    force_slow = False
    dirty = 0
    rs = (3, 100, 40)
    g = (3, 100, 200)
    q0 = (3, 600, 700)
    aq = (3, 60, 40)
    xd = 40
    bound = 60.0

DPP = "row_mask:0xf bank_mask:0xf"
G_OFF = 0x1000; G_STRIDE = 0x8000
GB_OFF = 0x40000; GB_STRIDE = 0x60000
SM = 0x50000 + 0x1000
AGQ = [-0x1000, -0xC00]; XALL = [-0x800, -0x400, 0x0]; OSTAT = [0x400, 0x800]; XCC = 0xC00
DBG_OFF = 0x400000
NTAGS = 16
L_O = 32768; L_ST = 40960; L_X = L_ST + 128; L_CS = L_X + 256; L_Q = 41984; L_WQ = L_Q + 2048; L_GU = L_WQ + 16384; L_WD = L_GU + 16384; LDS_BYTES = L_WD + 8192
sX, sK, sV, sWQ, sWO, sWG, sWU, sWD, sOUT, sWS = ("s[4:5]", "s[6:7]", "s[8:9]", "s[10:11]", "s[12:13]",
    "s[16:17]", "s[18:19]", "s[20:21]", "s[22:23]", "s[26:27]")
sB = ["s[36:37]", "s[38:39]", "s[40:41]"]; sCG = "s[42:43]"; sCQ = "s[44:45]"; sSM = "s[46:47]"
sG = ["s[48:49]", "s[50:51]", "s[52:53]", "s[54:55]"]
sE, sT, sCNT, sXCC, sLO, sHI, sONE, sSC = "s56", "s57", "s58", "s61", "s62", "s63", "s64", "s65"
sODD = "s[66:67]"
vMASK, vIN, vPUB, vPUBGU, vGIN, vGPUB, vPAIR, vXALL, vOSI, vOSP, vLDS, vLST = ["v%d" % i for i in range(1, 13)]
vX, vCQ, vCG, vPR, vMU, vRS, vNM = "v13", "v14", "v15", "v16", "v17", "v18", "v19"
vZERO, vAQ, vLX = "v75", "v74", "v73"
GA = 20; MA = 28; LA = 36; ACC = 44; TMP = 48; T2 = 64; PL = 194; PM = 202; PX = 218
WQ0, GU0, WD0, WO0, SPARE = 80, 112, 144, 160, 192


class Gen:
    def __init__(self, cfg):
        self.c = cfg
        self.a = Asm()
        self.tail = []
        self.nlab = 0
        self.spare = SPARE

    def lab(self, s):
        self.nlab += 1
        return f"L_{s}_{self.nlab}"

    def stamp(self, i):
        if self.c.debug: self.a(f"s_memtime s[{70+2*i}:{71+2*i}]")

    def dump_and_end(self, slot):
        a = self.a
        if self.c.debug:
            a("s_memtime s[100:101]\ns_waitcnt vmcnt(0) lgkmcnt(0)\ns_mov_b64 exec, -1")
            a(f"s_lshl_b32 s30, s2, 9\ns_add_u32 s30, s30, {DBG_OFF}")
            if isinstance(slot, int): a(f"s_add_u32 s30, s30, {slot*128}")
            else: a(f"s_lshl_b32 s31, {slot}, 7\ns_add_u32 s30, s30, s31")
            a("v_mov_b32 v200, s30\nv_mov_b32 v204, s68")
            for i in range(1, 16):
                a(f"s_sub_u32 s31, s{70+2*i}, s70\nv_mov_b32 v{204+i}, s31")
            a("v_mov_b32 v220, s70\nv_mov_b32 v221, s71")
            for i in range(4):
                a(f"global_store_dwordx4 v200, v[{204+4*i}:{207+4*i}], {sWS} offset:{16*i}")
            a(f"global_store_dwordx2 v200, v[220:221], {sWS} offset:64")
        a("s_endpgm")

    def tag(self, k):
        self.a(f"s_add_u32 {sT}, {sE}, {k}\ns_and_b32 {sT}, {sT}, 0xff")

    def nops(self, cyc):
        if cyc >= 192:
            self.a(f"s_sleep {cyc // 64}"); cyc = 0
        while cyc >= 4:
            k = min(cyc // 4, 16); self.a(f"s_nop {k-1}"); cyc -= 4 * k

    def poll(self, name, loads, check, par=(1, 0, 0), shadow=None, limit=None, fail="s_endpgm"):
        a = self.a
        depth, delay, gap = par
        nl = loads.count("global_")
        chk, retry = self.lab(name + "_chk"), self.lab(name + "_retry")
        a(f"s_mov_b32 {sCNT}, {limit or self.c.limit}")
        self.nops(delay)
        for k in range(depth):
            a(loads)
            if k < depth - 1: self.nops(gap)
        if shadow: shadow(depth * nl)
        a(f"{chk}:")
        check((depth - 1) * nl)
        a(f"s_cbranch_vccnz {retry}")
        self.tail.append(f"{retry}:\n{loads}\ns_sub_u32 {sCNT}, {sCNT}, 1\ns_cbranch_scc0 {chk}\n{fail}\n")

    def strip(self, src, dst, n):
        for i in range(n): self.a(f"v_xor_b32 v{dst+i}, {sT}, v{src+i}")

    def ortree(self, regs, t):
        a = self.a
        regs = list(regs)
        first = True
        while regs:
            if first:
                take = regs[:3]; regs = regs[3:]
                while len(take) < 3: take.append(take[-1])
                a(f"v_or3_b32 v{t}, v{take[0]}, v{take[1]}, v{take[2]}"); first = False
            else:
                take = regs[:2]; regs = regs[2:]
                a(f"v_or3_b32 v{t}, v{t}, v{take[0]}, v{take[-1]}")
        a(f"v_cmp_ne_u32_sdwa vcc, v{t}, 0 src0_sel:BYTE_0 src1_sel:DWORD")

    def allred(self, r, t, op="v_add_f32"):
        self.a(f"""v_mov_b32 v{t}, v{r}
v_permlane32_swap_b32 v{r}, v{t}
{op} v{r}, v{r}, v{t}
v_mov_b32 v{t}, v{r}
v_permlane16_swap_b32 v{r}, v{t}
{op} v{r}, v{r}, v{t}""")

    def sum8(self, g, n=8):
        a = self.a
        if n == 8:
            a(f"v_pk_add_f32 v[{g}:{g+1}], v[{g}:{g+1}], v[{g+2}:{g+3}]")
            a(f"v_pk_add_f32 v[{g+4}:{g+5}], v[{g+4}:{g+5}], v[{g+6}:{g+7}]")
            a(f"v_pk_add_f32 v[{g}:{g+1}], v[{g}:{g+1}], v[{g+4}:{g+5}]")
            a(f"v_add_f32 v{g}, v{g}, v{g+1}")
        else:
            a(f"v_pk_add_f32 v[{g}:{g+1}], v[{g}:{g+1}], v[{g+2}:{g+3}]")
            a(f"v_add_f32 v{g+4}, v{g+4}, v{g+6}")
            a(f"v_pk_add_f32 v[{g}:{g+1}], v[{g}:{g+1}], v[{g+4}:{g+5}]")
            a(f"v_add_f32 v{g}, v{g}, v{g+1}")

    def rs_loads(self, base, g, n=8):
        return "\n".join(f"global_load_dword v{g+i}, {vIN}, {base} offset:{256*i} sc1" for i in range(n))

    def rs_gather(self, name, base, n=8, post=None, par=None, ln=None):
        a = self.a
        y, z, t = GA + 2, GA, TMP
        y = MA
        def check(off):
            a(f"s_waitcnt vmcnt({off + n - 4})")
            self.strip(PL, y, 4)
            a(f"v_or3_b32 v{t+1}, v{y}, v{y+1}, v{y+2}")
            a(f"v_pk_add_f32 v[{z}:{z+1}], v[{y}:{y+1}], v[{y+2}:{y+3}]")
            a(f"s_waitcnt vmcnt({off})")
            self.strip(PL + 4, y + 4, n - 4)
            if n == 8: a(f"v_pk_add_f32 v[{z+2}:{z+3}], v[{y+4}:{y+5}], v[{y+6}:{y+7}]\nv_pk_add_f32 v[{z}:{z+1}], v[{z}:{z+1}], v[{z+2}:{z+3}]")
            else: a(f"v_pk_add_f32 v[{z}:{z+1}], v[{z}:{z+1}], v[{y+4}:{y+5}]\nv_add_f32 v{z}, v{z}, v{y+6}")
            a(f"""v_add_f32 v{z}, v{z}, v{z+1}
v_mov_b32 v{t}, v{z}
v_or3_b32 v{t+1}, v{t+1}, v{y+3}, v{y+4}
v_or3_b32 v{t+1}, v{t+1}, v{y+5}, v{y+6}
v_permlane32_swap_b32 v{z}, v{t}
v_add_f32 v{z}, v{z}, v{t}
v_mov_b32 v{t}, v{z}
v_or_b32 v{t+1}, v{t+1}, v{y+n-1}
v_cmp_ne_u32_sdwa vcc, v{t+1}, 0 src0_sel:BYTE_0 src1_sel:DWORD
v_permlane16_swap_b32 v{z}, v{t}
v_add_f32 v{z}, v{z}, v{t}""")
            if post: post()
        loads = self.rs_loads(base, PL, n)
        if ln is None:
            self.poll(name, loads, check, par or self.c.rs)
            return
        xl = f"global_load_dwordx4 v[{PX}:{PX+3}], {vXALL}, {sSM} offset:{XALL[ln[0]]} sc1"
        xchk = f"v_max3_u32 v{TMP}, v{PX}, v{PX+1}, v{PX+2}\nv_max_u32 v{TMP}, v{TMP}, v{PX+3}\nv_cmp_eq_u32 vcc, -1, v{TMP}"
        xr, xok, chk, retry = self.lab("xretry"), self.lab("xok"), self.lab(name + "_chk"), self.lab(name + "_retry")
        a(f"{xl}\ns_mov_b32 {sCNT}, {self.c.limit}")
        self.nops(self.c.xd)
        a(f"{loads}\ns_waitcnt vmcnt({n})\n{xchk}\ns_cbranch_vccnz {xr}\n{xok}:")
        self.tail.append(f"{xr}:\n{xl}\ns_sub_u32 {sCNT}, {sCNT}, 1\ns_cbranch_scc1 L_exit\ns_waitcnt vmcnt(0)\n{xchk}\ns_cbranch_vccnz {xr}\ns_branch {xok}\n")
        self.stats(PX, lambda: a(loads))
        self.nm(ln[1])
        a(f"{chk}:")
        check(n)
        a(f"s_cbranch_vccnz {retry}")
        self.tail.append(f"{retry}:\n{loads}\ns_sub_u32 {sCNT}, {sCNT}, 1\ns_cbranch_scc0 {chk}\ns_endpgm\n")

    def pack(self, r):
        self.a(f"v_mov_b32_dpp v{TMP}, v{r} quad_perm:[1,0,3,2] {DPP}\nv_cvt_pk_bf16_f32 {vPR}, v{r}, v{TMP}")

    def perm_pair(self, W, base, kp):
        a = self.a
        W.append([])
        for u in range(2):
            lo = base + 4 * kp + u; hi = base + 4 * kp + 2 + u
            s = self.spare
            a(f"v_perm_b32 v{s}, v{hi}, v{lo}, {sLO}")
            a(f"v_perm_b32 v{hi}, v{hi}, v{lo}, {sHI}")
            W[kp] += [s, hi]
            self.spare = lo

    def zero_acc(self):
        for j in range(4): self.a(f"v_mov_b32 v{ACC+j}, 0")

    def dots(self, W, kp, src=None):
        for j in range(4):
            if src: self.a(f"v_dot2c_f32_bf16 v{ACC+j}, {src}, v{W[kp][j]}")
            else: self.a(f"v_dot2c_f32_bf16_dpp v{ACC+j}, {vPR}, v{W[kp][j]} row_newbcast:{2*kp} {DPP}")

    def publish(self, vaddr, base, sc, mask=None):
        a = self.a
        for j in range(4): a(f"v_bfi_b32 v{ACC+j}, {vMASK}, {sT}, v{ACC+j}")
        if mask: a(f"s_mov_b64 exec, {mask}")
        a(f"global_store_dwordx4 {vaddr}, v[{ACC}:{ACC+3}], {base}{sc}")
        if mask: a("s_mov_b64 exec, -1")

    def gemv(self, W, vaddr, base, sc, mask=None):
        for kp in range(len(W)): self.dots(W, kp)
        self.publish(vaddr, base, sc, mask)

    def bf16r(self, r):
        self.a(f"v_cvt_pk_bf16_f32 {r}, {r}, {r}\nv_lshlrev_b32 {r}, 16, {r}")

    def stats(self, x, hook=None):
        a = self.a
        p, q = TMP, TMP + 1
        a(f"v_mov_b32 v{p}, 0\nv_mov_b32 v{q}, 0")
        for i in range(4):
            a(f"v_dot2c_f32_bf16 v{p}, {sONE}, v{x+i}\nv_dot2c_f32_bf16 v{q}, v{x+i}, v{x+i}")
        a(f"v_mov_b32 v{q+1}, 0x{f2u(1/512.):08x}\nv_mov_b32 v{q+2}, 0x{f2u(1e-5):08x}")
        a(f"v_permlane32_swap_b32 v{p}, v{q}\nv_add_f32 v{p}, v{p}, v{q}")
        a(f"v_mov_b32 v{q}, v{p}")
        if hook: hook()
        a(f"v_permlane16_swap_b32 v{p}, v{q}\nv_add_f32 v{p}, v{p}, v{q}")
        for r in (8, 4, 2, 1):
            a(f"v_add_f32_dpp v{p}, v{p}, v{p} row_ror:{r} {DPP}")
        a(f"v_readlane_b32 s30, v{p}, 0\nv_readlane_b32 s31, v{p}, 32")
        if hook: hook()
        a(f"v_mul_f32 {vMU}, s30, v{q+1}\nv_fma_f32 {vRS}, s31, v{q+1}, v{q+2}")
        a(f"v_fma_f32 {vRS}, -{vMU}, {vMU}, {vRS}\nv_max_f32 {vRS}, {vRS}, v{q+2}\nv_rsq_f32 {vRS}, {vRS}")

    def nm(self, colsum):
        self.a(f"v_mul_f32 {vNM}, {vMU}, {vRS}\nv_mul_f32 {vNM}, -{vNM}, {colsum}".replace("v_mul_f32 v19, -v19", "v_mul_f32_e64 v19, -v19"))

    def g_publish(self, k):
        self.a(f"s_mov_b64 exec, 0xffff\nglobal_atomic_swap {vGPUB}, v{GA}, {sG[k]}\ns_mov_b64 exec, -1")

    def g_gather(self, k, par=None):
        a = self.a
        def check(off):
            a(f"s_waitcnt vmcnt({off})")
            self.strip(PL, GA, 2)
            a(f"""v_or_b32 v{TMP+1}, v{GA}, v{GA+1}
v_add_f32 v{GA}, v{GA}, v{GA+1}
v_mov_b32 v{TMP}, v{GA}
v_cmp_ne_u32_sdwa vcc, v{TMP+1}, 0 src0_sel:BYTE_0 src1_sel:DWORD
v_permlane32_swap_b32 v{GA}, v{TMP}
v_add_f32 v{GA}, v{GA}, v{TMP}
v_mov_b32 v{TMP}, v{GA}
v_permlane16_swap_b32 v{GA}, v{TMP}
v_add_f32 v{GA}, v{GA}, v{TMP}
v_add_f32 v{GA}, v{GA}, {vX}""")
            self.pack(GA)
        self.poll("g", f"global_atomic_or v{PL}, {vGIN}, {vZERO}, {sG[k]} sc0\nglobal_atomic_or v{PL+1}, {vGIN}, {vZERO}, {sG[k]} offset:512 sc0", check, par or self.c.g)

    def pair_store(self, base, off, sc):
        self.a(f"s_mov_b64 exec, 0x5555\nglobal_store_dword {vPAIR}, {vPR}, {base} offset:{off}{sc}\ns_mov_b64 exec, -1")

    def prologue(self):
        a = self.a
        if self.c.debug: a("s_memtime s[70:71]\ns_memrealtime s[68:69]")
        a("""s_load_dwordx16 s[4:19], s[0:1], 0
s_load_dwordx8 s[20:27], s[0:1], 64
s_cmp_ge_u32 s2, 256
s_cbranch_scc1 L_exit
v_lshrrev_b32 v1, 6, v0
v_and_b32 v0, 63, v0
s_and_b32 s28, s2, 7
s_lshr_b32 s29, s2, 3
v_readfirstlane_b32 s33, v1
s_mov_b32 s62, 0x05040100
s_mov_b32 s63, 0x07060302
s_mov_b32 s64, 0x3f803f80""")
        a(f"s_mul_i32 s59, s28, {GB_STRIDE}\ns_add_u32 s59, s59, {GB_OFF}")
        a("s_cmp_ge_u32 s33, 4\ns_cbranch_scc1 L_C")

    def s_program(self):
        a = self.a; c = self.c
        KF, VR, VF, Q, D, P, ON, O, OL, T = 16, 48, 80, 112, 128, 136, 140, 144, 176, 192
        a(f"""s_lshl_b32 s30, s29, 17
s_lshl_b32 s31, s33, 15
s_add_u32 s30, s30, s31
s_lshl_b32 s31, s28, 10
s_add_u32 s30, s30, s31
v_lshlrev_b32 v15, 4, v0
v_add_u32 v1, s30, v15
s_lshl_b32 s35, s33, 12
s_add_u32 m0, s35, {L_WQ}
s_mul_i32 s30, s29, 57344
s_mul_i32 s31, s33, 14336
s_add_u32 s30, s30, s31
s_mul_i32 s31, s28, 448
s_add_u32 s30, s30, s31
v_and_b32 v6, 31, v0
v_lshl_add_u32 v184, v6, 4, s30
v_cmp_gt_u32 vcc, 32, v0
s_waitcnt lgkmcnt(0)""")
        n = [0]
        def throttle():
            if n[0] >= c.win: a(f"s_waitcnt vmcnt({c.win-1})")
            if n[0] == c.win + 3:
                a("s_barrier")
                self.stamp(1)
            n[0] += 1
        for i in range(4):
            throttle()
            a(f"global_load_lds_dwordx4 v1, {sWQ}{c.nt}")
            if i < 3: a(f"s_add_u32 m0, s35, {L_WQ+1024*(i+1)}\nv_add_u32 v1, 8192, v1")
        a(f"""v_mov_b32 v186, s18
v_mov_b32 v187, s19
v_mov_b32 v188, s16
v_mov_b32 v189, s17
v_cndmask_b32 v186, v186, v188, vcc
v_cndmask_b32 v187, v187, v189, vcc
v_mov_b32 v185, 0
s_mov_b32 s14, 3584
s_mov_b32 s15, 0
v_lshl_add_u64 v[184:185], v[184:185], 0, v[186:187]
s_add_u32 m0, s35, {L_GU}
s_mov_b32 exec_lo, 0x0fffffff
s_mov_b32 exec_hi, 0x0fffffff""")
        def throttle_x():
            assert n[0] != c.win + 3 or True
            throttle()
        for i in range(4):
            throttle()
            a(f"global_load_lds_dwordx4 v[184:185], off{c.nt}")
            if i < 3: a(f"s_add_u32 m0, s35, {L_GU+1024*(i+1)}\nv_lshl_add_u64 v[184:185], v[184:185], 0, s[14:15]")
        a(f"""s_mov_b64 exec, -1
s_min_u32 s30, s29, 27
s_lshl_b32 s30, s30, 3
s_mul_i32 s31, s28, 224
s_add_u32 s30, s30, s31
s_lshl_b32 s30, s30, 10
s_lshl_b32 s31, s33, 11
s_add_u32 s30, s30, s31
v_add_u32 v1, s30, v15
s_add_u32 m0, s31, {L_WD}""")
        for i in range(2):
            throttle()
            a(f"global_load_lds_dwordx4 v1, {sWD} offset:{1024*i}{c.nt}")
        a("""s_lshl_b32 s30, s28, 24
s_lshl_b32 s31, s29, 15
s_add_u32 s30, s30, s31
s_add_u32 s30, s30, 0xF00000
s_add_u32 s6, s6, s30
s_addc_u32 s7, s7, 0
s_add_u32 s8, s8, s30
s_addc_u32 s9, s9, 0
s_lshl_b32 s34, s33, 13
s_mov_b32 m0, s34
v_and_b32 v6, 15, v0
v_lshrrev_b32 v7, 4, v0
v_xor_b32 v8, v6, v7
v_lshlrev_b32 v8, 4, v8""")
        a("v_lshl_add_u32 v9, v7, 8, v8\nv_add_u32 v9, s34, v9")
        for i in range(8):
            if i == 4: a("s_add_u32 m0, s34, 4096\nv_add_u32 v9, 4096, v9")
            if i & 3: a(f"v_xor_b32 v1, {64*(i&3)}, v9")
            throttle()
            a(f"global_load_lds_dwordx4 {'v1' if i & 3 else 'v9'}, {sK} offset:{1024*(i&3)}{c.nt}")
            if i == 0:
                a("v_lshlrev_b32 v10, 4, v6\nv_lshl_add_u32 v10, v7, 10, v10\nv_add_u32 v10, s34, v10\nv_add_u32 v10, 2048, v10")
                a("v_lshl_add_u32 v11, v6, 8, v8\nv_add_u32 v11, s34, v11")
                for j in range(1, 4): a(f"v_xor_b32 v{11+j}, {64*j}, v11")
                a("v_lshrrev_b32 v2, 2, v6\nv_lshlrev_b32 v5, 4, v2\nv_lshlrev_b32 v2, 8, v2\nv_lshl_add_u32 v2, v7, 4, v2")
                a(f"s_lshl_b32 s31, s33, 2\ns_add_u32 s31, s31, {L_ST}\nv_add_u32 v5, s31, v5")
                a(f"v_lshlrev_b32 v3, 4, v7\nv_add_u32 v3, s31, v3")
                a(f"s_lshl_b32 s31, s33, 11\ns_add_u32 s31, s31, {L_O}\nv_lshlrev_b32 v4, 2, v0\nv_add_u32 v4, s31, v4")
                for k in range(4): a(f"v_mov_b32 v{ON+k}, {sONE}")
                cs = f2u(128**-0.5*1.4426950408889634)
                a(f"v_mov_b32 v{T+6}, 0x{cs:08x}\nv_mov_b32 v{T+7}, 0x{cs:08x}\nv_mov_b32 v{T+5}, 0x{f2u(c.bound):08x}")
                a(f"v_add_u32 v2, {L_Q}, v2\nv_lshrrev_b32 v{T}, 2, v6")
                for j in range(4): a(f"v_add_u32 v{T+1}, {j}, v{T}\nv_and_b32 v{T+1}, 3, v{T+1}\nv_lshl_add_u32 v{T+8+j}, v{T+1}, 6, v2")
                a(f"v_mov_b32 v{T}, -1\nv_mov_b32 v{T+1}, -1\ns_lshl_b32 s31, s33, 9\ns_add_u32 s31, s31, {L_Q}\nv_lshl_add_u32 v{T+2}, v0, 3, s31\nds_write_b64 v{T+2}, v[{T}:{T+1}]")
        for i in range(8):
            throttle()
            a(f"global_load_dwordx4 v[{VR+4*i}:{VR+4*i+3}], v10, {sV} offset:{(i>>2)*4096+(i&3)*256-2048}{c.nt}")
        assert c.win + 3 < 26
        if c.win > 8: a("s_waitcnt vmcnt(8)")
        for t in range(2):
            for j in range(4):
                a(f"ds_read_b128 v[{KF+16*t+4*j}:{KF+16*t+4*j+3}], v{11+j} offset:{4096*t}")
        a("s_waitcnt lgkmcnt(0)")
        self.stamp(2)
        X = 184
        for li in range(2):
            if li and c.dirty:
                a(f"s_lshl_b32 s30, s2, 16\ns_lshl_b32 s31, s33, 14\ns_add_u32 s30, s30, s31\ns_add_u32 s30, s30, 0x1000000\nv_lshl_add_u32 v1, v0, 4, s30")
                for i in range(c.dirty): a(f"global_store_dwordx4 v1, v[16:19], {sWS}\nv_add_u32 v1, 1024, v1")
            if li: a("s_barrier\ns_barrier")
            a("s_barrier")
            self.stamp(3 + 6 * li)
            if li == 0:
                a("s_barrier")
                for u in range(4):
                    a(f"s_waitcnt vmcnt({6 - 2*u})")
                    for up in range(4):
                        for b in range(2):
                            a(f"v_perm_b32 v{VF+4*(2*up+b)+u}, v{VR+4*(2*u+1)+up}, v{VR+4*(2*u)+up}, {sHI if b else sLO}")
                self.stamp(4)
            lq, lfb, lback = self.lab("q"), self.lab("fallback"), self.lab("pv")
            a(f"s_mov_b32 {sCNT}, {8 * c.limit}\n{lq}:")
            for j in range(4): a(f"ds_read_b128 v[{Q+4*j}:{Q+4*j+3}], v{T+8+j} offset:{1024*li}")
            a(f"s_sub_u32 {sCNT}, {sCNT}, 1\ns_cbranch_scc1 L_exit")
            for j in range(4):
                a(f"s_waitcnt lgkmcnt({3 - j})")
                for t in range(2):
                    cc = f"v[{D+4*t}:{D+4*t+3}]"
                    a(f"v_mfma_f32_16x16x32_bf16 {cc}, v[{KF+16*t+4*j}:{KF+16*t+4*j+3}], v[{Q+4*j}:{Q+4*j+3}], {cc if j else 0}")
                a(f"v_max3_u32 v{T+j}, v{Q+4*j}, v{Q+4*j+1}, v{Q+4*j+2}\nv_max_u32 v{T+j}, v{T+j}, v{Q+4*j+3}")
            a(f"v_max3_u32 v{T}, v{T}, v{T+1}, v{T+2}\nv_max_u32 v{T}, v{T}, v{T+3}\nv_cmp_eq_u32 vcc, -1, v{T}")
            a(f"v_mov_b32 v{T+4}, 0\ns_cbranch_vccnz {lq}")
            self.stamp(5 + 6 * li)
            for i in range(0, 8, 2): a(f"v_pk_mul_f32 v[{X+i}:{X+i+1}], v[{D+i}:{D+i+1}], v[{T+6}:{T+7}]")
            for i in range(8): a(f"v_exp_f32 v{D+i}, v{X+i}")
            def pv():
                for u in range(4): a(f"v_cvt_pk_bf16_f32 v{P+u}, v{D+2*u}, v{D+2*u+1}")
                a(f"ds_write_b32 v5, v{T+4}")
            pv()
            self.stamp(6 + 6 * li)
            a(f"{lback}:")
            a(f"v_mfma_f32_16x16x32_bf16 v[{OL}:{OL+3}], v[{P}:{P+3}], v[{ON}:{ON+3}], 0")
            for e in range(8):
                a(f"v_mfma_f32_16x16x32_bf16 v[{O+4*e}:{O+4*e+3}], v[{P}:{P+3}], v[{VF+4*e}:{VF+4*e+3}], 0")
                if e == 0: a(f"v_max3_f32 v{T}, v{X}, v{X+1}, v{X+2}\nv_max3_f32 v{T+1}, v{X+3}, v{X+4}, v{X+5}")
                if e == 1: a(f"v_max3_f32 v{T}, v{T}, v{X+6}, v{X+7}\nv_max_f32 v{T}, v{T}, v{T+1}")
                if e == 2: a(f"v_cmp_gt_f32 vcc, |v{T}|, v{T+5}")
                if e == 3: a(f"s_cbranch_vccnz {lfb}")
                if e == 4: a(f"ds_write_b32 v3, v{OL} offset:64")
                if e == 6: a(f"ds_write2st64_b32 v4, v{O}, v{O+4} offset0:0 offset1:1")
            for e in range(2, 8, 2):
                a(f"ds_write2st64_b32 v4, v{O+4*e}, v{O+4*e+4} offset0:{e} offset1:{e+1}")
            a("s_waitcnt lgkmcnt(0)")
            self.stamp(7 + 6 * li)
            a("s_barrier")
            fb = Asm()
            sv, self.a = self.a, fb
            fb(f"{lfb}:\ns_nop 7")
            self.allred(T, T + 1, "v_max_f32")
            fb(f"v_mov_b32 v{T+4}, v{T}")
            for i in range(8): fb(f"v_sub_f32 v{X+i}, v{X+i}, v{T}")
            for i in range(8): fb(f"v_exp_f32 v{D+i}, v{X+i}\nv_mov_b32 v{X+i}, 0")
            for u in range(4): fb(f"v_cvt_pk_bf16_f32 v{P+u}, v{D+2*u}, v{D+2*u+1}")
            fb(f"ds_write_b32 v5, v{T+4}\ns_nop 7\ns_branch {lback}")
            self.a = sv
            self.tail.append(fb.text())
        if c.debug:
            l = self.lab("sdone")
            a(f"s_cmp_eq_u32 s33, 0\ns_cbranch_scc1 {l}\ns_endpgm\n{l}:")
        self.dump_and_end(2)

    def clear_store(self, sc):
        self.a(f"v_mov_b32 v{TMP}, -1\ns_mov_b32 exec_hi, 0x00ffffff\nglobal_store_dword v77, v{TMP}, {sSM} offset:{AGQ[0]}{sc}\ns_mov_b64 exec, -1")

    def init_inbox(self, sc):
        a = self.a
        for j in range(4): a(f"v_mov_b32 v{TMP+j}, {sE}")
        a(f"global_store_dwordx4 v72, v[{TMP}:{TMP+3}], {sB[0]}{sc}\nglobal_store_dwordx4 v72, v[{TMP}:{TMP+3}], {sB[0]} offset:1024{sc}")

    def first_hop(self, slow):
        a = self.a; c = self.c
        sc = " sc1" if slow else ""
        if slow:
            l = self.lab("noclr")
            self.init_inbox(sc)
            a(f"s_cmp_eq_u32 s34, 0\ns_cbranch_scc0 {l}")
            self.clear_store(sc)
            a(f"{l}:\ns_waitcnt vmcnt(0)")
            self.zero_acc()
            for kp in range(8): self.dots(self.WQ, kp)
        self.publish(vPUB, sB[1], sc)
        self.stamp(3)
        a(f"s_add_u32 s60, {sE}, 1\ns_lshl_b32 s60, s60, 4\ns_add_u32 s32, s60, 16\ns_or_b32 s60, s60, {sXCC}")
        l1, l2 = self.lab("c1xcc"), self.lab("mode")
        xl = f"global_load_dword v{PX}, v78, {sSM} offset:{XCC} sc1"
        def xcheck():
            a(f"v_cmp_ne_u32 s[30:31], s60, v{PX}")
            if slow: a(f"v_and_b32 v{TMP+2}, -16, v{PX}\nv_cmp_ne_u32 vcc, s32, v{TMP+2}\ns_and_b64 s[30:31], s[30:31], vcc")
        kw = dict(limit=c.limit if slow else c.limit1, fail="s_endpgm" if slow else "s_branch L_slow", par=(1, 0, 0) if slow else c.q0)
        a(f"s_cmp_eq_u32 s34, 0\ns_cbranch_scc0 {l1}")
        a(f"v_mov_b32 v{TMP}, {'s32' if slow else 's60'}\ns_lshl_b32 s31, s29, 2\nv_mov_b32 v{TMP+1}, s31")
        a(f"s_mov_b64 exec, 1\nglobal_store_dword v{TMP+1}, v{TMP}, {sSM} offset:{XCC}{sc}\ns_mov_b64 exec, -1")
        def check0(off):
            a(f"s_waitcnt vmcnt({off})")
            xcheck()
            self.strip(PL, GA, 8)
            self.ortree(range(GA, GA + 8), TMP)
            a("s_or_b64 vcc, vcc, s[30:31]")
        if c.force_slow and not slow: a("s_branch L_slow")
        self.poll("q0", self.rs_loads(sB[1], PL) + "\n" + xl, check0, **kw)
        self.sum8(GA)
        self.allred(GA, TMP)
        a(f"s_branch {l2}\n{l1}:")
        def check1(off):
            a(f"s_waitcnt vmcnt({off})")
            xcheck()
            a("s_mov_b64 vcc, s[30:31]")
        if c.force_slow and not slow: a("s_branch L_slow")
        self.poll("x1", xl, check1, **kw)
        a(f"{l2}:")
        self.stamp(4)

    def c_pre(self):
        a = self.a; c = self.c
        a("L_C:\ns_sub_u32 s34, s33, 4")
        a("s_getreg_b32 s61, hwreg(HW_REG_XCC_ID, 0, 4)")
        a(f"v_mov_b32 {vMASK}, 0xff")
        a("v_and_b32 v20, 15, v0\nv_lshrrev_b32 v21, 4, v0\nv_lshlrev_b32 v22, 2, v0\nv_lshlrev_b32 v23, 3, v0\ns_lshl_b32 s35, s34, 9")
        a(f"s_lshl_b32 s30, s29, 5\nv_lshl_add_u32 v28, v20, 1, s30\nv_mov_b32 v29, 0\nv_lshlrev_b32 {vXALL}, 4, v0")
        a(f"v_lshrrev_b32 {vPAIR}, 1, v20\nv_lshl_add_u32 {vPAIR}, {vPAIR}, 2, s30")
        a(f"""v_lshrrev_b32 v77, 3, v0
v_lshlrev_b32 v77, 10, v77
v_and_b32 v31, 7, v0
v_lshl_add_u32 v43, v31, 2, s30
s_and_b32 s31, s29, 3
s_lshl_b32 s31, s31, 5
s_lshr_b32 s32, s29, 2
s_lshl_b32 s32, s32, 2
s_add_u32 s60, s31, s32
v_lshl_add_u32 v42, v31, 7, s60
v_cmp_gt_u32 vcc, 40, v0
v_cndmask_b32 v43, v42, v43, vcc
v_add_u32 v77, v77, v43""")
        assert OSTAT[0] - AGQ[0] == 5 * 1024 and OSTAT[1] - OSTAT[0] == 1024
        a("s_waitcnt lgkmcnt(0)")
        a(f"global_load_dword v30, v29, {sWS} sc1")
        a(f"global_load_ushort {vX}, v28, {sX}")
        a(f"global_load_dwordx4 v[32:35], {vXALL}, {sX}")
        a("s_add_u32 s36, s26, s59\ns_addc_u32 s37, s27, 0")
        a(f"s_add_u32 s46, s36, {SM}\ns_addc_u32 s47, s37, 0")
        l = self.lab("c1pre"); l2 = self.lab("cpre")
        a(f"s_cmp_eq_u32 s34, 0\ns_cbranch_scc0 {l}")
        self.clear_store("")
        a(f"s_branch {l2}\n{l}:")
        a(f"s_getpc_b64 s[30:31]\nL_pc:\ns_sub_u32 s30, s30, L_pc-{KNAME}\ns_subb_u32 s31, s31, 0\ns_mul_i32 s32, s29, 768\nv_lshl_add_u32 v29, v0, 7, s32")
        a(f"s_mov_b64 exec, 0x3f\nglobal_load_dword v193, v29, s[30:31]\ns_mov_b64 exec, -1\n{l2}:")
        for i in range(1, 5):
            a(f"s_add_u32 s{36+2*i}, s36, {0x10000*i}\ns_addc_u32 s{37+2*i}, s37, 0")
        for k in range(4):
            a(f"s_add_u32 s{48+2*k}, s26, {G_OFF+G_STRIDE*k}\ns_addc_u32 s{49+2*k}, s27, 0")
        a(f"""s_lshl_b32 s30, s29, 11
v_add_u32 {vIN}, s30, v22
v_and_b32 v38, 3, v0
s_lshl_b32 s32, s34, 17
s_add_u32 s32, s32, s30
v_add_u32 v72, s32, {vXALL}
s_lshl_b32 s31, s29, 10
v_lshl_add_u32 {vGIN}, v20, 2, s31
v_lshl_add_u32 {vGIN}, v21, 7, {vGIN}
v_mov_b32 {vZERO}, 0
v_lshlrev_b32 {vAQ}, 2, v21
v_sub_u32 {vAQ}, v0, {vAQ}
v_and_b32 {vAQ}, 15, {vAQ}
v_lshl_add_u32 {vAQ}, v21, 4, {vAQ}
v_lshlrev_b32 {vAQ}, 4, {vAQ}
v_add_u32 {vLX}, {L_X}, v22
s_lshl_b32 s32, s28, 7
s_add_u32 s31, s31, s32
v_lshl_add_u32 {vGPUB}, v20, 2, s31
s_lshl_b32 s31, s29, 6
s_lshl_b32 s32, s34, 15
s_add_u32 s32, s32, s31
v_lshrrev_b32 {vPUB}, 2, v0
v_lshlrev_b32 {vPUB}, 11, {vPUB}
v_lshl_add_u32 {vPUB}, v38, 4, {vPUB}
v_add_u32 {vPUB}, s32, {vPUB}
s_lshl_b32 s32, s34, 5
s_add_u32 s32, s32, s31
v_lshrrev_b32 {vPUBGU}, 1, v0
v_lshlrev_b32 {vPUBGU}, 11, {vPUBGU}
v_and_b32 v41, 1, v0
v_lshl_add_u32 {vPUBGU}, v41, 4, {vPUBGU}
v_add_u32 {vPUBGU}, s32, {vPUBGU}
s_and_b32 s31, s29, 3
s_lshl_b32 s32, s31, 8
v_lshl_add_u32 {vOSI}, v21, 5, s32
v_bfe_u32 v42, v0, 2, 2
v_lshlrev_b32 {vOSP}, 8, v42
v_lshl_add_u32 {vOSP}, v41, 7, {vOSP}
v_add_u32 {vOSP}, s60, {vOSP}
s_lshl_b32 s31, s34, 10
s_add_u32 s31, s31, {L_O}
v_add_u32 {vLDS}, s31, {vXALL}
v_lshlrev_b32 {vLST}, 4, v42
v_add_u32 {vLST}, {L_ST}, {vLST}
s_mov_b32 s66, 0xaaaaaaaa
s_mov_b32 s67, 0xaaaaaaaa
s_and_b32 s31, s29, 3
s_lshl_b32 s31, s31, 7
s_lshr_b32 s32, s29, 2
s_add_u32 s31, s31, s32
s_lshl_b32 s32, s28, 9
s_add_u32 s31, s31, s32
s_lshl_b32 s31, s31, 10
s_add_u32 s31, s31, s35
v_add_u32 v79, s31, v23
s_add_u32 s31, s35, {L_WQ}
v_add_u32 v76, s31, v23""")
        a("v_and_b32 v78, 31, v0\nv_lshlrev_b32 v78, 2, v78")
        a(f"s_waitcnt vmcnt(1)")
        a(f"v_readfirstlane_b32 {sE}, v30\nv_lshlrev_b32 {vX}, 16, {vX}")
        self.init_inbox("")
        self.stats(32)
        a(f"v_sub_f32 v{GA}, {vX}, {vMU}")
        self.pack(GA)
        self.tag(1)
        self.zero_acc()
        a("s_waitcnt vmcnt(0)")
        a("s_barrier")
        self.stamp(1)
        self.WQ = []
        self.lds_weights(self.WQ, WQ0, 0, 8, lambda kp: self.dots(self.WQ, kp))
        self.stamp(2)

    def lds_weights(self, W, base, off, npair, use=None):
        a = self.a
        for k in range(min(8, 2 * npair)): a(f"ds_read_b64 v[{base+2*k}:{base+2*k+1}], v76 offset:{off+1024*k}")
        for kp in range(npair):
            if 2 * kp + 8 < 2 * npair:
                for k in (2 * kp + 8, 2 * kp + 9): a(f"ds_read_b64 v[{base+2*k}:{base+2*k+1}], v76 offset:{off+1024*k}")
                out = 8
            else: out = 2 * npair - 2 * kp - 2
            a(f"s_waitcnt lgkmcnt({out})")
            self.perm_pair(W, base, kp)
            if use: use(kp)

    def ool(self, fn):
        fb = Asm(); sv, self.a = self.a, fb
        fn(fb)
        self.a = sv
        self.tail.append(fb.text())

    def c_rest(self, sc):
        a = self.a; c = self.c
        spare0 = self.spare
        def c0(name):
            l = self.lab(name); a(f"s_cmp_eq_u32 s34, 0\ns_cbranch_scc0 {l}"); return l
        def ffn(name):
            l = self.lab(name); a(f"s_cmp_lt_u32 s29, 28\ns_cbranch_scc0 {l}"); return l
        def qcalc():
            a(f"v_fma_f32 v{GA}, v{GA}, {vRS}, {vNM}")
            self.pack(GA)
        def gtag(): a(f"v_bfi_b32 v{GA}, {vMASK}, s32, v{GA}")
        def x_gemv(W, xi, lc1, extra=None):
            join = self.lab("join")
            a(f"ds_write_b32 {vLX}, {vPR}")
            self.pair_store(sSM, XALL[xi], sc)
            for kp in range(8):
                if kp == 3: a("s_waitcnt lgkmcnt(0)\ns_barrier")
                self.dots(W, kp)
            a(f"{join}:")
            def c1(fb):
                fb(f"{lc1}:")
                if extra: extra(fb)
                self.zero_acc()
                fb(f"s_barrier\nds_read_b32 {vPR}, {vLX}\ns_waitcnt lgkmcnt(0)")
                for kp in range(8): self.dots(W, kp)
                fb(f"s_branch {join}")
            self.ool(c1)
        GU, WD, WO = [], [], []
        M56 = "s[98:99]" if not c.debug else "s[14:15]"
        a(f"s_mov_b32 {M56[:-1].replace('[','').split(':')[0]}, -1\ns_mov_b32 s{M56[:-1].split(':')[1]}, 0x00ffffff")
        l = c0("q0pub")
        a(f"v_mul_f32 v{GA}, v{GA}, {vRS}")
        self.pack(GA); self.pair_store(sSM, AGQ[0], sc); a(f"{l}:")
        self.stamp(5)
        for li in range(2):
            h = 5 * li
            B = lambda k: sB[(h + k) % 3]
            st = (lambda i: self.stamp(i)) if li == c.stamp_layer else (lambda i: None)
            if li == 1:
                self.tag(h + 1)
                self.publish(vPUB, B(1), sc)
                a(f"v_lshlrev_b32 {vX}, 16, {vPR}")
                st(2)
                l = c0("q1")
                self.rs_gather("q", B(1), post=qcalc, ln=(1, vCQ))
                st(4)
                self.pair_store(sSM, AGQ[1], sc); a(f"{l}:")
                st(5)
            ql = f"global_load_lds_dwordx4 v{TMP+15}, {sB[0]} sc1"
            a(f"s_mov_b32 m0, {L_Q + 1024*li}\nv_add_u32 v{TMP+15}, {SM + AGQ[li]}, {vAQ}")
            a("s_barrier")
            def qcheck(off):
                a(f"s_waitcnt vmcnt({off})\nds_read_b128 v[{PX}:{PX+3}], {vXALL} offset:{L_Q + 1024*li}\ns_waitcnt lgkmcnt(0)")
                a(f"v_max3_u32 v{TMP}, v{PX}, v{PX+1}, v{PX+2}\nv_max_u32 v{TMP}, v{TMP}, v{PX+3}\nv_cmp_eq_u32 vcc, -1, v{TMP}")
            if li == 0:
                a(ql)
                a("s_barrier")
                for k in range(16):
                    a(f"global_load_dwordx2 v[{WO0+2*k}:{WO0+2*k+1}], v79, {sWO}{c.nt}")
                    if k < 15: a("v_add_u32 v79, 8192, v79")
                    if k in (5, 11): a(ql)
                a(f"v_lshlrev_b32 v{TMP}, 7, v0\nglobal_load_dword v193, v{TMP}, {sSM} offset:-4096 sc1")
                a(f"v_lshrrev_b32 v{TMP}, 4, v0\nv_lshlrev_b32 v{TMP}, 15, v{TMP}\nv_add_u32 v{TMP}, v{TMP}, {vGPUB}\nv_mov_b32 v{TMP+1}, {sE}")
                l = c0("nopre"); l2 = self.lab("pre")
                a(f"global_atomic_swap v{TMP}, v{TMP+1}, {sG[0]}\ns_branch {l2}\n{l}:\nglobal_load_dword v193, {vPAIR}, {sOUT}\n{l2}:")
                self.zero_acc()
                for kp in range(8): self.dots(self.WQ, kp, sONE)
                self.publish(vPUB, sCQ, sc)
                self.zero_acc()
                self.lds_weights(GU, GU0, 16384, 8, lambda kp: self.dots(GU, kp, sONE))
                self.publish(vPUBGU, sCG, sc, M56)
                self.lds_weights(WD, WD0, 32768, 4)
                qok, qre = self.lab("qok"), self.lab("qre")
                qcheck(22)
                a(f"s_cbranch_vccnz {qre}\n{qok}:")
                def qretry(fb):
                    loop = self.lab("ql")
                    fb(f"{qre}:\ns_mov_b32 {sCNT}, {c.limit}\n{loop}:\ns_sub_u32 {sCNT}, {sCNT}, 1\ns_cbranch_scc1 L_exit")
                    fb(f"s_waitcnt vmcnt(0)\nds_read_b128 v[{PX}:{PX+3}], {vXALL} offset:{L_Q}\n{ql}\ns_waitcnt lgkmcnt(0)")
                    fb(f"v_max3_u32 v{TMP}, v{PX}, v{PX+1}, v{PX+2}\nv_max_u32 v{TMP}, v{TMP}, v{PX+3}\nv_cmp_eq_u32 vcc, -1, v{TMP}")
                    fb(f"s_cbranch_vccnz {loop}\ns_waitcnt vmcnt(0)\ns_branch {qok}")
                self.ool(qretry)
            else:
                self.poll("aq", ql, qcheck, c.aq)
            self.tag(h + 2)
            a("s_barrier")
            st(6)
            gen_c, back_c = self.lab("cgen"), self.lab("cback")
            a(f"ds_read_b128 v[{T2}:{T2+3}], {vLST}")
            for w in range(4): a(f"ds_read_b128 v[{TMP+4*w}:{TMP+4*w+3}], {vLDS} offset:{2048*w}")
            a(f"ds_read_b128 v[{T2+4}:{T2+7}], {vLST} offset:64")
            a(f"s_waitcnt lgkmcnt(3)\nv_or3_b32 v{GA}, v{T2}, v{T2+1}, v{T2+2}")
            a(f"v_pk_add_f32 v[{ACC}:{ACC+1}], v[{TMP}:{TMP+1}], v[{TMP+4}:{TMP+5}]\nv_or_b32 v{GA}, v{GA}, v{T2+3}")
            a(f"v_pk_add_f32 v[{ACC+2}:{ACC+3}], v[{TMP+2}:{TMP+3}], v[{TMP+6}:{TMP+7}]\nv_cmp_ne_u32 vcc, 0, v{GA}\ns_waitcnt lgkmcnt(1)")
            a(f"v_pk_add_f32 v[{GA}:{GA+1}], v[{TMP+8}:{TMP+9}], v[{TMP+12}:{TMP+13}]\nv_pk_add_f32 v[{GA+2}:{GA+3}], v[{TMP+10}:{TMP+11}], v[{TMP+14}:{TMP+15}]")
            a(f"v_pk_add_f32 v[{ACC}:{ACC+1}], v[{ACC}:{ACC+1}], v[{GA}:{GA+1}]\nv_pk_add_f32 v[{ACC+2}:{ACC+3}], v[{ACC+2}:{ACC+3}], v[{GA+2}:{GA+3}]")
            a(f"s_cbranch_vccnz {gen_c}")
            self.publish(vPUB, B(2), sc)
            a(f"s_waitcnt lgkmcnt(0)\nv_pk_add_f32 v[{GA}:{GA+1}], v[{T2+4}:{T2+5}], v[{T2+6}:{T2+7}]\nv_add_f32 v{GA}, v{GA}, v{GA+1}")
            a(f"s_mov_b64 exec, 0x2222\n{back_c}:\nglobal_store_dword {vOSP}, v{GA}, {sSM} offset:{OSTAT[li]}{sc}\ns_mov_b64 exec, -1")
            def cgen(fb):
                fb(f"{gen_c}:\ns_waitcnt lgkmcnt(0)")
                fb(f"v_max3_f32 v{GA}, v{T2}, v{T2+1}, v{T2+2}\nv_max_f32 v{GA}, v{GA}, v{T2+3}")
                for w in range(4): fb(f"v_sub_f32 v{T2+w}, v{T2+w}, v{GA}")
                for w in range(4): fb(f"v_exp_f32 v{T2+w}, v{T2+w}")
                for w in range(4):
                    for j in range(4):
                        fb(f"v_mul_f32 v{ACC+j}, v{T2}, v{TMP+j}" if w == 0 else f"v_fmac_f32 v{ACC+j}, v{T2+w}, v{TMP+4*w+j}")
                self.publish(vPUB, B(2), sc)
                fb(f"v_mul_f32 v{GA+1}, v{T2}, v{T2+4}")
                for w in range(1, 4): fb(f"v_fmac_f32 v{GA+1}, v{T2+w}, v{T2+4+w}")
                fb(f"v_or_b32 v{GA+1}, 0x80000000, v{GA+1}\nv_cndmask_b32 v{GA}, v{GA}, v{GA+1}, {sODD}")
                fb(f"s_mov_b64 exec, 0x3333\ns_branch {back_c}")
            self.ool(cgen)
            st(7)
            loads = ""
            for i in range(2):
                loads += f"global_load_dwordx4 v[{PM+8+4*i}:{PM+8+4*i+3}], {vOSI}, {sSM} offset:{OSTAT[li]+128+16*i} sc1\n"
            loads += self.rs_loads(B(2), PL)
            def shadow(nafter):
                self.zero_acc()
                if li == 0:
                    for kp in range(8):
                        a(f"s_waitcnt vmcnt({14 - 2*kp + (2 if kp < 2 else 1 if kp < 5 else 0) + 4 + 2 + nafter})")
                        self.perm_pair(WO, WO0, kp)
            y, z, t, L = MA, GA, TMP, PM + 8
            onorm, ogen = self.lab("onorm"), self.lab("ogen")
            def ocheck(off):
                a(f"""s_waitcnt vmcnt({off + 8})
v_or3_b32 v{t+2}, v{L}, v{L+1}, v{L+2}
v_or3_b32 v{t+2}, v{t+2}, v{L+3}, v{L+4}
v_pk_add_f32 v[{LA}:{LA+1}], v[{L}:{L+1}], v[{L+2}:{L+3}]
v_or3_b32 v{t+2}, v{t+2}, v{L+5}, v{L+6}
v_or_b32 v{t+2}, v{t+2}, v{L+7}
v_pk_add_f32 v[{LA+2}:{LA+3}], v[{L+4}:{L+5}], v[{L+6}:{L+7}]
v_pk_add_f32 v[{LA}:{LA+1}], v[{LA}:{LA+1}], v[{LA+2}:{LA+3}]
v_add_f32 v{LA}, v{LA}, v{LA+1}
s_waitcnt vmcnt({off + 4})""")
                self.strip(PL, y, 4)
                a(f"v_or3_b32 v{t+1}, v{y}, v{y+1}, v{y+2}\nv_pk_add_f32 v[{z}:{z+1}], v[{y}:{y+1}], v[{y+2}:{y+3}]")
                a(f"s_waitcnt vmcnt({off})")
                self.strip(PL + 4, y + 4, 4)
                a(f"""v_pk_add_f32 v[{z+2}:{z+3}], v[{y+4}:{y+5}], v[{y+6}:{y+7}]
v_pk_add_f32 v[{z}:{z+1}], v[{z}:{z+1}], v[{z+2}:{z+3}]
v_add_f32 v{z}, v{z}, v{z+1}
v_or3_b32 v{t+1}, v{t+1}, v{y+3}, v{y+4}
v_or3_b32 v{t+1}, v{t+1}, v{y+5}, v{y+6}
v_permlane32_swap_b32 v{z}, v{LA}
v_add_f32 v{z}, v{z}, v{LA}
v_mov_b32 v{t}, v{z}
v_or_b32 v{t+1}, v{t+1}, v{y+7}
v_lshlrev_b32 v{t+1}, 24, v{t+1}
v_permlane16_swap_b32 v{z}, v{t}
v_add_f32 v{z}, v{z}, v{t}
v_mov_b32 v{LA}, v{z}
v_and_or_b32 v{t+2}, v{t+2}, v{t+3}, v{t+1}
v_cmp_ne_u32 vcc, 0, v{t+2}
v_permlane32_swap_b32 v{z}, v{LA}
v_rcp_f32 v{LA}, v{LA}
v_mul_f32 v{z}, v{z}, v{LA}""")
                self.pack(GA)
            a(f"v_mov_b32 v{t+3}, 0x80000000")
            depth, delay, gap = c.rs if li else (1, 0, 0)
            chk = self.lab("o_chk")
            a(f"s_mov_b32 {sCNT}, {c.limit}")
            self.nops(delay)
            for k in range(depth):
                a(loads)
                if k < depth - 1: self.nops(gap)
            shadow(depth * 10)
            a(f"{chk}:")
            ocheck((depth - 1) * 10)
            self.tag(h + 3)
            a(f"s_cbranch_vccnz {ogen}\n{onorm}:")
            def ogen_f(fb):
                again, mloop = self.lab("oagain"), self.lab("omloop")
                fb(f"{ogen}:")
                self.tag(h + 2)
                fb(f"v_max3_u32 v{t}, v{L}, v{L+1}, v{L+2}\nv_max3_u32 v{t}, v{t}, v{L+3}, v{L+4}\nv_max3_u32 v{t}, v{t}, v{L+5}, v{L+6}\nv_max_u32 v{t}, v{t}, v{L+7}")
                fb(f"v_cmp_eq_u32 vcc, -1, v{t}\ns_cbranch_vccnz {again}\nv_cmp_ne_u32 vcc, 0, v{t+1}\ns_cbranch_vccnz {again}")
                fb(f"s_waitcnt vmcnt(0)\n{mloop}:\ns_sub_u32 {sCNT}, {sCNT}, 1\ns_cbranch_scc1 L_exit")
                for i in range(2): fb(f"global_load_dwordx4 v[{PM+4*i}:{PM+4*i+3}], {vOSI}, {sSM} offset:{OSTAT[li]+16*i} sc1")
                fb("s_waitcnt vmcnt(0)")
                for i in range(8): fb(f"v_cmp_gt_i32 vcc, 0, v{L+i}\nv_cndmask_b32 v{T2+i}, 0, v{PM+i}, vcc")
                fb(f"v_max3_u32 v{t}, v{T2}, v{T2+1}, v{T2+2}\nv_max3_u32 v{t}, v{t}, v{T2+3}, v{T2+4}\nv_max3_u32 v{t}, v{t}, v{T2+5}, v{T2+6}\nv_max_u32 v{t}, v{t}, v{T2+7}")
                fb(f"v_cmp_eq_u32 vcc, -1, v{t}\ns_cbranch_vccnz {mloop}")
                fb(f"v_max3_f32 v{t}, v{T2}, v{T2+1}, v{T2+2}\nv_max3_f32 v{t}, v{t}, v{T2+3}, v{T2+4}\nv_max3_f32 v{t}, v{t}, v{T2+5}, v{T2+6}\nv_max_f32 v{t}, v{t}, v{T2+7}")
                self.allred(t, t + 1, "v_max_f32")
                for i in range(8): fb(f"v_sub_f32 v{T2+i}, v{T2+i}, v{t}")
                for i in range(8): fb(f"v_exp_f32 v{T2+i}, v{T2+i}")
                fb(f"v_mul_f32 v{GA}, v{T2}, v{y}\nv_mul_f32_e64 v{LA}, v{T2}, |v{L}|")
                for i in range(1, 8): fb(f"v_fmac_f32 v{GA}, v{T2+i}, v{y+i}\nv_fma_f32 v{LA}, v{T2+i}, |v{L+i}|, v{LA}")
                self.allred(LA, t + 1); self.allred(GA, t + 2)
                fb(f"v_rcp_f32 v{LA}, v{LA}\nv_mul_f32 v{GA}, v{GA}, v{LA}")
                self.pack(GA)
                self.tag(h + 3)
                fb(f"s_branch {onorm}")
                fb(f"{again}:\n{loads}\ns_sub_u32 {sCNT}, {sCNT}, 1\ns_cbranch_scc0 {chk}\ns_endpgm")
            self.ool(ogen_f)
            st(8)
            self.gemv(WO, vPUB, B(3), sc)
            st(9)
            lc1 = c0("out")
            a(f"s_add_u32 s32, {sE}, {11 + 2*li}")
            self.rs_gather("out", B(3), post=gtag)
            self.g_publish(2 * li)
            st(10)
            self.zero_acc()
            self.tag(11 + 2 * li)
            self.g_gather(2 * li)
            st(11)
            def colsums(fb):
                l = self.lab("nocg")
                self.tag(1)
                self.rs_gather("cq", sCQ, par=(1, 0, 0))
                fb(f"ds_write_b32 {vLX}, v{GA} offset:{L_CS - L_X}\ns_cmp_lt_u32 s29, 28\ns_cbranch_scc0 {l}")
                self.rs_gather("cg", sCG, par=(1, 0, 0))
                fb(f"ds_write_b32 {vLX}, v{GA} offset:{L_CS - L_X + 256}\n{l}:\ns_waitcnt lgkmcnt(0)")
            x_gemv(GU, 2 * li, lc1, colsums if li == 0 else None)
            self.tag(h + 4)
            self.publish(vPUBGU, B(4), sc, M56)
            a(f"v_lshlrev_b32 {vX}, 16, {vPR}")
            if li == 0: a(f"ds_read_b32 {vCQ}, {vLX} offset:{L_CS - L_X}\nds_read_b32 {vCG}, {vLX} offset:{L_CS - L_X + 256}\ns_waitcnt lgkmcnt(0)")
            st(12)
            l = ffn("ffn")
            self.zero_acc()
            def hcalc():
                a(f"v_fma_f32 v{GA}, v{GA}, {vRS}, {vNM}")
                a(f"v_mul_f32_dpp v{GA}, v{GA}, v{GA} row_ror:8 {DPP}")
                self.pack(GA)
            self.rs_gather("gu", B(4), post=hcalc, ln=(2 * li, vCG))
            self.tag(h + 5)
            self.gemv(WD, vPUB, B(5), sc)
            a(f"{l}:")
            st(13)
            lc1 = c0("dn")
            self.tag(h + 5)
            a(f"s_add_u32 s32, {sE}, {12 + 2*li}")
            self.rs_gather("dn", B(5), 7, post=gtag)
            self.g_publish(2 * li + 1)
            st(14)
            if li == 0:
                self.zero_acc()
                self.tag(12)
                self.g_gather(1)
                x_gemv(self.WQ, 1, lc1)
            else:
                l2 = self.lab("fin")
                a(f"s_cmp_eq_u32 s28, 0\ns_cbranch_scc0 {l2}")
                self.tag(14)
                self.g_gather(3)
                self.pair_store(sOUT, 0, "")
                a(f"s_cmp_eq_u32 s29, 0\ns_cbranch_scc0 {l2}")
                a(f"s_add_u32 s30, {sE}, {NTAGS}\nv_mov_b32 v{TMP}, s30\nv_mov_b32 v{TMP+1}, 0")
                a(f"s_mov_b64 exec, 1\nglobal_store_dword v{TMP+1}, v{TMP}, {sWS} sc1")
                a(f"{l2}:\n{lc1}:")
                self.dump_and_end("s34")
        self.spare = spare0

    def flush_tail(self):
        while self.tail:
            t = self.tail.pop(0); self.a(t)

    def build(self):
        a = self.a
        self.prologue()
        self.s_program()
        self.flush_tail()
        self.c_pre()
        self.first_hop(False)
        self.c_rest("")
        self.flush_tail()
        a("L_slow:")
        self.first_hop(True)
        self.c_rest(" sc1")
        self.flush_tail()
        a("L_exit:\ns_endpgm")
        head = f"""; Fused decode step: 2 x (LayerNorm -> GQA sliding-window attention -> residual -> LayerNorm -> bilinear GLU -> residual)
; @launch grid=(256,1,1) block=(384,1,1) lds={LDS_BYTES}
.amdgcn_target "amdgcn-amd-amdhsa--gfx950"
.text
.globl {KNAME}
.p2align 8
.type {KNAME},@function
{KNAME}:
"""
        tail = f"""
.section .rodata,"a"
.p2align 6
.amdhsa_kernel {KNAME}
  .amdhsa_next_free_vgpr 256
  .amdhsa_next_free_sgpr 102
  .amdhsa_accum_offset 256
  .amdhsa_group_segment_fixed_size 0
  .amdhsa_kernarg_size 96
  .amdhsa_user_sgpr_count 2
  .amdhsa_user_sgpr_kernarg_segment_ptr 1
  .amdhsa_system_sgpr_workgroup_id_x 1
  .amdhsa_float_denorm_mode_32 3
.end_amdhsa_kernel
"""
        return head + a.text() + tail


def make(**kw):
    c = Cfg(); c.stamp_layer = 0
    for k, v in kw.items(): setattr(c, k, v)
    return Gen(c).build()

if __name__ == "__main__":
    out = sys.argv[1]
    kw = {}
    for x in sys.argv[2:]:
        k, v = x.split("=", 1)
        kw[k] = eval(v)
    open(out, "w").write(make(**kw))
```

```python
import sys, struct
from asmlib import Asm

KNAME = "interleave_layers__sliding_block_cached__glu_gated_bilinear__decode_kernel"
def f2u(x): return struct.unpack("<I", struct.pack("<f", x))[0]

class Cfg:
    debug = False
    stamp_layer = 0
    nt = " nt"
    win = 4
    wins = [8,8,8,8, 6,6, 5,5] + [4]*14
    limit = 64
    outer = 2000
    limit1 = 64
    force_slow = False
    rs = (3, 60, 40)
    ro = (3, 60, 40)
    g = (3, 100, 200)
    q0 = (2, 200, 600)
    a0 = (2, 300, 600)
    aq = (4, 60, 40)
    prew = 2
    cs_sc = ''
    pace = 200
    touch = 1
    tpol = ' nt'
    xpol = ''
    pfpol = ''
    exp = ''
    rot = 1
    pf = 6
    b0_late = 1
    cs_late = 1
    tlb = 0
    xd = 40
    bound = 60.0

DPP = "row_mask:0xf bank_mask:0xf"
G_OFF = 0x1000; G_STRIDE = 0x8000
GB_OFF = 0x40000; GB_STRIDE = 0x60000
SM = 0x50000 + 0x1000
AGQ = [-0x1000, -0xC00]; XALL = [-0x800, -0x400, 0x0]; OSTAT = [0x400, 0x800]; XCC = 0xC00
DBG_OFF = 0x400000
NTAGS = 16
L_O = 32768; L_ST = 40960; L_MODE = L_ST + 128; L_CNT = L_ST + 136; L_Q = 41984; L_WQ = L_Q + 1024; L_GU = L_WQ + 16384; L_WD = L_GU + 16384
LDS_BYTES = L_WD + 8192
sX, sK, sV, sWQ, sWO, sWG, sWU, sWD, sOUT, sWS = ("s[4:5]", "s[6:7]", "s[8:9]", "s[10:11]", "s[12:13]",
    "s[16:17]", "s[18:19]", "s[20:21]", "s[22:23]", "s[26:27]")
sB = ["s[36:37]", "s[38:39]", "s[40:41]"]; sCG = "s[42:43]"; sCQ = "s[44:45]"; sSM = "s[46:47]"
sG = ["s[48:49]", "s[50:51]", "s[52:53]", "s[54:55]"]
sE, sT, sCNT, sXCC, sLO, sHI, sONE, sCN2 = "s56", "s57", "s58", "s61", "s62", "s63", "s64", "s65"
sODD = "s[66:67]"; M56 = "s[14:15]"
vMASK, vIN, vPUB, vPUB2, vGIN, vGPUB, vPAIR, vXALL, vOSI, vOSP, vLDS, vLST = ["v%d" % i for i in range(1, 13)]
vX, vCS, vINX, vPR, vMU, vRS, vNM = "v13", "v14", "v15", "v16", "v17", "v18", "v19"
GA = 20; MA = 28; LA = 36; ACC = 40; TMP = 48; T2 = 64; NEG = 72
vZERO, vAQ, vCLR, vXC, vWO, vDN, vDN2, vJ = "v76", "v77", "v78", "v79", "v208", "v209", "v210", "v211"
WA, WB, SPARE = 80, 144, 212
PL = 214; PM = 222; PX = 238; PC = 242


def HB(hop): return sB[1] if hop == 1 else sB[[1, 0, 2][hop % 3]]


class Gen:
    def __init__(self, cfg):
        self.c = cfg; self.a = Asm(); self.tail = []; self.nlab = 0; self.spare = SPARE

    def lab(self, s):
        self.nlab += 1
        return f"L_{s}_{self.nlab}"

    def stamp(self, i):
        if self.c.debug: self.a(f"s_memtime s[{70+2*i}:{71+2*i}]")

    def end(self, slot):
        a = self.a
        if self.c.debug:
            a("s_memtime s[100:101]\ns_waitcnt vmcnt(0) lgkmcnt(0)\ns_mov_b64 exec, -1")
            a(f"s_lshl_b32 s30, s2, 9\ns_add_u32 s30, s30, {DBG_OFF + slot*128}")
            a("v_mov_b32 v20, s30\nv_mov_b32 v24, s68")
            for i in range(1, 16): a(f"s_sub_u32 s31, s{70+2*i}, s70\nv_mov_b32 v{24+i}, s31")
            for i in range(4): a(f"global_store_dwordx4 v20, v[{24+4*i}:{27+4*i}], {sWS} offset:{16*i}")
        a("s_endpgm")

    def tag(self, k): self.a(f"s_add_u32 {sT}, {sE}, {k}\ns_and_b32 {sT}, {sT}, 0xff")

    def nops(self, cyc):
        if cyc >= 192:
            self.a(f"s_sleep {cyc // 64}"); return
        while cyc >= 4:
            k = min(cyc // 4, 16); self.a(f"s_nop {k-1}"); cyc -= 4 * k

    def ool(self, fn):
        fb = Asm(); sv, self.a = self.a, fb
        fn(fb)
        self.a = sv
        self.tail.append(fb.text())

    def flush(self):
        while self.tail: self.a(self.tail.pop(0))

    def poll(self, name, loads, body, par, shadow=None, bound=None, over=None, first=True, pace=0):
        a = self.a
        depth, delay, gap = par
        nl = loads.count("global_")
        top, ov = self.lab(name), self.lab(name + "_over")
        a(f"s_mov_b32 {sCNT}, {bound or self.c.limit * self.c.outer}")
        if first:
            self.nops(delay)
            for k in range(depth - 1):
                a(loads); self.nops(gap)
        if shadow:
            skip = self.lab(name + "_in")
            a(loads); shadow(depth * nl); a(f"s_branch {skip}\n{top}:\n{loads}\n{skip}:")
        else:
            a(f"{top}:\n{loads}")
        a(f"s_sub_u32 {sCNT}, {sCNT}, 1\ns_cbranch_scc1 {ov if over else 'L_exit'}")
        self.nops(pace)
        body((depth - 1) * nl)
        a(f"s_cbranch_vccnz {top}")
        if over: self.ool(lambda fb: over(fb, ov, top))

    def allred(self, r, t, op="v_add_f32"):
        self.a(f"""v_mov_b32 v{t}, v{r}
v_permlane32_swap_b32 v{r}, v{t}
{op} v{r}, v{r}, v{t}
v_mov_b32 v{t}, v{r}
v_permlane16_swap_b32 v{r}, v{t}
{op} v{r}, v{r}, v{t}""")

    def rs_loads(self, base, g, n=8):
        return "\n".join(f"global_load_dword v{g+i}, {vIN}, {base} offset:{256*i} sc1" for i in range(n))

    def umax(self, t, regs):
        regs = list(regs)
        self.a(f"v_max3_u32 v{t}, v{regs[0]}, v{regs[1]}, v{regs[2]}")
        for i in range(3, len(regs), 2): self.a(f"v_max3_u32 v{t}, v{t}, v{regs[i]}, v{regs[min(i+1, len(regs)-1)]}")

    def tagged_sum(self, src, n=8):
        a = self.a
        for i in range(n): a(f"v_xor_b32 v{MA+i}, {sT}, v{src+i}")
        a(f"v_or3_b32 v{TMP}, v{MA}, v{MA+1}, v{MA+2}\nv_or3_b32 v{TMP}, v{TMP}, v{MA+3}, v{MA+4}\nv_or3_b32 v{TMP}, v{TMP}, v{MA+5}, v{MA+6}\nv_or_b32 v{TMP}, v{TMP}, v{MA+7}")
        a(f"v_cmp_ne_u32_sdwa vcc, v{TMP}, 0 src0_sel:BYTE_0 src1_sel:DWORD")
        a(f"v_pk_add_f32 v[{GA}:{GA+1}], v[{MA}:{MA+1}], v[{MA+2}:{MA+3}]\nv_pk_add_f32 v[{GA+2}:{GA+3}], v[{MA+4}:{MA+5}], v[{MA+6}:{MA+7}]")
        a(f"v_pk_add_f32 v[{GA}:{GA+1}], v[{GA}:{GA+1}], v[{GA+2}:{GA+3}]\nv_add_f32 v{GA}, v{GA}, v{GA+1}")

    def rs_gather(self, name, base, n=8, post=None, par=None, ln=None):
        z, t, y = GA, TMP, PL
        done = self.lab(name + "_done")
        def reduce(off, test):
            a = self.a
            a(f"s_waitcnt vmcnt({off + n - 4})\nv_pk_add_f32 v[{z}:{z+1}], v[{y}:{y+1}], v[{y+2}:{y+3}]\ns_waitcnt vmcnt({off})")
            if n == 8: a(f"v_pk_add_f32 v[{z+2}:{z+3}], v[{y+4}:{y+5}], v[{y+6}:{y+7}]\nv_pk_add_f32 v[{z}:{z+1}], v[{z}:{z+1}], v[{z+2}:{z+3}]")
            else: a(f"v_pk_add_f32 v[{z}:{z+1}], v[{z}:{z+1}], v[{y+4}:{y+5}]\nv_add_f32 v{z}, v{z}, v{y+6}")
            a(f"v_add_f32 v{z}, v{z}, v{z+1}\nv_mov_b32 v{t}, v{z}")
            if test: a(f"v_cmp_u_f32 vcc, v{z}, v{z}")
            a(f"v_permlane32_swap_b32 v{z}, v{t}\nv_add_f32 v{z}, v{z}, v{t}\nv_mov_b32 v{t}, v{z}")
        def over(fb, ov, top):
            fb(f"{ov}:\ns_sub_u32 {sCN2}, {sCN2}, 1\ns_cbranch_scc1 L_exit\ns_mov_b32 {sCNT}, {self.c.limit}\ns_waitcnt vmcnt(0)")
            self.umax(t, range(y, y + n))
            fb(f"v_cmp_eq_u32 vcc, -1, v{t}\ns_cbranch_vccnz {top}")
            reduce(0, False)
            fb(f"s_branch {done}")
        loads = self.rs_loads(base, PL, n)
        a = self.a
        a(f"s_mov_b32 {sCN2}, {self.c.outer}")
        if ln is None:
            self.poll(name, loads, lambda off: reduce(off, True), par or self.c.rs, bound=self.c.limit, over=over)
        else:
            xl = f"global_load_dwordx4 v[{PX}:{PX+3}], {vXALL}, {sSM} offset:{XALL[ln]} sc1"
            xchk = f"v_max3_u32 v{TMP}, v{PX}, v{PX+1}, v{PX+2}\nv_max_u32 v{TMP}, v{TMP}, v{PX+3}\nv_cmp_eq_u32 vcc, -1, v{TMP}"
            xr, xok = self.lab("xretry"), self.lab("xok")
            a(f"{xl}\ns_mov_b32 {sCNT}, {self.c.limit * self.c.outer}")
            self.nops(self.c.xd)
            a(f"{loads}\ns_waitcnt vmcnt({n})\n{xchk}\ns_cbranch_vccnz {xr}\n{xok}:")
            self.tail.append(f"{xr}:\n{xl}\n{xr}_b:\n{xl}\ns_sub_u32 {sCNT}, {sCNT}, 1\ns_cbranch_scc1 L_exit\ns_waitcnt vmcnt(1)\n{xchk}\ns_cbranch_vccnz {xr}_b\n{loads}\ns_branch {xok}\n")
            self.stats(PX, lambda: a(loads))
            a(f"v_mul_f32 {vNM}, {vMU}, {vRS}\nv_mul_f32_e64 {vNM}, -{vNM}, {vCS}")
            self.poll(name, loads, lambda off: reduce(off, True), (3, 0, 0), bound=self.c.limit, over=over, first=False)
        a(f"{done}:\nv_permlane16_swap_b32 v{z}, v{t}\nv_add_f32 v{z}, v{z}, v{t}")

    def pack(self, r):
        self.a(f"v_mov_b32_dpp v{TMP}, v{r} quad_perm:[1,0,3,2] {DPP}\nv_cvt_pk_bf16_f32 {vPR}, v{r}, v{TMP}")

    def perm_pair(self, W, base, kp):
        W.append([])
        for u in range(4):
            lo = base + 8 * kp + u; hi = lo + 4; s = self.spare
            self.a(f"v_perm_b32 v{s}, v{hi}, v{lo}, {sLO}\nv_perm_b32 v{hi}, v{hi}, v{lo}, {sHI}")
            W[kp] += [s, hi]; self.spare = lo

    def zero_acc(self):
        for j in range(0, 8, 2): self.a(f"v_mov_b64 v[{ACC+j}:{ACC+j+1}], 0")

    def dots(self, W, kp, src=None, lane=None):
        for j in range(8):
            if src: self.a(f"v_dot2c_f32_bf16 v{ACC+j}, {src}, v{W[kp][j]}")
            else: self.a(f"v_dot2c_f32_bf16_dpp v{ACC+j}, {vPR}, v{W[kp][j]} row_newbcast:{2*kp if lane is None else lane} {DPP}")

    def gemv(self, W, base, sc, lanes=None, addr=(vPUB, vPUB2), mask=None):
        a = self.a
        n = len(W)
        d = lambda kp, j: a(f"v_dot2c_f32_bf16_dpp v{ACC+j}, {vPR}, v{W[kp][j]} row_newbcast:{2*kp if lanes is None else lanes[kp]} {DPP}")
        def store(t):
            if mask: a(f"s_mov_b64 exec, {mask}")
            a(f"global_store_dwordx4 {addr[t]}, v[{ACC+4*t}:{ACC+4*t+3}], {base}{sc}")
            if mask: a("s_mov_b64 exec, -1")
        for kp in range(n):
            for j in range(4): d(kp, j)
        for kp in range(n):
            for j in range(4, 8): d(kp, j)
            if kp == 0: store(0)
        store(1)

    def tagged_publish(self, base, sc, mask=None):
        a = self.a
        for j in range(8): a(f"v_bfi_b32 v{ACC+j}, {vMASK}, {sT}, v{ACC+j}")
        if mask: a(f"s_mov_b64 exec, {mask}")
        a(f"global_store_dwordx4 {vPUB}, v[{ACC}:{ACC+3}], {base}{sc}\nglobal_store_dwordx4 {vPUB2}, v[{ACC+4}:{ACC+7}], {base}{sc}")
        if mask: a("s_mov_b64 exec, -1")

    def clear_inbox(self, base, sc):
        self.a(f"global_store_dwordx4 {vINX}, v[{NEG}:{NEG+3}], {base}{sc}\nglobal_store_dwordx4 {vINX}, v[{NEG}:{NEG+3}], {base} offset:1024{sc}")

    def stats(self, x, hook=None):
        a = self.a
        p, q = TMP, TMP + 1
        a(f"v_mov_b32 v{p}, 0\nv_mov_b32 v{q}, 0")
        for i in range(4): a(f"v_dot2c_f32_bf16 v{p}, {sONE}, v{x+i}\nv_dot2c_f32_bf16 v{q}, v{x+i}, v{x+i}")
        a(f"v_mov_b32 v{q+1}, 0x{f2u(1/512.):08x}\nv_mov_b32 v{q+2}, 0x{f2u(1e-5):08x}")
        a(f"v_permlane32_swap_b32 v{p}, v{q}\nv_add_f32 v{p}, v{p}, v{q}\nv_mov_b32 v{q}, v{p}")
        a(f"v_permlane16_swap_b32 v{p}, v{q}\nv_add_f32 v{p}, v{p}, v{q}")
        if hook: hook()
        for r in (8, 4, 2, 1): a(f"v_add_f32_dpp v{p}, v{p}, v{p} row_ror:{r} {DPP}")
        a(f"v_readlane_b32 s30, v{p}, 0\nv_readlane_b32 s31, v{p}, 32")
        a(f"v_mul_f32 {vMU}, s30, v{q+1}\nv_fma_f32 {vRS}, s31, v{q+1}, v{q+2}")
        a(f"v_fma_f32 {vRS}, -{vMU}, {vMU}, {vRS}\nv_max_f32 {vRS}, {vRS}, v{q+2}\nv_rsq_f32 {vRS}, {vRS}")

    def pair_store(self, base, off, sc):
        self.a(f"s_mov_b64 exec, 0x5555\nglobal_store_dword {vPAIR}, {vPR}, {base} offset:{off}{sc}\ns_mov_b64 exec, -1")

    def lds_weights(self, W, base, vaddr, off, npair, use=None):
        a = self.a
        rd = lambda k: a(f"ds_read_b128 v[{base+4*k}:{base+4*k+3}], {vaddr} offset:{off+1024*k}")
        for k in range(min(8, 2 * npair)): rd(k)
        for kp in range(npair):
            if 2 * kp + 8 < 2 * npair:
                rd(2 * kp + 8); rd(2 * kp + 9); out = 8
            else: out = 2 * npair - 2 * kp - 2
            a(f"s_waitcnt lgkmcnt({out})")
            self.perm_pair(W, base, kp)
            if use: use(kp)

    def prologue(self):
        a = self.a; c = self.c
        if c.debug: a("s_memtime s[70:71]\ns_memrealtime s[68:69]")
        a(f"""s_load_dwordx16 s[4:19], s[0:1], 0
s_load_dwordx8 s[20:27], s[0:1], 64
s_cmpk_ge_u32 s2, 0x100
s_cbranch_scc1 L_exit
v_lshrrev_b32 v1, 6, v0
v_and_b32 v0, 63, v0
s_lshr_b32 s29, s2, 3
v_readfirstlane_b32 s33, v1
s_and_b32 s28, s2, 7
s_and_b32 s34, s29, 15
s_lshr_b32 s35, s29, 4
s_lshl_b32 s60, s34, 5
s_lshl2_add_u32 s60, s35, s60
v_lshlrev_b32 v15, 4, v0
s_cmp_ge_u32 s33, 4
s_cbranch_scc1 L_C0
s_lshl3_add_u32 s32, s33, s60
s_lshl3_add_u32 s30, s32, s28
s_lshl_b32 s30, s30, 10
v_add_u32 v1, s30, v15
s_lshl_b32 s36, s33, 12
s_add_u32 m0, s36, {L_WQ}
s_movk_i32 s3, 0x2000
s_waitcnt lgkmcnt(0)""")
        for i in range(4):
            a(f"global_load_lds_dwordx4 v1, {sWQ}{c.nt}")
            if i < 3: a("s_addk_i32 m0, 0x400\nv_add_u32 v1, s3, v1")
        a(f"""s_branch L_S1
L_C0:
s_cmp_eq_u32 s33, 4
s_cbranch_scc1 L_X0
s_getpc_b64 s[30:31]
s_mulk_i32 s29, {128 * c.pf}
v_lshl_add_u32 v2, v0, 7, s29
s_mov_b64 exec, {(1 << c.pf) - 1}
global_load_dword {vJ}, v2, s[30:31]{c.pfpol}
s_branch L_C
L_X0:
s_setprio 3
s_waitcnt lgkmcnt(0)
global_load_dwordx4 v[32:35], v15, {sX}{c.xpol}
s_branch L_C
L_early_end:""")

    def consts(self):
        self.a("s_mov_b32 s62, 0x05040100\ns_mov_b32 s63, 0x07060302\ns_mov_b32 s64, 0x3f803f80")

    KF, VR, VF, Q, D, P, ON, O, OL, X, T = 16, 48, 80, 112, 128, 136, 140, 144, 176, 184, 192

    def s_stream(self):
        a = self.a; c = self.c
        KF, VR, ON, T = self.KF, self.VR, self.ON, self.T
        a(f"""L_S1:
s_mul_i32 s30, s32, 3584
s_mul_i32 s31, s28, 448
s_add_u32 s30, s30, s31
v_and_b32 v6, 31, v0
v_lshl_add_u32 v184, v6, 4, s30
v_cmp_gt_u32 vcc, 32, v0""")
        self.consts()
        n = [4]
        landed = [-1]
        wins = c.wins
        def throttle():
            w = wins[n[0] - 4]
            if n[0] - w > landed[0]:
                for mark in (3, 9):
                    if landed[0] < mark <= n[0] - w:
                        a(f"s_waitcnt vmcnt({n[0] - 1 - mark})")
                        if 'noq' in c.exp and mark == 3: self.stamp(14)
                        a("s_barrier")
                        if mark == 3: self.stamp(1)
                        landed[0] = mark
                if n[0] - w > landed[0]: a(f"s_waitcnt vmcnt({w-1})"); landed[0] = n[0] - w
            if 'noq' in c.exp and n[0] in (4, 8, 12, 16, 20): self.stamp({4: 9, 8: 10, 12: 11, 16: 12, 20: 13}[n[0]])
            n[0] += 1
        a(f"""v_mov_b32 v186, s18
v_mov_b32 v187, s19
v_mov_b32 v188, s16
v_mov_b32 v189, s17
v_cndmask_b32 v186, v186, v188, vcc
v_cndmask_b32 v187, v187, v189, vcc
v_mov_b32 v185, 0
s_mov_b32 s14, 3584
s_mov_b32 s15, 0
v_lshl_add_u64 v[184:185], v[184:185], 0, v[186:187]
s_add_u32 m0, s36, {L_GU}
s_mov_b32 exec_lo, 0x0fffffff
s_mov_b32 exec_hi, 0x0fffffff""")
        for i in range(4):
            throttle()
            a(f"global_load_lds_dwordx4 v[184:185], off{c.nt}")
            if i < 3: a(f"s_add_u32 m0, s36, {L_GU+1024*(i+1)}\nv_lshl_add_u64 v[184:185], v[184:185], 0, s[14:15]")
        a(f"""s_mov_b64 exec, -1
s_min_u32 s30, s34, 13
s_lshl_b32 s30, s30, 4
s_mul_i32 s31, s28, 224
s_add_u32 s30, s30, s31
s_lshl_b32 s31, s35, 2
s_add_u32 s30, s30, s31
s_lshr_b32 s31, s33, 1
s_lshl_b32 s31, s31, 3
s_add_u32 s30, s30, s31
s_and_b32 s31, s33, 1
s_lshl_b32 s31, s31, 1
s_add_u32 s30, s30, s31
s_lshl_b32 s30, s30, 10
v_add_u32 v1, s30, v15
s_lshl_b32 s31, s33, 11
s_add_u32 m0, s31, {L_WD}""")
        for i in range(2):
            throttle()
            a(f"global_load_lds_dwordx4 v1, {sWD} offset:{1024*i}{c.nt}")
        a("""s_lshl_b32 s30, s28, 24
s_lshl_b32 s31, s29, 15
s_add_u32 s30, s30, s31
s_add_u32 s30, s30, 0xF00000
s_add_u32 s6, s6, s30
s_addc_u32 s7, s7, 0
s_add_u32 s8, s8, s30
s_addc_u32 s9, s9, 0
s_lshl_b32 s36, s33, 13
s_mov_b32 m0, s36
v_and_b32 v6, 15, v0
v_lshrrev_b32 v7, 4, v0
v_xor_b32 v8, v6, v7
v_lshlrev_b32 v8, 4, v8
v_lshl_add_u32 v9, v7, 8, v8
v_add_u32 v9, s36, v9""")
        if c.rot: a("s_lshl_b32 s37, s29, 2\ns_and_b32 s30, s28, 3\ns_or_b32 s37, s37, s30\ns_lshl_b32 s37, s37, 8\nv_xor_b32 v9, s37, v9")
        else: a("s_mov_b32 s37, 0")
        for i in range(8):
            if i: a(f"s_add_u32 m0, s36, {1024*i}\nv_xor_b32 v1, {64*(i&3) + 1024*i}, v9")
            throttle()
            a(f"global_load_lds_dwordx4 {'v1' if i else 'v9'}, {sK}{c.nt}")
            if i == 0:
                a("v_lshlrev_b32 v10, 4, v6\nv_lshl_add_u32 v10, v7, 10, v10\nv_add_u32 v10, s36, v10\nv_xor_b32 v10, s37, v10")
                a("v_lshl_add_u32 v11, v6, 8, v8\nv_add_u32 v11, s36, v11")
                for j in range(1, 4): a(f"v_xor_b32 v{11+j}, {64*j}, v11")
                a("v_lshrrev_b32 v2, 2, v6\nv_lshlrev_b32 v5, 4, v2\nv_lshlrev_b32 v2, 8, v2\nv_lshl_add_u32 v2, v7, 4, v2")
                a(f"s_lshl_b32 s31, s33, 2\ns_add_u32 s31, s31, {L_ST}\nv_add_u32 v5, s31, v5")
                a(f"v_lshlrev_b32 v3, 4, v7\nv_add_u32 v3, s31, v3")
                a(f"s_lshl_b32 s31, s33, 11\ns_add_u32 s31, s31, {L_O}\nv_lshlrev_b32 v4, 2, v0\nv_add_u32 v4, s31, v4")
                for k in range(4): a(f"v_mov_b32 v{ON+k}, {sONE}")
                cs = f2u(128**-0.5*1.4426950408889634)
                a(f"v_mov_b32 v{T+6}, 0x{cs:08x}\nv_mov_b32 v{T+7}, 0x{cs:08x}\nv_mov_b32 v{T+5}, 0x{f2u(c.bound):08x}")
                a(f"v_add_u32 v2, {L_Q}, v2\nv_lshrrev_b32 v{T}, 2, v6")
                for j in range(4): a(f"v_add_u32 v{T+1}, {j}, v{T}\nv_and_b32 v{T+1}, 3, v{T+1}\nv_lshl_add_u32 v{T+8+j}, v{T+1}, 6, v2")
        for i in range(8):
            if i: a(f"v_xor_b32 v1, {(i>>2)*4096+(i&3)*256}, v10")
            throttle()
            a(f"global_load_dwordx4 v[{VR+4*i}:{VR+4*i+3}], {'v1' if i else 'v10'}, {sV}{c.nt}")
        a(f"v_mov_b32 v{T}, {L_CNT}\nv_mov_b32 v{T+1}, 1\ns_mov_b64 exec, 1\nds_add_u32 v{T}, v{T+1}\ns_mov_b64 exec, -1")
        assert landed[0] >= 17
        for t in range(2):
            for j in range(4): a(f"ds_read_b128 v[{KF+16*t+4*j}:{KF+16*t+4*j+3}], v{11+j} offset:{4096*t}")
        self.stamp(2)
        a("s_branch L_S2")

    def s_layers(self):
        a = self.a; c = self.c
        KF, VR, VF, Q, D, P, ON, O, OL, X, T = self.KF, self.VR, self.VF, self.Q, self.D, self.P, self.ON, self.O, self.OL, self.X, self.T
        a("L_S2:")
        for li in range(2):
            if li: a("s_barrier\ns_barrier\ns_barrier" + ("\ns_barrier" if c.cs_late else ""))
            a(f"v_mov_b32 v{T+4}, 0\ns_waitcnt lgkmcnt(0)\ns_barrier")
            self.stamp(3 + 6 * li)
            if 'noq' in c.exp and li == 0:
                a("s_waitcnt vmcnt(0)"); self.stamp(4)
                l = self.lab("x"); a(f"s_cmp_eq_u32 s33, 0\ns_cbranch_scc1 {l}\ns_endpgm\n{l}:"); self.end(2)
            for j in range(4): a(f"ds_read_b128 v[{Q+4*j}:{Q+4*j+3}], v{T+8+j}")
            a(f"ds_write_b32 v5, v{T+4}")
            for j in range(4):
                a(f"s_waitcnt lgkmcnt({4 - j})")
                for t in range(2):
                    cc = f"v[{D+4*t}:{D+4*t+3}]"
                    a(f"v_mfma_f32_16x16x32_bf16 {cc}, v[{KF+16*t+4*j}:{KF+16*t+4*j+3}], v[{Q+4*j}:{Q+4*j+3}], {cc if j else 0}")
            self.stamp(5 + 6 * li)
            for i in range(0, 8, 2): a(f"v_pk_mul_f32 v[{X+i}:{X+i+1}], v[{D+i}:{D+i+1}], v[{T+6}:{T+7}]")
            for i in range(8): a(f"v_exp_f32 v{D+i}, v{X+i}")
            for u in range(4): a(f"v_cvt_pk_bf16_f32 v{P+u}, v{D+2*u}, v{D+2*u+1}")
            self.stamp(6 + 6 * li)
            if li == 0:
                for u in range(4):
                    a(f"s_waitcnt vmcnt({6 - 2*u})")
                    for up in range(4):
                        for b in range(2):
                            a(f"v_perm_b32 v{VF+4*(2*up+b)+u}, v{VR+4*(2*u+1)+up}, v{VR+4*(2*u)+up}, {sHI if b else sLO}")
                self.stamp(4)
            lfb, lback = self.lab("fallback"), self.lab("pv")
            a(f"{lback}:")
            for e in range(8):
                a(f"v_mfma_f32_16x16x32_bf16 v[{O+4*e}:{O+4*e+3}], v[{P}:{P+3}], v[{VF+4*e}:{VF+4*e+3}], 0")
                if e == 0: a(f"v_max3_f32 v{T}, v{X}, v{X+1}, v{X+2}\nv_max3_f32 v{T+1}, v{X+3}, v{X+4}, v{X+5}")
                if e == 1: a(f"v_max3_f32 v{T}, v{T}, v{X+6}, v{X+7}\nv_max_f32 v{T}, v{T}, v{T+1}")
                if e == 2: a(f"v_cmp_gt_f32 vcc, |v{T}|, v{T+5}")
                if e == 3: a(f"v_mfma_f32_16x16x32_bf16 v[{OL}:{OL+3}], v[{P}:{P+3}], v[{ON}:{ON+3}], 0\ns_cbranch_vccnz {lfb}")
                if e == 5: a(f"ds_write2st64_b32 v4, v{O}, v{O+4} offset0:0 offset1:1")
                if e == 7: a(f"ds_write2st64_b32 v4, v{O+8}, v{O+12} offset0:2 offset1:3\nds_write_b32 v3, v{OL} offset:64")
            for e in range(4, 8, 2): a(f"ds_write2st64_b32 v4, v{O+4*e}, v{O+4*e+4} offset0:{e} offset1:{e+1}")
            a("s_waitcnt lgkmcnt(0)")
            self.stamp(7 + 6 * li)
            a("s_barrier")
            def fbk(fb):
                fb(f"{lfb}:\ns_nop 7")
                self.allred(T, T + 1, "v_max_f32")
                for i in range(8): fb(f"v_sub_f32 v{X+i}, v{X+i}, v{T}")
                for i in range(8): fb(f"v_exp_f32 v{D+i}, v{X+i}\nv_mov_b32 v{X+i}, 0")
                for u in range(4): fb(f"v_cvt_pk_bf16_f32 v{P+u}, v{D+2*u}, v{D+2*u+1}")
                fb(f"ds_write_b32 v5, v{T}\ns_nop 7\ns_branch {lback}")
            self.ool(fbk)
        if c.debug:
            l = self.lab("sdone")
            a(f"s_cmp_eq_u32 s33, 0\ns_cbranch_scc1 {l}\ns_endpgm\n{l}:")
        self.end(2)

    def clear_all(self, sc):
        a = self.a
        a(f"s_mov_b32 exec_hi, 0x00ffffff\nglobal_store_dword {vCLR}, v{NEG}, {sSM} offset:{AGQ[0]}{sc}\ns_mov_b64 exec, -1")
        self.clear_inbox(sB[0], sc); self.clear_inbox(sB[2], sc)

    def c_pre(self):
        a = self.a; c = self.c
        a(f"""L_C:
s_mov_b64 exec, -1
s_lshr_b32 s29, s2, 3
s_waitcnt lgkmcnt(0)
s_load_dword {sE}, {sWS}, 0
s_mul_i32 s59, s28, {GB_STRIDE}
s_add_u32 s59, s59, {GB_OFF}
v_and_b32 v20, 15, v0
v_lshrrev_b32 v21, 4, v0
v_lshlrev_b32 v22, 2, v0
v_lshlrev_b32 {vXALL}, 4, v0
v_lshrrev_b32 v23, 2, v20
v_and_b32 v24, 3, v0
v_lshl_add_u32 v28, v23, 3, v24
v_add_u32 v28, s60, v28
v_lshlrev_b32 {vPAIR}, 1, v28
v_mov_b32 {vZERO}, 0
s_lshl_b32 s30, s29, 11
v_add_u32 {vINX}, s30, {vXALL}
v_add_u32 {vIN}, s30, v22
v_mov_b64 v[{NEG}:{NEG+1}], -1
v_mov_b64 v[{NEG+2}:{NEG+3}], -1
s_cmp_eq_u32 s33, 4
s_cbranch_scc0 L_Ypre""")
        a(f"""v_and_b32 v31, 7, v0
v_lshrrev_b32 v25, 1, v31
v_and_b32 v26, 1, v0
v_lshlrev_b32 v25, 4, v25
v_lshl_add_u32 v25, v26, 2, v25
s_lshl_b32 s31, s60, 1
v_add_u32 v25, s31, v25
s_and_b32 s31, s29, 3
s_lshl_b32 s31, s31, 5
s_lshr_b32 s32, s29, 2
s_lshl_b32 s32, s32, 2
s_add_u32 s31, s31, s32
v_lshl_add_u32 v27, v31, 7, s31
v_cmp_gt_u32 vcc, 40, v0
v_lshrrev_b32 {vCLR}, 3, v0
v_lshlrev_b32 {vCLR}, 10, {vCLR}
v_cndmask_b32 v25, v27, v25, vcc
v_add_u32 {vCLR}, {vCLR}, v25
global_load_ushort {vX}, {vPAIR}, {sX}{c.xpol}""")
        assert OSTAT[0] - AGQ[0] == 5 * 1024 and OSTAT[1] - OSTAT[0] == 1024
        self.bases()
        self.clear_all("")
        if c.touch:
            a(f"global_load_dwordx4 v[{PM}:{PM+3}], {vINX}, {sB[1]}{c.tpol}\nglobal_load_dwordx4 v[{PM}:{PM+3}], {vINX}, {sB[1]} offset:1024{c.tpol}")
            a(f"s_lshl_b32 s30, s29, 8\nv_lshl_add_u32 v29, v0, 7, s30\ns_mov_b64 exec, 3\nglobal_load_dword {vJ}, v29, {sSM} offset:-4096{c.tpol}\ns_mov_b64 exec, -1")
        a(f"s_branch L_Cjoin\nL_Ypre:\nv_mov_b32 {vCLR}, 0")
        if c.tlb:
            nl = c.tlb
            a(f"""s_lshl_b32 s30, s28, 24
s_lshl_b32 s31, s29, 15
s_add_u32 s30, s30, s31
s_add_u32 s30, s30, 0xF00000
v_lshl_add_u32 v25, v0, 13, s30
s_mul_i32 s30, s60, 3584
s_mul_i32 s31, s28, 448
s_add_u32 s30, s30, s31
v_mul_u32_u24 v26, 28672, v0
v_add_u32 v26, s30, v26
s_min_u32 s30, s34, 13
s_lshl_b32 s30, s30, 4
s_mul_i32 s31, s28, 224
s_add_u32 s30, s30, s31
s_lshl_b32 s30, s30, 10
v_lshl_add_u32 v27, v0, 12, s30
s_and_b32 s31, s29, 3
s_lshl_b32 s31, s31, 7
s_lshr_b32 s32, s29, 2
s_add_u32 s31, s31, s32
s_lshl_b32 s32, s28, 9
s_add_u32 s31, s31, s32
s_lshl_b32 s31, s31, 10
v_lshl_add_u32 v29, v0, 15, s31
s_mov_b64 exec, {(1 << nl) - 1}
global_load_dword {vJ}, v26, {sWG} nt
global_load_dword {vJ}, v26, {sWU} nt
global_load_dword {vJ}, v27, {sWD} nt
global_load_dword {vJ}, v25, {sK} nt
global_load_dword {vJ}, v25, {sV} nt
global_load_dword {vJ}, v29, {sWO} nt
s_mov_b64 exec, -1""")
        a(f"global_load_ushort {vJ}, {vPAIR}, {sOUT}")
        self.bases()
        a("L_Cjoin:")
        self.consts()
        a(f"""s_getreg_b32 s61, hwreg(HW_REG_XCC_ID, 0, 4)
v_mov_b32 {vMASK}, 0xff
s_lshl_b32 s31, s29, 10
v_lshl_add_u32 {vGIN}, v20, 2, s31
v_lshl_add_u32 {vGIN}, v21, 7, {vGIN}
s_lshl_b32 s32, s28, 7
s_add_u32 s31, s31, s32
v_lshl_add_u32 {vGPUB}, v20, 2, s31
v_lshlrev_b32 {vAQ}, 2, v21
v_sub_u32 {vAQ}, v0, {vAQ}
v_and_b32 {vAQ}, 15, {vAQ}
v_lshl_add_u32 {vAQ}, v21, 4, {vAQ}
v_lshlrev_b32 {vAQ}, 4, {vAQ}
v_lshrrev_b32 v25, 2, v0
v_lshlrev_b32 v25, 11, v25
v_lshl_add_u32 v25, v24, 4, v25
s_lshl_b32 s31, s29, 6
v_add_u32 {vPUB}, s31, v25
v_add_u32 {vPUB2}, 0x8000, {vPUB}
s_mul_i32 s31, s35, 14
s_add_u32 s31, s31, s34
s_lshl_b32 s31, s31, 6
v_add_u32 {vDN}, s31, v25
v_add_u32 {vDN2}, 0x8000, {vDN}
s_and_b32 s31, s29, 3
s_lshl_b32 s32, s31, 8
v_lshl_add_u32 {vOSI}, v21, 5, s32
s_lshl_b32 s31, s31, 5
s_lshr_b32 s32, s29, 2
s_lshl_b32 s32, s32, 2
s_add_u32 s31, s31, s32
v_and_b32 v26, 1, v0
v_and_b32 v27, 3, v23
v_lshlrev_b32 {vOSP}, 8, v27
v_lshl_add_u32 {vOSP}, v26, 7, {vOSP}
v_add_u32 {vOSP}, s31, {vOSP}
s_sub_u32 s31, s33, 4
s_lshl_b32 s31, s31, 10
s_add_u32 s31, s31, {L_O}
v_add_u32 {vLDS}, s31, {vXALL}
v_lshlrev_b32 {vLST}, 4, v27
v_add_u32 {vLST}, {L_ST}, {vLST}
s_mov_b32 s66, 0xaaaaaaaa
s_mov_b32 s67, 0xaaaaaaaa
s_mov_b32 s14, -1
s_mov_b32 s15, 0x00ffffff
s_and_b32 s31, s29, 3
s_lshl_b32 s31, s31, 7
s_lshr_b32 s32, s29, 2
s_add_u32 s31, s31, s32
s_lshl_b32 s32, s28, 9
s_add_u32 s31, s31, s32
s_lshl_b32 s31, s31, 10
v_add_u32 {vWO}, s31, {vXALL}
v_and_b32 {vXC}, 31, v0
v_lshlrev_b32 {vXC}, 2, {vXC}
s_cmp_eq_u32 s33, 4
s_cbranch_scc0 L_Y""")

    def prewrite(self, val):
        self.a(f"v_lshrrev_b32 v{TMP}, 4, v0\nv_lshlrev_b32 v{TMP}, 15, v{TMP}\nv_add_u32 v{TMP}, v{TMP}, {vGPUB}\nv_mov_b32 v{TMP+1}, {val}")
        self.a(f"global_atomic_swap v{TMP}, v{TMP+1}, {sG[0]}")

    def bases(self):
        a = self.a
        a("s_add_u32 s36, s26, s59\ns_addc_u32 s37, s27, 0")
        a(f"s_add_u32 s46, s36, {SM}\ns_addc_u32 s47, s37, 0")
        for i in range(1, 5): a(f"s_add_u32 s{36+2*i}, s36, {0x10000*i}\ns_addc_u32 s{37+2*i}, s37, 0")
        for k in range(4): a(f"s_add_u32 s{48+2*k}, s26, {G_OFF+G_STRIDE*k}\ns_addc_u32 s{49+2*k}, s27, 0")

    def combine(self, li, base, half, sc):
        a = self.a
        gen_c, back_c = self.lab("cgen"), self.lab("cback")
        addr = vPUB2 if half else vPUB
        a(f"ds_read_b128 v[{T2}:{T2+3}], {vLST}")
        for w in range(4): a(f"ds_read_b128 v[{TMP+4*w}:{TMP+4*w+3}], {vLDS} offset:{2048*w}")
        a(f"ds_read_b128 v[{T2+4}:{T2+7}], {vLST} offset:64")
        a(f"s_waitcnt lgkmcnt(3)\nv_or3_b32 v{GA}, v{T2}, v{T2+1}, v{T2+2}")
        a(f"v_pk_add_f32 v[{ACC}:{ACC+1}], v[{TMP}:{TMP+1}], v[{TMP+4}:{TMP+5}]\nv_or_b32 v{GA}, v{GA}, v{T2+3}")
        a(f"v_pk_add_f32 v[{ACC+2}:{ACC+3}], v[{TMP+2}:{TMP+3}], v[{TMP+6}:{TMP+7}]\nv_cmp_ne_u32 vcc, 0, v{GA}\ns_waitcnt lgkmcnt(2)")
        a(f"v_pk_add_f32 v[{ACC}:{ACC+1}], v[{ACC}:{ACC+1}], v[{TMP+8}:{TMP+9}]\nv_pk_add_f32 v[{ACC+2}:{ACC+3}], v[{ACC+2}:{ACC+3}], v[{TMP+10}:{TMP+11}]\ns_waitcnt lgkmcnt(1)")
        a(f"v_pk_add_f32 v[{ACC}:{ACC+1}], v[{ACC}:{ACC+1}], v[{TMP+12}:{TMP+13}]\nv_pk_add_f32 v[{ACC+2}:{ACC+3}], v[{ACC+2}:{ACC+3}], v[{TMP+14}:{TMP+15}]")
        a(f"s_cbranch_vccnz {gen_c}\nglobal_store_dwordx4 {addr}, v[{ACC}:{ACC+3}], {base}{sc}")
        if not half:
            a(f"s_waitcnt lgkmcnt(0)\nv_pk_add_f32 v[{GA}:{GA+1}], v[{T2+4}:{T2+5}], v[{T2+6}:{T2+7}]\nv_add_f32 v{GA}, v{GA}, v{GA+1}")
            a(f"s_mov_b64 exec, 0x2222\n{back_c}:\nglobal_store_dword {vOSP}, v{GA}, {sSM} offset:{OSTAT[li]}{sc}\ns_mov_b64 exec, -1")
        else: a(f"{back_c}:")
        def cgen(fb):
            fb(f"{gen_c}:\ns_waitcnt lgkmcnt(0)")
            fb(f"v_max3_f32 v{GA}, v{T2}, v{T2+1}, v{T2+2}\nv_max_f32 v{GA}, v{GA}, v{T2+3}")
            for w in range(4): fb(f"v_sub_f32 v{T2+w}, v{T2+w}, v{GA}")
            for w in range(4): fb(f"v_exp_f32 v{T2+w}, v{T2+w}")
            for w in range(4):
                for j in range(4):
                    fb(f"v_mul_f32 v{ACC+j}, v{T2}, v{TMP+j}" if w == 0 else f"v_fmac_f32 v{ACC+j}, v{T2+w}, v{TMP+4*w+j}")
            fb(f"global_store_dwordx4 {addr}, v[{ACC}:{ACC+3}], {base}{sc}")
            if not half:
                fb(f"v_mul_f32 v{GA+1}, v{T2}, v{T2+4}")
                for w in range(1, 4): fb(f"v_fmac_f32 v{GA+1}, v{T2+w}, v{T2+4+w}")
                fb(f"v_or_b32 v{GA+1}, 0x80000000, v{GA+1}\nv_cndmask_b32 v{GA}, v{GA}, v{GA+1}, {sODD}\ns_mov_b64 exec, 0x3333")
            fb(f"s_nop 1\ns_branch {back_c}")
        self.ool(cgen)

    def colsum_gather(self, base, issue):
        loads = self.rs_loads(base, PC)
        if issue:
            self.a(loads); return
        a = self.a
        top, chk = self.lab("cs"), self.lab("cschk")
        self.tag(1)
        a(f"s_mov_b32 {sCNT}, {self.c.limit * self.c.outer}\n{chk}:\ns_waitcnt vmcnt(0)")
        self.tagged_sum(PC)
        a(f"s_cbranch_vccnz {top}")
        self.tail.append(f"{top}:\n{loads}\ns_sub_u32 {sCNT}, {sCNT}, 1\ns_cbranch_scc0 {chk}\ns_endpgm\n")
        self.allred(GA, TMP)
        a(f"v_mov_b32 {vCS}, v{GA}")

    def x_head(self):
        a = self.a
        nt3 = 3 * int(bool(self.c.touch)); pw = int(self.c.prew == 1)
        self.zero_acc()
        if 'noq' in self.c.exp: self.stamp(5)
        a(f"v_add_u32 v{T2}, {L_WQ}, {vXALL}\ns_waitcnt lgkmcnt(0)\ns_barrier")
        self.stamp(1)
        if 'noq' in self.c.exp:
            a("s_barrier\ns_barrier"); self.end(0)
        self.WQ = []
        self.lds_weights(self.WQ, WA, f"v{T2}", 0, 8)
        if pw: self.prewrite(sE)
        a(f"s_waitcnt vmcnt({5 + nt3 + pw})")
        self.stats(32)
        a(f"v_lshlrev_b32 {vX}, 16, {vX}\nv_sub_f32 v{GA}, {vX}, {vMU}")
        self.pack(GA)
        self.tag(1)
        for kp in range(8): self.dots(self.WQ, kp)
        a(f"s_waitcnt vmcnt({nt3 + pw})\ns_setprio 0")
        self.stamp(2)

    def x_program(self, slow):
        a = self.a; c = self.c
        sc = " sc1" if slow else ""
        if slow:
            self.clear_all(sc)
            a("s_waitcnt vmcnt(0)")
            self.zero_acc()
            for kp in range(8): self.dots(self.WQ, kp)
        self.tagged_publish(sB[1], sc)
        a(f"s_add_u32 s3, {sE}, 1\ns_lshl_b32 s3, s3, 4\ns_add_u32 s32, s3, 16\ns_or_b32 s3, s3, {sXCC}")
        a(f"v_mov_b32 v{TMP}, {'s32' if slow else 's3'}\ns_lshl_b32 s31, s29, 2\nv_mov_b32 v{TMP+1}, s31")
        a(f"s_mov_b64 exec, 1\nglobal_store_dword v{TMP+1}, v{TMP}, {sSM} offset:{XCC}{sc}\ns_mov_b64 exec, -1")
        self.stamp(3)
        def check0(off):
            a(f"s_waitcnt vmcnt({off})\nv_cmp_ne_u32 s[30:31], s3, v{PX}")
            if slow: a(f"v_and_b32 v{TMP+2}, -16, v{PX}\nv_cmp_ne_u32 vcc, s32, v{TMP+2}\ns_and_b64 s[30:31], s[30:31], vcc")
            self.tagged_sum(PL)
            a("s_or_b64 vcc, vcc, s[30:31]")
        loads = self.rs_loads(sB[1], PL) + f"\nglobal_load_dword v{PX}, {vXC}, {sSM} offset:{XCC} sc1"
        self.zero_acc()
        for kp in range(8): self.dots(self.WQ, kp, sONE)
        self.tagged_publish(sCQ, sc)
        if slow:
            self.zero_acc()
            for kp in range(8): self.dots(self.GU, kp, sONE)
        else:
            self.nops(c.q0[1])
            a(loads)
            a(f"v_lshrrev_b32 v{T2}, 1, v0\nv_lshlrev_b32 v{T2}, 4, v{T2}\nv_and_b32 v{T2+1}, 1, v0\nv_lshl_add_u32 v{T2}, v{T2+1}, 9, v{T2}\nv_add_u32 v{T2}, {L_GU}, v{T2}")
            self.zero_acc()
            a("s_barrier")
            self.GU = []
            self.lds_weights(self.GU, WB, f"v{T2}", 0, 8, lambda kp: self.dots(self.GU, kp, sONE))
        self.tagged_publish(sCG, sc, M56)
        if c.force_slow and not slow: a("s_branch L_Xslow")
        if slow: self.poll("q0", loads, check0, (1, 0, 0))
        else:
            def shadow(n): check0(n + 2); a("s_cbranch_vccz L_q0ok")
            self.poll("q0", loads, check0, (1, 0, 0), shadow, bound=c.limit1, over=lambda fb, ov, top: fb(f"{ov}:\ns_branch L_Xslow"), pace=c.pace)
            a("L_q0ok:")
        GU = self.GU
        self.allred(GA, TMP)
        a(f"v_mul_f32 v{GA}, v{GA}, {vRS}")
        self.stamp(4)
        for li in range(2):
            h = 5 * li
            B = lambda k: HB(h + k)
            st = (lambda i: self.stamp(i)) if li == c.stamp_layer else (lambda i: None)
            self.pack(GA)
            self.pair_store(sSM, AGQ[li], sc)
            self.clear_inbox(B(1), sc)
            st(5)
            def qbody(off):
                a(f"s_waitcnt vmcnt({off})\nv_max3_u32 v{TMP}, v{PX}, v{PX+1}, v{PX+2}\nv_max_u32 v{TMP}, v{TMP}, v{PX+3}\nv_cmp_eq_u32 vcc, -1, v{TMP}")
            if li == 0: a(f"v_mov_b32 v{TMP+1}, {int(slow)}\nv_mov_b32 v{TMP+2}, {L_MODE}\nds_write_b32 v{TMP+2}, v{TMP+1}")
            self.poll("aq", f"global_load_dwordx4 v[{PX}:{PX+3}], {vAQ}, {sSM} offset:{AGQ[li]} sc1", qbody, c.aq if li else c.a0, pace=0 if li else c.pace)
            a(f"ds_write_b128 {vXALL}, v[{PX}:{PX+3}] offset:{L_Q}\ns_waitcnt lgkmcnt(0)\ns_barrier")
            if li == 0:
                if c.prew == 2: self.prewrite(sE)
                if not c.touch: a(f"s_lshl_b32 s30, s29, 8\nv_lshl_add_u32 v{TMP+2}, v0, 7, s30\ns_mov_b64 exec, 3\nglobal_load_dword {vJ}, v{TMP+2}, {sSM} offset:-4096 sc1\ns_mov_b64 exec, -1")
            a("s_barrier")
            st(6)
            self.combine(li, B(2), 0, sc)
            st(7)
            if li == 0:
                if not c.b0_late: a(f"global_load_dwordx4 v[{PM}:{PM+3}], {vINX}, {B(4)} sc1\nglobal_load_dwordx4 v[{PM}:{PM+3}], {vINX}, {B(4)} offset:1024 sc1")
                if not c.cs_late: self.colsum_gather(sCQ, True); self.colsum_gather(sCQ, False)
            for half in range(2):
                k = 2 * li + half
                last = k == 3
                self.zero_acc()
                a(f"s_add_u32 s32, {sE}, {11 + k}")
                self.tag(11 + k)
                a("s_barrier")
                if not last: self.clear_inbox(B(2 + 2 * half), sc) if (li == 0 or half == 0) else None
                self.rs_gather("out", B(3 + 2 * half), 7 if half else 8)
                a(f"v_bfi_b32 v{GA}, {vMASK}, s32, v{GA}\ns_mov_b64 exec, 0xffff\nglobal_atomic_swap {vGPUB}, v{GA}, {sG[k]}\ns_mov_b64 exec, -1")
                if li == 0: self.clear_inbox(B(3 + 2 * half), sc)
                if k == 0 and c.b0_late: a(f"global_load_dwordx4 v[{PM}:{PM+3}], {vINX}, {B(4)} sc1\nglobal_load_dwordx4 v[{PM}:{PM+3}], {vINX}, {B(4)} offset:1024 sc1")
                if k == 0 and c.cs_late: self.colsum_gather(sCQ, True); a("s_barrier")
                st(10 + 4 * half)
                fin = self.lab("fin")
                if last: a(f"s_cmp_eq_u32 s28, 0\ns_cbranch_scc0 {fin}")
                def gbody(off):
                    a(f"""s_waitcnt vmcnt({off})
v_xor_b32 v{GA}, {sT}, v{PL}
v_xor_b32 v{GA+1}, {sT}, v{PL+1}
v_or_b32 v{TMP+1}, v{GA}, v{GA+1}
v_add_f32 v{GA}, v{GA}, v{GA+1}
v_mov_b32 v{TMP}, v{GA}
v_cmp_ne_u32_sdwa vcc, v{TMP+1}, 0 src0_sel:BYTE_0 src1_sel:DWORD
v_permlane32_swap_b32 v{GA}, v{TMP}
v_add_f32 v{GA}, v{GA}, v{TMP}
v_mov_b32 v{TMP}, v{GA}""")
                self.poll("g", f"global_atomic_or v{PL}, {vGIN}, {vZERO}, {sG[k]} sc0\nglobal_atomic_or v{PL+1}, {vGIN}, {vZERO}, {sG[k]} offset:512 sc0", gbody, c.g)
                a(f"v_permlane16_swap_b32 v{GA}, v{TMP}\nv_add_f32 v{GA}, v{GA}, v{TMP}\nv_add_f32 v{GA}, v{GA}, {vX}")
                self.pack(GA)
                if last:
                    self.pair_store(sOUT, 0, "")
                    a(f"s_cmp_eq_u32 s29, 0\ns_cbranch_scc0 {fin}")
                    a(f"s_add_u32 s30, {sE}, {NTAGS}\nv_mov_b32 v{TMP}, s30\ns_mov_b64 exec, 1\nglobal_store_dword {vZERO}, v{TMP}, {sWS} sc1\n{fin}:")
                    self.end(0)
                    break
                if half == 0: st(11)
                self.pair_store(sSM, XALL[k], sc)
                if half == 0:
                    self.gemv(GU, B(4), sc, mask=M56)
                    a(f"s_barrier\nv_lshlrev_b32 {vX}, 16, {vPR}")
                    st(12)
                    if k == 0 and c.cs_late: self.colsum_gather(sCQ, False)
                else:
                    st2 = (lambda i: self.stamp(i)) if c.stamp_layer == 1 else (lambda i: None)
                    self.gemv(self.WQ, HB(6), sc)
                    a(f"v_lshlrev_b32 {vX}, 16, {vPR}")
                    st2(2)
                    self.rs_gather("q", HB(6), ln=1)
                    a(f"v_fma_f32 v{GA}, v{GA}, {vRS}, {vNM}")
                    st2(4)

    def y_head(self):
        a = self.a; c = self.c
        a(f"L_Y:\nv_mov_b32 v{TMP}, {L_MODE}\nds_write_b32 v{TMP}, {vZERO} offset:{L_CNT - L_MODE}\nv_add_u32 v{T2}, {L_WD}, {vXALL}\ns_waitcnt lgkmcnt(0)\ns_barrier")
        self.stamp(1)
        a("s_barrier")
        self.spare = SPARE
        self.WD = []
        self.lds_weights(self.WD, WB, f"v{T2}", 0, 4)
        a(f"s_mov_b32 {sCNT}, {c.limit * c.outer * 4}")
        for grp in range(4):
            l = self.lab("wo")
            a(f"{l}:\nds_read_b32 v{TMP+1}, v{TMP} offset:{L_CNT - L_MODE}\ns_sub_u32 {sCNT}, {sCNT}, 1\ns_cbranch_scc1 L_exit\ns_waitcnt lgkmcnt(0)")
            a(f"v_cmp_gt_u32 vcc, {grp + 1}, v{TMP+1}\ns_cbranch_vccnz {l}")
            for k in range(4 * grp, 4 * grp + 4):
                a(f"global_load_dwordx4 v[{WA+4*k}:{WA+4*k+3}], {vWO}, {sWO}{c.nt}")
                if k < 15: a(f"v_add_u32 {vWO}, 8192, {vWO}")
        self.stamp(2)
        a(f"s_barrier\nds_read_b32 v{TMP+1}, v{TMP}")
        if 'noq' in self.c.exp: a("s_waitcnt vmcnt(0)"); self.end(1)
        a(f"s_waitcnt lgkmcnt(0)\nv_readfirstlane_b32 s3, v{TMP+1}\ns_cmp_eq_u32 s3, 0\ns_cbranch_scc0 L_Yslow")

    def y_program(self, slow):
        a = self.a; c = self.c
        sc = " sc1" if slow else ""
        spare0 = self.spare
        WO = []
        for li in range(2):
            h = 5 * li
            B = lambda k: HB(h + k)
            st = (lambda i: self.stamp(i)) if li == c.stamp_layer else (lambda i: None)
            if li: a("s_barrier")
            a("s_barrier")
            st(6)
            self.combine(li, B(2), 1, sc)
            st(7)
            if li == 0 and not c.cs_late: self.colsum_gather(sCG, True)
            y, z, t, L = PL, GA, TMP, PM + 8
            loads = "".join(f"global_load_dwordx4 v[{L+4*i}:{L+4*i+3}], {vOSI}, {sSM} offset:{OSTAT[li]+128+16*i} sc1\n" for i in range(2))
            loads += self.rs_loads(B(2), PL)
            def shadow(nafter):
                for kp in range(8):
                    a(f"s_waitcnt vmcnt({14 - 2*kp + 1 + (0 if c.cs_late else 8) + nafter})")
                    self.perm_pair(WO, WA, kp)
            onorm, ogen = self.lab("onorm"), self.lab("ogen")
            def obody(off):
                a(f"""s_waitcnt vmcnt({off + 8})
v_pk_add_f32 v[{LA}:{LA+1}], v[{L}:{L+1}], v[{L+2}:{L+3}]
v_pk_add_f32 v[{LA+2}:{LA+3}], v[{L+4}:{L+5}], v[{L+6}:{L+7}]
v_pk_add_f32 v[{LA}:{LA+1}], v[{LA}:{LA+1}], v[{LA+2}:{LA+3}]
v_add_f32 v{LA}, v{LA}, v{LA+1}
s_waitcnt vmcnt({off + 4})
v_pk_add_f32 v[{z}:{z+1}], v[{y}:{y+1}], v[{y+2}:{y+3}]
s_waitcnt vmcnt({off})
v_pk_add_f32 v[{z+2}:{z+3}], v[{y+4}:{y+5}], v[{y+6}:{y+7}]
v_pk_add_f32 v[{z}:{z+1}], v[{z}:{z+1}], v[{z+2}:{z+3}]
v_add_f32 v{z}, v{z}, v{z+1}
v_cmp_u_f32 vcc, v{z}, v{LA}
v_or3_b32 v{t+2}, v{L}, v{L+1}, v{L+2}
v_permlane32_swap_b32 v{z}, v{LA}
v_add_f32 v{z}, v{z}, v{LA}
v_mov_b32 v{t}, v{z}""")
            def oover(fb, ov, top):
                fb(f"{ov}:\ns_sub_u32 {sCN2}, {sCN2}, 1\ns_cbranch_scc1 L_exit\ns_mov_b32 {sCNT}, {c.limit}\ns_waitcnt vmcnt(0)")
                self.umax(t, list(range(y, y + 8)) + list(range(L, L + 8)))
                fb(f"v_cmp_eq_u32 vcc, -1, v{t}\ns_cbranch_vccnz {top}\ns_branch {ogen}")
            self.zero_acc()
            a(f"s_mov_b32 {sCN2}, {c.outer}")
            self.poll("o", loads, obody, c.ro if li else (1, 0, 0), shadow if li == 0 else None, bound=c.limit, over=oover)
            a(f"""v_or3_b32 v{t+2}, v{t+2}, v{L+3}, v{L+4}
v_permlane16_swap_b32 v{z}, v{t}
v_add_f32 v{z}, v{z}, v{t}
v_mov_b32 v{LA}, v{z}
v_or3_b32 v{t+2}, v{t+2}, v{L+5}, v{L+6}
v_or_b32 v{t+2}, v{t+2}, v{L+7}
v_permlane32_swap_b32 v{z}, v{LA}
v_rcp_f32 v{LA}, v{LA}
v_cmp_gt_i32 vcc, 0, v{t+2}
v_mul_f32 v{z}, v{z}, v{LA}""")
            self.pack(GA)
            a(f"s_cbranch_vccnz {ogen}\n{onorm}:")
            def ogen_f(fb):
                mloop = self.lab("omloop")
                fb(f"{ogen}:\ns_waitcnt vmcnt(0)\ns_mov_b32 {sCNT}, {c.limit * c.outer}\n{mloop}:\ns_sub_u32 {sCNT}, {sCNT}, 1\ns_cbranch_scc1 L_exit")
                for i in range(2): fb(f"global_load_dwordx4 v[{PM+4*i}:{PM+4*i+3}], {vOSI}, {sSM} offset:{OSTAT[li]+16*i} sc1")
                fb("s_waitcnt vmcnt(0)")
                for i in range(8): fb(f"v_cmp_gt_i32 vcc, 0, v{L+i}\nv_cndmask_b32 v{T2+i}, 0, v{PM+i}, vcc")
                self.umax(t, range(T2, T2 + 8))
                fb(f"v_cmp_eq_u32 vcc, -1, v{t}\ns_cbranch_vccnz {mloop}")
                fb(f"v_max3_f32 v{t}, v{T2}, v{T2+1}, v{T2+2}\nv_max3_f32 v{t}, v{t}, v{T2+3}, v{T2+4}\nv_max3_f32 v{t}, v{t}, v{T2+5}, v{T2+6}\nv_max_f32 v{t}, v{t}, v{T2+7}")
                self.allred(t, t + 1, "v_max_f32")
                for i in range(8): fb(f"v_sub_f32 v{T2+i}, v{T2+i}, v{t}")
                for i in range(8): fb(f"v_exp_f32 v{T2+i}, v{T2+i}")
                fb(f"v_mul_f32 v{GA}, v{T2}, v{y}\nv_mul_f32_e64 v{LA}, v{T2}, |v{L}|")
                for i in range(1, 8): fb(f"v_fmac_f32 v{GA}, v{T2+i}, v{y+i}\nv_fma_f32 v{LA}, v{T2+i}, |v{L+i}|, v{LA}")
                self.allred(LA, t + 1); self.allred(GA, t + 2)
                fb(f"v_rcp_f32 v{LA}, v{LA}\nv_mul_f32 v{GA}, v{GA}, v{LA}")
                self.pack(GA)
                fb(f"s_nop 1\ns_branch {onorm}")
            self.ool(ogen_f)
            st(8)
            self.gemv(WO, B(3), sc)
            a("s_barrier")
            st(9)
            noffn = self.lab("noffn")
            if li == 0:
                l = self.lab("nocg")
                if c.cs_late: a("s_barrier")
                a(f"s_cmp_lt_u32 s34, 14\ns_cbranch_scc0 {l}")
                if c.cs_late: self.colsum_gather(sCG, True)
                self.colsum_gather(sCG, False)
                a(f"{l}:")
            self.zero_acc()
            a(f"s_barrier\ns_cmp_lt_u32 s34, 14\ns_cbranch_scc0 {noffn}")
            st(12)
            self.rs_gather("gu", B(4), ln=2 * li)
            a(f"v_fma_f32 v{GA}, v{GA}, {vRS}, {vNM}\nv_mul_f32_dpp v{GA}, v{GA}, v{GA} row_ror:12 {DPP}")
            self.pack(GA)
            self.gemv(self.WD, B(5), sc, lanes=[0, 2, 8, 10], addr=(vDN, vDN2))
            a(f"{noffn}:")
            st(13)
            a("s_barrier")
        self.end(1)
        self.spare = spare0

    def build(self):
        a = self.a
        self.prologue()
        self.s_stream()
        self.c_pre()
        self.x_head()
        self.x_program(False); self.flush()
        self.y_head()
        self.y_program(False); self.flush()
        self.s_layers(); self.flush()
        a("L_fast_end:\nL_Yslow:")
        self.y_program(True); self.flush()
        a("L_Xslow:")
        self.x_program(True); self.flush()
        a("L_exit:\ns_endpgm")
        head = f"""; Fused decode step: 2 x (LayerNorm -> GQA sliding-window attention -> residual -> LayerNorm -> bilinear GLU -> residual)
; @launch grid=(256,1,1) block=(384,1,1) lds={LDS_BYTES}
.amdgcn_target "amdgcn-amd-amdhsa--gfx950"
.text
.globl {KNAME}
.p2align 8
.type {KNAME},@function
{KNAME}:
"""
        tail = f"""
.section .rodata,"a"
.p2align 6
.amdhsa_kernel {KNAME}
  .amdhsa_next_free_vgpr 256
  .amdhsa_next_free_sgpr 102
  .amdhsa_accum_offset 256
  .amdhsa_group_segment_fixed_size 0
  .amdhsa_kernarg_size 96
  .amdhsa_user_sgpr_count 2
  .amdhsa_user_sgpr_kernarg_segment_ptr 1
  .amdhsa_system_sgpr_workgroup_id_x 1
  .amdhsa_float_denorm_mode_32 3
.end_amdhsa_kernel
"""
        return head + a.text() + tail


def make(**kw):
    c = Cfg()
    for k, v in kw.items(): setattr(c, k, v)
    return Gen(c).build()

if __name__ == "__main__":
    kw = {}
    for x in sys.argv[2:]:
        k, v = x.split("=", 1); kw[k] = eval(v)
    open(sys.argv[1], "w").write(make(**kw))
```

```python
import sys, struct
from asmlib import Asm

KNAME = "interleave_layers__sliding_block_cached__glu_gated_bilinear__decode_kernel"
def f2u(x): return struct.unpack("<I", struct.pack("<f", x))[0]

class Cfg:
    debug = False
    stamp_layer = 0
    nt = " nt"
    win = 4
    wins = [8,8,8,8, 6,6, 5,5] + [4]*14
    limit = 64
    outer = 2000
    limit1 = 64
    force_slow = False
    rs = (3, 60, 40)
    ro = (3, 60, 40)
    g = (3, 100, 200)
    q0 = (2, 200, 600)
    a0 = (2, 300, 600)
    aq = (4, 60, 40)
    prew = 2
    cs_sc = ''
    pace = 200
    touch = 1
    tpol = ' nt'
    xpol = ''
    pfpol = ''
    exp = ''
    rot = 1
    pf = 6
    b0_late = 1
    cs_late = 1
    tlb = 0
    xd = 40
    bound = 60.0

DPP = "row_mask:0xf bank_mask:0xf"
G_OFF = 0x1000; G_STRIDE = 0x8000
GB_OFF = 0x40000; GB_STRIDE = 0x60000
SM = 0x50000 + 0x1000
AGQ = [-0x1000, -0xC00]; XALL = [-0x800, -0x400, 0x0]; OSTAT = [0x400, 0x800]; XCC = 0xC00
DBG_OFF = 0x400000
NTAGS = 16
L_O = 32768; L_ST = 40960; L_MODE = L_ST + 128; L_CNT = L_ST + 136; L_Q = 41984; L_WQ = L_Q + 1024; L_GU = L_WQ + 16384; L_WD = L_GU + 16384
LDS_BYTES = L_WD + 8192
sX, sK, sV, sWQ, sWO, sWG, sWU, sWD, sOUT, sWS = ("s[4:5]", "s[6:7]", "s[8:9]", "s[10:11]", "s[12:13]",
    "s[16:17]", "s[18:19]", "s[20:21]", "s[22:23]", "s[26:27]")
sB = ["s[36:37]", "s[38:39]", "s[40:41]"]; sCG = "s[42:43]"; sCQ = "s[44:45]"; sSM = "s[46:47]"
sG = ["s[48:49]", "s[50:51]", "s[52:53]", "s[54:55]"]
sE, sT, sCNT, sXCC, sLO, sHI, sONE, sCN2 = "s56", "s57", "s58", "s61", "s62", "s63", "s64", "s65"
sODD = "s[66:67]"; M56 = "s[14:15]"
vMASK, vIN, vPUB, vPUB2, vGIN, vGPUB, vPAIR, vXALL, vOSI, vOSP, vLDS, vLST = ["v%d" % i for i in range(1, 13)]
vX, vCS, vINX, vPR, vMU, vRS, vNM = "v13", "v14", "v15", "v16", "v17", "v18", "v19"
GA = 20; MA = 28; LA = 36; ACC = 40; TMP = 48; T2 = 64; NEG = 72
vZERO, vAQ, vCLR, vXC, vWO, vDN, vDN2, vJ = "v76", "v77", "v78", "v79", "v208", "v209", "v210", "v211"
WA, WB, SPARE = 80, 144, 212
PL = 214; PM = 222; PX = 238; PC = 242; PG = 250


def HB(hop): return sB[1] if hop == 1 else sB[[1, 0, 2][hop % 3]]


class Gen:
    def __init__(self, cfg):
        self.c = cfg; self.a = Asm(); self.tail = []; self.nlab = 0; self.spare = SPARE

    def lab(self, s):
        self.nlab += 1
        return f"L_{s}_{self.nlab}"

    def stamp(self, i):
        if self.c.debug: self.a(f"s_memtime s[{70+2*i}:{71+2*i}]")

    def end(self, slot):
        a = self.a
        if self.c.debug:
            a("s_memtime s[100:101]\ns_waitcnt vmcnt(0) lgkmcnt(0)\ns_mov_b64 exec, -1")
            a(f"s_lshl_b32 s30, s2, 9\ns_add_u32 s30, s30, {DBG_OFF + slot*128}")
            a("v_mov_b32 v20, s30\nv_mov_b32 v24, s68")
            for i in range(1, 16): a(f"s_sub_u32 s31, s{70+2*i}, s70\nv_mov_b32 v{24+i}, s31")
            for i in range(4): a(f"global_store_dwordx4 v20, v[{24+4*i}:{27+4*i}], {sWS} offset:{16*i}")
        a("s_endpgm")

    def tag(self, k): self.a(f"s_add_u32 {sT}, {sE}, {k}\ns_and_b32 {sT}, {sT}, 0x3f\ns_or_b32 {sT}, {sT}, 0x40")

    def nops(self, cyc):
        if cyc >= 192:
            self.a(f"s_sleep {cyc // 64}"); return
        while cyc >= 4:
            k = min(cyc // 4, 16); self.a(f"s_nop {k-1}"); cyc -= 4 * k

    def ool(self, fn):
        fb = Asm(); sv, self.a = self.a, fb
        fn(fb)
        self.a = sv
        self.tail.append(fb.text())

    def flush(self):
        while self.tail: self.a(self.tail.pop(0))

    def poll(self, name, loads, body, par, shadow=None, bound=None, over=None, first=True, pace=0):
        a = self.a
        depth, delay, gap = par
        nl = loads.count("global_")
        top, ov = self.lab(name), self.lab(name + "_over")
        a(f"s_mov_b32 {sCNT}, {bound or self.c.limit * self.c.outer}")
        if first:
            self.nops(delay)
            for k in range(depth - 1):
                a(loads); self.nops(gap)
        if shadow:
            skip = self.lab(name + "_in")
            a(loads); shadow(depth * nl); a(f"s_branch {skip}\n{top}:\n{loads}\n{skip}:")
        else:
            a(f"{top}:\n{loads}")
        a(f"s_sub_u32 {sCNT}, {sCNT}, 1\ns_cbranch_scc1 {ov if over else 'L_exit'}")
        self.nops(pace)
        body((depth - 1) * nl)
        a(f"s_cbranch_vccnz {top}")
        if over: self.ool(lambda fb: over(fb, ov, top))

    def allred(self, r, t, op="v_add_f32"):
        self.a(f"""v_mov_b32 v{t}, v{r}
v_permlane32_swap_b32 v{r}, v{t}
{op} v{r}, v{r}, v{t}
v_mov_b32 v{t}, v{r}
v_permlane16_swap_b32 v{r}, v{t}
{op} v{r}, v{r}, v{t}""")

    def rs_loads(self, base, g, n=8):
        return "\n".join(f"global_load_dword v{g+i}, {vIN}, {base} offset:{256*i} sc1" for i in range(n))

    def umax(self, t, regs):
        regs = list(regs)
        self.a(f"v_max3_u32 v{t}, v{regs[0]}, v{regs[1]}, v{regs[2]}")
        for i in range(3, len(regs), 2): self.a(f"v_max3_u32 v{t}, v{t}, v{regs[i]}, v{regs[min(i+1, len(regs)-1)]}")

    def tagged_sum(self, src, n=8):
        a = self.a
        for i in range(n): a(f"v_xor_b32 v{MA+i}, {sT}, v{src+i}")
        a(f"v_or3_b32 v{TMP}, v{MA}, v{MA+1}, v{MA+2}\nv_or3_b32 v{TMP}, v{TMP}, v{MA+3}, v{MA+4}\nv_or3_b32 v{TMP}, v{TMP}, v{MA+5}, v{MA+6}\nv_or_b32 v{TMP}, v{TMP}, v{MA+7}")
        a(f"v_cmp_ne_u32_sdwa vcc, v{TMP}, 0 src0_sel:BYTE_0 src1_sel:DWORD")
        a(f"v_pk_add_f32 v[{GA}:{GA+1}], v[{MA}:{MA+1}], v[{MA+2}:{MA+3}]\nv_pk_add_f32 v[{GA+2}:{GA+3}], v[{MA+4}:{MA+5}], v[{MA+6}:{MA+7}]")
        a(f"v_pk_add_f32 v[{GA}:{GA+1}], v[{GA}:{GA+1}], v[{GA+2}:{GA+3}]\nv_add_f32 v{GA}, v{GA}, v{GA+1}")

    def rs_gather(self, name, base, n=8, post=None, par=None, ln=None):
        z, t, y = GA, TMP, PL
        done = self.lab(name + "_done")
        def reduce(off, test):
            a = self.a
            a(f"s_waitcnt vmcnt({off + n - 4})\nv_pk_add_f32 v[{z}:{z+1}], v[{y}:{y+1}], v[{y+2}:{y+3}]\ns_waitcnt vmcnt({off})")
            if n == 8: a(f"v_pk_add_f32 v[{z+2}:{z+3}], v[{y+4}:{y+5}], v[{y+6}:{y+7}]\nv_pk_add_f32 v[{z}:{z+1}], v[{z}:{z+1}], v[{z+2}:{z+3}]")
            else: a(f"v_pk_add_f32 v[{z}:{z+1}], v[{z}:{z+1}], v[{y+4}:{y+5}]\nv_add_f32 v{z}, v{z}, v{y+6}")
            a(f"v_add_f32 v{z}, v{z}, v{z+1}\nv_mov_b32 v{t}, v{z}")
            if test: a(f"v_cmp_u_f32 vcc, v{z}, v{z}")
            a(f"v_permlane32_swap_b32 v{z}, v{t}\nv_add_f32 v{z}, v{z}, v{t}\nv_mov_b32 v{t}, v{z}")
        def over(fb, ov, top):
            fb(f"{ov}:\ns_sub_u32 {sCN2}, {sCN2}, 1\ns_cbranch_scc1 L_exit\ns_mov_b32 {sCNT}, {self.c.limit}\ns_waitcnt vmcnt(0)")
            self.umax(t, range(y, y + n))
            fb(f"v_cmp_eq_u32 vcc, -1, v{t}\ns_cbranch_vccnz {top}")
            reduce(0, False)
            fb(f"s_branch {done}")
        loads = self.rs_loads(base, PL, n)
        a = self.a
        a(f"s_mov_b32 {sCN2}, {self.c.outer}")
        if ln is None:
            self.poll(name, loads, lambda off: reduce(off, True), par or self.c.rs, bound=self.c.limit, over=over)
        else:
            xl = f"global_load_dwordx4 v[{PX}:{PX+3}], {vXALL}, {sSM} offset:{XALL[ln]} sc1"
            xchk = f"v_max3_u32 v{TMP}, v{PX}, v{PX+1}, v{PX+2}\nv_max_u32 v{TMP}, v{TMP}, v{PX+3}\nv_cmp_eq_u32 vcc, -1, v{TMP}"
            xr, xok = self.lab("xretry"), self.lab("xok")
            a(f"{xl}\ns_mov_b32 {sCNT}, {self.c.limit * self.c.outer}")
            self.nops(self.c.xd)
            a(f"{loads}\ns_waitcnt vmcnt({n})\n{xchk}\ns_cbranch_vccnz {xr}\n{xok}:")
            self.tail.append(f"{xr}:\n{xl}\n{xr}_b:\n{xl}\ns_sub_u32 {sCNT}, {sCNT}, 1\ns_cbranch_scc1 L_exit\ns_waitcnt vmcnt(1)\n{xchk}\ns_cbranch_vccnz {xr}_b\n{loads}\ns_branch {xok}\n")
            self.stats(PX, lambda: a(loads))
            a(f"v_mul_f32 {vNM}, {vMU}, {vRS}\nv_mul_f32_e64 {vNM}, -{vNM}, {vCS}")
            self.poll(name, loads, lambda off: reduce(off, True), (3, 0, 0), bound=self.c.limit, over=over, first=False)
        a(f"{done}:\nv_permlane16_swap_b32 v{z}, v{t}\nv_add_f32 v{z}, v{z}, v{t}")

    def pack(self, r):
        self.a(f"v_mov_b32_dpp v{TMP}, v{r} quad_perm:[1,0,3,2] {DPP}\nv_cvt_pk_bf16_f32 {vPR}, v{r}, v{TMP}")

    def perm_pair(self, W, base, kp):
        W.append([])
        for u in range(4):
            lo = base + 8 * kp + u; hi = lo + 4; s = self.spare
            self.a(f"v_perm_b32 v{s}, v{hi}, v{lo}, {sLO}\nv_perm_b32 v{hi}, v{hi}, v{lo}, {sHI}")
            W[kp] += [s, hi]; self.spare = lo

    def zero_acc(self):
        for j in range(0, 8, 2): self.a(f"v_mov_b64 v[{ACC+j}:{ACC+j+1}], 0")

    def dots(self, W, kp, src=None, lane=None):
        for j in range(8):
            if src: self.a(f"v_dot2c_f32_bf16 v{ACC+j}, {src}, v{W[kp][j]}")
            else: self.a(f"v_dot2c_f32_bf16_dpp v{ACC+j}, {vPR}, v{W[kp][j]} row_newbcast:{2*kp if lane is None else lane} {DPP}")

    def gemv(self, W, base, sc, lanes=None, addr=(vPUB, vPUB2), mask=None):
        a = self.a
        n = len(W)
        d = lambda kp, j: a(f"v_dot2c_f32_bf16_dpp v{ACC+j}, {vPR}, v{W[kp][j]} row_newbcast:{2*kp if lanes is None else lanes[kp]} {DPP}")
        def store(t):
            if mask: a(f"s_mov_b64 exec, {mask}")
            a(f"global_store_dwordx4 {addr[t]}, v[{ACC+4*t}:{ACC+4*t+3}], {base}{sc}")
            if mask: a("s_mov_b64 exec, -1")
        for kp in range(n):
            for j in range(4): d(kp, j)
        for kp in range(n):
            for j in range(4, 8): d(kp, j)
            if kp == 0: store(0)
        store(1)

    def tagged_publish(self, base, sc, mask=None):
        a = self.a
        for j in range(8): a(f"v_bfi_b32 v{ACC+j}, {vMASK}, {sT}, v{ACC+j}")
        if mask: a(f"s_mov_b64 exec, {mask}")
        a(f"global_store_dwordx4 {vPUB}, v[{ACC}:{ACC+3}], {base}{sc}\nglobal_store_dwordx4 {vPUB2}, v[{ACC+4}:{ACC+7}], {base}{sc}")
        if mask: a("s_mov_b64 exec, -1")

    def clear_inbox(self, base, sc):
        self.a(f"global_store_dwordx4 {vINX}, v[{NEG}:{NEG+3}], {base}{sc}\nglobal_store_dwordx4 {vINX}, v[{NEG}:{NEG+3}], {base} offset:1024{sc}")

    def stats(self, x, hook=None):
        a = self.a
        p, q = TMP, TMP + 1
        a(f"v_mov_b32 v{p}, 0\nv_mov_b32 v{q}, 0")
        for i in range(4): a(f"v_dot2c_f32_bf16 v{p}, {sONE}, v{x+i}\nv_dot2c_f32_bf16 v{q}, v{x+i}, v{x+i}")
        a(f"v_mov_b32 v{q+1}, 0x{f2u(1/512.):08x}\nv_mov_b32 v{q+2}, 0x{f2u(1e-5):08x}")
        a(f"v_permlane32_swap_b32 v{p}, v{q}\nv_add_f32 v{p}, v{p}, v{q}\nv_mov_b32 v{q}, v{p}")
        a(f"v_permlane16_swap_b32 v{p}, v{q}\nv_add_f32 v{p}, v{p}, v{q}")
        if hook: hook()
        for r in (8, 4, 2, 1): a(f"v_add_f32_dpp v{p}, v{p}, v{p} row_ror:{r} {DPP}")
        a(f"v_readlane_b32 s30, v{p}, 0\nv_readlane_b32 s31, v{p}, 32")
        a(f"v_mul_f32 {vMU}, s30, v{q+1}\nv_fma_f32 {vRS}, s31, v{q+1}, v{q+2}")
        a(f"v_fma_f32 {vRS}, -{vMU}, {vMU}, {vRS}\nv_max_f32 {vRS}, {vRS}, v{q+2}\nv_rsq_f32 {vRS}, {vRS}")

    def pair_store(self, base, off, sc):
        self.a(f"s_mov_b64 exec, 0x5555\nglobal_store_dword {vPAIR}, {vPR}, {base} offset:{off}{sc}\ns_mov_b64 exec, -1")

    def lds_weights(self, W, base, vaddr, off, npair, use=None):
        a = self.a
        rd = lambda k: a(f"ds_read_b128 v[{base+4*k}:{base+4*k+3}], {vaddr} offset:{off+1024*k}")
        for k in range(min(8, 2 * npair)): rd(k)
        for kp in range(npair):
            if 2 * kp + 8 < 2 * npair:
                rd(2 * kp + 8); rd(2 * kp + 9); out = 8
            else: out = 2 * npair - 2 * kp - 2
            a(f"s_waitcnt lgkmcnt({out})")
            self.perm_pair(W, base, kp)
            if use: use(kp)

    def prologue(self):
        a = self.a; c = self.c
        if c.debug: a("s_memtime s[70:71]\ns_memrealtime s[68:69]")
        a(f"""s_load_dwordx16 s[4:19], s[0:1], 0
s_load_dwordx8 s[20:27], s[0:1], 64
s_cmpk_ge_u32 s2, 0x100
s_cbranch_scc1 L_exit
v_lshrrev_b32 v1, 6, v0
v_and_b32 v0, 63, v0
s_lshr_b32 s29, s2, 3
v_readfirstlane_b32 s33, v1
s_and_b32 s28, s2, 7
s_and_b32 s34, s29, 15
s_lshr_b32 s35, s29, 4
s_lshl_b32 s60, s34, 5
s_lshl2_add_u32 s60, s35, s60
v_lshlrev_b32 v15, 4, v0
s_cmp_ge_u32 s33, 4
s_cbranch_scc1 L_C0
s_lshl3_add_u32 s32, s33, s60
s_lshl3_add_u32 s30, s32, s28
s_lshl_b32 s30, s30, 10
v_add_u32 v1, s30, v15
s_lshl_b32 s36, s33, 12
s_add_u32 m0, s36, {L_WQ}
s_movk_i32 s3, 0x2000
s_waitcnt lgkmcnt(0)""")
        for i in range(4):
            a(f"global_load_lds_dwordx4 v1, {sWQ}{c.nt}")
            if i < 3: a("s_addk_i32 m0, 0x400\nv_add_u32 v1, s3, v1")
        a(f"""s_branch L_S1
L_C0:
s_cmp_eq_u32 s33, 4
s_cbranch_scc1 L_X0
s_getpc_b64 s[30:31]
s_mulk_i32 s29, {128 * c.pf}
v_lshl_add_u32 v2, v0, 7, s29
s_mov_b64 exec, {(1 << c.pf) - 1}
global_load_dword {vJ}, v2, s[30:31]{c.pfpol}
s_branch L_C
L_X0:
s_setprio 3
s_waitcnt lgkmcnt(0)
global_load_dwordx4 v[32:35], v15, {sX}{c.xpol}
s_branch L_C
L_early_end:""")

    def consts(self):
        self.a("s_mov_b32 s62, 0x05040100\ns_mov_b32 s63, 0x07060302\ns_mov_b32 s64, 0x3f803f80")

    KF, VR, VF, Q, D, P, ON, O, OL, X, T = 16, 48, 80, 112, 128, 136, 140, 144, 176, 184, 192

    def s_stream(self):
        a = self.a; c = self.c
        KF, VR, ON, T = self.KF, self.VR, self.ON, self.T
        a(f"""L_S1:
s_mul_i32 s30, s32, 3584
s_mul_i32 s31, s28, 448
s_add_u32 s30, s30, s31
v_and_b32 v6, 31, v0
v_lshl_add_u32 v184, v6, 4, s30
v_cmp_gt_u32 vcc, 32, v0""")
        self.consts()
        n = [4]
        landed = [-1]
        wins = c.wins
        def throttle():
            w = wins[n[0] - 4]
            if n[0] - w > landed[0]:
                for mark in (3, 9):
                    if landed[0] < mark <= n[0] - w:
                        a(f"s_waitcnt vmcnt({n[0] - 1 - mark})")
                        if 'noq' in c.exp and mark == 3: self.stamp(14)
                        a("s_barrier")
                        if mark == 3: self.stamp(1)
                        landed[0] = mark
                if n[0] - w > landed[0]: a(f"s_waitcnt vmcnt({w-1})"); landed[0] = n[0] - w
            if 'noq' in c.exp and n[0] in (4, 8, 12, 16, 20): self.stamp({4: 9, 8: 10, 12: 11, 16: 12, 20: 13}[n[0]])
            n[0] += 1
        a(f"""v_mov_b32 v186, s18
v_mov_b32 v187, s19
v_mov_b32 v188, s16
v_mov_b32 v189, s17
v_cndmask_b32 v186, v186, v188, vcc
v_cndmask_b32 v187, v187, v189, vcc
v_mov_b32 v185, 0
s_mov_b32 s14, 3584
s_mov_b32 s15, 0
v_lshl_add_u64 v[184:185], v[184:185], 0, v[186:187]
s_add_u32 m0, s36, {L_GU}
s_mov_b32 exec_lo, 0x0fffffff
s_mov_b32 exec_hi, 0x0fffffff""")
        for i in range(4):
            throttle()
            a(f"global_load_lds_dwordx4 v[184:185], off{c.nt}")
            if i < 3: a(f"s_add_u32 m0, s36, {L_GU+1024*(i+1)}\nv_lshl_add_u64 v[184:185], v[184:185], 0, s[14:15]")
        a(f"""s_mov_b64 exec, -1
s_min_u32 s30, s34, 13
s_lshl_b32 s30, s30, 4
s_mul_i32 s31, s28, 224
s_add_u32 s30, s30, s31
s_lshl_b32 s31, s35, 2
s_add_u32 s30, s30, s31
s_lshr_b32 s31, s33, 1
s_lshl_b32 s31, s31, 3
s_add_u32 s30, s30, s31
s_and_b32 s31, s33, 1
s_lshl_b32 s31, s31, 1
s_add_u32 s30, s30, s31
s_lshl_b32 s30, s30, 10
v_add_u32 v1, s30, v15
s_lshl_b32 s31, s33, 11
s_add_u32 m0, s31, {L_WD}""")
        for i in range(2):
            throttle()
            a(f"global_load_lds_dwordx4 v1, {sWD} offset:{1024*i}{c.nt}")
        a("""s_lshl_b32 s30, s28, 24
s_lshl_b32 s31, s29, 15
s_add_u32 s30, s30, s31
s_add_u32 s30, s30, 0xF00000
s_add_u32 s6, s6, s30
s_addc_u32 s7, s7, 0
s_add_u32 s8, s8, s30
s_addc_u32 s9, s9, 0
s_lshl_b32 s36, s33, 13
s_mov_b32 m0, s36
v_and_b32 v6, 15, v0
v_lshrrev_b32 v7, 4, v0
v_xor_b32 v8, v6, v7
v_lshlrev_b32 v8, 4, v8
v_lshl_add_u32 v9, v7, 8, v8
v_add_u32 v9, s36, v9""")
        if c.rot: a("s_lshl_b32 s37, s29, 2\ns_and_b32 s30, s28, 3\ns_or_b32 s37, s37, s30\ns_lshl_b32 s37, s37, 8\nv_xor_b32 v9, s37, v9")
        else: a("s_mov_b32 s37, 0")
        for i in range(8):
            if i: a(f"s_add_u32 m0, s36, {1024*i}\nv_xor_b32 v1, {64*(i&3) + 1024*i}, v9")
            throttle()
            a(f"global_load_lds_dwordx4 {'v1' if i else 'v9'}, {sK}{c.nt}")
            if i == 0:
                a("v_lshlrev_b32 v10, 4, v6\nv_lshl_add_u32 v10, v7, 10, v10\nv_add_u32 v10, s36, v10\nv_xor_b32 v10, s37, v10")
                a("v_lshl_add_u32 v11, v6, 8, v8\nv_add_u32 v11, s36, v11")
                for j in range(1, 4): a(f"v_xor_b32 v{11+j}, {64*j}, v11")
                a("v_lshrrev_b32 v2, 2, v6\nv_lshlrev_b32 v5, 4, v2\nv_lshlrev_b32 v2, 8, v2\nv_lshl_add_u32 v2, v7, 4, v2")
                a(f"s_lshl_b32 s31, s33, 2\ns_add_u32 s31, s31, {L_ST}\nv_add_u32 v5, s31, v5")
                a(f"v_lshlrev_b32 v3, 4, v7\nv_add_u32 v3, s31, v3")
                a(f"s_lshl_b32 s31, s33, 11\ns_add_u32 s31, s31, {L_O}\nv_lshlrev_b32 v4, 2, v0\nv_add_u32 v4, s31, v4")
                for k in range(4): a(f"v_mov_b32 v{ON+k}, {sONE}")
                cs = f2u(128**-0.5*1.4426950408889634)
                a(f"v_mov_b32 v{T+6}, 0x{cs:08x}\nv_mov_b32 v{T+7}, 0x{cs:08x}\nv_mov_b32 v{T+5}, 0x{f2u(c.bound):08x}")
                a(f"v_add_u32 v2, {L_Q}, v2\nv_lshrrev_b32 v{T}, 2, v6")
                for j in range(4): a(f"v_add_u32 v{T+1}, {j}, v{T}\nv_and_b32 v{T+1}, 3, v{T+1}\nv_lshl_add_u32 v{T+8+j}, v{T+1}, 6, v2")
        for i in range(8):
            if i: a(f"v_xor_b32 v1, {(i>>2)*4096+(i&3)*256}, v10")
            throttle()
            a(f"global_load_dwordx4 v[{VR+4*i}:{VR+4*i+3}], {'v1' if i else 'v10'}, {sV}{c.nt}")
        a(f"v_mov_b32 v{T}, {L_CNT}\nv_mov_b32 v{T+1}, 1\ns_mov_b64 exec, 1\nds_add_u32 v{T}, v{T+1}\ns_mov_b64 exec, -1")
        assert landed[0] >= 17
        for t in range(2):
            for j in range(4): a(f"ds_read_b128 v[{KF+16*t+4*j}:{KF+16*t+4*j+3}], v{11+j} offset:{4096*t}")
        self.stamp(2)
        a("s_branch L_S2")

    def s_layers(self):
        a = self.a; c = self.c
        KF, VR, VF, Q, D, P, ON, O, OL, X, T = self.KF, self.VR, self.VF, self.Q, self.D, self.P, self.ON, self.O, self.OL, self.X, self.T
        a("L_S2:")
        for li in range(2):
            if li: a("s_barrier\ns_barrier\ns_barrier" + ("\ns_barrier" if c.cs_late else ""))
            a(f"v_mov_b32 v{T+4}, 0\ns_waitcnt lgkmcnt(0)\ns_barrier")
            self.stamp(3 + 6 * li)
            if 'noq' in c.exp and li == 0:
                a("s_waitcnt vmcnt(0)"); self.stamp(4)
                l = self.lab("x"); a(f"s_cmp_eq_u32 s33, 0\ns_cbranch_scc1 {l}\ns_endpgm\n{l}:"); self.end(2)
            for j in range(4): a(f"ds_read_b128 v[{Q+4*j}:{Q+4*j+3}], v{T+8+j}")
            a(f"ds_write_b32 v5, v{T+4}")
            for j in range(4):
                a(f"s_waitcnt lgkmcnt({4 - j})")
                for t in range(2):
                    cc = f"v[{D+4*t}:{D+4*t+3}]"
                    a(f"v_mfma_f32_16x16x32_bf16 {cc}, v[{KF+16*t+4*j}:{KF+16*t+4*j+3}], v[{Q+4*j}:{Q+4*j+3}], {cc if j else 0}")
            self.stamp(5 + 6 * li)
            for i in range(0, 8, 2): a(f"v_pk_mul_f32 v[{X+i}:{X+i+1}], v[{D+i}:{D+i+1}], v[{T+6}:{T+7}]")
            for i in range(8): a(f"v_exp_f32 v{D+i}, v{X+i}")
            for u in range(4): a(f"v_cvt_pk_bf16_f32 v{P+u}, v{D+2*u}, v{D+2*u+1}")
            self.stamp(6 + 6 * li)
            if li == 0:
                for u in range(4):
                    a(f"s_waitcnt vmcnt({6 - 2*u})")
                    for up in range(4):
                        for b in range(2):
                            a(f"v_perm_b32 v{VF+4*(2*up+b)+u}, v{VR+4*(2*u+1)+up}, v{VR+4*(2*u)+up}, {sHI if b else sLO}")
                self.stamp(4)
            lfb, lback = self.lab("fallback"), self.lab("pv")
            a(f"{lback}:")
            for e in range(8):
                a(f"v_mfma_f32_16x16x32_bf16 v[{O+4*e}:{O+4*e+3}], v[{P}:{P+3}], v[{VF+4*e}:{VF+4*e+3}], 0")
                if e == 0: a(f"v_max3_f32 v{T}, v{X}, v{X+1}, v{X+2}\nv_max3_f32 v{T+1}, v{X+3}, v{X+4}, v{X+5}")
                if e == 1: a(f"v_max3_f32 v{T}, v{T}, v{X+6}, v{X+7}\nv_max_f32 v{T}, v{T}, v{T+1}")
                if e == 2: a(f"v_cmp_gt_f32 vcc, |v{T}|, v{T+5}")
                if e == 3: a(f"v_mfma_f32_16x16x32_bf16 v[{OL}:{OL+3}], v[{P}:{P+3}], v[{ON}:{ON+3}], 0\ns_cbranch_vccnz {lfb}")
                if e == 5: a(f"ds_write2st64_b32 v4, v{O}, v{O+4} offset0:0 offset1:1")
                if e == 7: a(f"ds_write2st64_b32 v4, v{O+8}, v{O+12} offset0:2 offset1:3\nds_write_b32 v3, v{OL} offset:64")
            for e in range(4, 8, 2): a(f"ds_write2st64_b32 v4, v{O+4*e}, v{O+4*e+4} offset0:{e} offset1:{e+1}")
            a("s_waitcnt lgkmcnt(0)")
            self.stamp(7 + 6 * li)
            a("s_barrier")
            def fbk(fb):
                fb(f"{lfb}:\ns_nop 7")
                self.allred(T, T + 1, "v_max_f32")
                for i in range(8): fb(f"v_sub_f32 v{X+i}, v{X+i}, v{T}")
                for i in range(8): fb(f"v_exp_f32 v{D+i}, v{X+i}\nv_mov_b32 v{X+i}, 0")
                for u in range(4): fb(f"v_cvt_pk_bf16_f32 v{P+u}, v{D+2*u}, v{D+2*u+1}")
                fb(f"ds_write_b32 v5, v{T}\ns_nop 7\ns_branch {lback}")
            self.ool(fbk)
        if c.debug:
            l = self.lab("sdone")
            a(f"s_cmp_eq_u32 s33, 0\ns_cbranch_scc1 {l}\ns_endpgm\n{l}:")
        self.end(2)

    def clear_all(self, sc):
        a = self.a
        a(f"s_mov_b32 exec_hi, 0x00ffffff\nglobal_store_dword {vCLR}, v{NEG}, {sSM} offset:{AGQ[0]}{sc}\ns_mov_b64 exec, -1")
        self.clear_inbox(sB[0], sc); self.clear_inbox(sB[2], sc)

    def c_pre(self):
        a = self.a; c = self.c
        a(f"""L_C:
s_mov_b64 exec, -1
s_lshr_b32 s29, s2, 3
s_waitcnt lgkmcnt(0)
s_load_dword {sE}, {sWS}, 0
s_mul_i32 s59, s28, {GB_STRIDE}
s_add_u32 s59, s59, {GB_OFF}
v_and_b32 v20, 15, v0
v_lshrrev_b32 v21, 4, v0
v_lshlrev_b32 v22, 2, v0
v_lshlrev_b32 {vXALL}, 4, v0
v_lshrrev_b32 v23, 2, v20
v_and_b32 v24, 3, v0
v_lshl_add_u32 v28, v23, 3, v24
v_add_u32 v28, s60, v28
v_lshlrev_b32 {vPAIR}, 1, v28
v_mov_b32 {vZERO}, 0
s_lshl_b32 s30, s29, 11
v_add_u32 {vINX}, s30, {vXALL}
v_add_u32 {vIN}, s30, v22
v_mov_b64 v[{NEG}:{NEG+1}], -1
v_mov_b64 v[{NEG+2}:{NEG+3}], -1
s_cmp_eq_u32 s33, 4
s_cbranch_scc0 L_Ypre""")
        a(f"""v_and_b32 v31, 7, v0
v_lshrrev_b32 v25, 1, v31
v_and_b32 v26, 1, v0
v_lshlrev_b32 v25, 4, v25
v_lshl_add_u32 v25, v26, 2, v25
s_lshl_b32 s31, s60, 1
v_add_u32 v25, s31, v25
s_and_b32 s31, s29, 3
s_lshl_b32 s31, s31, 5
s_lshr_b32 s32, s29, 2
s_lshl_b32 s32, s32, 2
s_add_u32 s31, s31, s32
v_lshl_add_u32 v27, v31, 7, s31
v_cmp_gt_u32 vcc, 40, v0
v_lshrrev_b32 {vCLR}, 3, v0
v_lshlrev_b32 {vCLR}, 10, {vCLR}
v_cndmask_b32 v25, v27, v25, vcc
v_add_u32 {vCLR}, {vCLR}, v25
global_load_ushort {vX}, {vPAIR}, {sX}{c.xpol}""")
        assert OSTAT[0] - AGQ[0] == 5 * 1024 and OSTAT[1] - OSTAT[0] == 1024
        self.bases()
        self.clear_all("")
        if c.touch:
            a(f"global_load_dwordx4 v[{PM}:{PM+3}], {vINX}, {sB[1]}{c.tpol}\nglobal_load_dwordx4 v[{PM}:{PM+3}], {vINX}, {sB[1]} offset:1024{c.tpol}")
            a(f"s_lshl_b32 s30, s29, 8\nv_lshl_add_u32 v29, v0, 7, s30\ns_mov_b64 exec, 3\nglobal_load_dword {vJ}, v29, {sSM} offset:-4096{c.tpol}\ns_mov_b64 exec, -1")
        a(f"s_branch L_Cjoin\nL_Ypre:\nv_mov_b32 {vCLR}, 0")
        if c.tlb:
            nl = c.tlb
            a(f"""s_lshl_b32 s30, s28, 24
s_lshl_b32 s31, s29, 15
s_add_u32 s30, s30, s31
s_add_u32 s30, s30, 0xF00000
v_lshl_add_u32 v25, v0, 13, s30
s_mul_i32 s30, s60, 3584
s_mul_i32 s31, s28, 448
s_add_u32 s30, s30, s31
v_mul_u32_u24 v26, 28672, v0
v_add_u32 v26, s30, v26
s_min_u32 s30, s34, 13
s_lshl_b32 s30, s30, 4
s_mul_i32 s31, s28, 224
s_add_u32 s30, s30, s31
s_lshl_b32 s30, s30, 10
v_lshl_add_u32 v27, v0, 12, s30
s_and_b32 s31, s29, 3
s_lshl_b32 s31, s31, 7
s_lshr_b32 s32, s29, 2
s_add_u32 s31, s31, s32
s_lshl_b32 s32, s28, 9
s_add_u32 s31, s31, s32
s_lshl_b32 s31, s31, 10
v_lshl_add_u32 v29, v0, 15, s31
s_mov_b64 exec, {(1 << nl) - 1}
global_load_dword {vJ}, v26, {sWG} nt
global_load_dword {vJ}, v26, {sWU} nt
global_load_dword {vJ}, v27, {sWD} nt
global_load_dword {vJ}, v25, {sK} nt
global_load_dword {vJ}, v25, {sV} nt
global_load_dword {vJ}, v29, {sWO} nt
s_mov_b64 exec, -1""")
        a(f"global_load_ushort {vJ}, {vPAIR}, {sOUT}")
        self.bases()
        a("L_Cjoin:")
        self.consts()
        a(f"""s_getreg_b32 s61, hwreg(HW_REG_XCC_ID, 0, 4)
v_mov_b32 {vMASK}, 0xff
s_lshl_b32 s31, s29, 10
v_lshl_add_u32 {vGIN}, v20, 2, s31
v_lshl_add_u32 {vGIN}, v21, 7, {vGIN}
s_lshl_b32 s32, s28, 7
s_add_u32 s31, s31, s32
v_lshl_add_u32 {vGPUB}, v20, 2, s31
v_lshlrev_b32 {vAQ}, 2, v21
v_sub_u32 {vAQ}, v0, {vAQ}
v_and_b32 {vAQ}, 15, {vAQ}
v_lshl_add_u32 {vAQ}, v21, 4, {vAQ}
v_lshlrev_b32 {vAQ}, 4, {vAQ}
v_lshrrev_b32 v25, 2, v0
v_lshlrev_b32 v25, 11, v25
v_lshl_add_u32 v25, v24, 4, v25
s_lshl_b32 s31, s29, 6
v_add_u32 {vPUB}, s31, v25
v_add_u32 {vPUB2}, 0x8000, {vPUB}
s_mul_i32 s31, s35, 14
s_add_u32 s31, s31, s34
s_lshl_b32 s31, s31, 6
v_add_u32 {vDN}, s31, v25
v_add_u32 {vDN2}, 0x8000, {vDN}
s_and_b32 s31, s29, 3
s_lshl_b32 s32, s31, 8
v_lshl_add_u32 {vOSI}, v21, 5, s32
s_lshl_b32 s31, s31, 5
s_lshr_b32 s32, s29, 2
s_lshl_b32 s32, s32, 2
s_add_u32 s31, s31, s32
v_and_b32 v26, 1, v0
v_and_b32 v27, 3, v23
v_lshlrev_b32 {vOSP}, 8, v27
v_lshl_add_u32 {vOSP}, v26, 7, {vOSP}
v_add_u32 {vOSP}, s31, {vOSP}
s_sub_u32 s31, s33, 4
s_lshl_b32 s31, s31, 10
s_add_u32 s31, s31, {L_O}
v_add_u32 {vLDS}, s31, {vXALL}
v_lshlrev_b32 {vLST}, 4, v27
v_add_u32 {vLST}, {L_ST}, {vLST}
s_mov_b32 s66, 0xaaaaaaaa
s_mov_b32 s67, 0xaaaaaaaa
s_mov_b32 s14, -1
s_mov_b32 s15, 0x00ffffff
s_and_b32 s31, s29, 3
s_lshl_b32 s31, s31, 7
s_lshr_b32 s32, s29, 2
s_add_u32 s31, s31, s32
s_lshl_b32 s32, s28, 9
s_add_u32 s31, s31, s32
s_lshl_b32 s31, s31, 10
v_add_u32 {vWO}, s31, {vXALL}
v_and_b32 {vXC}, 31, v0
v_lshlrev_b32 {vXC}, 2, {vXC}
s_cmp_eq_u32 s33, 4
s_cbranch_scc0 L_Y""")

    def prewrite(self, val):
        self.a(f"v_lshrrev_b32 v{TMP}, 4, v0\nv_lshlrev_b32 v{TMP}, 15, v{TMP}\nv_add_u32 v{TMP}, v{TMP}, {vGPUB}\nv_mov_b32 v{TMP+1}, {val}")
        self.a(f"global_atomic_swap v{TMP}, v{TMP+1}, {sG[0]}")

    def bases(self):
        a = self.a
        a("s_add_u32 s36, s26, s59\ns_addc_u32 s37, s27, 0")
        a(f"s_add_u32 s46, s36, {SM}\ns_addc_u32 s47, s37, 0")
        for i in range(1, 5): a(f"s_add_u32 s{36+2*i}, s36, {0x10000*i}\ns_addc_u32 s{37+2*i}, s37, 0")
        for k in range(4): a(f"s_add_u32 s{48+2*k}, s26, {G_OFF+G_STRIDE*k}\ns_addc_u32 s{49+2*k}, s27, 0")

    def combine(self, li, base, half, sc):
        a = self.a
        gen_c, back_c = self.lab("cgen"), self.lab("cback")
        addr = vPUB2 if half else vPUB
        a(f"ds_read_b128 v[{T2}:{T2+3}], {vLST}")
        for w in range(4): a(f"ds_read_b128 v[{TMP+4*w}:{TMP+4*w+3}], {vLDS} offset:{2048*w}")
        a(f"ds_read_b128 v[{T2+4}:{T2+7}], {vLST} offset:64")
        a(f"s_waitcnt lgkmcnt(3)\nv_or3_b32 v{GA}, v{T2}, v{T2+1}, v{T2+2}")
        a(f"v_pk_add_f32 v[{ACC}:{ACC+1}], v[{TMP}:{TMP+1}], v[{TMP+4}:{TMP+5}]\nv_or_b32 v{GA}, v{GA}, v{T2+3}")
        a(f"v_pk_add_f32 v[{ACC+2}:{ACC+3}], v[{TMP+2}:{TMP+3}], v[{TMP+6}:{TMP+7}]\nv_cmp_ne_u32 vcc, 0, v{GA}\ns_waitcnt lgkmcnt(2)")
        a(f"v_pk_add_f32 v[{ACC}:{ACC+1}], v[{ACC}:{ACC+1}], v[{TMP+8}:{TMP+9}]\nv_pk_add_f32 v[{ACC+2}:{ACC+3}], v[{ACC+2}:{ACC+3}], v[{TMP+10}:{TMP+11}]\ns_waitcnt lgkmcnt(1)")
        a(f"v_pk_add_f32 v[{ACC}:{ACC+1}], v[{ACC}:{ACC+1}], v[{TMP+12}:{TMP+13}]\nv_pk_add_f32 v[{ACC+2}:{ACC+3}], v[{ACC+2}:{ACC+3}], v[{TMP+14}:{TMP+15}]")
        a(f"s_cbranch_vccnz {gen_c}\nglobal_store_dwordx4 {addr}, v[{ACC}:{ACC+3}], {base}{sc}")
        if not half:
            a(f"s_waitcnt lgkmcnt(0)\nv_pk_add_f32 v[{GA}:{GA+1}], v[{T2+4}:{T2+5}], v[{T2+6}:{T2+7}]\nv_add_f32 v{GA}, v{GA}, v{GA+1}")
            a(f"s_mov_b64 exec, 0x2222\n{back_c}:\nglobal_store_dword {vOSP}, v{GA}, {sSM} offset:{OSTAT[li]}{sc}\ns_mov_b64 exec, -1")
        else: a(f"{back_c}:")
        def cgen(fb):
            fb(f"{gen_c}:\ns_waitcnt lgkmcnt(0)")
            fb(f"v_max3_f32 v{GA}, v{T2}, v{T2+1}, v{T2+2}\nv_max_f32 v{GA}, v{GA}, v{T2+3}")
            for w in range(4): fb(f"v_sub_f32 v{T2+w}, v{T2+w}, v{GA}")
            for w in range(4): fb(f"v_exp_f32 v{T2+w}, v{T2+w}")
            for w in range(4):
                for j in range(4):
                    fb(f"v_mul_f32 v{ACC+j}, v{T2}, v{TMP+j}" if w == 0 else f"v_fmac_f32 v{ACC+j}, v{T2+w}, v{TMP+4*w+j}")
            fb(f"global_store_dwordx4 {addr}, v[{ACC}:{ACC+3}], {base}{sc}")
            if not half:
                fb(f"v_mul_f32 v{GA+1}, v{T2}, v{T2+4}")
                for w in range(1, 4): fb(f"v_fmac_f32 v{GA+1}, v{T2+w}, v{T2+4+w}")
                fb(f"v_or_b32 v{GA+1}, 0x80000000, v{GA+1}\nv_cndmask_b32 v{GA}, v{GA}, v{GA+1}, {sODD}\ns_mov_b64 exec, 0x3333")
            fb(f"s_nop 1\ns_branch {back_c}")
        self.ool(cgen)

    def colsum_gather(self, base, issue):
        loads = self.rs_loads(base, PC)
        if issue:
            self.a(loads); return
        a = self.a
        top, chk = self.lab("cs"), self.lab("cschk")
        self.tag(1)
        a(f"s_mov_b32 {sCNT}, {self.c.limit * self.c.outer}\n{chk}:\ns_waitcnt vmcnt(0)")
        self.tagged_sum(PC)
        a(f"s_cbranch_vccnz {top}")
        self.tail.append(f"{top}:\n{loads}\ns_sub_u32 {sCNT}, {sCNT}, 1\ns_cbranch_scc0 {chk}\ns_endpgm\n")
        self.allred(GA, TMP)
        a(f"v_mov_b32 {vCS}, v{GA}")

    def x_head(self):
        a = self.a
        nt3 = 3 * int(bool(self.c.touch)); pw = int(self.c.prew == 1)
        self.zero_acc()
        if 'noq' in self.c.exp: self.stamp(5)
        a(f"v_add_u32 v{T2}, {L_WQ}, {vXALL}\ns_waitcnt lgkmcnt(0)\ns_barrier")
        self.stamp(1)
        if 'noq' in self.c.exp:
            a("s_barrier\ns_barrier"); self.end(0)
        self.WQ = []
        self.lds_weights(self.WQ, WA, f"v{T2}", 0, 8)
        if pw: self.prewrite(0)
        a(f"s_waitcnt vmcnt({5 + nt3 + pw})")
        self.stats(32)
        a(f"v_lshlrev_b32 {vX}, 16, {vX}\nv_sub_f32 v{GA}, {vX}, {vMU}")
        self.pack(GA)
        self.tag(1)
        for kp in range(8): self.dots(self.WQ, kp)
        a(f"s_waitcnt vmcnt({nt3 + pw})\ns_setprio 0")
        self.stamp(2)

    def x_program(self, slow):
        a = self.a; c = self.c
        sc = " sc1" if slow else ""
        if slow:
            self.clear_all(sc)
            a("s_waitcnt vmcnt(0)")
            self.zero_acc()
            for kp in range(8): self.dots(self.WQ, kp)
        self.tagged_publish(sB[1], sc)
        a(f"s_add_u32 s3, {sE}, 1\ns_lshl_b32 s3, s3, 4\ns_add_u32 s32, s3, 16\ns_or_b32 s3, s3, {sXCC}\ns_add_u32 s24, s3, 16")
        def xword():
            a(f"v_mov_b32 v{TMP}, {'s24' if slow else 's3'}\ns_lshl_b32 s31, s29, 2\nv_mov_b32 v{TMP+1}, s31")
            a(f"s_mov_b64 exec, 1\nglobal_store_dword v{TMP+1}, v{TMP}, {sSM} offset:{XCC}{sc}\ns_mov_b64 exec, -1")
        if not slow: xword()
        self.stamp(3)
        def check0(off):
            a(f"s_waitcnt vmcnt({off})\nv_cmp_ne_u32 s[30:31], s3, v{PX}")
            if slow:
                a(f"v_cmp_ne_u32 vcc, s24, v{PX}\nv_and_b32 v{TMP+2}, -16, v{PX}\ns_and_b64 s[30:31], s[30:31], vcc\nv_cmp_ne_u32 vcc, s32, v{TMP+2}")
                a("s_cmp_eq_u64 s[30:31], 0\ns_cselect_b64 s[30:31], 0, vcc")
            self.tagged_sum(PL)
            a("s_or_b64 vcc, vcc, s[30:31]")
        loads = self.rs_loads(sB[1], PL) + f"\nglobal_load_dword v{PX}, {vXC}, {sSM} offset:{XCC} sc1"
        self.zero_acc()
        for kp in range(8): self.dots(self.WQ, kp, sONE)
        self.tagged_publish(sCQ, sc)
        if slow:
            self.zero_acc()
            for kp in range(8): self.dots(self.GU, kp, sONE)
        else:
            self.nops(c.q0[1])
            a(loads)
            a(f"v_lshrrev_b32 v{T2}, 1, v0\nv_lshlrev_b32 v{T2}, 4, v{T2}\nv_and_b32 v{T2+1}, 1, v0\nv_lshl_add_u32 v{T2}, v{T2+1}, 9, v{T2}\nv_add_u32 v{T2}, {L_GU}, v{T2}")
            self.zero_acc()
            a("s_barrier")
            self.GU = []
            self.lds_weights(self.GU, WB, f"v{T2}", 0, 8, lambda kp: self.dots(self.GU, kp, sONE))
        self.tagged_publish(sCG, sc, M56)
        if c.force_slow and not slow: a("s_branch L_Xslow")
        if slow:
            a("s_waitcnt vmcnt(0)")
            xword()
            self.poll("q0", loads, check0, (1, 0, 0))
        else:
            def shadow(n): check0(n + 2); a("s_cbranch_vccz L_q0ok")
            self.poll("q0", loads, check0, (1, 0, 0), shadow, bound=c.limit1, over=lambda fb, ov, top: fb(f"{ov}:\ns_branch L_Xslow"), pace=c.pace)
            a("L_q0ok:")
        GU = self.GU
        self.allred(GA, TMP)
        a(f"v_mul_f32 v{GA}, v{GA}, {vRS}")
        self.stamp(4)
        for li in range(2):
            h = 5 * li
            B = lambda k: HB(h + k)
            st = (lambda i: self.stamp(i)) if li == c.stamp_layer else (lambda i: None)
            self.pack(GA)
            self.pair_store(sSM, AGQ[li], sc)
            self.clear_inbox(B(1), sc)
            st(5)
            def qbody(off):
                a(f"s_waitcnt vmcnt({off})\nv_max3_u32 v{TMP}, v{PX}, v{PX+1}, v{PX+2}\nv_max_u32 v{TMP}, v{TMP}, v{PX+3}\nv_cmp_eq_u32 vcc, -1, v{TMP}")
            if li == 0: a(f"v_mov_b32 v{TMP+1}, {int(slow)}\nv_mov_b32 v{TMP+2}, {L_MODE}\nds_write_b32 v{TMP+2}, v{TMP+1}")
            self.poll("aq", f"global_load_dwordx4 v[{PX}:{PX+3}], {vAQ}, {sSM} offset:{AGQ[li]} sc1", qbody, c.aq if li else c.a0, pace=0 if li else c.pace)
            a(f"ds_write_b128 {vXALL}, v[{PX}:{PX+3}] offset:{L_Q}\ns_waitcnt lgkmcnt(0)\ns_barrier")
            if li == 0:
                if c.prew == 2: self.prewrite(0)
                if not c.touch: a(f"s_lshl_b32 s30, s29, 8\nv_lshl_add_u32 v{TMP+2}, v0, 7, s30\ns_mov_b64 exec, 3\nglobal_load_dword {vJ}, v{TMP+2}, {sSM} offset:-4096 sc1\ns_mov_b64 exec, -1")
            a("s_barrier")
            st(6)
            self.combine(li, B(2), 0, sc)
            st(7)
            if li == 0:
                if not c.b0_late: a(f"global_load_dwordx4 v[{PM}:{PM+3}], {vINX}, {B(4)} sc1\nglobal_load_dwordx4 v[{PM}:{PM+3}], {vINX}, {B(4)} offset:1024 sc1")
                if not c.cs_late: self.colsum_gather(sCQ, True); self.colsum_gather(sCQ, False)
            for half in range(2):
                k = 2 * li + half
                last = k == 3
                self.zero_acc()
                self.tag(11 + k)
                a("s_barrier")
                if not last: self.clear_inbox(B(2 + 2 * half), sc) if (li == 0 or half == 0) else None
                self.rs_gather("out", B(3 + 2 * half), 7 if half else 8)
                a(f"v_bfi_b32 v{GA}, {vMASK}, {sT}, v{GA}\ns_mov_b64 exec, 0xffff\nglobal_atomic_swap {vGPUB}, v{GA}, {sG[k]}\ns_mov_b64 exec, -1")
                if li == 0: self.clear_inbox(B(3 + 2 * half), sc)
                if k == 0 and c.b0_late: a(f"global_load_dwordx4 v[{PM}:{PM+3}], {vINX}, {B(4)} sc1\nglobal_load_dwordx4 v[{PM}:{PM+3}], {vINX}, {B(4)} offset:1024 sc1")
                if k == 0 and c.cs_late: self.colsum_gather(sCQ, True); a("s_barrier")
                st(10 + 4 * half)
                fin = self.lab("fin")
                if last: a(f"s_cmp_eq_u32 s28, 0\ns_cbranch_scc0 {fin}")
                def gbody(off):
                    a(f"""s_waitcnt vmcnt({off})
v_xor_b32 v{GA}, {sT}, v{PG}
v_xor_b32 v{GA+1}, {sT}, v{PG+1}
v_or_b32 v{TMP+1}, v{GA}, v{GA+1}
v_add_f32 v{GA}, v{GA}, v{GA+1}
v_mov_b32 v{TMP}, v{GA}
v_cmp_ne_u32_sdwa vcc, v{TMP+1}, 0 src0_sel:BYTE_0 src1_sel:DWORD
v_permlane32_swap_b32 v{GA}, v{TMP}
v_add_f32 v{GA}, v{GA}, v{TMP}
v_mov_b32 v{TMP}, v{GA}""")
                self.poll("g", f"global_atomic_or v{PG}, {vGIN}, {vZERO}, {sG[k]} sc0\nglobal_atomic_or v{PG+1}, {vGIN}, {vZERO}, {sG[k]} offset:512 sc0", gbody, c.g)
                a(f"v_permlane16_swap_b32 v{GA}, v{TMP}\nv_add_f32 v{GA}, v{GA}, v{TMP}\nv_add_f32 v{GA}, v{GA}, {vX}")
                self.pack(GA)
                if last:
                    self.pair_store(sOUT, 0, "")
                    a(f"s_cmp_eq_u32 s29, 0\ns_cbranch_scc0 {fin}")
                    a(f"s_add_u32 s30, {sE}, {NTAGS}\nv_mov_b32 v{TMP}, s30\ns_mov_b64 exec, 1\nglobal_store_dword {vZERO}, v{TMP}, {sWS} sc1\n{fin}:")
                    self.end(0)
                    break
                if half == 0: st(11)
                self.pair_store(sSM, XALL[k], sc)
                if half == 0:
                    self.gemv(GU, B(4), sc, mask=M56)
                    a(f"s_barrier\nv_lshlrev_b32 {vX}, 16, {vPR}")
                    st(12)
                    if k == 0 and c.cs_late: self.colsum_gather(sCQ, False)
                else:
                    st2 = (lambda i: self.stamp(i)) if c.stamp_layer == 1 else (lambda i: None)
                    self.gemv(self.WQ, HB(6), sc)
                    a(f"v_lshlrev_b32 {vX}, 16, {vPR}")
                    st2(2)
                    self.rs_gather("q", HB(6), ln=1)
                    a(f"v_fma_f32 v{GA}, v{GA}, {vRS}, {vNM}")
                    st2(4)

    def y_head(self):
        a = self.a; c = self.c
        a(f"L_Y:\nv_mov_b32 v{TMP}, {L_MODE}\nds_write_b32 v{TMP}, {vZERO} offset:{L_CNT - L_MODE}\nv_add_u32 v{T2}, {L_WD}, {vXALL}\ns_waitcnt lgkmcnt(0)\ns_barrier")
        self.stamp(1)
        a("s_barrier")
        self.spare = SPARE
        self.WD = []
        self.lds_weights(self.WD, WB, f"v{T2}", 0, 4)
        a(f"s_mov_b32 {sCNT}, {c.limit * c.outer * 4}")
        for grp in range(4):
            l = self.lab("wo")
            a(f"{l}:\nds_read_b32 v{TMP+1}, v{TMP} offset:{L_CNT - L_MODE}\ns_sub_u32 {sCNT}, {sCNT}, 1\ns_cbranch_scc1 L_exit\ns_waitcnt lgkmcnt(0)")
            a(f"v_cmp_gt_u32 vcc, {grp + 1}, v{TMP+1}\ns_cbranch_vccnz {l}")
            for k in range(4 * grp, 4 * grp + 4):
                a(f"global_load_dwordx4 v[{WA+4*k}:{WA+4*k+3}], {vWO}, {sWO}{c.nt}")
                if k < 15: a(f"v_add_u32 {vWO}, 8192, {vWO}")
        self.stamp(2)
        a(f"s_barrier\nds_read_b32 v{TMP+1}, v{TMP}")
        if 'noq' in self.c.exp: a("s_waitcnt vmcnt(0)"); self.end(1)
        a(f"s_waitcnt lgkmcnt(0)\nv_readfirstlane_b32 s3, v{TMP+1}\ns_cmp_eq_u32 s3, 0\ns_cbranch_scc0 L_Yslow")

    def y_program(self, slow):
        a = self.a; c = self.c
        sc = " sc1" if slow else ""
        spare0 = self.spare
        WO = []
        for li in range(2):
            h = 5 * li
            B = lambda k: HB(h + k)
            st = (lambda i: self.stamp(i)) if li == c.stamp_layer else (lambda i: None)
            if li: a("s_barrier")
            a("s_barrier")
            st(6)
            self.combine(li, B(2), 1, sc)
            st(7)
            if li == 0 and not c.cs_late: self.colsum_gather(sCG, True)
            y, z, t, L = PL, GA, TMP, PM + 8
            loads = "".join(f"global_load_dwordx4 v[{L+4*i}:{L+4*i+3}], {vOSI}, {sSM} offset:{OSTAT[li]+128+16*i} sc1\n" for i in range(2))
            loads += self.rs_loads(B(2), PL)
            def shadow(nafter):
                for kp in range(8):
                    a(f"s_waitcnt vmcnt({14 - 2*kp + 1 + (0 if c.cs_late else 8) + nafter})")
                    self.perm_pair(WO, WA, kp)
            onorm, ogen = self.lab("onorm"), self.lab("ogen")
            def obody(off):
                a(f"""s_waitcnt vmcnt({off + 8})
v_pk_add_f32 v[{LA}:{LA+1}], v[{L}:{L+1}], v[{L+2}:{L+3}]
v_pk_add_f32 v[{LA+2}:{LA+3}], v[{L+4}:{L+5}], v[{L+6}:{L+7}]
v_pk_add_f32 v[{LA}:{LA+1}], v[{LA}:{LA+1}], v[{LA+2}:{LA+3}]
v_add_f32 v{LA}, v{LA}, v{LA+1}
s_waitcnt vmcnt({off + 4})
v_pk_add_f32 v[{z}:{z+1}], v[{y}:{y+1}], v[{y+2}:{y+3}]
s_waitcnt vmcnt({off})
v_pk_add_f32 v[{z+2}:{z+3}], v[{y+4}:{y+5}], v[{y+6}:{y+7}]
v_pk_add_f32 v[{z}:{z+1}], v[{z}:{z+1}], v[{z+2}:{z+3}]
v_add_f32 v{z}, v{z}, v{z+1}
v_cmp_u_f32 vcc, v{z}, v{LA}
v_or3_b32 v{t+2}, v{L}, v{L+1}, v{L+2}
v_permlane32_swap_b32 v{z}, v{LA}
v_add_f32 v{z}, v{z}, v{LA}
v_mov_b32 v{t}, v{z}""")
            def oover(fb, ov, top):
                fb(f"{ov}:\ns_sub_u32 {sCN2}, {sCN2}, 1\ns_cbranch_scc1 L_exit\ns_mov_b32 {sCNT}, {c.limit}\ns_waitcnt vmcnt(0)")
                self.umax(t, list(range(y, y + 8)) + list(range(L, L + 8)))
                fb(f"v_cmp_eq_u32 vcc, -1, v{t}\ns_cbranch_vccnz {top}\ns_branch {ogen}")
            self.zero_acc()
            a(f"s_mov_b32 {sCN2}, {c.outer}")
            self.poll("o", loads, obody, c.ro if li else (1, 0, 0), shadow if li == 0 else None, bound=c.limit, over=oover)
            a(f"""v_or3_b32 v{t+2}, v{t+2}, v{L+3}, v{L+4}
v_permlane16_swap_b32 v{z}, v{t}
v_add_f32 v{z}, v{z}, v{t}
v_mov_b32 v{LA}, v{z}
v_or3_b32 v{t+2}, v{t+2}, v{L+5}, v{L+6}
v_or_b32 v{t+2}, v{t+2}, v{L+7}
v_permlane32_swap_b32 v{z}, v{LA}
v_rcp_f32 v{LA}, v{LA}
v_cmp_gt_i32 vcc, 0, v{t+2}
v_mul_f32 v{z}, v{z}, v{LA}""")
            self.pack(GA)
            a(f"s_cbranch_vccnz {ogen}\n{onorm}:")
            def ogen_f(fb):
                mloop = self.lab("omloop")
                fb(f"{ogen}:\ns_waitcnt vmcnt(0)\ns_mov_b32 {sCNT}, {c.limit * c.outer}\n{mloop}:\ns_sub_u32 {sCNT}, {sCNT}, 1\ns_cbranch_scc1 L_exit")
                for i in range(2): fb(f"global_load_dwordx4 v[{PM+4*i}:{PM+4*i+3}], {vOSI}, {sSM} offset:{OSTAT[li]+16*i} sc1")
                fb("s_waitcnt vmcnt(0)")
                for i in range(8): fb(f"v_cmp_gt_i32 vcc, 0, v{L+i}\nv_cndmask_b32 v{T2+i}, 0, v{PM+i}, vcc")
                self.umax(t, range(T2, T2 + 8))
                fb(f"v_cmp_eq_u32 vcc, -1, v{t}\ns_cbranch_vccnz {mloop}")
                fb(f"v_max3_f32 v{t}, v{T2}, v{T2+1}, v{T2+2}\nv_max3_f32 v{t}, v{t}, v{T2+3}, v{T2+4}\nv_max3_f32 v{t}, v{t}, v{T2+5}, v{T2+6}\nv_max_f32 v{t}, v{t}, v{T2+7}")
                self.allred(t, t + 1, "v_max_f32")
                for i in range(8): fb(f"v_sub_f32 v{T2+i}, v{T2+i}, v{t}")
                for i in range(8): fb(f"v_exp_f32 v{T2+i}, v{T2+i}")
                fb(f"v_mul_f32 v{GA}, v{T2}, v{y}\nv_mul_f32_e64 v{LA}, v{T2}, |v{L}|")
                for i in range(1, 8): fb(f"v_fmac_f32 v{GA}, v{T2+i}, v{y+i}\nv_fma_f32 v{LA}, v{T2+i}, |v{L+i}|, v{LA}")
                self.allred(LA, t + 1); self.allred(GA, t + 2)
                fb(f"v_rcp_f32 v{LA}, v{LA}\nv_mul_f32 v{GA}, v{GA}, v{LA}")
                self.pack(GA)
                fb(f"s_nop 1\ns_branch {onorm}")
            self.ool(ogen_f)
            st(8)
            self.gemv(WO, B(3), sc)
            a("s_barrier")
            st(9)
            noffn = self.lab("noffn")
            if li == 0:
                l = self.lab("nocg")
                if c.cs_late: a("s_barrier")
                a(f"s_cmp_lt_u32 s34, 14\ns_cbranch_scc0 {l}")
                if c.cs_late: self.colsum_gather(sCG, True)
                self.colsum_gather(sCG, False)
                a(f"{l}:")
            self.zero_acc()
            a(f"s_barrier\ns_cmp_lt_u32 s34, 14\ns_cbranch_scc0 {noffn}")
            st(12)
            self.rs_gather("gu", B(4), ln=2 * li)
            a(f"v_fma_f32 v{GA}, v{GA}, {vRS}, {vNM}\nv_mul_f32_dpp v{GA}, v{GA}, v{GA} row_ror:12 {DPP}")
            self.pack(GA)
            self.gemv(self.WD, B(5), sc, lanes=[0, 2, 8, 10], addr=(vDN, vDN2))
            a(f"{noffn}:")
            st(13)
            a("s_barrier")
        self.end(1)
        self.spare = spare0

    def build(self):
        a = self.a
        self.prologue()
        self.s_stream()
        self.c_pre()
        self.x_head()
        self.x_program(False); self.flush()
        self.y_head()
        self.y_program(False); self.flush()
        self.s_layers(); self.flush()
        a("L_fast_end:\nL_Yslow:")
        self.y_program(True); self.flush()
        a("L_Xslow:")
        self.x_program(True); self.flush()
        a("L_exit:\ns_endpgm")
        head = f"""; Fused decode step: 2 x (LayerNorm -> GQA sliding-window attention -> residual -> LayerNorm -> bilinear GLU -> residual)
; @launch grid=(256,1,1) block=(384,1,1) lds={LDS_BYTES}
.amdgcn_target "amdgcn-amd-amdhsa--gfx950"
.text
.globl {KNAME}
.p2align 8
.type {KNAME},@function
{KNAME}:
"""
        tail = f"""
.section .rodata,"a"
.p2align 6
.amdhsa_kernel {KNAME}
  .amdhsa_next_free_vgpr 256
  .amdhsa_next_free_sgpr 102
  .amdhsa_accum_offset 256
  .amdhsa_group_segment_fixed_size 0
  .amdhsa_kernarg_size 96
  .amdhsa_user_sgpr_count 2
  .amdhsa_user_sgpr_kernarg_segment_ptr 1
  .amdhsa_system_sgpr_workgroup_id_x 1
  .amdhsa_float_denorm_mode_32 3
.end_amdhsa_kernel
"""
        return head + a.text() + tail


def make(**kw):
    c = Cfg()
    for k, v in kw.items(): setattr(c, k, v)
    return Gen(c).build()

if __name__ == "__main__":
    kw = {}
    for x in sys.argv[2:]:
        k, v = x.split("=", 1); kw[k] = eval(v)
    open(sys.argv[1], "w").write(make(**kw))
```

```python
import sys, struct
from asmlib import Asm

KNAME = "interleave_layers__sliding_block_cached__glu_gated_bilinear__decode_kernel"
def f2u(x): return struct.unpack("<I", struct.pack("<f", x))[0]

class Cfg:
    debug = False
    stamp_layer = 0
    nt = " nt"
    win = 4
    wins = [4]*22
    limit = 64
    outer = 2000
    limit1 = 64
    force_slow = False
    rs = (3, 60, 40)
    ro = (3, 60, 40)
    g = (3, 100, 200)
    q0 = (2, 200, 600)
    a0 = (2, 300, 600)
    aq = (4, 60, 40)
    prew = 2
    cs_sc = ''
    pace = 200
    touch = 1
    tpol = ' nt'
    xpol = ''
    pfpol = ''
    exp = ''
    rot = 1
    pf = 6
    b0_late = 1
    fclean = 0
    ldsx = 0
    cs_late = 1
    tlb = 0
    xd = 40
    bound = 60.0

DPP = "row_mask:0xf bank_mask:0xf"
G_OFF = 0x1000; G_STRIDE = 0x8000
GB_OFF = 0x40000; GB_STRIDE = 0x60000
SM = 0x50000 + 0x1000
AGQ = [-0x1000, -0xC00]; XALL = [-0x800, -0x400, 0x0]; OSTAT = [0x400, 0x800]; XCC = 0xC00
DBG_OFF = 0x400000
NTAGS = 16
L_O = 32768; L_ST = 40960; L_MODE = L_ST + 128; L_CNT = L_ST + 136; L_Q = 41984; L_WQ = L_Q + 1024; L_GU = L_WQ + 16384; L_WD = L_GU + 16384
LDS_BYTES = L_WD + 8192
sX, sK, sV, sWQ, sWO, sWG, sWU, sWD, sOUT, sWS = ("s[4:5]", "s[6:7]", "s[8:9]", "s[10:11]", "s[12:13]",
    "s[16:17]", "s[18:19]", "s[20:21]", "s[22:23]", "s[26:27]")
sB = ["s[36:37]", "s[38:39]", "s[40:41]"]; sCG = "s[42:43]"; sCQ = "s[44:45]"; sSM = "s[46:47]"
sG = ["s[48:49]", "s[50:51]", "s[52:53]", "s[54:55]"]
sE, sT, sCNT, sXCC, sLO, sHI, sONE, sCN2 = "s56", "s57", "s58", "s61", "s62", "s63", "s64", "s65"
sODD = "s[66:67]"; M56 = "s[14:15]"
vMASK, vIN, vPUB, vPUB2, vGIN, vGPUB, vPAIR, vXALL, vOSI, vOSP, vLDS, vLST = ["v%d" % i for i in range(1, 13)]
vX, vCS, vINX, vPR, vMU, vRS, vNM = "v13", "v14", "v15", "v16", "v17", "v18", "v19"
GA = 20; MA = 28; LA = 36; ACC = 40; TMP = 48; T2 = 64; NEG = 72
vZERO, vAQ, vCLR, vXC, vWO, vDN, vDN2, vJ = "v76", "v77", "v78", "v79", "v208", "v209", "v210", "v211"
WA, WB, SPARE = 80, 144, 212
PL = 214; PM = 222; PX = 238; PC = 242; PG = 250


def HB(hop): return sB[1] if hop == 1 else sB[[1, 0, 2][hop % 3]]


class Gen:
    def __init__(self, cfg):
        self.c = cfg; self.a = Asm(); self.tail = []; self.nlab = 0; self.spare = SPARE

    def lab(self, s):
        self.nlab += 1
        return f"L_{s}_{self.nlab}"

    def stamp(self, i):
        if self.c.debug: self.a(f"s_memtime s[{70+2*i}:{71+2*i}]")

    def end(self, slot):
        a = self.a
        if self.c.debug:
            a("s_memtime s[100:101]\ns_waitcnt vmcnt(0) lgkmcnt(0)\ns_mov_b64 exec, -1")
            a(f"s_lshl_b32 s30, s2, 9\ns_add_u32 s30, s30, {DBG_OFF + slot*128}")
            a("v_mov_b32 v20, s30\nv_mov_b32 v24, s68")
            for i in range(1, 16): a(f"s_sub_u32 s31, s{70+2*i}, s70\nv_mov_b32 v{24+i}, s31")
            for i in range(4): a(f"global_store_dwordx4 v20, v[{24+4*i}:{27+4*i}], {sWS} offset:{16*i}")
        a("s_endpgm")

    def tag(self, k): self.a(f"s_add_u32 {sT}, {sE}, {k}\ns_and_b32 {sT}, {sT}, 0x3f\ns_or_b32 {sT}, {sT}, 0x40")

    def nops(self, cyc):
        if cyc >= 192:
            self.a(f"s_sleep {cyc // 64}"); return
        while cyc >= 4:
            k = min(cyc // 4, 16); self.a(f"s_nop {k-1}"); cyc -= 4 * k

    def ool(self, fn):
        fb = Asm(); sv, self.a = self.a, fb
        fn(fb)
        self.a = sv
        self.tail.append(fb.text())

    def flush(self):
        while self.tail: self.a(self.tail.pop(0))

    def poll(self, name, loads, body, par, shadow=None, bound=None, over=None, first=True, pace=0):
        a = self.a
        depth, delay, gap = par
        nl = loads.count("global_")
        top, ov = self.lab(name), self.lab(name + "_over")
        a(f"s_mov_b32 {sCNT}, {bound or self.c.limit * self.c.outer}")
        if first:
            self.nops(delay)
            for k in range(depth - 1):
                a(loads); self.nops(gap)
        if shadow:
            skip = self.lab(name + "_in")
            a(loads); shadow(depth * nl); a(f"s_branch {skip}\n{top}:\n{loads}\n{skip}:")
        else:
            a(f"{top}:\n{loads}")
        a(f"s_sub_u32 {sCNT}, {sCNT}, 1\ns_cbranch_scc1 {ov if over else 'L_exit'}")
        self.nops(pace)
        body((depth - 1) * nl)
        a(f"s_cbranch_vccnz {top}")
        if over: self.ool(lambda fb: over(fb, ov, top))

    def allred(self, r, t, op="v_add_f32"):
        self.a(f"""v_mov_b32 v{t}, v{r}
v_permlane32_swap_b32 v{r}, v{t}
{op} v{r}, v{r}, v{t}
v_mov_b32 v{t}, v{r}
v_permlane16_swap_b32 v{r}, v{t}
{op} v{r}, v{r}, v{t}""")

    def rs_loads(self, base, g, n=8):
        return "\n".join(f"global_load_dword v{g+i}, {vIN}, {base} offset:{256*i} sc1" for i in range(n))

    def umax(self, t, regs):
        regs = list(regs)
        self.a(f"v_max3_u32 v{t}, v{regs[0]}, v{regs[1]}, v{regs[2]}")
        for i in range(3, len(regs), 2): self.a(f"v_max3_u32 v{t}, v{t}, v{regs[i]}, v{regs[min(i+1, len(regs)-1)]}")

    def tagged_sum(self, src, n=8):
        a = self.a
        for i in range(n): a(f"v_xor_b32 v{MA+i}, {sT}, v{src+i}")
        a(f"v_or3_b32 v{TMP}, v{MA}, v{MA+1}, v{MA+2}\nv_or3_b32 v{TMP}, v{TMP}, v{MA+3}, v{MA+4}\nv_or3_b32 v{TMP}, v{TMP}, v{MA+5}, v{MA+6}\nv_or_b32 v{TMP}, v{TMP}, v{MA+7}")
        a(f"v_cmp_ne_u32_sdwa vcc, v{TMP}, 0 src0_sel:BYTE_0 src1_sel:DWORD")
        a(f"v_pk_add_f32 v[{GA}:{GA+1}], v[{MA}:{MA+1}], v[{MA+2}:{MA+3}]\nv_pk_add_f32 v[{GA+2}:{GA+3}], v[{MA+4}:{MA+5}], v[{MA+6}:{MA+7}]")
        a(f"v_pk_add_f32 v[{GA}:{GA+1}], v[{GA}:{GA+1}], v[{GA+2}:{GA+3}]\nv_add_f32 v{GA}, v{GA}, v{GA+1}")

    def rs_gather(self, name, base, n=8, post=None, par=None, ln=None):
        z, t, y = GA, TMP, PL
        done = self.lab(name + "_done")
        def reduce(off, test):
            a = self.a
            a(f"s_waitcnt vmcnt({off + n - 4})\nv_pk_add_f32 v[{z}:{z+1}], v[{y}:{y+1}], v[{y+2}:{y+3}]\ns_waitcnt vmcnt({off})")
            if n == 8: a(f"v_pk_add_f32 v[{z+2}:{z+3}], v[{y+4}:{y+5}], v[{y+6}:{y+7}]\nv_pk_add_f32 v[{z}:{z+1}], v[{z}:{z+1}], v[{z+2}:{z+3}]")
            else: a(f"v_pk_add_f32 v[{z}:{z+1}], v[{z}:{z+1}], v[{y+4}:{y+5}]\nv_add_f32 v{z}, v{z}, v{y+6}")
            a(f"v_add_f32 v{z}, v{z}, v{z+1}\nv_mov_b32 v{t}, v{z}")
            if test: a(f"v_cmp_u_f32 vcc, v{z}, v{z}")
            a(f"v_permlane32_swap_b32 v{z}, v{t}\nv_add_f32 v{z}, v{z}, v{t}\nv_mov_b32 v{t}, v{z}")
        def over(fb, ov, top):
            fb(f"{ov}:\ns_sub_u32 {sCN2}, {sCN2}, 1\ns_cbranch_scc1 L_exit\ns_mov_b32 {sCNT}, {self.c.limit}\ns_waitcnt vmcnt(0)")
            self.umax(t, range(y, y + n))
            fb(f"v_cmp_eq_u32 vcc, -1, v{t}\ns_cbranch_vccnz {top}")
            reduce(0, False)
            fb(f"s_branch {done}")
        loads = self.rs_loads(base, PL, n)
        a = self.a
        a(f"s_mov_b32 {sCN2}, {self.c.outer}")
        if ln is None:
            self.poll(name, loads, lambda off: reduce(off, True), par or self.c.rs, bound=self.c.limit, over=over)
        else:
            xl = f"global_load_dwordx4 v[{PX}:{PX+3}], {vXALL}, {sSM} offset:{XALL[ln]} sc1"
            xchk = f"v_max3_u32 v{TMP}, v{PX}, v{PX+1}, v{PX+2}\nv_max_u32 v{TMP}, v{TMP}, v{PX+3}\nv_cmp_eq_u32 vcc, -1, v{TMP}"
            xr, xok = self.lab("xretry"), self.lab("xok")
            a(f"{xl}\ns_mov_b32 {sCNT}, {self.c.limit * self.c.outer}")
            self.nops(self.c.xd)
            a(f"{loads}\ns_waitcnt vmcnt({n})\n{xchk}\ns_cbranch_vccnz {xr}\n{xok}:")
            self.tail.append(f"{xr}:\n{xl}\n{xr}_b:\n{xl}\ns_sub_u32 {sCNT}, {sCNT}, 1\ns_cbranch_scc1 L_exit\ns_waitcnt vmcnt(1)\n{xchk}\ns_cbranch_vccnz {xr}_b\n{loads}\ns_branch {xok}\n")
            self.stats(PX, lambda: a(loads))
            a(f"v_mul_f32 {vNM}, {vMU}, {vRS}\nv_mul_f32_e64 {vNM}, -{vNM}, {vCS}")
            self.poll(name, loads, lambda off: reduce(off, True), (3, 0, 0), bound=self.c.limit, over=over, first=False)
        a(f"{done}:\nv_permlane16_swap_b32 v{z}, v{t}\nv_add_f32 v{z}, v{z}, v{t}")

    def pack(self, r):
        self.a(f"v_mov_b32_dpp v{TMP}, v{r} quad_perm:[1,0,3,2] {DPP}\nv_cvt_pk_bf16_f32 {vPR}, v{r}, v{TMP}")

    def perm_pair(self, W, base, kp):
        W.append([])
        for u in range(4):
            lo = base + 8 * kp + u; hi = lo + 4; s = self.spare
            self.a(f"v_perm_b32 v{s}, v{hi}, v{lo}, {sLO}\nv_perm_b32 v{hi}, v{hi}, v{lo}, {sHI}")
            W[kp] += [s, hi]; self.spare = lo

    def zero_acc(self):
        for j in range(0, 8, 2): self.a(f"v_mov_b64 v[{ACC+j}:{ACC+j+1}], 0")

    def dots(self, W, kp, src=None, lane=None):
        for j in range(8):
            if src: self.a(f"v_dot2c_f32_bf16 v{ACC+j}, {src}, v{W[kp][j]}")
            else: self.a(f"v_dot2c_f32_bf16_dpp v{ACC+j}, {vPR}, v{W[kp][j]} row_newbcast:{2*kp if lane is None else lane} {DPP}")

    def gemv(self, W, base, sc, lanes=None, addr=(vPUB, vPUB2), mask=None):
        a = self.a
        n = len(W)
        d = lambda kp, j: a(f"v_dot2c_f32_bf16_dpp v{ACC+j}, {vPR}, v{W[kp][j]} row_newbcast:{2*kp if lanes is None else lanes[kp]} {DPP}")
        def store(t):
            if mask: a(f"s_mov_b64 exec, {mask}")
            a(f"global_store_dwordx4 {addr[t]}, v[{ACC+4*t}:{ACC+4*t+3}], {base}{sc}")
            if mask: a("s_mov_b64 exec, -1")
        for kp in range(n):
            for j in range(4): d(kp, j)
        for kp in range(n):
            for j in range(4, 8): d(kp, j)
            if kp == 0: store(0)
        store(1)

    def tagged_publish(self, base, sc, mask=None):
        a = self.a
        for j in range(8): a(f"v_bfi_b32 v{ACC+j}, {vMASK}, {sT}, v{ACC+j}")
        if mask: a(f"s_mov_b64 exec, {mask}")
        a(f"global_store_dwordx4 {vPUB}, v[{ACC}:{ACC+3}], {base}{sc}\nglobal_store_dwordx4 {vPUB2}, v[{ACC+4}:{ACC+7}], {base}{sc}")
        if mask: a("s_mov_b64 exec, -1")

    def clear_inbox(self, base, sc):
        self.a(f"global_store_dwordx4 {vINX}, v[{NEG}:{NEG+3}], {base}{sc}\nglobal_store_dwordx4 {vINX}, v[{NEG}:{NEG+3}], {base} offset:1024{sc}")

    def stats(self, x, hook=None):
        a = self.a
        p, q = TMP, TMP + 1
        a(f"v_mov_b32 v{p}, 0\nv_mov_b32 v{q}, 0")
        for i in range(4): a(f"v_dot2c_f32_bf16 v{p}, {sONE}, v{x+i}\nv_dot2c_f32_bf16 v{q}, v{x+i}, v{x+i}")
        a(f"v_mov_b32 v{q+1}, 0x{f2u(1/512.):08x}\nv_mov_b32 v{q+2}, 0x{f2u(1e-5):08x}")
        a(f"v_permlane32_swap_b32 v{p}, v{q}\nv_add_f32 v{p}, v{p}, v{q}\nv_mov_b32 v{q}, v{p}")
        a(f"v_permlane16_swap_b32 v{p}, v{q}\nv_add_f32 v{p}, v{p}, v{q}")
        if hook: hook()
        for r in (8, 4, 2, 1): a(f"v_add_f32_dpp v{p}, v{p}, v{p} row_ror:{r} {DPP}")
        a(f"v_readlane_b32 s30, v{p}, 0\nv_readlane_b32 s31, v{p}, 32")
        a(f"v_mul_f32 {vMU}, s30, v{q+1}\nv_fma_f32 {vRS}, s31, v{q+1}, v{q+2}")
        a(f"v_fma_f32 {vRS}, -{vMU}, {vMU}, {vRS}\nv_max_f32 {vRS}, {vRS}, v{q+2}\nv_rsq_f32 {vRS}, {vRS}")

    def pair_store(self, base, off, sc):
        self.a(f"s_mov_b64 exec, 0x5555\nglobal_store_dword {vPAIR}, {vPR}, {base} offset:{off}{sc}\ns_mov_b64 exec, -1")

    def lds_weights(self, W, base, vaddr, off, npair, use=None):
        a = self.a
        rd = lambda k: a(f"ds_read_b128 v[{base+4*k}:{base+4*k+3}], {vaddr} offset:{off+1024*k}")
        for k in range(min(8, 2 * npair)): rd(k)
        for kp in range(npair):
            if 2 * kp + 8 < 2 * npair:
                rd(2 * kp + 8); rd(2 * kp + 9); out = 8
            else: out = 2 * npair - 2 * kp - 2
            a(f"s_waitcnt lgkmcnt({out})")
            self.perm_pair(W, base, kp)
            if use: use(kp)

    def prologue(self):
        a = self.a; c = self.c
        if c.debug: a("s_memtime s[70:71]\ns_memrealtime s[68:69]")
        a(f"""s_load_dwordx16 s[4:19], s[0:1], 0
s_load_dwordx8 s[20:27], s[0:1], 64
s_cmpk_ge_u32 s2, 0x100
s_cbranch_scc1 L_exit
v_lshrrev_b32 v1, 6, v0
v_and_b32 v0, 63, v0
s_lshr_b32 s29, s2, 3
v_readfirstlane_b32 s33, v1
s_and_b32 s28, s2, 7
s_and_b32 s34, s29, 15
s_lshr_b32 s35, s29, 4
s_lshl_b32 s60, s34, 5
s_lshl2_add_u32 s60, s35, s60
v_lshlrev_b32 v15, 4, v0
s_cmp_ge_u32 s33, 4
s_cbranch_scc1 L_C0
s_lshl3_add_u32 s32, s33, s60
s_lshl3_add_u32 s30, s32, s28
s_lshl_b32 s30, s30, 10
v_add_u32 v1, s30, v15
s_lshl_b32 s36, s33, 12
s_add_u32 m0, s36, {L_WQ}
s_movk_i32 s3, 0x2000
s_waitcnt lgkmcnt(0)""")
        for i in range(4):
            a(f"global_load_lds_dwordx4 v1, {sWQ}{c.nt}")
            if i < 3: a("s_addk_i32 m0, 0x400\nv_add_u32 v1, s3, v1")
        a(f"""s_branch L_S1
L_C0:
s_cmp_eq_u32 s33, 4
s_cbranch_scc1 L_X0
s_getpc_b64 s[30:31]
s_mulk_i32 s29, {128 * c.pf}
v_lshl_add_u32 v2, v0, 7, s29
s_mov_b64 exec, {(1 << c.pf) - 1}
global_load_dword {vJ}, v2, s[30:31]{c.pfpol}
s_branch L_C
L_X0:
s_setprio 3
s_waitcnt lgkmcnt(0)
global_load_dwordx4 v[32:35], v15, {sX}{c.xpol}
s_branch L_C
L_early_end:""")

    def consts(self):
        self.a("s_mov_b32 s62, 0x05040100\ns_mov_b32 s63, 0x07060302\ns_mov_b32 s64, 0x3f803f80")

    KF, VR, VF, Q, D, P, ON, O, OL, X, T = 16, 48, 80, 112, 128, 136, 140, 144, 176, 184, 192

    def s_stream(self):
        a = self.a; c = self.c
        KF, VR, ON, T = self.KF, self.VR, self.ON, self.T
        a(f"""L_S1:
s_mul_i32 s30, s32, 3584
s_mul_i32 s31, s28, 448
s_add_u32 s30, s30, s31
v_and_b32 v6, 31, v0
v_lshl_add_u32 v184, v6, 4, s30
v_cmp_gt_u32 vcc, 32, v0""")
        self.consts()
        n = [4]
        landed = [-1]
        wins = c.wins
        def throttle():
            w = wins[n[0] - 4]
            if n[0] - w > landed[0]:
                for mark in (3, 9):
                    if landed[0] < mark <= n[0] - w:
                        a(f"s_waitcnt vmcnt({n[0] - 1 - mark})")
                        if 'noq' in c.exp and mark == 3: self.stamp(14)
                        a("s_barrier")
                        if mark == 3: self.stamp(1)
                        landed[0] = mark
                if n[0] - w > landed[0]: a(f"s_waitcnt vmcnt({w-1})"); landed[0] = n[0] - w
            if 'noq' in c.exp and n[0] in (4, 8, 12, 16, 20): self.stamp({4: 9, 8: 10, 12: 11, 16: 12, 20: 13}[n[0]])
            n[0] += 1
        a(f"""v_mov_b32 v186, s18
v_mov_b32 v187, s19
v_mov_b32 v188, s16
v_mov_b32 v189, s17
v_cndmask_b32 v186, v186, v188, vcc
v_cndmask_b32 v187, v187, v189, vcc
v_mov_b32 v185, 0
s_mov_b32 s14, 3584
s_mov_b32 s15, 0
v_lshl_add_u64 v[184:185], v[184:185], 0, v[186:187]
s_add_u32 m0, s36, {L_GU}
s_mov_b32 exec_lo, 0x0fffffff
s_mov_b32 exec_hi, 0x0fffffff""")
        for i in range(4):
            throttle()
            a(f"global_load_lds_dwordx4 v[184:185], off{c.nt}")
            if i < 3: a(f"s_add_u32 m0, s36, {L_GU+1024*(i+1)}\nv_lshl_add_u64 v[184:185], v[184:185], 0, s[14:15]")
        a(f"""s_mov_b64 exec, -1
s_min_u32 s30, s34, 13
s_lshl_b32 s30, s30, 4
s_mul_i32 s31, s28, 224
s_add_u32 s30, s30, s31
s_lshl_b32 s31, s35, 2
s_add_u32 s30, s30, s31
s_lshr_b32 s31, s33, 1
s_lshl_b32 s31, s31, 3
s_add_u32 s30, s30, s31
s_and_b32 s31, s33, 1
s_lshl_b32 s31, s31, 1
s_add_u32 s30, s30, s31
s_lshl_b32 s30, s30, 10
v_add_u32 v1, s30, v15
s_lshl_b32 s31, s33, 11
s_add_u32 m0, s31, {L_WD}""")
        for i in range(2):
            throttle()
            a(f"global_load_lds_dwordx4 v1, {sWD} offset:{1024*i}{c.nt}")
        a("""s_lshl_b32 s30, s28, 24
s_lshl_b32 s31, s29, 15
s_add_u32 s30, s30, s31
s_add_u32 s30, s30, 0xF00000
s_add_u32 s6, s6, s30
s_addc_u32 s7, s7, 0
s_add_u32 s8, s8, s30
s_addc_u32 s9, s9, 0
s_lshl_b32 s36, s33, 13
s_mov_b32 m0, s36
v_and_b32 v6, 15, v0
v_lshrrev_b32 v7, 4, v0
v_xor_b32 v8, v6, v7
v_lshlrev_b32 v8, 4, v8
v_lshl_add_u32 v9, v7, 8, v8
v_add_u32 v9, s36, v9""")
        if c.rot: a("s_lshl_b32 s37, s29, 2\ns_and_b32 s30, s28, 3\ns_or_b32 s37, s37, s30\ns_lshl_b32 s37, s37, 8\nv_xor_b32 v9, s37, v9")
        else: a("s_mov_b32 s37, 0")
        for i in range(8):
            if i: a(f"s_add_u32 m0, s36, {1024*i}\nv_xor_b32 v1, {64*(i&3) + 1024*i}, v9")
            throttle()
            a(f"global_load_lds_dwordx4 {'v1' if i else 'v9'}, {sK}{c.nt}")
            if i == 0:
                a("v_lshlrev_b32 v10, 4, v6\nv_lshl_add_u32 v10, v7, 10, v10\nv_add_u32 v10, s36, v10\nv_xor_b32 v10, s37, v10")
                a("v_lshl_add_u32 v11, v6, 8, v8\nv_add_u32 v11, s36, v11")
                for j in range(1, 4): a(f"v_xor_b32 v{11+j}, {64*j}, v11")
                a("v_lshrrev_b32 v2, 2, v6\nv_lshlrev_b32 v5, 4, v2\nv_lshlrev_b32 v2, 8, v2\nv_lshl_add_u32 v2, v7, 4, v2")
                a(f"s_lshl_b32 s31, s33, 2\ns_add_u32 s31, s31, {L_ST}\nv_add_u32 v5, s31, v5")
                a(f"v_lshlrev_b32 v3, 4, v7\nv_add_u32 v3, s31, v3")
                a(f"s_lshl_b32 s31, s33, 11\ns_add_u32 s31, s31, {L_O}\nv_lshlrev_b32 v4, 2, v0\nv_add_u32 v4, s31, v4")
                for k in range(4): a(f"v_mov_b32 v{ON+k}, {sONE}")
                cs = f2u(128**-0.5*1.4426950408889634)
                a(f"v_mov_b32 v{T+6}, 0x{cs:08x}\nv_mov_b32 v{T+7}, 0x{cs:08x}\nv_mov_b32 v{T+5}, 0x{f2u(c.bound):08x}")
                a(f"v_add_u32 v2, {L_Q}, v2\nv_lshrrev_b32 v{T}, 2, v6")
                for j in range(4): a(f"v_add_u32 v{T+1}, {j}, v{T}\nv_and_b32 v{T+1}, 3, v{T+1}\nv_lshl_add_u32 v{T+8+j}, v{T+1}, 6, v2")
        for i in range(8):
            if i: a(f"v_xor_b32 v1, {(i>>2)*4096+(i&3)*256}, v10")
            throttle()
            a(f"global_load_dwordx4 v[{VR+4*i}:{VR+4*i+3}], {'v1' if i else 'v10'}, {sV}{c.nt}")
        a(f"v_mov_b32 v{T}, {L_CNT}\nv_mov_b32 v{T+1}, 1\ns_mov_b64 exec, 1\nds_add_u32 v{T}, v{T+1}\ns_mov_b64 exec, -1")
        assert landed[0] >= 17
        for t in range(2):
            for j in range(4): a(f"ds_read_b128 v[{KF+16*t+4*j}:{KF+16*t+4*j+3}], v{11+j} offset:{4096*t}")
        self.stamp(2)
        a("s_branch L_S2")

    def s_layers(self):
        a = self.a; c = self.c
        KF, VR, VF, Q, D, P, ON, O, OL, X, T = self.KF, self.VR, self.VF, self.Q, self.D, self.P, self.ON, self.O, self.OL, self.X, self.T
        a("L_S2:")
        for li in range(2):
            if li: a("s_barrier\ns_barrier\ns_barrier" + ("\ns_barrier" if c.cs_late else ""))
            a(f"v_mov_b32 v{T+4}, 0\ns_waitcnt lgkmcnt(0)\ns_barrier")
            self.stamp(3 + 6 * li)
            if 'noq' in c.exp and li == 0:
                a("s_waitcnt vmcnt(0)"); self.stamp(4)
                l = self.lab("x"); a(f"s_cmp_eq_u32 s33, 0\ns_cbranch_scc1 {l}\ns_endpgm\n{l}:"); self.end(2)
            for j in range(4): a(f"ds_read_b128 v[{Q+4*j}:{Q+4*j+3}], v{T+8+j}")
            a(f"ds_write_b32 v5, v{T+4}")
            for j in range(4):
                a(f"s_waitcnt lgkmcnt({4 - j})")
                for t in range(2):
                    cc = f"v[{D+4*t}:{D+4*t+3}]"
                    a(f"v_mfma_f32_16x16x32_bf16 {cc}, v[{KF+16*t+4*j}:{KF+16*t+4*j+3}], v[{Q+4*j}:{Q+4*j+3}], {cc if j else 0}")
            self.stamp(5 + 6 * li)
            for i in range(0, 8, 2): a(f"v_pk_mul_f32 v[{X+i}:{X+i+1}], v[{D+i}:{D+i+1}], v[{T+6}:{T+7}]")
            for i in range(8): a(f"v_exp_f32 v{D+i}, v{X+i}")
            for u in range(4): a(f"v_cvt_pk_bf16_f32 v{P+u}, v{D+2*u}, v{D+2*u+1}")
            self.stamp(6 + 6 * li)
            if li == 0:
                for u in range(4):
                    a(f"s_waitcnt vmcnt({6 - 2*u})")
                    for up in range(4):
                        for b in range(2):
                            a(f"v_perm_b32 v{VF+4*(2*up+b)+u}, v{VR+4*(2*u+1)+up}, v{VR+4*(2*u)+up}, {sHI if b else sLO}")
                self.stamp(4)
            lfb, lback = self.lab("fallback"), self.lab("pv")
            a(f"{lback}:")
            for e in range(8):
                a(f"v_mfma_f32_16x16x32_bf16 v[{O+4*e}:{O+4*e+3}], v[{P}:{P+3}], v[{VF+4*e}:{VF+4*e+3}], 0")
                if e == 0: a(f"v_max3_f32 v{T}, v{X}, v{X+1}, v{X+2}\nv_max3_f32 v{T+1}, v{X+3}, v{X+4}, v{X+5}")
                if e == 1: a(f"v_max3_f32 v{T}, v{T}, v{X+6}, v{X+7}\nv_max_f32 v{T}, v{T}, v{T+1}")
                if e == 2: a(f"v_cmp_gt_f32 vcc, |v{T}|, v{T+5}")
                if e == 3: a(f"v_mfma_f32_16x16x32_bf16 v[{OL}:{OL+3}], v[{P}:{P+3}], v[{ON}:{ON+3}], 0\ns_cbranch_vccnz {lfb}")
                if e == 5: a(f"ds_write2st64_b32 v4, v{O}, v{O+4} offset0:0 offset1:1")
                if e == 7: a(f"ds_write2st64_b32 v4, v{O+8}, v{O+12} offset0:2 offset1:3\nds_write_b32 v3, v{OL} offset:64")
            for e in range(4, 8, 2): a(f"ds_write2st64_b32 v4, v{O+4*e}, v{O+4*e+4} offset0:{e} offset1:{e+1}")
            a("s_waitcnt lgkmcnt(0)")
            self.stamp(7 + 6 * li)
            a("s_barrier")
            def fbk(fb):
                fb(f"{lfb}:\ns_nop 7")
                self.allred(T, T + 1, "v_max_f32")
                for i in range(8): fb(f"v_sub_f32 v{X+i}, v{X+i}, v{T}")
                for i in range(8): fb(f"v_exp_f32 v{D+i}, v{X+i}\nv_mov_b32 v{X+i}, 0")
                for u in range(4): fb(f"v_cvt_pk_bf16_f32 v{P+u}, v{D+2*u}, v{D+2*u+1}")
                fb(f"ds_write_b32 v5, v{T}\ns_nop 7\ns_branch {lback}")
            self.ool(fbk)
        if c.debug:
            l = self.lab("sdone")
            a(f"s_cmp_eq_u32 s33, 0\ns_cbranch_scc1 {l}\ns_endpgm\n{l}:")
        self.end(2)

    def clear_all(self, sc):
        a = self.a
        a(f"s_mov_b32 exec_hi, 0x00ffffff\nglobal_store_dword {vCLR}, v{NEG}, {sSM} offset:{AGQ[0]}{sc}\ns_mov_b64 exec, -1")
        self.clear_inbox(sB[0], sc); self.clear_inbox(sB[2], sc)

    def c_pre(self):
        a = self.a; c = self.c
        a(f"""L_C:
s_mov_b64 exec, -1
s_lshr_b32 s29, s2, 3
s_waitcnt lgkmcnt(0)
s_load_dword {sE}, {sWS}, 0
s_mul_i32 s59, s28, {GB_STRIDE}
s_add_u32 s59, s59, {GB_OFF}
v_and_b32 v20, 15, v0
v_lshrrev_b32 v21, 4, v0
v_lshlrev_b32 v22, 2, v0
v_lshlrev_b32 {vXALL}, 4, v0
v_lshrrev_b32 v23, 2, v20
v_and_b32 v24, 3, v0
v_lshl_add_u32 v28, v23, 3, v24
v_add_u32 v28, s60, v28
v_lshlrev_b32 {vPAIR}, 1, v28
v_mov_b32 {vZERO}, 0
s_lshl_b32 s30, s29, 11
v_add_u32 {vINX}, s30, {vXALL}
v_add_u32 {vIN}, s30, v22
v_mov_b64 v[{NEG}:{NEG+1}], -1
v_mov_b64 v[{NEG+2}:{NEG+3}], -1
s_cmp_eq_u32 s33, 4
s_cbranch_scc0 L_Ypre""")
        a(f"""v_and_b32 v31, 7, v0
v_lshrrev_b32 v25, 1, v31
v_and_b32 v26, 1, v0
v_lshlrev_b32 v25, 4, v25
v_lshl_add_u32 v25, v26, 2, v25
s_lshl_b32 s31, s60, 1
v_add_u32 v25, s31, v25
s_and_b32 s31, s29, 3
s_lshl_b32 s31, s31, 5
s_lshr_b32 s32, s29, 2
s_lshl_b32 s32, s32, 2
s_add_u32 s31, s31, s32
v_lshl_add_u32 v27, v31, 7, s31
v_cmp_gt_u32 vcc, 40, v0
v_lshrrev_b32 {vCLR}, 3, v0
v_lshlrev_b32 {vCLR}, 10, {vCLR}
v_cndmask_b32 v25, v27, v25, vcc
v_add_u32 {vCLR}, {vCLR}, v25
global_load_ushort {vX}, {vPAIR}, {sX}{c.xpol}""")
        assert OSTAT[0] - AGQ[0] == 5 * 1024 and OSTAT[1] - OSTAT[0] == 1024
        self.bases()
        self.clear_all("")
        if c.touch:
            a(f"global_load_dwordx4 v[{PM}:{PM+3}], {vINX}, {sB[1]}{c.tpol}\nglobal_load_dwordx4 v[{PM}:{PM+3}], {vINX}, {sB[1]} offset:1024{c.tpol}")
            a(f"s_lshl_b32 s30, s29, 8\nv_lshl_add_u32 v29, v0, 7, s30\ns_mov_b64 exec, 3\nglobal_load_dword {vJ}, v29, {sSM} offset:-4096{c.tpol}\ns_mov_b64 exec, -1")
        a(f"s_branch L_Cjoin\nL_Ypre:\nv_mov_b32 {vCLR}, 0")
        if c.tlb:
            nl = c.tlb
            a(f"""s_lshl_b32 s30, s28, 24
s_lshl_b32 s31, s29, 15
s_add_u32 s30, s30, s31
s_add_u32 s30, s30, 0xF00000
v_lshl_add_u32 v25, v0, 13, s30
s_mul_i32 s30, s60, 3584
s_mul_i32 s31, s28, 448
s_add_u32 s30, s30, s31
v_mul_u32_u24 v26, 28672, v0
v_add_u32 v26, s30, v26
s_min_u32 s30, s34, 13
s_lshl_b32 s30, s30, 4
s_mul_i32 s31, s28, 224
s_add_u32 s30, s30, s31
s_lshl_b32 s30, s30, 10
v_lshl_add_u32 v27, v0, 12, s30
s_and_b32 s31, s29, 3
s_lshl_b32 s31, s31, 7
s_lshr_b32 s32, s29, 2
s_add_u32 s31, s31, s32
s_lshl_b32 s32, s28, 9
s_add_u32 s31, s31, s32
s_lshl_b32 s31, s31, 10
v_lshl_add_u32 v29, v0, 15, s31
s_mov_b64 exec, {(1 << nl) - 1}
global_load_dword {vJ}, v26, {sWG} nt
global_load_dword {vJ}, v26, {sWU} nt
global_load_dword {vJ}, v27, {sWD} nt
global_load_dword {vJ}, v25, {sK} nt
global_load_dword {vJ}, v25, {sV} nt
global_load_dword {vJ}, v29, {sWO} nt
s_mov_b64 exec, -1""")
        a(f"global_load_ushort {vJ}, {vPAIR}, {sOUT}")
        self.bases()
        a("L_Cjoin:")
        self.consts()
        a(f"""s_getreg_b32 s61, hwreg(HW_REG_XCC_ID, 0, 4)
v_mov_b32 {vMASK}, 0xff
s_lshl_b32 s31, s29, 10
v_lshl_add_u32 {vGIN}, v20, 2, s31
v_lshl_add_u32 {vGIN}, v21, 7, {vGIN}
s_lshl_b32 s32, s28, 7
s_add_u32 s31, s31, s32
v_lshl_add_u32 {vGPUB}, v20, 2, s31
v_lshlrev_b32 {vAQ}, 2, v21
v_sub_u32 {vAQ}, v0, {vAQ}
v_and_b32 {vAQ}, 15, {vAQ}
v_lshl_add_u32 {vAQ}, v21, 4, {vAQ}
v_lshlrev_b32 {vAQ}, 4, {vAQ}
v_lshrrev_b32 v25, 2, v0
v_lshlrev_b32 v25, 11, v25
v_lshl_add_u32 v25, v24, 4, v25
s_lshl_b32 s31, s29, 6
v_add_u32 {vPUB}, s31, v25
v_add_u32 {vPUB2}, 0x8000, {vPUB}
s_mul_i32 s31, s35, 14
s_add_u32 s31, s31, s34
s_lshl_b32 s31, s31, 6
v_add_u32 {vDN}, s31, v25
v_add_u32 {vDN2}, 0x8000, {vDN}
s_and_b32 s31, s29, 3
s_lshl_b32 s32, s31, 8
v_lshl_add_u32 {vOSI}, v21, 5, s32
s_lshl_b32 s31, s31, 5
s_lshr_b32 s32, s29, 2
s_lshl_b32 s32, s32, 2
s_add_u32 s31, s31, s32
v_and_b32 v26, 1, v0
v_and_b32 v27, 3, v23
v_lshlrev_b32 {vOSP}, 8, v27
v_lshl_add_u32 {vOSP}, v26, 7, {vOSP}
v_add_u32 {vOSP}, s31, {vOSP}
s_sub_u32 s31, s33, 4
s_lshl_b32 s31, s31, 10
s_add_u32 s31, s31, {L_O}
v_add_u32 {vLDS}, s31, {vXALL}
v_lshlrev_b32 {vLST}, 4, v27
v_add_u32 {vLST}, {L_ST}, {vLST}
s_mov_b32 s66, 0xaaaaaaaa
s_mov_b32 s67, 0xaaaaaaaa
s_mov_b32 s14, -1
s_mov_b32 s15, 0x00ffffff
s_and_b32 s31, s29, 3
s_lshl_b32 s31, s31, 7
s_lshr_b32 s32, s29, 2
s_add_u32 s31, s31, s32
s_lshl_b32 s32, s28, 9
s_add_u32 s31, s31, s32
s_lshl_b32 s31, s31, 10
v_add_u32 {vWO}, s31, {vXALL}
v_and_b32 {vXC}, 31, v0
v_lshlrev_b32 {vXC}, 2, {vXC}
s_cmp_eq_u32 s33, 4
s_cbranch_scc0 L_Y""")

    def prewrite(self, val):
        self.a(f"v_lshrrev_b32 v{TMP}, 4, v0\nv_lshlrev_b32 v{TMP}, 15, v{TMP}\nv_add_u32 v{TMP}, v{TMP}, {vGPUB}\nv_mov_b32 v{TMP+1}, {val}")
        self.a(f"global_atomic_swap v{TMP}, v{TMP+1}, {sG[0]}")

    def bases(self):
        a = self.a
        a("s_add_u32 s36, s26, s59\ns_addc_u32 s37, s27, 0")
        a(f"s_add_u32 s46, s36, {SM}\ns_addc_u32 s47, s37, 0")
        for i in range(1, 5): a(f"s_add_u32 s{36+2*i}, s36, {0x10000*i}\ns_addc_u32 s{37+2*i}, s37, 0")
        for k in range(4): a(f"s_add_u32 s{48+2*k}, s26, {G_OFF+G_STRIDE*k}\ns_addc_u32 s{49+2*k}, s27, 0")

    def combine(self, li, base, half, sc):
        a = self.a
        gen_c, back_c = self.lab("cgen"), self.lab("cback")
        addr = vPUB2 if half else vPUB
        a(f"ds_read_b128 v[{T2}:{T2+3}], {vLST}")
        for w in range(4): a(f"ds_read_b128 v[{TMP+4*w}:{TMP+4*w+3}], {vLDS} offset:{2048*w}")
        a(f"ds_read_b128 v[{T2+4}:{T2+7}], {vLST} offset:64")
        a(f"s_waitcnt lgkmcnt(3)\nv_or3_b32 v{GA}, v{T2}, v{T2+1}, v{T2+2}")
        a(f"v_pk_add_f32 v[{ACC}:{ACC+1}], v[{TMP}:{TMP+1}], v[{TMP+4}:{TMP+5}]\nv_or_b32 v{GA}, v{GA}, v{T2+3}")
        a(f"v_pk_add_f32 v[{ACC+2}:{ACC+3}], v[{TMP+2}:{TMP+3}], v[{TMP+6}:{TMP+7}]\nv_cmp_ne_u32 vcc, 0, v{GA}\ns_waitcnt lgkmcnt(2)")
        a(f"v_pk_add_f32 v[{ACC}:{ACC+1}], v[{ACC}:{ACC+1}], v[{TMP+8}:{TMP+9}]\nv_pk_add_f32 v[{ACC+2}:{ACC+3}], v[{ACC+2}:{ACC+3}], v[{TMP+10}:{TMP+11}]\ns_waitcnt lgkmcnt(1)")
        a(f"v_pk_add_f32 v[{ACC}:{ACC+1}], v[{ACC}:{ACC+1}], v[{TMP+12}:{TMP+13}]\nv_pk_add_f32 v[{ACC+2}:{ACC+3}], v[{ACC+2}:{ACC+3}], v[{TMP+14}:{TMP+15}]")
        a(f"s_cbranch_vccnz {gen_c}\nglobal_store_dwordx4 {addr}, v[{ACC}:{ACC+3}], {base}{sc}")
        if not half:
            a(f"s_waitcnt lgkmcnt(0)\nv_pk_add_f32 v[{GA}:{GA+1}], v[{T2+4}:{T2+5}], v[{T2+6}:{T2+7}]\nv_add_f32 v{GA}, v{GA}, v{GA+1}")
            a(f"s_mov_b64 exec, 0x2222\n{back_c}:\nglobal_store_dword {vOSP}, v{GA}, {sSM} offset:{OSTAT[li]}{sc}\ns_mov_b64 exec, -1")
        else: a(f"{back_c}:")
        def cgen(fb):
            fb(f"{gen_c}:\ns_waitcnt lgkmcnt(0)")
            fb(f"v_max3_f32 v{GA}, v{T2}, v{T2+1}, v{T2+2}\nv_max_f32 v{GA}, v{GA}, v{T2+3}")
            for w in range(4): fb(f"v_sub_f32 v{T2+w}, v{T2+w}, v{GA}")
            for w in range(4): fb(f"v_exp_f32 v{T2+w}, v{T2+w}")
            for w in range(4):
                for j in range(4):
                    fb(f"v_mul_f32 v{ACC+j}, v{T2}, v{TMP+j}" if w == 0 else f"v_fmac_f32 v{ACC+j}, v{T2+w}, v{TMP+4*w+j}")
            fb(f"global_store_dwordx4 {addr}, v[{ACC}:{ACC+3}], {base}{sc}")
            if not half:
                fb(f"v_mul_f32 v{GA+1}, v{T2}, v{T2+4}")
                for w in range(1, 4): fb(f"v_fmac_f32 v{GA+1}, v{T2+w}, v{T2+4+w}")
                fb(f"v_or_b32 v{GA+1}, 0x80000000, v{GA+1}\nv_cndmask_b32 v{GA}, v{GA}, v{GA+1}, {sODD}\ns_mov_b64 exec, 0x3333")
            fb(f"s_nop 1\ns_branch {back_c}")
        self.ool(cgen)

    def colsum_gather(self, base, issue):
        loads = self.rs_loads(base, PC)
        if issue:
            self.a(loads); return
        a = self.a
        top, chk = self.lab("cs"), self.lab("cschk")
        self.tag(1)
        a(f"s_mov_b32 {sCNT}, {self.c.limit * self.c.outer}\n{chk}:\ns_waitcnt vmcnt(0)")
        self.tagged_sum(PC)
        a(f"s_cbranch_vccnz {top}")
        self.tail.append(f"{top}:\n{loads}\ns_sub_u32 {sCNT}, {sCNT}, 1\ns_cbranch_scc0 {chk}\ns_endpgm\n")
        self.allred(GA, TMP)
        a(f"v_mov_b32 {vCS}, v{GA}")

    def x_head(self):
        a = self.a
        nt3 = 3 * int(bool(self.c.touch)); pw = int(self.c.prew == 1)
        self.zero_acc()
        if 'noq' in self.c.exp: self.stamp(5)
        a(f"v_add_u32 v{T2}, {L_WQ}, {vXALL}\ns_waitcnt lgkmcnt(0)\ns_barrier")
        self.stamp(1)
        if 'noq' in self.c.exp:
            a("s_barrier\ns_barrier"); self.end(0)
        self.WQ = []
        self.lds_weights(self.WQ, WA, f"v{T2}", 0, 8)
        if pw: self.prewrite(0)
        a(f"s_waitcnt vmcnt({5 + nt3 + pw})")
        self.stats(32)
        a(f"v_lshlrev_b32 {vX}, 16, {vX}\nv_sub_f32 v{GA}, {vX}, {vMU}")
        self.pack(GA)
        self.tag(1)
        for kp in range(8): self.dots(self.WQ, kp)
        a(f"s_waitcnt vmcnt({nt3 + pw})\ns_setprio 0")
        self.stamp(2)

    def x_program(self, slow):
        a = self.a; c = self.c
        sc = " sc1" if slow else ""
        if slow:
            self.clear_all(sc)
            a("s_waitcnt vmcnt(0)")
            self.zero_acc()
            for kp in range(8): self.dots(self.WQ, kp)
        self.tagged_publish(sB[1], sc)
        a(f"s_add_u32 s3, {sE}, 1\ns_lshl_b32 s3, s3, 4\ns_add_u32 s32, s3, 16\ns_or_b32 s3, s3, {sXCC}\ns_add_u32 s24, s3, 16")
        def xword():
            a(f"v_mov_b32 v{TMP}, {'s24' if slow else 's3'}\ns_lshl_b32 s31, s29, 2\nv_mov_b32 v{TMP+1}, s31")
            a(f"s_mov_b64 exec, 1\nglobal_store_dword v{TMP+1}, v{TMP}, {sSM} offset:{XCC}{sc}\ns_mov_b64 exec, -1")
        if not slow: xword()
        self.stamp(3)
        def check0(off):
            a(f"s_waitcnt vmcnt({off})\nv_cmp_ne_u32 s[30:31], s3, v{PX}")
            if slow:
                a(f"v_cmp_ne_u32 vcc, s24, v{PX}\nv_and_b32 v{TMP+2}, -16, v{PX}\ns_and_b64 s[30:31], s[30:31], vcc\nv_cmp_ne_u32 vcc, s32, v{TMP+2}")
                a("s_cmp_eq_u64 s[30:31], 0\ns_cselect_b64 s[30:31], 0, vcc")
            self.tagged_sum(PL)
            a("s_or_b64 vcc, vcc, s[30:31]")
        loads = self.rs_loads(sB[1], PL) + f"\nglobal_load_dword v{PX}, {vXC}, {sSM} offset:{XCC} sc1"
        self.zero_acc()
        for kp in range(8): self.dots(self.WQ, kp, sONE)
        self.tagged_publish(sCQ, sc or c.cs_sc)
        if slow:
            self.zero_acc()
            for kp in range(8): self.dots(self.GU, kp, sONE)
        else:
            self.nops(c.q0[1])
            a(loads)
            a(f"v_lshrrev_b32 v{T2}, 1, v0\nv_lshlrev_b32 v{T2}, 4, v{T2}\nv_and_b32 v{T2+1}, 1, v0\nv_lshl_add_u32 v{T2}, v{T2+1}, 9, v{T2}\nv_add_u32 v{T2}, {L_GU}, v{T2}")
            self.zero_acc()
            a("s_barrier")
            self.GU = []
            self.lds_weights(self.GU, WB, f"v{T2}", 0, 8, lambda kp: self.dots(self.GU, kp, sONE))
        self.tagged_publish(sCG, sc or c.cs_sc, M56)
        if c.force_slow and not slow: a("s_branch L_Xslow")
        if slow:
            a("s_waitcnt vmcnt(0)")
            xword()
            self.poll("q0", loads, check0, (1, 0, 0))
        else:
            def shadow(n): check0(n + 2); a("s_cbranch_vccz L_q0ok")
            self.poll("q0", loads, check0, (1, 0, 0), shadow, bound=c.limit1, over=lambda fb, ov, top: fb(f"{ov}:\ns_branch L_Xslow"), pace=c.pace)
            a("L_q0ok:")
        GU = self.GU
        self.allred(GA, TMP)
        a(f"v_mul_f32 v{GA}, v{GA}, {vRS}")
        self.stamp(4)
        for li in range(2):
            h = 5 * li
            B = lambda k: HB(h + k)
            st = (lambda i: self.stamp(i)) if li == c.stamp_layer else (lambda i: None)
            self.pack(GA)
            self.pair_store(sSM, AGQ[li], sc)
            self.clear_inbox(B(1), sc)
            st(5)
            def qbody(off):
                a(f"s_waitcnt vmcnt({off})\nv_max3_u32 v{TMP}, v{PX}, v{PX+1}, v{PX+2}\nv_max_u32 v{TMP}, v{TMP}, v{PX+3}\nv_cmp_eq_u32 vcc, -1, v{TMP}")
            if li == 0: a(f"v_mov_b32 v{TMP+1}, {int(slow)}\nv_mov_b32 v{TMP+2}, {L_MODE}\nds_write_b32 v{TMP+2}, v{TMP+1}")
            self.poll("aq", f"global_load_dwordx4 v[{PX}:{PX+3}], {vAQ}, {sSM} offset:{AGQ[li]} sc1", qbody, c.aq if li else c.a0, pace=0 if li else c.pace)
            a(f"ds_write_b128 {vXALL}, v[{PX}:{PX+3}] offset:{L_Q}\ns_waitcnt lgkmcnt(0)\ns_barrier")
            if li == 0:
                if c.prew == 2: self.prewrite(0)
                if not c.touch: a(f"s_lshl_b32 s30, s29, 8\nv_lshl_add_u32 v{TMP+2}, v0, 7, s30\ns_mov_b64 exec, 3\nglobal_load_dword {vJ}, v{TMP+2}, {sSM} offset:-4096 sc1\ns_mov_b64 exec, -1")
            a("s_barrier")
            st(6)
            self.combine(li, B(2), 0, sc)
            st(7)
            if li == 0:
                if not c.b0_late: a(f"global_load_dwordx4 v[{PM}:{PM+3}], {vINX}, {B(4)} sc1\nglobal_load_dwordx4 v[{PM}:{PM+3}], {vINX}, {B(4)} offset:1024 sc1")
                if not c.cs_late: self.colsum_gather(sCQ, True); self.colsum_gather(sCQ, False)
            for half in range(2):
                k = 2 * li + half
                last = k == 3
                self.zero_acc()
                self.tag(11 + k)
                a("s_barrier")
                if not last: self.clear_inbox(B(2 + 2 * half), sc) if (li == 0 or half == 0) else None
                self.rs_gather("out", B(3 + 2 * half), 7 if half else 8)
                a(f"v_bfi_b32 v{GA}, {vMASK}, {sT}, v{GA}\ns_mov_b64 exec, 0xffff\nglobal_atomic_swap {vGPUB}, v{GA}, {sG[k]}\ns_mov_b64 exec, -1")
                if li == 0: self.clear_inbox(B(3 + 2 * half), sc)
                if k == 0 and c.b0_late: a(f"global_load_dwordx4 v[{PM}:{PM+3}], {vINX}, {B(4)} sc1\nglobal_load_dwordx4 v[{PM}:{PM+3}], {vINX}, {B(4)} offset:1024 sc1")
                if k == 0 and c.cs_late: self.colsum_gather(sCQ, True); a("s_barrier")
                st(10 + 4 * half)
                fin = self.lab("fin")
                if not slow and c.fclean:
                    if k == 2 and c.fclean & 1: self.clear_inbox(B(3), " sc1")
                    if last:
                        if not c.fclean & 1: self.clear_inbox(B(3), " sc1")
                        self.clear_inbox(B(4), " sc1"); self.clear_inbox(B(5), " sc1")
                if last: a(f"s_cmp_eq_u32 s28, 0\ns_cbranch_scc0 {fin}")
                def gbody(off):
                    a(f"""s_waitcnt vmcnt({off})
v_xor_b32 v{GA}, {sT}, v{PG}
v_xor_b32 v{GA+1}, {sT}, v{PG+1}
v_or_b32 v{TMP+1}, v{GA}, v{GA+1}
v_add_f32 v{GA}, v{GA}, v{GA+1}
v_mov_b32 v{TMP}, v{GA}
v_cmp_ne_u32_sdwa vcc, v{TMP+1}, 0 src0_sel:BYTE_0 src1_sel:DWORD
v_permlane32_swap_b32 v{GA}, v{TMP}
v_add_f32 v{GA}, v{GA}, v{TMP}
v_mov_b32 v{TMP}, v{GA}""")
                self.poll("g", f"global_atomic_or v{PG}, {vGIN}, {vZERO}, {sG[k]} sc0\nglobal_atomic_or v{PG+1}, {vGIN}, {vZERO}, {sG[k]} offset:512 sc0", gbody, c.g)
                a(f"v_permlane16_swap_b32 v{GA}, v{TMP}\nv_add_f32 v{GA}, v{GA}, v{TMP}\nv_add_f32 v{GA}, v{GA}, {vX}")
                self.pack(GA)
                if last:
                    self.pair_store(sOUT, 0, "")
                    a(f"s_cmp_eq_u32 s29, 0\ns_cbranch_scc0 {fin}")
                    a(f"s_add_u32 s30, {sE}, {NTAGS}\nv_mov_b32 v{TMP}, s30\ns_mov_b64 exec, 1\nglobal_store_dword {vZERO}, v{TMP}, {sWS} sc1\n{fin}:")
                    self.end(0)
                    break
                if half == 0: st(11)
                self.pair_store(sSM, XALL[k], sc)
                if half == 0:
                    self.gemv(GU, B(4), sc, mask=M56)
                    a(f"s_barrier\nv_lshlrev_b32 {vX}, 16, {vPR}")
                    st(12)
                    if k == 0 and c.cs_late: self.colsum_gather(sCQ, False)
                else:
                    st2 = (lambda i: self.stamp(i)) if c.stamp_layer == 1 else (lambda i: None)
                    self.gemv(self.WQ, HB(6), sc)
                    a(f"v_lshlrev_b32 {vX}, 16, {vPR}")
                    st2(2)
                    self.rs_gather("q", HB(6), ln=1)
                    a(f"v_fma_f32 v{GA}, v{GA}, {vRS}, {vNM}")
                    st2(4)

    def y_head(self):
        a = self.a; c = self.c
        a(f"L_Y:\nv_mov_b32 v{TMP}, {L_MODE}\nds_write_b32 v{TMP}, {vZERO} offset:{L_CNT - L_MODE}\nv_add_u32 v{T2}, {L_WD}, {vXALL}\ns_waitcnt lgkmcnt(0)\ns_barrier")
        self.stamp(1)
        a("s_barrier")
        self.spare = SPARE
        self.WD = []
        self.lds_weights(self.WD, WB, f"v{T2}", 0, 4)
        a(f"s_mov_b32 {sCNT}, {c.limit * c.outer * 4}")
        for grp in range(4):
            l = self.lab("wo")
            a(f"{l}:\nds_read_b32 v{TMP+1}, v{TMP} offset:{L_CNT - L_MODE}\ns_sub_u32 {sCNT}, {sCNT}, 1\ns_cbranch_scc1 L_exit\ns_waitcnt lgkmcnt(0)")
            a(f"v_cmp_gt_u32 vcc, {grp + 1}, v{TMP+1}\ns_cbranch_vccnz {l}")
            for k in range(4 * grp, 4 * grp + 4):
                a(f"global_load_dwordx4 v[{WA+4*k}:{WA+4*k+3}], {vWO}, {sWO}{c.nt}")
                if k < 15: a(f"v_add_u32 {vWO}, 8192, {vWO}")
        self.stamp(2)
        a(f"s_barrier\nds_read_b32 v{TMP+1}, v{TMP}")
        if 'noq' in self.c.exp: a("s_waitcnt vmcnt(0)"); self.end(1)
        a(f"s_waitcnt lgkmcnt(0)\nv_readfirstlane_b32 s3, v{TMP+1}\ns_cmp_eq_u32 s3, 0\ns_cbranch_scc0 L_Yslow")

    def y_program(self, slow):
        a = self.a; c = self.c
        sc = " sc1" if slow else ""
        spare0 = self.spare
        WO = []
        for li in range(2):
            h = 5 * li
            B = lambda k: HB(h + k)
            st = (lambda i: self.stamp(i)) if li == c.stamp_layer else (lambda i: None)
            if li: a("s_barrier")
            a("s_barrier")
            st(6)
            self.combine(li, B(2), 1, sc)
            st(7)
            if li == 0 and not c.cs_late: self.colsum_gather(sCG, True)
            y, z, t, L = PL, GA, TMP, PM + 8
            loads = "".join(f"global_load_dwordx4 v[{L+4*i}:{L+4*i+3}], {vOSI}, {sSM} offset:{OSTAT[li]+128+16*i} sc1\n" for i in range(2))
            loads += self.rs_loads(B(2), PL)
            def shadow(nafter):
                for kp in range(8):
                    a(f"s_waitcnt vmcnt({14 - 2*kp + 1 + (0 if c.cs_late else 8) + nafter})")
                    self.perm_pair(WO, WA, kp)
            onorm, ogen = self.lab("onorm"), self.lab("ogen")
            def obody(off):
                a(f"""s_waitcnt vmcnt({off + 8})
v_pk_add_f32 v[{LA}:{LA+1}], v[{L}:{L+1}], v[{L+2}:{L+3}]
v_pk_add_f32 v[{LA+2}:{LA+3}], v[{L+4}:{L+5}], v[{L+6}:{L+7}]
v_pk_add_f32 v[{LA}:{LA+1}], v[{LA}:{LA+1}], v[{LA+2}:{LA+3}]
v_add_f32 v{LA}, v{LA}, v{LA+1}
s_waitcnt vmcnt({off + 4})
v_pk_add_f32 v[{z}:{z+1}], v[{y}:{y+1}], v[{y+2}:{y+3}]
s_waitcnt vmcnt({off})
v_pk_add_f32 v[{z+2}:{z+3}], v[{y+4}:{y+5}], v[{y+6}:{y+7}]
v_pk_add_f32 v[{z}:{z+1}], v[{z}:{z+1}], v[{z+2}:{z+3}]
v_add_f32 v{z}, v{z}, v{z+1}
v_cmp_u_f32 vcc, v{z}, v{LA}
v_or3_b32 v{t+2}, v{L}, v{L+1}, v{L+2}
v_permlane32_swap_b32 v{z}, v{LA}
v_add_f32 v{z}, v{z}, v{LA}
v_mov_b32 v{t}, v{z}""")
            def oover(fb, ov, top):
                fb(f"{ov}:\ns_sub_u32 {sCN2}, {sCN2}, 1\ns_cbranch_scc1 L_exit\ns_mov_b32 {sCNT}, {c.limit}\ns_waitcnt vmcnt(0)")
                self.umax(t, list(range(y, y + 8)) + list(range(L, L + 8)))
                fb(f"v_cmp_eq_u32 vcc, -1, v{t}\ns_cbranch_vccnz {top}\ns_branch {ogen}")
            self.zero_acc()
            a(f"s_mov_b32 {sCN2}, {c.outer}")
            self.poll("o", loads, obody, c.ro if li else (1, 0, 0), shadow if li == 0 else None, bound=c.limit, over=oover)
            a(f"""v_or3_b32 v{t+2}, v{t+2}, v{L+3}, v{L+4}
v_permlane16_swap_b32 v{z}, v{t}
v_add_f32 v{z}, v{z}, v{t}
v_mov_b32 v{LA}, v{z}
v_or3_b32 v{t+2}, v{t+2}, v{L+5}, v{L+6}
v_or_b32 v{t+2}, v{t+2}, v{L+7}
v_permlane32_swap_b32 v{z}, v{LA}
v_rcp_f32 v{LA}, v{LA}
v_cmp_gt_i32 vcc, 0, v{t+2}
v_mul_f32 v{z}, v{z}, v{LA}""")
            self.pack(GA)
            a(f"s_cbranch_vccnz {ogen}\n{onorm}:")
            def ogen_f(fb):
                mloop = self.lab("omloop")
                fb(f"{ogen}:\ns_waitcnt vmcnt(0)\ns_mov_b32 {sCNT}, {c.limit * c.outer}\n{mloop}:\ns_sub_u32 {sCNT}, {sCNT}, 1\ns_cbranch_scc1 L_exit")
                for i in range(2): fb(f"global_load_dwordx4 v[{PM+4*i}:{PM+4*i+3}], {vOSI}, {sSM} offset:{OSTAT[li]+16*i} sc1")
                fb("s_waitcnt vmcnt(0)")
                for i in range(8): fb(f"v_cmp_gt_i32 vcc, 0, v{L+i}\nv_cndmask_b32 v{T2+i}, 0, v{PM+i}, vcc")
                self.umax(t, range(T2, T2 + 8))
                fb(f"v_cmp_eq_u32 vcc, -1, v{t}\ns_cbranch_vccnz {mloop}")
                fb(f"v_max3_f32 v{t}, v{T2}, v{T2+1}, v{T2+2}\nv_max3_f32 v{t}, v{t}, v{T2+3}, v{T2+4}\nv_max3_f32 v{t}, v{t}, v{T2+5}, v{T2+6}\nv_max_f32 v{t}, v{t}, v{T2+7}")
                self.allred(t, t + 1, "v_max_f32")
                for i in range(8): fb(f"v_sub_f32 v{T2+i}, v{T2+i}, v{t}")
                for i in range(8): fb(f"v_exp_f32 v{T2+i}, v{T2+i}")
                fb(f"v_mul_f32 v{GA}, v{T2}, v{y}\nv_mul_f32_e64 v{LA}, v{T2}, |v{L}|")
                for i in range(1, 8): fb(f"v_fmac_f32 v{GA}, v{T2+i}, v{y+i}\nv_fma_f32 v{LA}, v{T2+i}, |v{L+i}|, v{LA}")
                self.allred(LA, t + 1); self.allred(GA, t + 2)
                fb(f"v_rcp_f32 v{LA}, v{LA}\nv_mul_f32 v{GA}, v{GA}, v{LA}")
                self.pack(GA)
                fb(f"s_nop 1\ns_branch {onorm}")
            self.ool(ogen_f)
            st(8)
            self.gemv(WO, B(3), sc)
            a("s_barrier")
            st(9)
            noffn = self.lab("noffn")
            if li == 0:
                l = self.lab("nocg")
                if c.cs_late: a("s_barrier")
                a(f"s_cmp_lt_u32 s34, 14\ns_cbranch_scc0 {l}")
                if c.cs_late: self.colsum_gather(sCG, True)
                self.colsum_gather(sCG, False)
                a(f"{l}:")
            self.zero_acc()
            a(f"s_barrier\ns_cmp_lt_u32 s34, 14\ns_cbranch_scc0 {noffn}")
            st(12)
            self.rs_gather("gu", B(4), ln=2 * li)
            a(f"v_fma_f32 v{GA}, v{GA}, {vRS}, {vNM}\nv_mul_f32_dpp v{GA}, v{GA}, v{GA} row_ror:12 {DPP}")
            self.pack(GA)
            self.gemv(self.WD, B(5), sc, lanes=[0, 2, 8, 10], addr=(vDN, vDN2))
            a(f"{noffn}:")
            st(13)
            a("s_barrier")
        self.end(1)
        self.spare = spare0

    def build(self):
        a = self.a
        self.prologue()
        self.s_stream()
        self.c_pre()
        self.x_head()
        self.x_program(False); self.flush()
        self.y_head()
        self.y_program(False); self.flush()
        self.s_layers(); self.flush()
        a("L_fast_end:\nL_Yslow:")
        self.y_program(True); self.flush()
        a("L_Xslow:")
        self.x_program(True); self.flush()
        a("L_exit:\ns_endpgm")
        head = f"""; Fused decode step: 2 x (LayerNorm -> GQA sliding-window attention -> residual -> LayerNorm -> bilinear GLU -> residual)
; @launch grid=(256,1,1) block=(384,1,1) lds={self.c.ldsx or LDS_BYTES}
.amdgcn_target "amdgcn-amd-amdhsa--gfx950"
.text
.globl {KNAME}
.p2align 8
.type {KNAME},@function
{KNAME}:
"""
        tail = f"""
.section .rodata,"a"
.p2align 6
.amdhsa_kernel {KNAME}
  .amdhsa_next_free_vgpr 256
  .amdhsa_next_free_sgpr 102
  .amdhsa_accum_offset 256
  .amdhsa_group_segment_fixed_size 0
  .amdhsa_kernarg_size 96
  .amdhsa_user_sgpr_count 2
  .amdhsa_user_sgpr_kernarg_segment_ptr 1
  .amdhsa_system_sgpr_workgroup_id_x 1
  .amdhsa_float_denorm_mode_32 3
.end_amdhsa_kernel
"""
        return head + a.text() + tail


def make(**kw):
    c = Cfg()
    for k, v in kw.items(): setattr(c, k, v)
    return Gen(c).build()

if __name__ == "__main__":
    kw = {}
    for x in sys.argv[2:]:
        k, v = x.split("=", 1); kw[k] = eval(v)
    open(sys.argv[1], "w").write(make(**kw))
```

```python
import sys, struct
from asmlib import Asm

KNAME = "interleave_layers__sliding_block_cached__glu_gated_bilinear__decode_kernel"
def f2u(x): return struct.unpack("<I", struct.pack("<f", x))[0]

class Cfg:
    debug = False
    stamp_layer = 0
    nt = " nt"
    win = 4
    wins = [4]*22
    limit = 64
    outer = 2000
    limit1 = 64
    force_slow = False
    rs = (3, 60, 40)
    ro = (3, 60, 40)
    g = (3, 100, 200)
    q0 = (2, 200, 600)
    a0 = (2, 300, 600)
    aq = (4, 60, 40)
    prew = 2
    cs_sc = ''
    pace = 200
    touch = 1
    tpol = ' nt'
    xpol = ''
    pfpol = ''
    exp = ''
    rot = 1
    pf = 6
    b0_late = 1
    fclean = 0
    ldsx = 0
    dbgwg = 0
    cs_late = 1
    tlb = 0
    xd = 40
    bound = 60.0

DPP = "row_mask:0xf bank_mask:0xf"
G_OFF = 0x1000; G_STRIDE = 0x8000
GB_OFF = 0x40000; GB_STRIDE = 0x60000
SM = 0x50000 + 0x1000
AGQ = [-0x1000, -0xC00]; XALL = [-0x800, -0x400, 0x0]; OSTAT = [0x400, 0x800]; XCC = 0xC00
DBG_OFF = 0x400000
NTAGS = 16
L_O = 32768; L_ST = 40960; L_MODE = L_ST + 128; L_CNT = L_ST + 136; L_Q = 41984; L_WQ = L_Q + 1024; L_GU = L_WQ + 16384; L_WD = L_GU + 16384
LDS_BYTES = L_WD + 8192
sX, sK, sV, sWQ, sWO, sWG, sWU, sWD, sOUT, sWS = ("s[4:5]", "s[6:7]", "s[8:9]", "s[10:11]", "s[12:13]",
    "s[16:17]", "s[18:19]", "s[20:21]", "s[22:23]", "s[26:27]")
sB = ["s[36:37]", "s[38:39]", "s[40:41]"]; sCG = "s[42:43]"; sCQ = "s[44:45]"; sSM = "s[46:47]"
sG = ["s[48:49]", "s[50:51]", "s[52:53]", "s[54:55]"]
sE, sT, sCNT, sXCC, sLO, sHI, sONE, sCN2 = "s56", "s57", "s58", "s61", "s62", "s63", "s64", "s65"
sODD = "s[66:67]"; M56 = "s[14:15]"
vMASK, vIN, vPUB, vPUB2, vGIN, vGPUB, vPAIR, vXALL, vOSI, vOSP, vLDS, vLST = ["v%d" % i for i in range(1, 13)]
vX, vCS, vINX, vPR, vMU, vRS, vNM = "v13", "v14", "v15", "v16", "v17", "v18", "v19"
GA = 20; MA = 28; LA = 36; ACC = 40; TMP = 48; T2 = 64; NEG = 72
vZERO, vAQ, vCLR, vXC, vWO, vDN, vDN2, vJ = "v76", "v77", "v78", "v79", "v208", "v209", "v210", "v211"
WA, WB, SPARE = 80, 144, 212
PL = 214; PM = 222; PX = 238; PC = 242; PG = 250


def HB(hop): return sB[1] if hop == 1 else sB[[1, 0, 2][hop % 3]]


class Gen:
    def __init__(self, cfg):
        self.c = cfg; self.a = Asm(); self.tail = []; self.nlab = 0; self.spare = SPARE

    def lab(self, s):
        self.nlab += 1
        return f"L_{s}_{self.nlab}"

    def stamp(self, i):
        if self.c.debug: self.a(f"s_memtime s[{70+2*i}:{71+2*i}]")

    def end(self, slot):
        a = self.a
        if self.c.debug == 2:
            if slot == 0:
                l = self.lab("nodbg")
                a(f"s_memtime s[100:101]\ns_load_dwordx2 s[24:25], s[0:1], 80\ns_waitcnt vmcnt(0) lgkmcnt(0)\ns_cmp_lt_u32 s2, 8\ns_cbranch_scc0 {l}\ns_mov_b64 exec, 1")
                a("s_lshl_b32 s30, s2, 2\nv_mov_b32 v20, s30\nv_mov_b32 v24, s68\nglobal_store_dword v20, v24, s[24:25]")
                a(f"s_cmp_eq_u32 s2, {self.c.dbgwg}\ns_cbranch_scc0 {l}")
                for j, i in enumerate((1, 4, 6, 10, 11, 14, 15)): a(f"s_sub_u32 s31, s{70+2*i}, s70\nv_mov_b32 v{24+j}, s31")
                a("v_mov_b32 v20, 0\nv_mov_b32 v31, 0\nglobal_store_dwordx4 v20, v[24:27], s[24:25] offset:32\nglobal_store_dwordx4 v20, v[28:31], s[24:25] offset:48")
                a(f"{l}:")
            a("s_endpgm"); return
        if self.c.debug:
            a("s_memtime s[100:101]\ns_waitcnt vmcnt(0) lgkmcnt(0)\ns_mov_b64 exec, -1")
            a(f"s_lshl_b32 s30, s2, 9\ns_add_u32 s30, s30, {DBG_OFF + slot*128}")
            a("v_mov_b32 v20, s30\nv_mov_b32 v24, s68")
            for i in range(1, 16): a(f"s_sub_u32 s31, s{70+2*i}, s70\nv_mov_b32 v{24+i}, s31")
            for i in range(4): a(f"global_store_dwordx4 v20, v[{24+4*i}:{27+4*i}], {sWS} offset:{16*i}")
        a("s_endpgm")

    def tag(self, k): self.a(f"s_add_u32 {sT}, {sE}, {k}\ns_and_b32 {sT}, {sT}, 0x3f\ns_or_b32 {sT}, {sT}, 0x40")

    def nops(self, cyc):
        if cyc >= 192:
            self.a(f"s_sleep {cyc // 64}"); return
        while cyc >= 4:
            k = min(cyc // 4, 16); self.a(f"s_nop {k-1}"); cyc -= 4 * k

    def ool(self, fn):
        fb = Asm(); sv, self.a = self.a, fb
        fn(fb)
        self.a = sv
        self.tail.append(fb.text())

    def flush(self):
        while self.tail: self.a(self.tail.pop(0))

    def poll(self, name, loads, body, par, shadow=None, bound=None, over=None, first=True, pace=0):
        a = self.a
        depth, delay, gap = par
        nl = loads.count("global_")
        top, ov = self.lab(name), self.lab(name + "_over")
        a(f"s_mov_b32 {sCNT}, {bound or self.c.limit * self.c.outer}")
        if first:
            self.nops(delay)
            for k in range(depth - 1):
                a(loads); self.nops(gap)
        if shadow:
            skip = self.lab(name + "_in")
            a(loads); shadow(depth * nl); a(f"s_branch {skip}\n{top}:\n{loads}\n{skip}:")
        else:
            a(f"{top}:\n{loads}")
        a(f"s_sub_u32 {sCNT}, {sCNT}, 1\ns_cbranch_scc1 {ov if over else 'L_exit'}")
        self.nops(pace)
        body((depth - 1) * nl)
        a(f"s_cbranch_vccnz {top}")
        if over: self.ool(lambda fb: over(fb, ov, top))

    def allred(self, r, t, op="v_add_f32"):
        self.a(f"""v_mov_b32 v{t}, v{r}
v_permlane32_swap_b32 v{r}, v{t}
{op} v{r}, v{r}, v{t}
v_mov_b32 v{t}, v{r}
v_permlane16_swap_b32 v{r}, v{t}
{op} v{r}, v{r}, v{t}""")

    def rs_loads(self, base, g, n=8):
        return "\n".join(f"global_load_dword v{g+i}, {vIN}, {base} offset:{256*i} sc1" for i in range(n))

    def umax(self, t, regs):
        regs = list(regs)
        self.a(f"v_max3_u32 v{t}, v{regs[0]}, v{regs[1]}, v{regs[2]}")
        for i in range(3, len(regs), 2): self.a(f"v_max3_u32 v{t}, v{t}, v{regs[i]}, v{regs[min(i+1, len(regs)-1)]}")

    def tagged_sum(self, src, n=8):
        a = self.a
        for i in range(n): a(f"v_xor_b32 v{MA+i}, {sT}, v{src+i}")
        a(f"v_or3_b32 v{TMP}, v{MA}, v{MA+1}, v{MA+2}\nv_or3_b32 v{TMP}, v{TMP}, v{MA+3}, v{MA+4}\nv_or3_b32 v{TMP}, v{TMP}, v{MA+5}, v{MA+6}\nv_or_b32 v{TMP}, v{TMP}, v{MA+7}")
        a(f"v_cmp_ne_u32_sdwa vcc, v{TMP}, 0 src0_sel:BYTE_0 src1_sel:DWORD")
        a(f"v_pk_add_f32 v[{GA}:{GA+1}], v[{MA}:{MA+1}], v[{MA+2}:{MA+3}]\nv_pk_add_f32 v[{GA+2}:{GA+3}], v[{MA+4}:{MA+5}], v[{MA+6}:{MA+7}]")
        a(f"v_pk_add_f32 v[{GA}:{GA+1}], v[{GA}:{GA+1}], v[{GA+2}:{GA+3}]\nv_add_f32 v{GA}, v{GA}, v{GA+1}")

    def rs_gather(self, name, base, n=8, post=None, par=None, ln=None):
        z, t, y = GA, TMP, PL
        done = self.lab(name + "_done")
        def reduce(off, test):
            a = self.a
            a(f"s_waitcnt vmcnt({off + n - 4})\nv_pk_add_f32 v[{z}:{z+1}], v[{y}:{y+1}], v[{y+2}:{y+3}]\ns_waitcnt vmcnt({off})")
            if n == 8: a(f"v_pk_add_f32 v[{z+2}:{z+3}], v[{y+4}:{y+5}], v[{y+6}:{y+7}]\nv_pk_add_f32 v[{z}:{z+1}], v[{z}:{z+1}], v[{z+2}:{z+3}]")
            else: a(f"v_pk_add_f32 v[{z}:{z+1}], v[{z}:{z+1}], v[{y+4}:{y+5}]\nv_add_f32 v{z}, v{z}, v{y+6}")
            a(f"v_add_f32 v{z}, v{z}, v{z+1}\nv_mov_b32 v{t}, v{z}")
            if test: a(f"v_cmp_u_f32 vcc, v{z}, v{z}")
            a(f"v_permlane32_swap_b32 v{z}, v{t}\nv_add_f32 v{z}, v{z}, v{t}\nv_mov_b32 v{t}, v{z}")
        def over(fb, ov, top):
            fb(f"{ov}:\ns_sub_u32 {sCN2}, {sCN2}, 1\ns_cbranch_scc1 L_exit\ns_mov_b32 {sCNT}, {self.c.limit}\ns_waitcnt vmcnt(0)")
            self.umax(t, range(y, y + n))
            fb(f"v_cmp_eq_u32 vcc, -1, v{t}\ns_cbranch_vccnz {top}")
            reduce(0, False)
            fb(f"s_branch {done}")
        loads = self.rs_loads(base, PL, n)
        a = self.a
        a(f"s_mov_b32 {sCN2}, {self.c.outer}")
        if ln is None:
            self.poll(name, loads, lambda off: reduce(off, True), par or self.c.rs, bound=self.c.limit, over=over)
        else:
            xl = f"global_load_dwordx4 v[{PX}:{PX+3}], {vXALL}, {sSM} offset:{XALL[ln]} sc1"
            xchk = f"v_max3_u32 v{TMP}, v{PX}, v{PX+1}, v{PX+2}\nv_max_u32 v{TMP}, v{TMP}, v{PX+3}\nv_cmp_eq_u32 vcc, -1, v{TMP}"
            xr, xok = self.lab("xretry"), self.lab("xok")
            a(f"{xl}\ns_mov_b32 {sCNT}, {self.c.limit * self.c.outer}")
            self.nops(self.c.xd)
            a(f"{loads}\ns_waitcnt vmcnt({n})\n{xchk}\ns_cbranch_vccnz {xr}\n{xok}:")
            self.tail.append(f"{xr}:\n{xl}\n{xr}_b:\n{xl}\ns_sub_u32 {sCNT}, {sCNT}, 1\ns_cbranch_scc1 L_exit\ns_waitcnt vmcnt(1)\n{xchk}\ns_cbranch_vccnz {xr}_b\n{loads}\ns_branch {xok}\n")
            self.stats(PX, lambda: a(loads))
            a(f"v_mul_f32 {vNM}, {vMU}, {vRS}\nv_mul_f32_e64 {vNM}, -{vNM}, {vCS}")
            self.poll(name, loads, lambda off: reduce(off, True), (3, 0, 0), bound=self.c.limit, over=over, first=False)
        a(f"{done}:\nv_permlane16_swap_b32 v{z}, v{t}\nv_add_f32 v{z}, v{z}, v{t}")

    def pack(self, r):
        self.a(f"v_mov_b32_dpp v{TMP}, v{r} quad_perm:[1,0,3,2] {DPP}\nv_cvt_pk_bf16_f32 {vPR}, v{r}, v{TMP}")

    def perm_pair(self, W, base, kp):
        W.append([])
        for u in range(4):
            lo = base + 8 * kp + u; hi = lo + 4; s = self.spare
            self.a(f"v_perm_b32 v{s}, v{hi}, v{lo}, {sLO}\nv_perm_b32 v{hi}, v{hi}, v{lo}, {sHI}")
            W[kp] += [s, hi]; self.spare = lo

    def zero_acc(self):
        for j in range(0, 8, 2): self.a(f"v_mov_b64 v[{ACC+j}:{ACC+j+1}], 0")

    def dots(self, W, kp, src=None, lane=None):
        for j in range(8):
            if src: self.a(f"v_dot2c_f32_bf16 v{ACC+j}, {src}, v{W[kp][j]}")
            else: self.a(f"v_dot2c_f32_bf16_dpp v{ACC+j}, {vPR}, v{W[kp][j]} row_newbcast:{2*kp if lane is None else lane} {DPP}")

    def gemv(self, W, base, sc, lanes=None, addr=(vPUB, vPUB2), mask=None):
        a = self.a
        n = len(W)
        d = lambda kp, j: a(f"v_dot2c_f32_bf16_dpp v{ACC+j}, {vPR}, v{W[kp][j]} row_newbcast:{2*kp if lanes is None else lanes[kp]} {DPP}")
        def store(t):
            if mask: a(f"s_mov_b64 exec, {mask}")
            a(f"global_store_dwordx4 {addr[t]}, v[{ACC+4*t}:{ACC+4*t+3}], {base}{sc}")
            if mask: a("s_mov_b64 exec, -1")
        for kp in range(n):
            for j in range(4): d(kp, j)
        for kp in range(n):
            for j in range(4, 8): d(kp, j)
            if kp == 0: store(0)
        store(1)

    def tagged_publish(self, base, sc, mask=None):
        a = self.a
        for j in range(8): a(f"v_bfi_b32 v{ACC+j}, {vMASK}, {sT}, v{ACC+j}")
        if mask: a(f"s_mov_b64 exec, {mask}")
        a(f"global_store_dwordx4 {vPUB}, v[{ACC}:{ACC+3}], {base}{sc}\nglobal_store_dwordx4 {vPUB2}, v[{ACC+4}:{ACC+7}], {base}{sc}")
        if mask: a("s_mov_b64 exec, -1")

    def clear_inbox(self, base, sc):
        self.a(f"global_store_dwordx4 {vINX}, v[{NEG}:{NEG+3}], {base}{sc}\nglobal_store_dwordx4 {vINX}, v[{NEG}:{NEG+3}], {base} offset:1024{sc}")

    def stats(self, x, hook=None):
        a = self.a
        p, q = TMP, TMP + 1
        a(f"v_mov_b32 v{p}, 0\nv_mov_b32 v{q}, 0")
        for i in range(4): a(f"v_dot2c_f32_bf16 v{p}, {sONE}, v{x+i}\nv_dot2c_f32_bf16 v{q}, v{x+i}, v{x+i}")
        a(f"v_mov_b32 v{q+1}, 0x{f2u(1/512.):08x}\nv_mov_b32 v{q+2}, 0x{f2u(1e-5):08x}")
        a(f"v_permlane32_swap_b32 v{p}, v{q}\nv_add_f32 v{p}, v{p}, v{q}\nv_mov_b32 v{q}, v{p}")
        a(f"v_permlane16_swap_b32 v{p}, v{q}\nv_add_f32 v{p}, v{p}, v{q}")
        if hook: hook()
        for r in (8, 4, 2, 1): a(f"v_add_f32_dpp v{p}, v{p}, v{p} row_ror:{r} {DPP}")
        a(f"v_readlane_b32 s30, v{p}, 0\nv_readlane_b32 s31, v{p}, 32")
        a(f"v_mul_f32 {vMU}, s30, v{q+1}\nv_fma_f32 {vRS}, s31, v{q+1}, v{q+2}")
        a(f"v_fma_f32 {vRS}, -{vMU}, {vMU}, {vRS}\nv_max_f32 {vRS}, {vRS}, v{q+2}\nv_rsq_f32 {vRS}, {vRS}")

    def pair_store(self, base, off, sc):
        self.a(f"s_mov_b64 exec, 0x5555\nglobal_store_dword {vPAIR}, {vPR}, {base} offset:{off}{sc}\ns_mov_b64 exec, -1")

    def lds_weights(self, W, base, vaddr, off, npair, use=None):
        a = self.a
        rd = lambda k: a(f"ds_read_b128 v[{base+4*k}:{base+4*k+3}], {vaddr} offset:{off+1024*k}")
        for k in range(min(8, 2 * npair)): rd(k)
        for kp in range(npair):
            if 2 * kp + 8 < 2 * npair:
                rd(2 * kp + 8); rd(2 * kp + 9); out = 8
            else: out = 2 * npair - 2 * kp - 2
            a(f"s_waitcnt lgkmcnt({out})")
            self.perm_pair(W, base, kp)
            if use: use(kp)

    def prologue(self):
        a = self.a; c = self.c
        if c.debug: a("s_memtime s[70:71]\ns_memrealtime s[68:69]")
        a(f"""s_load_dwordx16 s[4:19], s[0:1], 0
s_load_dwordx8 s[20:27], s[0:1], 64
s_cmpk_ge_u32 s2, 0x100
s_cbranch_scc1 L_exit
v_lshrrev_b32 v1, 6, v0
v_and_b32 v0, 63, v0
s_lshr_b32 s29, s2, 3
v_readfirstlane_b32 s33, v1
s_and_b32 s28, s2, 7
s_and_b32 s34, s29, 15
s_lshr_b32 s35, s29, 4
s_lshl_b32 s60, s34, 5
s_lshl2_add_u32 s60, s35, s60
v_lshlrev_b32 v15, 4, v0
s_cmp_ge_u32 s33, 4
s_cbranch_scc1 L_C0
s_lshl3_add_u32 s32, s33, s60
s_lshl3_add_u32 s30, s32, s28
s_lshl_b32 s30, s30, 10
v_add_u32 v1, s30, v15
s_lshl_b32 s36, s33, 12
s_add_u32 m0, s36, {L_WQ}
s_movk_i32 s3, 0x2000
s_waitcnt lgkmcnt(0)""")
        for i in range(4):
            a(f"global_load_lds_dwordx4 v1, {sWQ}{c.nt}")
            if i < 3: a("s_addk_i32 m0, 0x400\nv_add_u32 v1, s3, v1")
        a(f"""s_branch L_S1
L_C0:
s_cmp_eq_u32 s33, 4
s_cbranch_scc1 L_X0
s_getpc_b64 s[30:31]
s_mulk_i32 s29, {128 * c.pf}
v_lshl_add_u32 v2, v0, 7, s29
s_mov_b64 exec, {(1 << c.pf) - 1}
global_load_dword {vJ}, v2, s[30:31]{c.pfpol}
s_branch L_C
L_X0:
s_setprio 3
s_waitcnt lgkmcnt(0)
global_load_dwordx4 v[32:35], v15, {sX}{c.xpol}
s_branch L_C
L_early_end:""")

    def consts(self):
        self.a("s_mov_b32 s62, 0x05040100\ns_mov_b32 s63, 0x07060302\ns_mov_b32 s64, 0x3f803f80")

    KF, VR, VF, Q, D, P, ON, O, OL, X, T = 16, 48, 80, 112, 128, 136, 140, 144, 176, 184, 192

    def s_stream(self):
        a = self.a; c = self.c
        KF, VR, ON, T = self.KF, self.VR, self.ON, self.T
        a(f"""L_S1:
s_mul_i32 s30, s32, 3584
s_mul_i32 s31, s28, 448
s_add_u32 s30, s30, s31
v_and_b32 v6, 31, v0
v_lshl_add_u32 v184, v6, 4, s30
v_cmp_gt_u32 vcc, 32, v0""")
        self.consts()
        n = [4]
        landed = [-1]
        wins = c.wins
        def throttle():
            w = wins[n[0] - 4]
            if n[0] - w > landed[0]:
                for mark in (3, 9):
                    if landed[0] < mark <= n[0] - w:
                        a(f"s_waitcnt vmcnt({n[0] - 1 - mark})")
                        if 'noq' in c.exp and mark == 3: self.stamp(14)
                        a("s_barrier")
                        if mark == 3: self.stamp(1)
                        landed[0] = mark
                if n[0] - w > landed[0]: a(f"s_waitcnt vmcnt({w-1})"); landed[0] = n[0] - w
            if 'noq' in c.exp and n[0] in (4, 8, 12, 16, 20): self.stamp({4: 9, 8: 10, 12: 11, 16: 12, 20: 13}[n[0]])
            n[0] += 1
        a(f"""v_mov_b32 v186, s18
v_mov_b32 v187, s19
v_mov_b32 v188, s16
v_mov_b32 v189, s17
v_cndmask_b32 v186, v186, v188, vcc
v_cndmask_b32 v187, v187, v189, vcc
v_mov_b32 v185, 0
s_mov_b32 s14, 3584
s_mov_b32 s15, 0
v_lshl_add_u64 v[184:185], v[184:185], 0, v[186:187]
s_add_u32 m0, s36, {L_GU}
s_mov_b32 exec_lo, 0x0fffffff
s_mov_b32 exec_hi, 0x0fffffff""")
        for i in range(4):
            throttle()
            a(f"global_load_lds_dwordx4 v[184:185], off{c.nt}")
            if i < 3: a(f"s_add_u32 m0, s36, {L_GU+1024*(i+1)}\nv_lshl_add_u64 v[184:185], v[184:185], 0, s[14:15]")
        a(f"""s_mov_b64 exec, -1
s_min_u32 s30, s34, 13
s_lshl_b32 s30, s30, 4
s_mul_i32 s31, s28, 224
s_add_u32 s30, s30, s31
s_lshl_b32 s31, s35, 2
s_add_u32 s30, s30, s31
s_lshr_b32 s31, s33, 1
s_lshl_b32 s31, s31, 3
s_add_u32 s30, s30, s31
s_and_b32 s31, s33, 1
s_lshl_b32 s31, s31, 1
s_add_u32 s30, s30, s31
s_lshl_b32 s30, s30, 10
v_add_u32 v1, s30, v15
s_lshl_b32 s31, s33, 11
s_add_u32 m0, s31, {L_WD}""")
        for i in range(2):
            throttle()
            a(f"global_load_lds_dwordx4 v1, {sWD} offset:{1024*i}{c.nt}")
        a("""s_lshl_b32 s30, s28, 24
s_lshl_b32 s31, s29, 15
s_add_u32 s30, s30, s31
s_add_u32 s30, s30, 0xF00000
s_add_u32 s6, s6, s30
s_addc_u32 s7, s7, 0
s_add_u32 s8, s8, s30
s_addc_u32 s9, s9, 0
s_lshl_b32 s36, s33, 13
s_mov_b32 m0, s36
v_and_b32 v6, 15, v0
v_lshrrev_b32 v7, 4, v0
v_xor_b32 v8, v6, v7
v_lshlrev_b32 v8, 4, v8
v_lshl_add_u32 v9, v7, 8, v8
v_add_u32 v9, s36, v9""")
        if c.rot: a("s_lshl_b32 s37, s29, 2\ns_and_b32 s30, s28, 3\ns_or_b32 s37, s37, s30\ns_lshl_b32 s37, s37, 8\nv_xor_b32 v9, s37, v9")
        else: a("s_mov_b32 s37, 0")
        for i in range(8):
            if i: a(f"s_add_u32 m0, s36, {1024*i}\nv_xor_b32 v1, {64*(i&3) + 1024*i}, v9")
            throttle()
            a(f"global_load_lds_dwordx4 {'v1' if i else 'v9'}, {sK}{c.nt}")
            if i == 0:
                a("v_lshlrev_b32 v10, 4, v6\nv_lshl_add_u32 v10, v7, 10, v10\nv_add_u32 v10, s36, v10\nv_xor_b32 v10, s37, v10")
                a("v_lshl_add_u32 v11, v6, 8, v8\nv_add_u32 v11, s36, v11")
                for j in range(1, 4): a(f"v_xor_b32 v{11+j}, {64*j}, v11")
                a("v_lshrrev_b32 v2, 2, v6\nv_lshlrev_b32 v5, 4, v2\nv_lshlrev_b32 v2, 8, v2\nv_lshl_add_u32 v2, v7, 4, v2")
                a(f"s_lshl_b32 s31, s33, 2\ns_add_u32 s31, s31, {L_ST}\nv_add_u32 v5, s31, v5")
                a(f"v_lshlrev_b32 v3, 4, v7\nv_add_u32 v3, s31, v3")
                a(f"s_lshl_b32 s31, s33, 11\ns_add_u32 s31, s31, {L_O}\nv_lshlrev_b32 v4, 2, v0\nv_add_u32 v4, s31, v4")
                for k in range(4): a(f"v_mov_b32 v{ON+k}, {sONE}")
                cs = f2u(128**-0.5*1.4426950408889634)
                a(f"v_mov_b32 v{T+6}, 0x{cs:08x}\nv_mov_b32 v{T+7}, 0x{cs:08x}\nv_mov_b32 v{T+5}, 0x{f2u(c.bound):08x}")
                a(f"v_add_u32 v2, {L_Q}, v2\nv_lshrrev_b32 v{T}, 2, v6")
                for j in range(4): a(f"v_add_u32 v{T+1}, {j}, v{T}\nv_and_b32 v{T+1}, 3, v{T+1}\nv_lshl_add_u32 v{T+8+j}, v{T+1}, 6, v2")
        for i in range(8):
            if i: a(f"v_xor_b32 v1, {(i>>2)*4096+(i&3)*256}, v10")
            throttle()
            a(f"global_load_dwordx4 v[{VR+4*i}:{VR+4*i+3}], {'v1' if i else 'v10'}, {sV}{c.nt}")
        a(f"v_mov_b32 v{T}, {L_CNT}\nv_mov_b32 v{T+1}, 1\ns_mov_b64 exec, 1\nds_add_u32 v{T}, v{T+1}\ns_mov_b64 exec, -1")
        assert landed[0] >= 17
        for t in range(2):
            for j in range(4): a(f"ds_read_b128 v[{KF+16*t+4*j}:{KF+16*t+4*j+3}], v{11+j} offset:{4096*t}")
        self.stamp(2)
        a("s_branch L_S2")

    def s_layers(self):
        a = self.a; c = self.c
        KF, VR, VF, Q, D, P, ON, O, OL, X, T = self.KF, self.VR, self.VF, self.Q, self.D, self.P, self.ON, self.O, self.OL, self.X, self.T
        a("L_S2:")
        for li in range(2):
            if li: a("s_barrier\ns_barrier\ns_barrier" + ("\ns_barrier" if c.cs_late else ""))
            a(f"v_mov_b32 v{T+4}, 0\ns_waitcnt lgkmcnt(0)\ns_barrier")
            self.stamp(3 + 6 * li)
            if 'noq' in c.exp and li == 0:
                a("s_waitcnt vmcnt(0)"); self.stamp(4)
                l = self.lab("x"); a(f"s_cmp_eq_u32 s33, 0\ns_cbranch_scc1 {l}\ns_endpgm\n{l}:"); self.end(2)
            for j in range(4): a(f"ds_read_b128 v[{Q+4*j}:{Q+4*j+3}], v{T+8+j}")
            a(f"ds_write_b32 v5, v{T+4}")
            for j in range(4):
                a(f"s_waitcnt lgkmcnt({4 - j})")
                for t in range(2):
                    cc = f"v[{D+4*t}:{D+4*t+3}]"
                    a(f"v_mfma_f32_16x16x32_bf16 {cc}, v[{KF+16*t+4*j}:{KF+16*t+4*j+3}], v[{Q+4*j}:{Q+4*j+3}], {cc if j else 0}")
            self.stamp(5 + 6 * li)
            for i in range(0, 8, 2): a(f"v_pk_mul_f32 v[{X+i}:{X+i+1}], v[{D+i}:{D+i+1}], v[{T+6}:{T+7}]")
            for i in range(8): a(f"v_exp_f32 v{D+i}, v{X+i}")
            for u in range(4): a(f"v_cvt_pk_bf16_f32 v{P+u}, v{D+2*u}, v{D+2*u+1}")
            self.stamp(6 + 6 * li)
            if li == 0:
                for u in range(4):
                    a(f"s_waitcnt vmcnt({6 - 2*u})")
                    for up in range(4):
                        for b in range(2):
                            a(f"v_perm_b32 v{VF+4*(2*up+b)+u}, v{VR+4*(2*u+1)+up}, v{VR+4*(2*u)+up}, {sHI if b else sLO}")
                self.stamp(4)
            lfb, lback = self.lab("fallback"), self.lab("pv")
            a(f"{lback}:")
            for e in range(8):
                a(f"v_mfma_f32_16x16x32_bf16 v[{O+4*e}:{O+4*e+3}], v[{P}:{P+3}], v[{VF+4*e}:{VF+4*e+3}], 0")
                if e == 0: a(f"v_max3_f32 v{T}, v{X}, v{X+1}, v{X+2}\nv_max3_f32 v{T+1}, v{X+3}, v{X+4}, v{X+5}")
                if e == 1: a(f"v_max3_f32 v{T}, v{T}, v{X+6}, v{X+7}\nv_max_f32 v{T}, v{T}, v{T+1}")
                if e == 2: a(f"v_cmp_gt_f32 vcc, |v{T}|, v{T+5}")
                if e == 3: a(f"v_mfma_f32_16x16x32_bf16 v[{OL}:{OL+3}], v[{P}:{P+3}], v[{ON}:{ON+3}], 0\ns_cbranch_vccnz {lfb}")
                if e == 5: a(f"ds_write2st64_b32 v4, v{O}, v{O+4} offset0:0 offset1:1")
                if e == 7: a(f"ds_write2st64_b32 v4, v{O+8}, v{O+12} offset0:2 offset1:3\nds_write_b32 v3, v{OL} offset:64")
            for e in range(4, 8, 2): a(f"ds_write2st64_b32 v4, v{O+4*e}, v{O+4*e+4} offset0:{e} offset1:{e+1}")
            a("s_waitcnt lgkmcnt(0)")
            self.stamp(7 + 6 * li)
            a("s_barrier")
            def fbk(fb):
                fb(f"{lfb}:\ns_nop 7")
                self.allred(T, T + 1, "v_max_f32")
                for i in range(8): fb(f"v_sub_f32 v{X+i}, v{X+i}, v{T}")
                for i in range(8): fb(f"v_exp_f32 v{D+i}, v{X+i}\nv_mov_b32 v{X+i}, 0")
                for u in range(4): fb(f"v_cvt_pk_bf16_f32 v{P+u}, v{D+2*u}, v{D+2*u+1}")
                fb(f"ds_write_b32 v5, v{T}\ns_nop 7\ns_branch {lback}")
            self.ool(fbk)
        if c.debug:
            l = self.lab("sdone")
            a(f"s_cmp_eq_u32 s33, 0\ns_cbranch_scc1 {l}\ns_endpgm\n{l}:")
        self.end(2)

    def clear_all(self, sc):
        a = self.a
        a(f"s_mov_b32 exec_hi, 0x00ffffff\nglobal_store_dword {vCLR}, v{NEG}, {sSM} offset:{AGQ[0]}{sc}\ns_mov_b64 exec, -1")
        self.clear_inbox(sB[0], sc); self.clear_inbox(sB[2], sc)

    def c_pre(self):
        a = self.a; c = self.c
        a(f"""L_C:
s_mov_b64 exec, -1
s_lshr_b32 s29, s2, 3
s_waitcnt lgkmcnt(0)
s_load_dword {sE}, {sWS}, 0
s_mul_i32 s59, s28, {GB_STRIDE}
s_add_u32 s59, s59, {GB_OFF}
v_and_b32 v20, 15, v0
v_lshrrev_b32 v21, 4, v0
v_lshlrev_b32 v22, 2, v0
v_lshlrev_b32 {vXALL}, 4, v0
v_lshrrev_b32 v23, 2, v20
v_and_b32 v24, 3, v0
v_lshl_add_u32 v28, v23, 3, v24
v_add_u32 v28, s60, v28
v_lshlrev_b32 {vPAIR}, 1, v28
v_mov_b32 {vZERO}, 0
s_lshl_b32 s30, s29, 11
v_add_u32 {vINX}, s30, {vXALL}
v_add_u32 {vIN}, s30, v22
v_mov_b64 v[{NEG}:{NEG+1}], -1
v_mov_b64 v[{NEG+2}:{NEG+3}], -1
s_cmp_eq_u32 s33, 4
s_cbranch_scc0 L_Ypre""")
        a(f"""v_and_b32 v31, 7, v0
v_lshrrev_b32 v25, 1, v31
v_and_b32 v26, 1, v0
v_lshlrev_b32 v25, 4, v25
v_lshl_add_u32 v25, v26, 2, v25
s_lshl_b32 s31, s60, 1
v_add_u32 v25, s31, v25
s_and_b32 s31, s29, 3
s_lshl_b32 s31, s31, 5
s_lshr_b32 s32, s29, 2
s_lshl_b32 s32, s32, 2
s_add_u32 s31, s31, s32
v_lshl_add_u32 v27, v31, 7, s31
v_cmp_gt_u32 vcc, 40, v0
v_lshrrev_b32 {vCLR}, 3, v0
v_lshlrev_b32 {vCLR}, 10, {vCLR}
v_cndmask_b32 v25, v27, v25, vcc
v_add_u32 {vCLR}, {vCLR}, v25
global_load_ushort {vX}, {vPAIR}, {sX}{c.xpol}""")
        assert OSTAT[0] - AGQ[0] == 5 * 1024 and OSTAT[1] - OSTAT[0] == 1024
        self.bases()
        self.clear_all("")
        if c.touch:
            a(f"global_load_dwordx4 v[{PM}:{PM+3}], {vINX}, {sB[1]}{c.tpol}\nglobal_load_dwordx4 v[{PM}:{PM+3}], {vINX}, {sB[1]} offset:1024{c.tpol}")
            a(f"s_lshl_b32 s30, s29, 8\nv_lshl_add_u32 v29, v0, 7, s30\ns_mov_b64 exec, 3\nglobal_load_dword {vJ}, v29, {sSM} offset:-4096{c.tpol}\ns_mov_b64 exec, -1")
        a(f"s_branch L_Cjoin\nL_Ypre:\nv_mov_b32 {vCLR}, 0")
        if c.tlb:
            nl = c.tlb
            a(f"""s_lshl_b32 s30, s28, 24
s_lshl_b32 s31, s29, 15
s_add_u32 s30, s30, s31
s_add_u32 s30, s30, 0xF00000
v_lshl_add_u32 v25, v0, 13, s30
s_mul_i32 s30, s60, 3584
s_mul_i32 s31, s28, 448
s_add_u32 s30, s30, s31
v_mul_u32_u24 v26, 28672, v0
v_add_u32 v26, s30, v26
s_min_u32 s30, s34, 13
s_lshl_b32 s30, s30, 4
s_mul_i32 s31, s28, 224
s_add_u32 s30, s30, s31
s_lshl_b32 s30, s30, 10
v_lshl_add_u32 v27, v0, 12, s30
s_and_b32 s31, s29, 3
s_lshl_b32 s31, s31, 7
s_lshr_b32 s32, s29, 2
s_add_u32 s31, s31, s32
s_lshl_b32 s32, s28, 9
s_add_u32 s31, s31, s32
s_lshl_b32 s31, s31, 10
v_lshl_add_u32 v29, v0, 15, s31
s_mov_b64 exec, {(1 << nl) - 1}
global_load_dword {vJ}, v26, {sWG} nt
global_load_dword {vJ}, v26, {sWU} nt
global_load_dword {vJ}, v27, {sWD} nt
global_load_dword {vJ}, v25, {sK} nt
global_load_dword {vJ}, v25, {sV} nt
global_load_dword {vJ}, v29, {sWO} nt
s_mov_b64 exec, -1""")
        a(f"global_load_ushort {vJ}, {vPAIR}, {sOUT}")
        self.bases()
        a("L_Cjoin:")
        self.consts()
        a(f"""s_getreg_b32 s61, hwreg(HW_REG_XCC_ID, 0, 4)
v_mov_b32 {vMASK}, 0xff
s_lshl_b32 s31, s29, 10
v_lshl_add_u32 {vGIN}, v20, 2, s31
v_lshl_add_u32 {vGIN}, v21, 7, {vGIN}
s_lshl_b32 s32, s28, 7
s_add_u32 s31, s31, s32
v_lshl_add_u32 {vGPUB}, v20, 2, s31
v_lshlrev_b32 {vAQ}, 2, v21
v_sub_u32 {vAQ}, v0, {vAQ}
v_and_b32 {vAQ}, 15, {vAQ}
v_lshl_add_u32 {vAQ}, v21, 4, {vAQ}
v_lshlrev_b32 {vAQ}, 4, {vAQ}
v_lshrrev_b32 v25, 2, v0
v_lshlrev_b32 v25, 11, v25
v_lshl_add_u32 v25, v24, 4, v25
s_lshl_b32 s31, s29, 6
v_add_u32 {vPUB}, s31, v25
v_add_u32 {vPUB2}, 0x8000, {vPUB}
s_mul_i32 s31, s35, 14
s_add_u32 s31, s31, s34
s_lshl_b32 s31, s31, 6
v_add_u32 {vDN}, s31, v25
v_add_u32 {vDN2}, 0x8000, {vDN}
s_and_b32 s31, s29, 3
s_lshl_b32 s32, s31, 8
v_lshl_add_u32 {vOSI}, v21, 5, s32
s_lshl_b32 s31, s31, 5
s_lshr_b32 s32, s29, 2
s_lshl_b32 s32, s32, 2
s_add_u32 s31, s31, s32
v_and_b32 v26, 1, v0
v_and_b32 v27, 3, v23
v_lshlrev_b32 {vOSP}, 8, v27
v_lshl_add_u32 {vOSP}, v26, 7, {vOSP}
v_add_u32 {vOSP}, s31, {vOSP}
s_sub_u32 s31, s33, 4
s_lshl_b32 s31, s31, 10
s_add_u32 s31, s31, {L_O}
v_add_u32 {vLDS}, s31, {vXALL}
v_lshlrev_b32 {vLST}, 4, v27
v_add_u32 {vLST}, {L_ST}, {vLST}
s_mov_b32 s66, 0xaaaaaaaa
s_mov_b32 s67, 0xaaaaaaaa
s_mov_b32 s14, -1
s_mov_b32 s15, 0x00ffffff
s_and_b32 s31, s29, 3
s_lshl_b32 s31, s31, 7
s_lshr_b32 s32, s29, 2
s_add_u32 s31, s31, s32
s_lshl_b32 s32, s28, 9
s_add_u32 s31, s31, s32
s_lshl_b32 s31, s31, 10
v_add_u32 {vWO}, s31, {vXALL}
v_and_b32 {vXC}, 31, v0
v_lshlrev_b32 {vXC}, 2, {vXC}
s_cmp_eq_u32 s33, 4
s_cbranch_scc0 L_Y""")

    def prewrite(self, val):
        self.a(f"v_lshrrev_b32 v{TMP}, 4, v0\nv_lshlrev_b32 v{TMP}, 15, v{TMP}\nv_add_u32 v{TMP}, v{TMP}, {vGPUB}\nv_mov_b32 v{TMP+1}, {val}")
        self.a(f"global_atomic_swap v{TMP}, v{TMP+1}, {sG[0]}")

    def bases(self):
        a = self.a
        a("s_add_u32 s36, s26, s59\ns_addc_u32 s37, s27, 0")
        a(f"s_add_u32 s46, s36, {SM}\ns_addc_u32 s47, s37, 0")
        for i in range(1, 5): a(f"s_add_u32 s{36+2*i}, s36, {0x10000*i}\ns_addc_u32 s{37+2*i}, s37, 0")
        for k in range(4): a(f"s_add_u32 s{48+2*k}, s26, {G_OFF+G_STRIDE*k}\ns_addc_u32 s{49+2*k}, s27, 0")

    def combine(self, li, base, half, sc):
        a = self.a
        gen_c, back_c = self.lab("cgen"), self.lab("cback")
        addr = vPUB2 if half else vPUB
        a(f"ds_read_b128 v[{T2}:{T2+3}], {vLST}")
        for w in range(4): a(f"ds_read_b128 v[{TMP+4*w}:{TMP+4*w+3}], {vLDS} offset:{2048*w}")
        a(f"ds_read_b128 v[{T2+4}:{T2+7}], {vLST} offset:64")
        a(f"s_waitcnt lgkmcnt(3)\nv_or3_b32 v{GA}, v{T2}, v{T2+1}, v{T2+2}")
        a(f"v_pk_add_f32 v[{ACC}:{ACC+1}], v[{TMP}:{TMP+1}], v[{TMP+4}:{TMP+5}]\nv_or_b32 v{GA}, v{GA}, v{T2+3}")
        a(f"v_pk_add_f32 v[{ACC+2}:{ACC+3}], v[{TMP+2}:{TMP+3}], v[{TMP+6}:{TMP+7}]\nv_cmp_ne_u32 vcc, 0, v{GA}\ns_waitcnt lgkmcnt(2)")
        a(f"v_pk_add_f32 v[{ACC}:{ACC+1}], v[{ACC}:{ACC+1}], v[{TMP+8}:{TMP+9}]\nv_pk_add_f32 v[{ACC+2}:{ACC+3}], v[{ACC+2}:{ACC+3}], v[{TMP+10}:{TMP+11}]\ns_waitcnt lgkmcnt(1)")
        a(f"v_pk_add_f32 v[{ACC}:{ACC+1}], v[{ACC}:{ACC+1}], v[{TMP+12}:{TMP+13}]\nv_pk_add_f32 v[{ACC+2}:{ACC+3}], v[{ACC+2}:{ACC+3}], v[{TMP+14}:{TMP+15}]")
        a(f"s_cbranch_vccnz {gen_c}\nglobal_store_dwordx4 {addr}, v[{ACC}:{ACC+3}], {base}{sc}")
        if not half:
            a(f"s_waitcnt lgkmcnt(0)\nv_pk_add_f32 v[{GA}:{GA+1}], v[{T2+4}:{T2+5}], v[{T2+6}:{T2+7}]\nv_add_f32 v{GA}, v{GA}, v{GA+1}")
            a(f"s_mov_b64 exec, 0x2222\n{back_c}:\nglobal_store_dword {vOSP}, v{GA}, {sSM} offset:{OSTAT[li]}{sc}\ns_mov_b64 exec, -1")
        else: a(f"{back_c}:")
        def cgen(fb):
            fb(f"{gen_c}:\ns_waitcnt lgkmcnt(0)")
            fb(f"v_max3_f32 v{GA}, v{T2}, v{T2+1}, v{T2+2}\nv_max_f32 v{GA}, v{GA}, v{T2+3}")
            for w in range(4): fb(f"v_sub_f32 v{T2+w}, v{T2+w}, v{GA}")
            for w in range(4): fb(f"v_exp_f32 v{T2+w}, v{T2+w}")
            for w in range(4):
                for j in range(4):
                    fb(f"v_mul_f32 v{ACC+j}, v{T2}, v{TMP+j}" if w == 0 else f"v_fmac_f32 v{ACC+j}, v{T2+w}, v{TMP+4*w+j}")
            fb(f"global_store_dwordx4 {addr}, v[{ACC}:{ACC+3}], {base}{sc}")
            if not half:
                fb(f"v_mul_f32 v{GA+1}, v{T2}, v{T2+4}")
                for w in range(1, 4): fb(f"v_fmac_f32 v{GA+1}, v{T2+w}, v{T2+4+w}")
                fb(f"v_or_b32 v{GA+1}, 0x80000000, v{GA+1}\nv_cndmask_b32 v{GA}, v{GA}, v{GA+1}, {sODD}\ns_mov_b64 exec, 0x3333")
            fb(f"s_nop 1\ns_branch {back_c}")
        self.ool(cgen)

    def colsum_gather(self, base, issue):
        loads = self.rs_loads(base, PC)
        if issue:
            self.a(loads); return
        a = self.a
        top, chk = self.lab("cs"), self.lab("cschk")
        self.tag(1)
        a(f"s_mov_b32 {sCNT}, {self.c.limit * self.c.outer}\n{chk}:\ns_waitcnt vmcnt(0)")
        self.tagged_sum(PC)
        a(f"s_cbranch_vccnz {top}")
        self.tail.append(f"{top}:\n{loads}\ns_sub_u32 {sCNT}, {sCNT}, 1\ns_cbranch_scc0 {chk}\ns_endpgm\n")
        self.allred(GA, TMP)
        a(f"v_mov_b32 {vCS}, v{GA}")

    def x_head(self):
        a = self.a
        nt3 = 3 * int(bool(self.c.touch)); pw = int(self.c.prew == 1)
        self.zero_acc()
        if 'noq' in self.c.exp: self.stamp(5)
        a(f"v_add_u32 v{T2}, {L_WQ}, {vXALL}\ns_waitcnt lgkmcnt(0)\ns_barrier")
        self.stamp(1)
        if 'noq' in self.c.exp:
            a("s_barrier\ns_barrier"); self.end(0)
        self.WQ = []
        self.lds_weights(self.WQ, WA, f"v{T2}", 0, 8)
        if pw: self.prewrite(0)
        a(f"s_waitcnt vmcnt({5 + nt3 + pw})")
        self.stats(32)
        a(f"v_lshlrev_b32 {vX}, 16, {vX}\nv_sub_f32 v{GA}, {vX}, {vMU}")
        self.pack(GA)
        self.tag(1)
        for kp in range(8): self.dots(self.WQ, kp)
        a(f"s_waitcnt vmcnt({nt3 + pw})\ns_setprio 0")
        self.stamp(2)

    def x_program(self, slow):
        a = self.a; c = self.c
        sc = " sc1" if slow else ""
        if slow:
            self.clear_all(sc)
            a("s_waitcnt vmcnt(0)")
            self.zero_acc()
            for kp in range(8): self.dots(self.WQ, kp)
        self.tagged_publish(sB[1], sc)
        a(f"s_add_u32 s3, {sE}, 1\ns_lshl_b32 s3, s3, 4\ns_add_u32 s32, s3, 16\ns_or_b32 s3, s3, {sXCC}\ns_add_u32 s24, s3, 16")
        def xword():
            a(f"v_mov_b32 v{TMP}, {'s24' if slow else 's3'}\ns_lshl_b32 s31, s29, 2\nv_mov_b32 v{TMP+1}, s31")
            a(f"s_mov_b64 exec, 1\nglobal_store_dword v{TMP+1}, v{TMP}, {sSM} offset:{XCC}{sc}\ns_mov_b64 exec, -1")
        if not slow: xword()
        self.stamp(3)
        def check0(off):
            a(f"s_waitcnt vmcnt({off})\nv_cmp_ne_u32 s[30:31], s3, v{PX}")
            if slow:
                a(f"v_cmp_ne_u32 vcc, s24, v{PX}\nv_and_b32 v{TMP+2}, -16, v{PX}\ns_and_b64 s[30:31], s[30:31], vcc\nv_cmp_ne_u32 vcc, s32, v{TMP+2}")
                a("s_cmp_eq_u64 s[30:31], 0\ns_cselect_b64 s[30:31], 0, vcc")
            self.tagged_sum(PL)
            a("s_or_b64 vcc, vcc, s[30:31]")
        loads = self.rs_loads(sB[1], PL) + f"\nglobal_load_dword v{PX}, {vXC}, {sSM} offset:{XCC} sc1"
        self.zero_acc()
        for kp in range(8): self.dots(self.WQ, kp, sONE)
        self.tagged_publish(sCQ, sc or c.cs_sc)
        if slow:
            self.zero_acc()
            for kp in range(8): self.dots(self.GU, kp, sONE)
        else:
            self.nops(c.q0[1])
            a(loads)
            a(f"v_lshrrev_b32 v{T2}, 1, v0\nv_lshlrev_b32 v{T2}, 4, v{T2}\nv_and_b32 v{T2+1}, 1, v0\nv_lshl_add_u32 v{T2}, v{T2+1}, 9, v{T2}\nv_add_u32 v{T2}, {L_GU}, v{T2}")
            self.zero_acc()
            a("s_barrier")
            self.GU = []
            self.lds_weights(self.GU, WB, f"v{T2}", 0, 8, lambda kp: self.dots(self.GU, kp, sONE))
        self.tagged_publish(sCG, sc or c.cs_sc, M56)
        if c.force_slow and not slow: a("s_branch L_Xslow")
        if slow:
            a("s_waitcnt vmcnt(0)")
            xword()
            self.poll("q0", loads, check0, (1, 0, 0))
        else:
            def shadow(n): check0(n + 2); a("s_cbranch_vccz L_q0ok")
            self.poll("q0", loads, check0, (1, 0, 0), shadow, bound=c.limit1, over=lambda fb, ov, top: fb(f"{ov}:\ns_branch L_Xslow"), pace=c.pace)
            a("L_q0ok:")
        GU = self.GU
        self.allred(GA, TMP)
        a(f"v_mul_f32 v{GA}, v{GA}, {vRS}")
        self.stamp(4)
        for li in range(2):
            h = 5 * li
            B = lambda k: HB(h + k)
            st = (lambda i: self.stamp(i)) if li == c.stamp_layer else (lambda i: None)
            self.pack(GA)
            self.pair_store(sSM, AGQ[li], sc)
            self.clear_inbox(B(1), sc)
            st(5)
            def qbody(off):
                a(f"s_waitcnt vmcnt({off})\nv_max3_u32 v{TMP}, v{PX}, v{PX+1}, v{PX+2}\nv_max_u32 v{TMP}, v{TMP}, v{PX+3}\nv_cmp_eq_u32 vcc, -1, v{TMP}")
            if li == 0: a(f"v_mov_b32 v{TMP+1}, {int(slow)}\nv_mov_b32 v{TMP+2}, {L_MODE}\nds_write_b32 v{TMP+2}, v{TMP+1}")
            self.poll("aq", f"global_load_dwordx4 v[{PX}:{PX+3}], {vAQ}, {sSM} offset:{AGQ[li]} sc1", qbody, c.aq if li else c.a0, pace=0 if li else c.pace)
            a(f"ds_write_b128 {vXALL}, v[{PX}:{PX+3}] offset:{L_Q}\ns_waitcnt lgkmcnt(0)\ns_barrier")
            if li == 0:
                if c.prew == 2: self.prewrite(0)
                if not c.touch: a(f"s_lshl_b32 s30, s29, 8\nv_lshl_add_u32 v{TMP+2}, v0, 7, s30\ns_mov_b64 exec, 3\nglobal_load_dword {vJ}, v{TMP+2}, {sSM} offset:-4096 sc1\ns_mov_b64 exec, -1")
            a("s_barrier")
            st(6)
            self.combine(li, B(2), 0, sc)
            st(7)
            if li == 0:
                if not c.b0_late: a(f"global_load_dwordx4 v[{PM}:{PM+3}], {vINX}, {B(4)} sc1\nglobal_load_dwordx4 v[{PM}:{PM+3}], {vINX}, {B(4)} offset:1024 sc1")
                if not c.cs_late: self.colsum_gather(sCQ, True); self.colsum_gather(sCQ, False)
            for half in range(2):
                k = 2 * li + half
                last = k == 3
                self.zero_acc()
                self.tag(11 + k)
                a("s_barrier")
                if not last: self.clear_inbox(B(2 + 2 * half), sc) if (li == 0 or half == 0) else None
                self.rs_gather("out", B(3 + 2 * half), 7 if half else 8)
                a(f"v_bfi_b32 v{GA}, {vMASK}, {sT}, v{GA}\ns_mov_b64 exec, 0xffff\nglobal_atomic_swap {vGPUB}, v{GA}, {sG[k]}\ns_mov_b64 exec, -1")
                if li == 0: self.clear_inbox(B(3 + 2 * half), sc)
                if k == 0 and c.b0_late: a(f"global_load_dwordx4 v[{PM}:{PM+3}], {vINX}, {B(4)} sc1\nglobal_load_dwordx4 v[{PM}:{PM+3}], {vINX}, {B(4)} offset:1024 sc1")
                if k == 0 and c.cs_late: self.colsum_gather(sCQ, True); a("s_barrier")
                st(10 + 4 * half)
                fin = self.lab("fin")
                if not slow and c.fclean:
                    if k == 2 and c.fclean & 1: self.clear_inbox(B(3), " sc1")
                    if last:
                        if not c.fclean & 1: self.clear_inbox(B(3), " sc1")
                        self.clear_inbox(B(4), " sc1"); self.clear_inbox(B(5), " sc1")
                if last: a(f"s_cmp_eq_u32 s28, 0\ns_cbranch_scc0 {fin}")
                def gbody(off):
                    a(f"""s_waitcnt vmcnt({off})
v_xor_b32 v{GA}, {sT}, v{PG}
v_xor_b32 v{GA+1}, {sT}, v{PG+1}
v_or_b32 v{TMP+1}, v{GA}, v{GA+1}
v_add_f32 v{GA}, v{GA}, v{GA+1}
v_mov_b32 v{TMP}, v{GA}
v_cmp_ne_u32_sdwa vcc, v{TMP+1}, 0 src0_sel:BYTE_0 src1_sel:DWORD
v_permlane32_swap_b32 v{GA}, v{TMP}
v_add_f32 v{GA}, v{GA}, v{TMP}
v_mov_b32 v{TMP}, v{GA}""")
                self.poll("g", f"global_atomic_or v{PG}, {vGIN}, {vZERO}, {sG[k]} sc0\nglobal_atomic_or v{PG+1}, {vGIN}, {vZERO}, {sG[k]} offset:512 sc0", gbody, c.g)
                a(f"v_permlane16_swap_b32 v{GA}, v{TMP}\nv_add_f32 v{GA}, v{GA}, v{TMP}\nv_add_f32 v{GA}, v{GA}, {vX}")
                self.pack(GA)
                if last:
                    self.pair_store(sOUT, 0, "")
                    a(f"s_cmp_eq_u32 s29, 0\ns_cbranch_scc0 {fin}")
                    a(f"s_add_u32 s30, {sE}, {NTAGS}\nv_mov_b32 v{TMP}, s30\ns_mov_b64 exec, 1\nglobal_store_dword {vZERO}, v{TMP}, {sWS} sc1\n{fin}:")
                    self.end(0)
                    break
                if half == 0: st(11)
                self.pair_store(sSM, XALL[k], sc)
                if half == 0:
                    self.gemv(GU, B(4), sc, mask=M56)
                    a(f"s_barrier\nv_lshlrev_b32 {vX}, 16, {vPR}")
                    st(12)
                    if k == 0 and c.cs_late: self.colsum_gather(sCQ, False)
                else:
                    st2 = (lambda i: self.stamp(i)) if c.stamp_layer == 1 else (lambda i: None)
                    self.gemv(self.WQ, HB(6), sc)
                    a(f"v_lshlrev_b32 {vX}, 16, {vPR}")
                    st2(2)
                    self.rs_gather("q", HB(6), ln=1)
                    a(f"v_fma_f32 v{GA}, v{GA}, {vRS}, {vNM}")
                    st2(4)

    def y_head(self):
        a = self.a; c = self.c
        a(f"L_Y:\nv_mov_b32 v{TMP}, {L_MODE}\nds_write_b32 v{TMP}, {vZERO} offset:{L_CNT - L_MODE}\nv_add_u32 v{T2}, {L_WD}, {vXALL}\ns_waitcnt lgkmcnt(0)\ns_barrier")
        self.stamp(1)
        a("s_barrier")
        self.spare = SPARE
        self.WD = []
        self.lds_weights(self.WD, WB, f"v{T2}", 0, 4)
        a(f"s_mov_b32 {sCNT}, {c.limit * c.outer * 4}")
        for grp in range(4):
            l = self.lab("wo")
            a(f"{l}:\nds_read_b32 v{TMP+1}, v{TMP} offset:{L_CNT - L_MODE}\ns_sub_u32 {sCNT}, {sCNT}, 1\ns_cbranch_scc1 L_exit\ns_waitcnt lgkmcnt(0)")
            a(f"v_cmp_gt_u32 vcc, {grp + 1}, v{TMP+1}\ns_cbranch_vccnz {l}")
            for k in range(4 * grp, 4 * grp + 4):
                a(f"global_load_dwordx4 v[{WA+4*k}:{WA+4*k+3}], {vWO}, {sWO}{c.nt}")
                if k < 15: a(f"v_add_u32 {vWO}, 8192, {vWO}")
        self.stamp(2)
        a(f"s_barrier\nds_read_b32 v{TMP+1}, v{TMP}")
        if 'noq' in self.c.exp: a("s_waitcnt vmcnt(0)"); self.end(1)
        a(f"s_waitcnt lgkmcnt(0)\nv_readfirstlane_b32 s3, v{TMP+1}\ns_cmp_eq_u32 s3, 0\ns_cbranch_scc0 L_Yslow")

    def y_program(self, slow):
        a = self.a; c = self.c
        sc = " sc1" if slow else ""
        spare0 = self.spare
        WO = []
        for li in range(2):
            h = 5 * li
            B = lambda k: HB(h + k)
            st = (lambda i: self.stamp(i)) if li == c.stamp_layer else (lambda i: None)
            if li: a("s_barrier")
            a("s_barrier")
            st(6)
            self.combine(li, B(2), 1, sc)
            st(7)
            if li == 0 and not c.cs_late: self.colsum_gather(sCG, True)
            y, z, t, L = PL, GA, TMP, PM + 8
            loads = "".join(f"global_load_dwordx4 v[{L+4*i}:{L+4*i+3}], {vOSI}, {sSM} offset:{OSTAT[li]+128+16*i} sc1\n" for i in range(2))
            loads += self.rs_loads(B(2), PL)
            def shadow(nafter):
                for kp in range(8):
                    a(f"s_waitcnt vmcnt({14 - 2*kp + 1 + (0 if c.cs_late else 8) + nafter})")
                    self.perm_pair(WO, WA, kp)
            onorm, ogen = self.lab("onorm"), self.lab("ogen")
            def obody(off):
                a(f"""s_waitcnt vmcnt({off + 8})
v_pk_add_f32 v[{LA}:{LA+1}], v[{L}:{L+1}], v[{L+2}:{L+3}]
v_pk_add_f32 v[{LA+2}:{LA+3}], v[{L+4}:{L+5}], v[{L+6}:{L+7}]
v_pk_add_f32 v[{LA}:{LA+1}], v[{LA}:{LA+1}], v[{LA+2}:{LA+3}]
v_add_f32 v{LA}, v{LA}, v{LA+1}
s_waitcnt vmcnt({off + 4})
v_pk_add_f32 v[{z}:{z+1}], v[{y}:{y+1}], v[{y+2}:{y+3}]
s_waitcnt vmcnt({off})
v_pk_add_f32 v[{z+2}:{z+3}], v[{y+4}:{y+5}], v[{y+6}:{y+7}]
v_pk_add_f32 v[{z}:{z+1}], v[{z}:{z+1}], v[{z+2}:{z+3}]
v_add_f32 v{z}, v{z}, v{z+1}
v_cmp_u_f32 vcc, v{z}, v{LA}
v_or3_b32 v{t+2}, v{L}, v{L+1}, v{L+2}
v_permlane32_swap_b32 v{z}, v{LA}
v_add_f32 v{z}, v{z}, v{LA}
v_mov_b32 v{t}, v{z}""")
            def oover(fb, ov, top):
                fb(f"{ov}:\ns_sub_u32 {sCN2}, {sCN2}, 1\ns_cbranch_scc1 L_exit\ns_mov_b32 {sCNT}, {c.limit}\ns_waitcnt vmcnt(0)")
                self.umax(t, list(range(y, y + 8)) + list(range(L, L + 8)))
                fb(f"v_cmp_eq_u32 vcc, -1, v{t}\ns_cbranch_vccnz {top}\ns_branch {ogen}")
            self.zero_acc()
            a(f"s_mov_b32 {sCN2}, {c.outer}")
            self.poll("o", loads, obody, c.ro if li else (1, 0, 0), shadow if li == 0 else None, bound=c.limit, over=oover)
            a(f"""v_or3_b32 v{t+2}, v{t+2}, v{L+3}, v{L+4}
v_permlane16_swap_b32 v{z}, v{t}
v_add_f32 v{z}, v{z}, v{t}
v_mov_b32 v{LA}, v{z}
v_or3_b32 v{t+2}, v{t+2}, v{L+5}, v{L+6}
v_or_b32 v{t+2}, v{t+2}, v{L+7}
v_permlane32_swap_b32 v{z}, v{LA}
v_rcp_f32 v{LA}, v{LA}
v_cmp_gt_i32 vcc, 0, v{t+2}
v_mul_f32 v{z}, v{z}, v{LA}""")
            self.pack(GA)
            a(f"s_cbranch_vccnz {ogen}\n{onorm}:")
            def ogen_f(fb):
                mloop = self.lab("omloop")
                fb(f"{ogen}:\ns_waitcnt vmcnt(0)\ns_mov_b32 {sCNT}, {c.limit * c.outer}\n{mloop}:\ns_sub_u32 {sCNT}, {sCNT}, 1\ns_cbranch_scc1 L_exit")
                for i in range(2): fb(f"global_load_dwordx4 v[{PM+4*i}:{PM+4*i+3}], {vOSI}, {sSM} offset:{OSTAT[li]+16*i} sc1")
                fb("s_waitcnt vmcnt(0)")
                for i in range(8): fb(f"v_cmp_gt_i32 vcc, 0, v{L+i}\nv_cndmask_b32 v{T2+i}, 0, v{PM+i}, vcc")
                self.umax(t, range(T2, T2 + 8))
                fb(f"v_cmp_eq_u32 vcc, -1, v{t}\ns_cbranch_vccnz {mloop}")
                fb(f"v_max3_f32 v{t}, v{T2}, v{T2+1}, v{T2+2}\nv_max3_f32 v{t}, v{t}, v{T2+3}, v{T2+4}\nv_max3_f32 v{t}, v{t}, v{T2+5}, v{T2+6}\nv_max_f32 v{t}, v{t}, v{T2+7}")
                self.allred(t, t + 1, "v_max_f32")
                for i in range(8): fb(f"v_sub_f32 v{T2+i}, v{T2+i}, v{t}")
                for i in range(8): fb(f"v_exp_f32 v{T2+i}, v{T2+i}")
                fb(f"v_mul_f32 v{GA}, v{T2}, v{y}\nv_mul_f32_e64 v{LA}, v{T2}, |v{L}|")
                for i in range(1, 8): fb(f"v_fmac_f32 v{GA}, v{T2+i}, v{y+i}\nv_fma_f32 v{LA}, v{T2+i}, |v{L+i}|, v{LA}")
                self.allred(LA, t + 1); self.allred(GA, t + 2)
                fb(f"v_rcp_f32 v{LA}, v{LA}\nv_mul_f32 v{GA}, v{GA}, v{LA}")
                self.pack(GA)
                fb(f"s_nop 1\ns_branch {onorm}")
            self.ool(ogen_f)
            st(8)
            self.gemv(WO, B(3), sc)
            a("s_barrier")
            st(9)
            noffn = self.lab("noffn")
            if li == 0:
                l = self.lab("nocg")
                if c.cs_late: a("s_barrier")
                a(f"s_cmp_lt_u32 s34, 14\ns_cbranch_scc0 {l}")
                if c.cs_late: self.colsum_gather(sCG, True)
                self.colsum_gather(sCG, False)
                a(f"{l}:")
            self.zero_acc()
            a(f"s_barrier\ns_cmp_lt_u32 s34, 14\ns_cbranch_scc0 {noffn}")
            st(12)
            self.rs_gather("gu", B(4), ln=2 * li)
            a(f"v_fma_f32 v{GA}, v{GA}, {vRS}, {vNM}\nv_mul_f32_dpp v{GA}, v{GA}, v{GA} row_ror:12 {DPP}")
            self.pack(GA)
            self.gemv(self.WD, B(5), sc, lanes=[0, 2, 8, 10], addr=(vDN, vDN2))
            a(f"{noffn}:")
            st(13)
            a("s_barrier")
        self.end(1)
        self.spare = spare0

    def build(self):
        a = self.a
        self.prologue()
        self.s_stream()
        self.c_pre()
        self.x_head()
        self.x_program(False); self.flush()
        self.y_head()
        self.y_program(False); self.flush()
        self.s_layers(); self.flush()
        a("L_fast_end:\nL_Yslow:")
        self.y_program(True); self.flush()
        a("L_Xslow:")
        self.x_program(True); self.flush()
        a("L_exit:\ns_endpgm")
        head = f"""; Fused decode step: 2 x (LayerNorm -> GQA sliding-window attention -> residual -> LayerNorm -> bilinear GLU -> residual)
; @launch grid=(256,1,1) block=(384,1,1) lds={self.c.ldsx or LDS_BYTES}
.amdgcn_target "amdgcn-amd-amdhsa--gfx950"
.text
.globl {KNAME}
.p2align 8
.type {KNAME},@function
{KNAME}:
"""
        tail = f"""
.section .rodata,"a"
.p2align 6
.amdhsa_kernel {KNAME}
  .amdhsa_next_free_vgpr 256
  .amdhsa_next_free_sgpr 102
  .amdhsa_accum_offset 256
  .amdhsa_group_segment_fixed_size 0
  .amdhsa_kernarg_size 96
  .amdhsa_user_sgpr_count 2
  .amdhsa_user_sgpr_kernarg_segment_ptr 1
  .amdhsa_system_sgpr_workgroup_id_x 1
  .amdhsa_float_denorm_mode_32 3
.end_amdhsa_kernel
"""
        return head + a.text() + tail


def make(**kw):
    c = Cfg()
    for k, v in kw.items(): setattr(c, k, v)
    return Gen(c).build()

if __name__ == "__main__":
    kw = {}
    for x in sys.argv[2:]:
        k, v = x.split("=", 1); kw[k] = eval(v)
    open(sys.argv[1], "w").write(make(**kw))
```

```python
import sys, struct
from asmlib import Asm

KNAME = "interleave_layers__sliding_block_cached__glu_gated_bilinear__decode_kernel"
def f2u(x): return struct.unpack("<I", struct.pack("<f", x))[0]

class Cfg:
    debug = False
    stamp_layer = 0
    nt = " nt"
    win = 4
    wins = [4]*16+[6]*6
    wo_at = 24
    limit = 64
    outer = 2000
    limit1 = 64
    force_slow = False
    rs = (3, 60, 40)
    ro = (3, 60, 40)
    g = (3, 100, 200, 0)
    q0 = (3, 200, 500)
    a0 = (3, 300, 500)
    b2x_first = 0
    cgd = 800
    hooks = (0,)
    lnd = 3
    aq = (4, 60, 40)
    prew = 2
    cs_sc = ''
    pace = 200
    touch = 1
    tpol = ' nt'
    xpol = ''
    pfpol = ''
    exp = ''
    rot = 1
    pf0 = 0
    pf0pol = ' nt'
    pf = 6
    b0_late = 1
    fclean = 0
    ldsx = 0
    dbgwg = 0
    cs_late = 1
    tlb = 0
    xd = 40
    bound = 60.0

DPP = "row_mask:0xf bank_mask:0xf"
G_OFF = 0x1000; G_STRIDE = 0x8000
GB_OFF = 0x40000; GB_STRIDE = 0x60000
SM = 0x50000 + 0x1000
AGQ = [-0x1000, -0xC00]; XALL = [-0x800, -0x400, 0x0]; OSTAT = [0x400, 0x800]; XCC = 0xC00
DBG_OFF = 0x400000
NTAGS = 16
L_O = 32768; L_ST = 40960; L_MODE = L_ST + 128; L_CNT = L_ST + 136; L_CN2 = L_ST + 140; L_Q = 41984; L_WQ = L_Q + 1024; L_GU = L_WQ + 16384; L_WD = L_GU + 16384
LDS_BYTES = L_WD + 8192
sX, sK, sV, sWQ, sWO, sWG, sWU, sWD, sOUT, sWS = ("s[4:5]", "s[6:7]", "s[8:9]", "s[10:11]", "s[12:13]",
    "s[16:17]", "s[18:19]", "s[20:21]", "s[22:23]", "s[26:27]")
sB = ["s[36:37]", "s[38:39]", "s[40:41]"]; sCG = "s[42:43]"; sCQ = "s[40:41]"; sSM = "s[46:47]"
sG = ["s[48:49]", "s[50:51]", "s[52:53]", "s[54:55]"]
sE, sT, sCNT, sXCC, sLO, sHI, sONE, sCN2 = "s56", "s57", "s58", "s61", "s62", "s63", "s64", "s65"
sODD = "s[66:67]"; M56 = "s[14:15]"
vMASK, vIN, vPUB, vPUB2, vGIN, vGPUB, vPAIR, vXALL, vOSI, vOSP, vLDS, vLST = ["v%d" % i for i in range(1, 13)]
vX, vCS, vINX, vPR, vMU, vRS, vNM = "v13", "v14", "v15", "v16", "v17", "v18", "v19"
GA = 20; MA = 28; LA = 36; ACC = 40; TMP = 48; T2 = 64; NEG = 72
vZERO, vAQ, vCLR, vXC, vWO, vDN, vDN2, vJ = "v76", "v79", "v78", "v253", "v208", "v209", "v210", "v211"
vX1, vPAIR8 = "v252", "v254"
WA, WB, SPARE = 80, 144, 212
PL = 214; PM = 222; PX = 238; PC = 242; PG = 250


def HB(hop): return sB[1] if hop == 1 else sB[[1, 2, 0][hop % 3]]


class Gen:
    def __init__(self, cfg):
        self.c = cfg; self.a = Asm(); self.tail = []; self.nlab = 0; self.spare = SPARE

    def lab(self, s):
        self.nlab += 1
        return f"L_{s}_{self.nlab}"

    def stamp(self, i):
        if self.c.debug: self.a(f"s_memtime s[{70+2*i}:{71+2*i}]")

    def end(self, slot):
        a = self.a
        if self.c.debug == 2:
            if slot == 0:
                l = self.lab("nodbg")
                a(f"s_memtime s[100:101]\ns_load_dwordx2 s[24:25], s[0:1], 80\ns_waitcnt vmcnt(0) lgkmcnt(0)\ns_cmp_lt_u32 s2, 8\ns_cbranch_scc0 {l}\ns_mov_b64 exec, 1")
                a("s_lshl_b32 s30, s2, 2\nv_mov_b32 v20, s30\nv_mov_b32 v24, s68\nglobal_store_dword v20, v24, s[24:25]")
                a(f"s_cmp_eq_u32 s2, {self.c.dbgwg}\ns_cbranch_scc0 {l}")
                for j, i in enumerate((1, 4, 6, 10, 11, 14, 15)): a(f"s_sub_u32 s31, s{70+2*i}, s70\nv_mov_b32 v{24+j}, s31")
                a("v_mov_b32 v20, 0\nv_mov_b32 v31, 0\nglobal_store_dwordx4 v20, v[24:27], s[24:25] offset:32\nglobal_store_dwordx4 v20, v[28:31], s[24:25] offset:48")
                a(f"{l}:")
            a("s_endpgm"); return
        if self.c.debug:
            a("s_memtime s[100:101]\ns_waitcnt vmcnt(0) lgkmcnt(0)\ns_mov_b64 exec, -1")
            a(f"s_lshl_b32 s30, s2, 9\ns_add_u32 s30, s30, {DBG_OFF + slot*128}")
            a("v_mov_b32 v20, s30\nv_mov_b32 v24, s68")
            for i in range(1, 16): a(f"s_sub_u32 s31, s{70+2*i}, s70\nv_mov_b32 v{24+i}, s31")
            for i in range(4): a(f"global_store_dwordx4 v20, v[{24+4*i}:{27+4*i}], {sWS} offset:{16*i}")
        a("s_endpgm")

    def tag(self, k): self.a(f"s_add_u32 {sT}, {sE}, {k}\ns_and_b32 {sT}, {sT}, 0x3f\ns_or_b32 {sT}, {sT}, 0x40")

    def nops(self, cyc):
        if cyc >= 192:
            self.a(f"s_sleep {cyc // 64}"); return
        while cyc >= 4:
            k = min(cyc // 4, 16); self.a(f"s_nop {k-1}"); cyc -= 4 * k

    def ool(self, fn):
        fb = Asm(); sv, self.a = self.a, fb
        fn(fb)
        self.a = sv
        self.tail.append(fb.text())

    def flush(self):
        while self.tail: self.a(self.tail.pop(0))

    def poll(self, name, loads, body, par, shadow=None, bound=None, over=None, first=True, pace=0):
        a = self.a
        depth, delay, gap = par
        nl = loads.count("global_")
        top, ov = self.lab(name), self.lab(name + "_over")
        a(f"s_mov_b32 {sCNT}, {bound or self.c.limit * self.c.outer}")
        if first:
            self.nops(delay)
            for k in range(depth - 1):
                a(loads); self.nops(gap)
        if shadow:
            skip = self.lab(name + "_in")
            a(loads); shadow(depth * nl); a(f"s_branch {skip}\n{top}:\n{loads}\n{skip}:")
        else:
            a(f"{top}:\n{loads}")
        a(f"s_sub_u32 {sCNT}, {sCNT}, 1\ns_cbranch_scc1 {ov if over else 'L_exit'}")
        self.nops(pace)
        body((depth - 1) * nl)
        a(f"s_cbranch_vccnz {top}")
        if over: self.ool(lambda fb: over(fb, ov, top))

    def allred(self, r, t, op="v_add_f32"):
        self.a(f"""v_mov_b32 v{t}, v{r}
v_permlane32_swap_b32 v{r}, v{t}
{op} v{r}, v{r}, v{t}
v_mov_b32 v{t}, v{r}
v_permlane16_swap_b32 v{r}, v{t}
{op} v{r}, v{r}, v{t}""")

    def rs_loads(self, base, g, n=8):
        return "\n".join(f"global_load_dword v{g+i}, {vIN}, {base} offset:{256*i} sc1" for i in range(n))

    def umax(self, t, regs):
        regs = list(regs)
        self.a(f"v_max3_u32 v{t}, v{regs[0]}, v{regs[1]}, v{regs[2]}")
        for i in range(3, len(regs), 2): self.a(f"v_max3_u32 v{t}, v{t}, v{regs[i]}, v{regs[min(i+1, len(regs)-1)]}")

    def tagged_sum(self, src, n=8):
        a = self.a
        for i in range(n): a(f"v_xor_b32 v{MA+i}, {sT}, v{src+i}")
        a(f"v_or3_b32 v{TMP}, v{MA}, v{MA+1}, v{MA+2}\nv_or3_b32 v{TMP}, v{TMP}, v{MA+3}, v{MA+4}\nv_or3_b32 v{TMP}, v{TMP}, v{MA+5}, v{MA+6}\nv_or_b32 v{TMP}, v{TMP}, v{MA+7}")
        a(f"v_cmp_ne_u32_sdwa vcc, v{TMP}, 0 src0_sel:BYTE_0 src1_sel:DWORD")
        a(f"v_pk_add_f32 v[{GA}:{GA+1}], v[{MA}:{MA+1}], v[{MA+2}:{MA+3}]\nv_pk_add_f32 v[{GA+2}:{GA+3}], v[{MA+4}:{MA+5}], v[{MA+6}:{MA+7}]")
        a(f"v_pk_add_f32 v[{GA}:{GA+1}], v[{GA}:{GA+1}], v[{GA+2}:{GA+3}]\nv_add_f32 v{GA}, v{GA}, v{GA+1}")

    def rs_gather(self, name, base, n=8, post=None, par=None, ln=None):
        z, t, y = GA, TMP, PL
        done = self.lab(name + "_done")
        def reduce(off, test):
            a = self.a
            a(f"s_waitcnt vmcnt({off + n - 4})\nv_pk_add_f32 v[{z}:{z+1}], v[{y}:{y+1}], v[{y+2}:{y+3}]\ns_waitcnt vmcnt({off})")
            if n == 8: a(f"v_pk_add_f32 v[{z+2}:{z+3}], v[{y+4}:{y+5}], v[{y+6}:{y+7}]\nv_pk_add_f32 v[{z}:{z+1}], v[{z}:{z+1}], v[{z+2}:{z+3}]")
            else: a(f"v_pk_add_f32 v[{z}:{z+1}], v[{z}:{z+1}], v[{y+4}:{y+5}]\nv_add_f32 v{z}, v{z}, v{y+6}")
            a(f"v_add_f32 v{z}, v{z}, v{z+1}\nv_mov_b32 v{t}, v{z}")
            if test: a(f"v_cmp_u_f32 vcc, v{z}, v{z}")
            a(f"v_permlane32_swap_b32 v{z}, v{t}\nv_add_f32 v{z}, v{z}, v{t}\nv_mov_b32 v{t}, v{z}")
        def over(fb, ov, top):
            fb(f"{ov}:\ns_sub_u32 {sCN2}, {sCN2}, 1\ns_cbranch_scc1 L_exit\ns_mov_b32 {sCNT}, {self.c.limit}\ns_waitcnt vmcnt(0)")
            self.umax(t, range(y, y + n))
            fb(f"v_cmp_eq_u32 vcc, -1, v{t}\ns_cbranch_vccnz {top}")
            reduce(0, False)
            fb(f"s_branch {done}")
        loads = self.rs_loads(base, PL, n)
        a = self.a
        a(f"s_mov_b32 {sCN2}, {self.c.outer}")
        if ln is None:
            self.poll(name, loads, lambda off: reduce(off, True), par or self.c.rs, bound=self.c.limit, over=over)
        else:
            xl = f"global_load_dwordx4 v[{PX}:{PX+3}], {vXALL}, {sSM} offset:{XALL[ln]} sc1"
            xchk = f"v_max3_u32 v{TMP}, v{PX}, v{PX+1}, v{PX+2}\nv_max_u32 v{TMP}, v{TMP}, v{PX+3}\nv_cmp_eq_u32 vcc, -1, v{TMP}"
            xr, xok = self.lab("xretry"), self.lab("xok")
            a(f"{xl}\ns_mov_b32 {sCNT}, {self.c.limit * self.c.outer}")
            self.nops(self.c.xd)
            a(f"{loads}\ns_waitcnt vmcnt({n})\n{xchk}\ns_cbranch_vccnz {xr}\n{xok}:")
            self.tail.append(f"{xr}:\n{xl}\n{xr}_b:\n{xl}\ns_sub_u32 {sCNT}, {sCNT}, 1\ns_cbranch_scc1 L_exit\ns_waitcnt vmcnt(1)\n{xchk}\ns_cbranch_vccnz {xr}_b\n{loads}\ns_branch {xok}\n")
            self.stats(PX, lambda: a(loads))
            a(f"v_mul_f32 {vNM}, {vMU}, {vRS}\nv_mul_f32_e64 {vNM}, -{vNM}, {vCS}")
            self.poll(name, loads, lambda off: reduce(off, True), (self.c.lnd, 0, 0), bound=self.c.limit, over=over, first=False)
        a(f"{done}:\nv_permlane16_swap_b32 v{z}, v{t}\nv_add_f32 v{z}, v{z}, v{t}")

    def pack(self, r):
        self.a(f"v_mov_b32_dpp v{TMP}, v{r} quad_perm:[1,0,3,2] {DPP}\nv_cvt_pk_bf16_f32 {vPR}, v{r}, v{TMP}")

    def perm_pair(self, W, base, kp):
        W.append([])
        for u in range(4):
            lo = base + 8 * kp + u; hi = lo + 4; s = self.spare
            self.a(f"v_perm_b32 v{s}, v{hi}, v{lo}, {sLO}\nv_perm_b32 v{hi}, v{hi}, v{lo}, {sHI}")
            W[kp] += [s, hi]; self.spare = lo

    def zero_acc(self):
        for j in range(0, 8, 2): self.a(f"v_mov_b64 v[{ACC+j}:{ACC+j+1}], 0")

    def dots(self, W, kp, src=None, lane=None):
        for j in range(8):
            if src: self.a(f"v_dot2c_f32_bf16 v{ACC+j}, {src}, v{W[kp][j]}")
            else: self.a(f"v_dot2c_f32_bf16_dpp v{ACC+j}, {vPR}, v{W[kp][j]} row_newbcast:{2*kp if lane is None else lane} {DPP}")

    def gemv(self, W, base, sc, lanes=None, addr=(vPUB, vPUB2), mask=None):
        a = self.a
        n = len(W)
        d = lambda kp, j: a(f"v_dot2c_f32_bf16_dpp v{ACC+j}, {vPR}, v{W[kp][j]} row_newbcast:{2*kp if lanes is None else lanes[kp]} {DPP}")
        def store(t):
            if mask: a(f"s_mov_b64 exec, {mask}")
            a(f"global_store_dwordx4 {addr[t]}, v[{ACC+4*t}:{ACC+4*t+3}], {base}{sc}")
            if mask: a("s_mov_b64 exec, -1")
        for kp in range(n):
            for j in range(4): d(kp, j)
        for kp in range(n):
            for j in range(4, 8): d(kp, j)
            if kp == 0: store(0)
        store(1)

    def tagged_publish(self, base, sc, mask=None):
        a = self.a
        for j in range(8): a(f"v_bfi_b32 v{ACC+j}, {vMASK}, {sT}, v{ACC+j}")
        if mask: a(f"s_mov_b64 exec, {mask}")
        a(f"global_store_dwordx4 {vPUB}, v[{ACC}:{ACC+3}], {base}{sc}\nglobal_store_dwordx4 {vPUB2}, v[{ACC+4}:{ACC+7}], {base}{sc}")
        if mask: a("s_mov_b64 exec, -1")

    def clear_inbox(self, base, sc):
        self.a(f"global_store_dwordx4 {vINX}, v[{NEG}:{NEG+3}], {base}{sc}\nglobal_store_dwordx4 {vINX}, v[{NEG}:{NEG+3}], {base} offset:1024{sc}")

    def stats(self, x, hook=None):
        a = self.a
        p, q = TMP, TMP + 1
        a(f"v_mov_b32 v{p}, 0\nv_mov_b32 v{q}, 0")
        for i in range(4): a(f"v_dot2c_f32_bf16 v{p}, {sONE}, v{x+i}\nv_dot2c_f32_bf16 v{q}, v{x+i}, v{x+i}")
        a(f"v_mov_b32 v{q+1}, 0x{f2u(1/512.):08x}\nv_mov_b32 v{q+2}, 0x{f2u(1e-5):08x}")
        a(f"v_permlane32_swap_b32 v{p}, v{q}\nv_add_f32 v{p}, v{p}, v{q}\nv_mov_b32 v{q}, v{p}")
        a(f"v_permlane16_swap_b32 v{p}, v{q}\nv_add_f32 v{p}, v{p}, v{q}")
        for i, r in enumerate((8, 4, 2, 1)):
            if hook and i in self.c.hooks: hook()
            a(f"v_add_f32_dpp v{p}, v{p}, v{p} row_ror:{r} {DPP}")
        a(f"v_readlane_b32 s30, v{p}, 0\nv_readlane_b32 s31, v{p}, 32")
        if hook and 4 in self.c.hooks: hook()
        a(f"v_mul_f32 {vMU}, s30, v{q+1}\nv_fma_f32 {vRS}, s31, v{q+1}, v{q+2}")
        a(f"v_fma_f32 {vRS}, -{vMU}, {vMU}, {vRS}\nv_max_f32 {vRS}, {vRS}, v{q+2}\nv_rsq_f32 {vRS}, {vRS}")

    def pair_store(self, base, off, sc):
        self.a(f"s_mov_b64 exec, 0x5555\nglobal_store_dword {vPAIR}, {vPR}, {base} offset:{off}{sc}\ns_mov_b64 exec, -1")

    def lds_weights(self, W, base, vaddr, off, npair, use=None):
        a = self.a
        rd = lambda k: a(f"ds_read_b128 v[{base+4*k}:{base+4*k+3}], {vaddr} offset:{off+1024*k}")
        for k in range(min(8, 2 * npair)): rd(k)
        for kp in range(npair):
            if 2 * kp + 8 < 2 * npair:
                rd(2 * kp + 8); rd(2 * kp + 9); out = 8
            else: out = 2 * npair - 2 * kp - 2
            a(f"s_waitcnt lgkmcnt({out})")
            self.perm_pair(W, base, kp)
            if use: use(kp)

    def prologue(self):
        a = self.a; c = self.c
        if c.debug: a("s_memtime s[70:71]\ns_memrealtime s[68:69]")
        a(f"""s_load_dwordx16 s[4:19], s[0:1], 0
s_load_dwordx8 s[20:27], s[0:1], 64
s_cmpk_ge_u32 s2, 0x100
s_cbranch_scc1 L_exit
v_lshrrev_b32 v1, 6, v0
v_and_b32 v0, 63, v0
s_lshr_b32 s29, s2, 3
v_readfirstlane_b32 s33, v1
s_and_b32 s28, s2, 7
s_and_b32 s34, s29, 15
s_lshr_b32 s35, s29, 4
s_lshl_b32 s60, s34, 5
s_lshl2_add_u32 s60, s35, s60
v_lshlrev_b32 v15, 4, v0
s_cmp_ge_u32 s33, 4
s_cbranch_scc1 L_C0
s_lshl3_add_u32 s32, s33, s60
s_lshl3_add_u32 s30, s32, s28
s_lshl_b32 s30, s30, 10
v_add_u32 v1, s30, v15
s_lshl_b32 s36, s33, 12
s_add_u32 m0, s36, {L_WQ}
s_movk_i32 s3, 0x2000
s_waitcnt lgkmcnt(0)""")
        for i in range(4):
            a(f"global_load_lds_dwordx4 v1, {sWQ}{c.nt}")
            if i < 3: a("s_addk_i32 m0, 0x400\nv_add_u32 v1, s3, v1")
        a(f"""s_branch L_S1
L_C0:
s_cmp_eq_u32 s33, 4
s_cbranch_scc1 L_X0
s_getpc_b64 s[30:31]
s_mulk_i32 s29, {128 * c.pf}
v_lshl_add_u32 v2, v0, 7, s29
s_mov_b64 exec, {(1 << c.pf) - 1}
global_load_dword {vJ}, v2, s[30:31]{c.pfpol}
s_branch L_C
L_X0:
{self.pf0()}s_waitcnt lgkmcnt(0)
global_load_dwordx4 v[32:35], v15, {sX}{c.xpol}
s_branch L_C
L_early_end:""")

    def pf0(self):
        c = self.c
        if not c.pf0: return "s_setprio 3\n"
        return f"s_getpc_b64 s[30:31]\nv_lshlrev_b32 v2, 7, v0\ns_mov_b64 exec, {(1 << c.pf0) - 1 if c.pf0 <= 6 else hex((1 << c.pf0) - 1)}\nglobal_load_dword {vJ}, v2, s[30:31]{c.pf0pol}\ns_mov_b64 exec, -1\n"

    def consts(self):
        self.a("s_mov_b32 s62, 0x05040100\ns_mov_b32 s63, 0x07060302\ns_mov_b32 s64, 0x3f803f80")

    KF, VR, VF, Q, D, P, ON, O, OL, X, T = 16, 48, 80, 112, 128, 136, 140, 144, 176, 184, 192

    def s_stream(self):
        a = self.a; c = self.c
        KF, VR, VF, ON, T = self.KF, self.VR, self.VF, self.ON, self.T
        n = [4]; landed = [-1]
        wins = c.wins
        def signal(off):
            a(f"v_mov_b32 v{T}, 1\ns_mov_b64 s[38:39], exec\ns_mov_b64 exec, 1\nds_add_u32 v{T+12}, v{T} offset:{off}\ns_mov_b64 exec, s[38:39]")
        def throttle():
            w = wins[n[0] - 4]
            if n[0] - w > landed[0]:
                if landed[0] < 3 <= n[0] - w:
                    a(f"s_waitcnt vmcnt({n[0] - 4})")
                    if 'noq' in c.exp: self.stamp(14)
                    a("s_barrier"); self.stamp(1)
                    landed[0] = 3
                if n[0] - w > landed[0]: a(f"s_waitcnt vmcnt({w-1})"); landed[0] = n[0] - w
            if 'noq' in c.exp and n[0] in (4, 8, 12, 16, 20): self.stamp({4: 9, 8: 10, 12: 11, 16: 12, 20: 13}[n[0]])
            if n[0] == c.wo_at: signal(L_CNT)
            n[0] += 1
        a("""L_S1:
s_lshl_b32 s30, s28, 24
s_lshl_b32 s31, s29, 15
s_add_u32 s30, s30, s31
s_add_u32 s30, s30, 0xF00000
s_add_u32 s6, s6, s30
s_addc_u32 s7, s7, 0
s_lshl_b32 s40, s33, 13
s_mov_b32 m0, s40
v_and_b32 v6, 15, v0
v_lshrrev_b32 v7, 4, v0
v_xor_b32 v8, v6, v7
v_lshlrev_b32 v8, 4, v8
v_lshl_add_u32 v9, v7, 8, v8
v_add_u32 v9, s40, v9""")
        if c.rot: a("s_lshl_b32 s37, s29, 2\ns_and_b32 s31, s28, 3\ns_or_b32 s37, s37, s31\ns_lshl_b32 s37, s37, 8\nv_xor_b32 v9, s37, v9")
        else: a("s_mov_b32 s37, 0")
        for i in range(8):
            if i: a(f"s_addk_i32 m0, 0x400\nv_xor_b32 v1, {64*(i&3) + 1024*i}, v9")
            throttle()
            a(f"global_load_lds_dwordx4 {'v1' if i else 'v9'}, {sK}{c.nt}")
            if i == 3:
                a("s_add_u32 s8, s8, s30\ns_addc_u32 s9, s9, 0")
                self.consts()
                a("v_lshlrev_b32 v10, 4, v6\nv_lshl_add_u32 v10, v7, 10, v10\nv_add_u32 v10, s40, v10\nv_xor_b32 v10, s37, v10")
                a("v_lshl_add_u32 v11, v6, 8, v8\nv_add_u32 v11, s40, v11")
                for j in range(1, 4): a(f"v_xor_b32 v{11+j}, {64*j}, v11")
                a("v_lshrrev_b32 v2, 2, v6\nv_lshlrev_b32 v5, 4, v2\nv_lshlrev_b32 v2, 8, v2\nv_lshl_add_u32 v2, v7, 4, v2")
                a(f"s_lshl_b32 s31, s33, 2\ns_add_u32 s31, s31, {L_ST}\nv_add_u32 v5, s31, v5")
                a(f"v_lshlrev_b32 v3, 4, v7\nv_add_u32 v3, s31, v3")
                a(f"s_lshl_b32 s31, s33, 11\ns_add_u32 s31, s31, {L_O}\nv_lshlrev_b32 v4, 2, v0\nv_add_u32 v4, s31, v4")
            if i == 4:
                for k in range(4): a(f"v_mov_b32 v{ON+k}, {sONE}")
                cs = f2u(128**-0.5*1.4426950408889634)
                a(f"v_mov_b32 v{T+6}, 0x{cs:08x}\nv_mov_b32 v{T+7}, 0x{cs:08x}\nv_mov_b32 v{T+5}, 0x{f2u(c.bound):08x}\nv_mov_b32 v{T+12}, 0")
                a(f"v_add_u32 v2, {L_Q}, v2\nv_lshrrev_b32 v{T}, 2, v6")
                for j in range(4): a(f"v_add_u32 v{T+1}, {j}, v{T}\nv_and_b32 v{T+1}, 3, v{T+1}\nv_lshl_add_u32 v{T+8+j}, v{T+1}, 6, v2")
            if i == 5:
                a("""s_mul_i32 s30, s32, 3584
s_mul_i32 s31, s28, 448
s_add_u32 s30, s30, s31
v_and_b32 v184, 31, v0
v_lshl_add_u32 v184, v184, 4, s30
v_cmp_gt_u32 vcc, 32, v0
v_mov_b32 v186, s18
v_mov_b32 v187, s19
v_mov_b32 v188, s16
v_mov_b32 v189, s17
v_cndmask_b32 v186, v186, v188, vcc
v_cndmask_b32 v187, v187, v189, vcc
v_mov_b32 v185, 0
s_mov_b32 s14, 3584
s_mov_b32 s15, 0
v_lshl_add_u64 v[184:185], v[184:185], 0, v[186:187]
s_min_u32 s30, s34, 13
s_lshl_b32 s30, s30, 4
s_mul_i32 s31, s28, 224
s_add_u32 s30, s30, s31
s_lshl2_add_u32 s30, s35, s30
s_lshr_b32 s31, s33, 1
s_lshl3_add_u32 s30, s31, s30
s_and_b32 s31, s33, 1
s_lshl1_add_u32 s30, s31, s30
s_lshl_b32 s30, s30, 10
v_add_u32 v190, s30, v15""")
        for i in range(8):
            if i: a(f"v_xor_b32 v1, {(i>>2)*4096+(i&3)*256}, v10")
            throttle()
            a(f"global_load_dwordx4 v[{VR+4*i}:{VR+4*i+3}], {'v1' if i else 'v10'}, {sV}{c.nt}")
        kread = [False]; vdone = [0]
        def work():
            if landed[0] >= 11 and not kread[0]:
                kread[0] = True
                for t in range(2):
                    for j in range(4): a(f"ds_read_b128 v[{KF+16*t+4*j}:{KF+16*t+4*j+3}], v{11+j} offset:{4096*t}")
            while vdone[0] < 4 and landed[0] >= 13 + 2 * vdone[0]:
                self.vperm(vdone[0]); vdone[0] += 1
        work()
        a(f"s_add_u32 m0, s36, {L_GU}")
        for i in range(4):
            throttle()
            a(f"s_mov_b32 exec_lo, 0x0fffffff\ns_mov_b32 exec_hi, 0x0fffffff\nglobal_load_lds_dwordx4 v[184:185], off{c.nt}\ns_mov_b64 exec, -1")
            if i < 3: a("s_addk_i32 m0, 0x400\nv_lshl_add_u64 v[184:185], v[184:185], 0, s[14:15]")
            else: a(f"s_lshl_b32 s31, s33, 11\ns_add_u32 m0, s31, {L_WD}")
            work()
        for i in range(2):
            throttle()
            a(f"global_load_lds_dwordx4 v190, {sWD} offset:{1024*i}{c.nt}")
            work()
        if c.wo_at >= 26: signal(L_CNT)
        assert kread[0]
        self.vdone = vdone[0]; self.signal = signal
        self.stamp(2)
        a("s_branch L_S2")

    def vperm(self, u):
        for up in range(4):
            for b in range(2):
                self.a(f"v_perm_b32 v{self.VF+4*(2*up+b)+u}, v{self.VR+4*(2*u+1)+up}, v{self.VR+4*(2*u)+up}, {sHI if b else sLO}")

    def s_layers(self):
        a = self.a; c = self.c
        KF, VR, VF, Q, D, P, ON, O, OL, X, T = self.KF, self.VR, self.VF, self.Q, self.D, self.P, self.ON, self.O, self.OL, self.X, self.T
        a("L_S2:")
        for li in range(2):
            if li: a("s_barrier\n" * 4)
            a(f"v_mov_b32 v{T+4}, 0\ns_waitcnt lgkmcnt(0)\ns_barrier")
            self.stamp(3 + 6 * li)
            if 'noq' in c.exp and li == 0:
                a("s_waitcnt vmcnt(0)"); self.stamp(4)
                l = self.lab("x"); a(f"s_cmp_eq_u32 s33, 0\ns_cbranch_scc1 {l}\ns_endpgm\n{l}:"); self.end(2)
            for j in range(4): a(f"ds_read_b128 v[{Q+4*j}:{Q+4*j+3}], v{T+8+j}")
            a(f"ds_write_b32 v5, v{T+4}")
            for j in range(4):
                a(f"s_waitcnt lgkmcnt({4 - j})")
                for t in range(2):
                    cc = f"v[{D+4*t}:{D+4*t+3}]"
                    a(f"v_mfma_f32_16x16x32_bf16 {cc}, v[{KF+16*t+4*j}:{KF+16*t+4*j+3}], v[{Q+4*j}:{Q+4*j+3}], {cc if j else 0}")
            self.stamp(5 + 6 * li)
            for i in range(0, 8, 2): a(f"v_pk_mul_f32 v[{X+i}:{X+i+1}], v[{D+i}:{D+i+1}], v[{T+6}:{T+7}]")
            for i in range(8): a(f"v_exp_f32 v{D+i}, v{X+i}")
            for u in range(4): a(f"v_cvt_pk_bf16_f32 v{P+u}, v{D+2*u}, v{D+2*u+1}")
            self.stamp(6 + 6 * li)
            if li == 0:
                for u in range(self.vdone, 4):
                    a(f"s_waitcnt vmcnt({12 - 2*u})")
                    self.vperm(u)
                self.stamp(4)
            lfb, lback = self.lab("fallback"), self.lab("pv")
            a(f"{lback}:")
            for e in range(8):
                a(f"v_mfma_f32_16x16x32_bf16 v[{O+4*e}:{O+4*e+3}], v[{P}:{P+3}], v[{VF+4*e}:{VF+4*e+3}], 0")
                if e == 0: a(f"v_max3_f32 v{T}, v{X}, v{X+1}, v{X+2}\nv_max3_f32 v{T+1}, v{X+3}, v{X+4}, v{X+5}")
                if e == 1: a(f"v_max3_f32 v{T}, v{T}, v{X+6}, v{X+7}\nv_max_f32 v{T}, v{T}, v{T+1}")
                if e == 2: a(f"v_cmp_gt_f32 vcc, |v{T}|, v{T+5}")
                if e == 3: a(f"v_mfma_f32_16x16x32_bf16 v[{OL}:{OL+3}], v[{P}:{P+3}], v[{ON}:{ON+3}], 0\ns_cbranch_vccnz {lfb}")
                if e == 5: a(f"ds_write2st64_b32 v4, v{O}, v{O+4} offset0:0 offset1:1")
                if e == 7: a(f"ds_write2st64_b32 v4, v{O+8}, v{O+12} offset0:2 offset1:3\nds_write_b32 v3, v{OL} offset:64")
            for e in range(4, 8, 2): a(f"ds_write2st64_b32 v4, v{O+4*e}, v{O+4*e+4} offset0:{e} offset1:{e+1}")
            a("s_waitcnt lgkmcnt(0)")
            self.stamp(7 + 6 * li)
            a("s_barrier")
            if li == 0:
                a("s_waitcnt vmcnt(0)"); self.signal(L_CN2); a("s_waitcnt lgkmcnt(0)"); self.stamp(8)
            def fbk(fb):
                fb(f"{lfb}:\ns_nop 7")
                self.allred(T, T + 1, "v_max_f32")
                for i in range(8): fb(f"v_sub_f32 v{X+i}, v{X+i}, v{T}")
                for i in range(8): fb(f"v_exp_f32 v{D+i}, v{X+i}\nv_mov_b32 v{X+i}, 0")
                for u in range(4): fb(f"v_cvt_pk_bf16_f32 v{P+u}, v{D+2*u}, v{D+2*u+1}")
                fb(f"ds_write_b32 v5, v{T}\ns_nop 7\ns_branch {lback}")
            self.ool(fbk)
        if c.debug:
            l = self.lab("sdone")
            a(f"s_cmp_eq_u32 s33, 0\ns_cbranch_scc1 {l}\ns_endpgm\n{l}:")
        self.end(2)

    def clear_all(self, sc):
        a = self.a
        a(f"s_mov_b32 exec_hi, 0x00ffffff\nglobal_store_dword {vCLR}, v{NEG}, {sSM} offset:{AGQ[0]}{sc}\ns_mov_b64 exec, -1")
        self.clear_inbox(sB[0], sc)

    def c_pre(self):
        a = self.a; c = self.c
        a(f"""L_C:
s_mov_b64 exec, -1
s_lshr_b32 s29, s2, 3
s_waitcnt lgkmcnt(0)
s_load_dword {sE}, {sWS}, 0
s_mul_i32 s59, s28, {GB_STRIDE}
s_add_u32 s59, s59, {GB_OFF}
v_and_b32 v20, 15, v0
v_lshrrev_b32 v21, 4, v0
v_lshlrev_b32 v22, 2, v0
v_lshlrev_b32 {vXALL}, 4, v0
v_lshrrev_b32 v23, 2, v20
v_and_b32 v24, 3, v0
v_lshl_add_u32 v28, v23, 3, v24
v_add_u32 v28, s60, v28
v_lshlrev_b32 {vPAIR}, 1, v28
v_mov_b64 v[76:77], 0
s_lshl_b32 s30, s29, 11
v_add_u32 {vINX}, s30, {vXALL}
v_add_u32 {vIN}, s30, v22
v_mov_b64 v[{NEG}:{NEG+1}], -1
v_mov_b64 v[{NEG+2}:{NEG+3}], -1
s_cmp_eq_u32 s33, 4
s_cbranch_scc0 L_Ypre""")
        a(f"""v_and_b32 v31, 7, v0
v_lshrrev_b32 v25, 1, v31
v_and_b32 v26, 1, v0
v_lshlrev_b32 v25, 4, v25
v_lshl_add_u32 v25, v26, 2, v25
s_lshl_b32 s31, s60, 1
v_add_u32 v25, s31, v25
s_and_b32 s31, s29, 3
s_lshl_b32 s31, s31, 5
s_lshr_b32 s32, s29, 2
s_lshl_b32 s32, s32, 2
s_add_u32 s31, s31, s32
v_lshl_add_u32 v27, v31, 7, s31
v_cmp_gt_u32 vcc, 40, v0
v_lshrrev_b32 {vCLR}, 3, v0
v_lshlrev_b32 {vCLR}, 10, {vCLR}
v_cndmask_b32 v25, v27, v25, vcc
v_add_u32 {vCLR}, {vCLR}, v25
v_and_b32 v25, 6, v0
v_lshlrev_b32 v25, 3, v25
v_lshl_add_u32 v25, v26, 2, v25
s_lshl_b32 s31, s60, 1
v_add_u32 {vPAIR8}, s31, v25
global_load_dword {vX1}, {vPAIR8}, {sX}{c.xpol}""")
        assert OSTAT[0] - AGQ[0] == 5 * 1024 and OSTAT[1] - OSTAT[0] == 1024
        self.bases()
        self.clear_all("")
        if c.touch:
            a(f"v_lshlrev_b32 v29, 16, v21\nv_lshl_add_u32 v29, v20, 7, v29\ns_lshl_b32 s30, s29, 11\nv_add_u32 v29, s30, v29\ns_mov_b32 exec_hi, 0xffff\nglobal_load_dword {vJ}, v29, {sB[0]}{c.tpol}\ns_mov_b64 exec, -1")
            a(f"s_lshl_b32 s30, s29, 8\nv_lshl_add_u32 v29, v0, 7, s30\ns_mov_b64 exec, 3\nglobal_load_dword {vJ}, v29, {sSM} offset:-4096{c.tpol}\ns_mov_b64 exec, -1")
        a(f"s_branch L_Cjoin\nL_Ypre:\nv_mov_b32 {vCLR}, 0\nv_mov_b32 {vPAIR8}, 0")
        if c.tlb:
            nl = c.tlb
            a(f"""s_lshl_b32 s30, s28, 24
s_lshl_b32 s31, s29, 15
s_add_u32 s30, s30, s31
s_add_u32 s30, s30, 0xF00000
v_lshl_add_u32 v25, v0, 13, s30
s_mul_i32 s30, s60, 3584
s_mul_i32 s31, s28, 448
s_add_u32 s30, s30, s31
v_mul_u32_u24 v26, 28672, v0
v_add_u32 v26, s30, v26
s_min_u32 s30, s34, 13
s_lshl_b32 s30, s30, 4
s_mul_i32 s31, s28, 224
s_add_u32 s30, s30, s31
s_lshl_b32 s30, s30, 10
v_lshl_add_u32 v27, v0, 12, s30
s_and_b32 s31, s29, 3
s_lshl_b32 s31, s31, 7
s_lshr_b32 s32, s29, 2
s_add_u32 s31, s31, s32
s_lshl_b32 s32, s28, 9
s_add_u32 s31, s31, s32
s_lshl_b32 s31, s31, 10
v_lshl_add_u32 v29, v0, 15, s31
s_mov_b64 exec, {(1 << nl) - 1}
global_load_dword {vJ}, v26, {sWG} nt
global_load_dword {vJ}, v26, {sWU} nt
global_load_dword {vJ}, v27, {sWD} nt
global_load_dword {vJ}, v25, {sK} nt
global_load_dword {vJ}, v25, {sV} nt
global_load_dword {vJ}, v29, {sWO} nt
s_mov_b64 exec, -1""")
        a(f"global_load_ushort {vJ}, {vPAIR}, {sOUT}")
        self.bases()
        a("L_Cjoin:")
        self.consts()
        a(f"""s_getreg_b32 s61, hwreg(HW_REG_XCC_ID, 0, 4)
v_mov_b32 {vMASK}, 0xff
s_lshl_b32 s31, s29, 10
v_lshrrev_b32 {vGIN}, 3, v0
v_lshlrev_b32 {vGIN}, 7, {vGIN}
v_and_b32 v25, 7, v0
v_lshl_add_u32 {vGIN}, v25, 3, {vGIN}
v_add_u32 {vGIN}, s31, {vGIN}
s_lshl_b32 s32, s28, 7
s_add_u32 s31, s31, s32
v_lshl_add_u32 {vGPUB}, v20, 2, s31
v_lshlrev_b32 {vAQ}, 2, v21
v_sub_u32 {vAQ}, v0, {vAQ}
v_and_b32 {vAQ}, 15, {vAQ}
v_lshl_add_u32 {vAQ}, v21, 4, {vAQ}
v_lshlrev_b32 {vAQ}, 4, {vAQ}
v_lshrrev_b32 v25, 2, v0
v_lshlrev_b32 v25, 11, v25
v_lshl_add_u32 v25, v24, 4, v25
s_lshl_b32 s31, s29, 6
v_add_u32 {vPUB}, s31, v25
v_add_u32 {vPUB2}, 0x8000, {vPUB}
s_mul_i32 s31, s35, 14
s_add_u32 s31, s31, s34
s_lshl_b32 s31, s31, 6
v_add_u32 {vDN}, s31, v25
v_add_u32 {vDN2}, 0x8000, {vDN}
s_and_b32 s31, s29, 3
s_lshl_b32 s32, s31, 8
v_lshl_add_u32 {vOSI}, v21, 5, s32
s_lshl_b32 s31, s31, 5
s_lshr_b32 s32, s29, 2
s_lshl_b32 s32, s32, 2
s_add_u32 s31, s31, s32
v_and_b32 v26, 1, v0
v_and_b32 v27, 3, v23
v_lshlrev_b32 {vOSP}, 8, v27
v_lshl_add_u32 {vOSP}, v26, 7, {vOSP}
v_add_u32 {vOSP}, s31, {vOSP}
s_sub_u32 s31, s33, 4
s_lshl_b32 s31, s31, 10
s_add_u32 s31, s31, {L_O}
v_add_u32 {vLDS}, s31, {vXALL}
v_lshlrev_b32 {vLST}, 4, v27
v_add_u32 {vLST}, {L_ST}, {vLST}
s_mov_b32 s66, 0xaaaaaaaa
s_mov_b32 s67, 0xaaaaaaaa
s_mov_b32 s14, -1
s_mov_b32 s15, 0x00ffffff
s_and_b32 s31, s29, 3
s_lshl_b32 s31, s31, 7
s_lshr_b32 s32, s29, 2
s_add_u32 s31, s31, s32
s_lshl_b32 s32, s28, 9
s_add_u32 s31, s31, s32
s_lshl_b32 s31, s31, 10
v_add_u32 {vWO}, s31, {vXALL}
v_and_b32 {vXC}, 31, v0
v_lshlrev_b32 {vXC}, 2, {vXC}
s_cmp_eq_u32 s33, 4
s_cbranch_scc0 L_Y""")

    def lds_wait(self, off, n):
        l = self.lab("cnt")
        self.a(f"{l}:\nds_read_b32 v{TMP+1}, {vZERO} offset:{off}\ns_sub_u32 {sCN2}, {sCN2}, 1\ns_cbranch_scc1 L_exit\ns_waitcnt lgkmcnt(0)")
        self.a(f"v_cmp_gt_u32 vcc, {n}, v{TMP+1}\ns_cbranch_vccnz {l}")

    def prewrite(self, val):
        self.a(f"v_lshrrev_b32 v{TMP}, 4, v0\nv_lshlrev_b32 v{TMP}, 15, v{TMP}\nv_add_u32 v{TMP}, v{TMP}, {vGPUB}\nv_mov_b32 v{TMP+1}, {val}")
        self.a(f"global_atomic_swap v{TMP}, v{TMP+1}, {sG[0]}")

    def bases(self):
        a = self.a
        a("s_add_u32 s36, s26, s59\ns_addc_u32 s37, s27, 0")
        a(f"s_add_u32 s46, s36, {SM}\ns_addc_u32 s47, s37, 0")
        for i in range(1, 5): a(f"s_add_u32 s{36+2*i}, s36, {0x10000*i}\ns_addc_u32 s{37+2*i}, s37, 0")
        for k in range(4): a(f"s_add_u32 s{48+2*k}, s26, {G_OFF+G_STRIDE*k}\ns_addc_u32 s{49+2*k}, s27, 0")

    def combine(self, li, base, half, sc):
        a = self.a
        gen_c, back_c = self.lab("cgen"), self.lab("cback")
        addr = vPUB2 if half else vPUB
        a(f"ds_read_b128 v[{T2}:{T2+3}], {vLST}")
        for w in range(4): a(f"ds_read_b128 v[{TMP+4*w}:{TMP+4*w+3}], {vLDS} offset:{2048*w}")
        a(f"ds_read_b128 v[{T2+4}:{T2+7}], {vLST} offset:64")
        a(f"s_waitcnt lgkmcnt(3)\nv_or3_b32 v{GA}, v{T2}, v{T2+1}, v{T2+2}")
        a(f"v_pk_add_f32 v[{ACC}:{ACC+1}], v[{TMP}:{TMP+1}], v[{TMP+4}:{TMP+5}]\nv_or_b32 v{GA}, v{GA}, v{T2+3}")
        a(f"v_pk_add_f32 v[{ACC+2}:{ACC+3}], v[{TMP+2}:{TMP+3}], v[{TMP+6}:{TMP+7}]\nv_cmp_ne_u32 vcc, 0, v{GA}\ns_waitcnt lgkmcnt(2)")
        a(f"v_pk_add_f32 v[{ACC}:{ACC+1}], v[{ACC}:{ACC+1}], v[{TMP+8}:{TMP+9}]\nv_pk_add_f32 v[{ACC+2}:{ACC+3}], v[{ACC+2}:{ACC+3}], v[{TMP+10}:{TMP+11}]\ns_waitcnt lgkmcnt(1)")
        a(f"v_pk_add_f32 v[{ACC}:{ACC+1}], v[{ACC}:{ACC+1}], v[{TMP+12}:{TMP+13}]\nv_pk_add_f32 v[{ACC+2}:{ACC+3}], v[{ACC+2}:{ACC+3}], v[{TMP+14}:{TMP+15}]")
        a(f"s_cbranch_vccnz {gen_c}\nglobal_store_dwordx4 {addr}, v[{ACC}:{ACC+3}], {base}{sc}")
        if not half:
            a(f"s_waitcnt lgkmcnt(0)\nv_pk_add_f32 v[{GA}:{GA+1}], v[{T2+4}:{T2+5}], v[{T2+6}:{T2+7}]\nv_add_f32 v{GA}, v{GA}, v{GA+1}")
            a(f"s_mov_b64 exec, 0x2222\n{back_c}:\nglobal_store_dword {vOSP}, v{GA}, {sSM} offset:{OSTAT[li]}{sc}\ns_mov_b64 exec, -1")
        else: a(f"{back_c}:")
        def cgen(fb):
            fb(f"{gen_c}:\ns_waitcnt lgkmcnt(0)")
            fb(f"v_max3_f32 v{GA}, v{T2}, v{T2+1}, v{T2+2}\nv_max_f32 v{GA}, v{GA}, v{T2+3}")
            for w in range(4): fb(f"v_sub_f32 v{T2+w}, v{T2+w}, v{GA}")
            for w in range(4): fb(f"v_exp_f32 v{T2+w}, v{T2+w}")
            for w in range(4):
                for j in range(4):
                    fb(f"v_mul_f32 v{ACC+j}, v{T2}, v{TMP+j}" if w == 0 else f"v_fmac_f32 v{ACC+j}, v{T2+w}, v{TMP+4*w+j}")
            fb(f"global_store_dwordx4 {addr}, v[{ACC}:{ACC+3}], {base}{sc}")
            if not half:
                fb(f"v_mul_f32 v{GA+1}, v{T2}, v{T2+4}")
                for w in range(1, 4): fb(f"v_fmac_f32 v{GA+1}, v{T2+w}, v{T2+4+w}")
                fb(f"v_or_b32 v{GA+1}, 0x80000000, v{GA+1}\nv_cndmask_b32 v{GA}, v{GA}, v{GA+1}, {sODD}\ns_mov_b64 exec, 0x3333")
            fb(f"s_nop 1\ns_branch {back_c}")
        self.ool(cgen)

    def colsum_gather(self, base, issue, wait=True):
        loads = self.rs_loads(base, PC)
        if issue:
            self.a(loads); return
        a = self.a
        top, chk = self.lab("cs"), self.lab("cschk")
        self.tag(1)
        a(f"s_mov_b32 {sCNT}, {self.c.limit * self.c.outer}")
        if wait: a("s_waitcnt vmcnt(0)")
        a(f"{chk}:")
        self.tagged_sum(PC)
        a(f"s_cbranch_vccnz {top}")
        self.tail.append(f"{top}:\n{loads}\ns_waitcnt vmcnt(0)\ns_sub_u32 {sCNT}, {sCNT}, 1\ns_cbranch_scc0 {chk}\ns_endpgm\n")
        self.allred(GA, TMP)
        a(f"v_mov_b32 {vCS}, v{GA}")

    def x_head(self):
        a = self.a
        nt3 = 2 * int(bool(self.c.touch)); pw = int(self.c.prew == 1)
        self.zero_acc()
        if 'noq' in self.c.exp: self.stamp(5)
        a(f"v_add_u32 v{T2}, {L_WQ}, {vXALL}\ns_waitcnt lgkmcnt(0)\ns_barrier")
        self.stamp(1)
        if 'noq' in self.c.exp:
            a("s_barrier"); self.end(0)
        self.WQ = []
        self.lds_weights(self.WQ, WA, f"v{T2}", 0, 8)
        if pw: self.prewrite(0)
        a(f"s_waitcnt vmcnt({3 + nt3 + pw})")
        self.stats(32)
        a(f"v_lshlrev_b32 {vX}, 16, {vX1}\nv_and_b32 {vX1}, 0xffff0000, {vX1}\nv_sub_f32 v{GA}, {vX}, {vMU}\nv_sub_f32 v{GA+1}, {vX1}, {vMU}")
        a(f"v_cvt_pk_bf16_f32 {vPR}, v{GA}, v{GA+1}")
        self.tag(1)
        for kp in range(8): self.dots(self.WQ, kp, lane=kp)
        self.xspare = self.spare
        a(f"s_waitcnt vmcnt({nt3 + pw})\ns_setprio 0")
        self.stamp(2)

    def x_program(self, slow):
        a = self.a; c = self.c
        sc = " sc1" if slow else ""
        self.spare = self.xspare
        if slow:
            self.clear_all(sc)
            a("s_waitcnt vmcnt(0)")
            self.zero_acc()
            for kp in range(8): self.dots(self.WQ, kp, lane=kp)
        self.tagged_publish(sB[1], sc)
        a(f"s_add_u32 s3, {sE}, 1\ns_lshl_b32 s3, s3, 4\ns_add_u32 s32, s3, 16\ns_or_b32 s3, s3, {sXCC}\ns_add_u32 s24, s3, 16")
        def xword():
            a(f"v_mov_b32 v{TMP}, {'s24' if slow else 's3'}\ns_lshl_b32 s31, s29, 2\nv_mov_b32 v{TMP+1}, s31")
            a(f"s_mov_b64 exec, 1\nglobal_store_dword v{TMP+1}, v{TMP}, {sSM} offset:{XCC}{sc}\ns_mov_b64 exec, -1")
        if not slow: xword()
        self.stamp(3)
        def check0(off):
            a(f"s_waitcnt vmcnt({off})\nv_cmp_ne_u32 s[30:31], s3, v{PX}")
            if slow:
                a(f"v_cmp_ne_u32 vcc, s24, v{PX}\nv_and_b32 v{TMP+2}, -16, v{PX}\ns_and_b64 s[30:31], s[30:31], vcc\nv_cmp_ne_u32 vcc, s32, v{TMP+2}")
                a("s_cmp_eq_u64 s[30:31], 0\ns_cselect_b64 s[30:31], 0, vcc")
            self.tagged_sum(PL)
            a("s_or_b64 vcc, vcc, s[30:31]")
        loads = self.rs_loads(sB[1], PL) + f"\nglobal_load_dword v{PX}, {vXC}, {sSM} offset:{XCC} sc1"
        self.zero_acc()
        for kp in range(8): self.dots(self.WQ, kp, sONE)
        self.tagged_publish(sCQ, sc)
        if c.force_slow and not slow: a("s_branch L_Xslow")
        if slow:
            a("s_waitcnt vmcnt(0)")
            xword()
            self.poll("q0", loads, check0, (1, 0, 0))
        else:
            self.poll("q0", loads, check0, c.q0, bound=c.limit1, over=lambda fb, ov, top: fb(f"{ov}:\ns_branch L_Xslow"), pace=c.pace)
        GU = []
        self.allred(GA, TMP)
        a(f"v_mul_f32 v{GA}, v{GA}, {vRS}")
        self.stamp(4)
        for li in range(2):
            h = 5 * li
            B = lambda k: HB(h + k)
            st = (lambda i: self.stamp(i)) if li == c.stamp_layer else (lambda i: None)
            self.pack(GA)
            self.pair_store(sSM, AGQ[li], sc)
            self.clear_inbox(B(1), sc)
            st(5)
            def qbody(off):
                a(f"s_waitcnt vmcnt({off})\nv_max3_u32 v{TMP}, v{PX}, v{PX+1}, v{PX+2}\nv_max_u32 v{TMP}, v{TMP}, v{PX+3}\nv_cmp_eq_u32 vcc, -1, v{TMP}")
            ql = f"global_load_dwordx4 v[{PX}:{PX+3}], {vAQ}, {sSM} offset:{AGQ[li]} sc1"
            if li == 0:
                a(f"v_mov_b32 v{TMP+1}, {int(slow)}\nds_write_b32 {vZERO}, v{TMP+1} offset:{L_MODE}")
                self.colsum_gather(sCQ, True)
                self.poll("aq", ql, qbody, c.a0, pace=c.pace)
            else: self.poll("aq", ql, qbody, c.aq)
            a(f"ds_write_b128 {vXALL}, v[{PX}:{PX+3}] offset:{L_Q}\ns_waitcnt lgkmcnt(0)\ns_barrier")
            if li == 0:
                self.colsum_gather(sCQ, False, wait=False)
                self.clear_inbox(sCQ, sc)
            if li == 0:
                if c.prew == 2: self.prewrite(0)
                if not c.touch: a(f"s_lshl_b32 s30, s29, 8\nv_lshl_add_u32 v{TMP+2}, v0, 7, s30\ns_mov_b64 exec, 3\nglobal_load_dword {vJ}, v{TMP+2}, {sSM} offset:-4096 sc1\ns_mov_b64 exec, -1")
            a("s_barrier")
            st(6)
            self.combine(li, B(2), 0, sc)
            st(7)
            if li == 0:
                a(f"v_lshrrev_b32 v{T2}, 1, v0\nv_lshlrev_b32 v{T2}, 4, v{T2}\nv_and_b32 v{T2+1}, 1, v0\nv_lshl_add_u32 v{T2}, v{T2+1}, 9, v{T2}\nv_add_u32 v{T2}, {L_GU}, v{T2}")
                a(f"s_mov_b32 {sCN2}, {c.limit * c.outer * 4}")
                self.zero_acc()
                if c.b2x_first: a("s_waitcnt vmcnt(0)"); st(8); a("s_barrier")
                self.lds_wait(L_CN2, 4)
                st(9)
                self.lds_weights(GU, WB, f"v{T2}", 0, 8, lambda kp: self.dots(GU, kp, sONE))
                self.tagged_publish(sCG, sc or c.cs_sc, M56)
                st(13)
            if li == 0 and not c.b2x_first: a("s_waitcnt vmcnt(2)\ns_barrier")
            for half in range(2):
                k = 2 * li + half
                last = k == 3
                self.zero_acc()
                self.tag(11 + k)
                a("s_barrier")
                if not last: self.clear_inbox(B(2 + 2 * half), sc) if (li == 0 or half == 0) else None
                self.rs_gather("out", B(3 + 2 * half), 7 if half else 8)
                a(f"v_bfi_b32 v{GA}, {vMASK}, {sT}, v{GA}\ns_mov_b64 exec, 0xffff\nglobal_atomic_swap {vGPUB}, v{GA}, {sG[k]}\ns_mov_b64 exec, -1")
                if li == 0: self.clear_inbox(B(3 + 2 * half), sc)
                st(10 + 4 * half)
                fin = self.lab("fin")
                if not slow and c.fclean:
                    if k == 2 and c.fclean & 1: self.clear_inbox(B(3), " sc1")
                    if last:
                        if not c.fclean & 1: self.clear_inbox(B(3), " sc1")
                        self.clear_inbox(B(4), " sc1"); self.clear_inbox(B(5), " sc1")
                if last: a(f"s_cmp_eq_u32 s28, 0\ns_cbranch_scc0 {fin}")
                depth, delay, gap, gap2 = c.g
                top = self.lab("g")
                gl = f"global_atomic_or_x2 v[{PG}:{PG+1}], {vGIN}, v[76:77], {sG[k]} sc0"
                a(f"s_mov_b32 {sCNT}, {c.limit * c.outer}\ns_mov_b64 vcc, -1")
                self.nops(delay)
                for j in range(depth - 1):
                    a(gl); self.nops(gap)
                a(f"{top}:\ns_mov_b64 exec, vcc\n{gl}\ns_mov_b64 exec, -1\ns_sub_u32 {sCNT}, {sCNT}, 1\ns_cbranch_scc1 L_exit")
                self.nops(gap2)
                a(f"""s_waitcnt vmcnt({depth - 1})
v_xor_b32 v{GA}, {sT}, v{PG}
v_xor_b32 v{GA+1}, {sT}, v{PG+1}
v_or_b32 v{TMP+1}, v{GA}, v{GA+1}
v_cmp_ne_u32_sdwa vcc, v{TMP+1}, 0 src0_sel:BYTE_0 src1_sel:DWORD
v_permlane32_swap_b32 v{GA}, v{GA+1}
v_add_f32 v{GA}, v{GA}, v{GA+1}
v_mov_b32 v{TMP}, v{GA}
s_cbranch_vccnz {top}
v_permlane16_swap_b32 v{GA}, v{TMP}
v_add_f32 v{GA}, v{GA}, v{TMP}
v_add_f32_dpp v{GA}, v{GA}, v{GA} row_ror:8 {DPP}
v_mov_b32 v{GA+1}, v{GA}
v_permlane32_swap_b32 v{GA}, v{GA+1}
v_add_f32 v{GA}, v{GA}, {vX}
v_add_f32 v{GA+1}, v{GA+1}, {vX1}
v_cvt_pk_bf16_f32 {vPR}, v{GA}, v{GA+1}""")
                pst = lambda base, off, s_: a(f"s_mov_b64 exec, 0xff\nglobal_store_dword {vPAIR8}, {vPR}, {base} offset:{off}{s_}\ns_mov_b64 exec, -1")
                if last:
                    pst(sOUT, 0, "")
                    a(f"s_cmp_eq_u32 s29, 0\ns_cbranch_scc0 {fin}")
                    a(f"s_add_u32 s30, {sE}, {NTAGS}\nv_mov_b32 v{TMP}, s30\ns_mov_b64 exec, 1\nglobal_store_dword {vZERO}, v{TMP}, {sWS} sc1\n{fin}:")
                    self.end(0)
                    break
                if half == 0: st(11)
                pst(sSM, XALL[k], sc)
                if half == 0:
                    self.gemv(GU, B(4), sc, lanes=range(8), mask=M56)
                    a(f"s_barrier\nv_lshlrev_b32 {vX}, 16, {vPR}\nv_and_b32 {vX1}, 0xffff0000, {vPR}")
                    st(12)
                else:
                    st2 = (lambda i: self.stamp(i)) if c.stamp_layer == 1 else (lambda i: None)
                    self.gemv(self.WQ, HB(6), sc, lanes=range(8))
                    a(f"v_lshlrev_b32 {vX}, 16, {vPR}\nv_and_b32 {vX1}, 0xffff0000, {vPR}")
                    st2(2)
                    self.rs_gather("q", HB(6), ln=1)
                    a(f"v_fma_f32 v{GA}, v{GA}, {vRS}, {vNM}")
                    st2(4)

    def y_head(self):
        a = self.a; c = self.c
        a(f"L_Y:\nds_write_b64 {vZERO}, v[{TMP}:{TMP+1}] offset:{L_CNT}\nv_add_u32 v{T2}, {L_WD}, {vXALL}\ns_waitcnt lgkmcnt(0)\ns_barrier".replace("L_Y:", f"L_Y:\nv_mov_b64 v[{TMP}:{TMP+1}], 0"))
        self.stamp(1)
        a(f"s_mov_b32 {sCN2}, {c.limit * c.outer * 4}")
        self.spare = SPARE
        for grp in range(4):
            self.lds_wait(L_CNT, grp + 1)
            if grp == 0: a(f"global_load_dwordx4 v[{PC}:{PC+3}], {vINX}, {sCG} sc1\nglobal_load_dwordx4 v[{PC}:{PC+3}], {vINX}, {sCG} offset:1024 sc1")
            for k in range(4 * grp, 4 * grp + 4):
                a(f"global_load_dwordx4 v[{WA+4*k}:{WA+4*k+3}], {vWO}, {sWO}{c.nt}")
                if k < 15: a(f"v_add_u32 {vWO}, 8192, {vWO}")
        self.stamp(2)
        a(f"s_barrier\nds_read_b32 v{TMP+1}, {vZERO} offset:{L_MODE}")
        if 'noq' in self.c.exp: a("s_waitcnt vmcnt(0)"); self.end(1)
        a(f"s_waitcnt lgkmcnt(0)\nv_readfirstlane_b32 s3, v{TMP+1}\ns_cmp_eq_u32 s3, 0\ns_cbranch_scc0 L_Yslow")

    def y_program(self, slow):
        a = self.a; c = self.c
        sc = " sc1" if slow else ""
        spare0 = self.spare
        WO = []; WD = []
        for li in range(2):
            h = 5 * li
            B = lambda k: HB(h + k)
            st = (lambda i: self.stamp(i)) if li == c.stamp_layer else (lambda i: None)
            if li: a("s_barrier")
            a("s_barrier")
            st(6)
            self.combine(li, B(2), 1, sc)
            st(7)
            y, z, t, L = PL, GA, TMP, PM + 8
            loads = "".join(f"global_load_dwordx4 v[{L+4*i}:{L+4*i+3}], {vOSI}, {sSM} offset:{OSTAT[li]+128+16*i} sc1\n" for i in range(2))
            loads += self.rs_loads(B(2), PL)
            def shadow(nafter):
                a(f"v_add_u32 v{T2}, {L_WD}, {vXALL}\ns_mov_b32 {sCN2}, {c.limit * c.outer * 4}")
                self.lds_wait(L_CN2, 4)
                self.lds_weights(WD, WB, f"v{T2}", 0, 4)
                a(f"s_mov_b32 {sCN2}, {c.outer}")
                for kp in range(8):
                    a(f"s_waitcnt vmcnt({14 - 2*kp + 1 + nafter})")
                    self.perm_pair(WO, WA, kp)
            onorm, ogen = self.lab("onorm"), self.lab("ogen")
            def obody(off):
                a(f"""s_waitcnt vmcnt({off + 8})
v_pk_add_f32 v[{LA}:{LA+1}], v[{L}:{L+1}], v[{L+2}:{L+3}]
v_pk_add_f32 v[{LA+2}:{LA+3}], v[{L+4}:{L+5}], v[{L+6}:{L+7}]
v_pk_add_f32 v[{LA}:{LA+1}], v[{LA}:{LA+1}], v[{LA+2}:{LA+3}]
v_add_f32 v{LA}, v{LA}, v{LA+1}
s_waitcnt vmcnt({off + 4})
v_pk_add_f32 v[{z}:{z+1}], v[{y}:{y+1}], v[{y+2}:{y+3}]
s_waitcnt vmcnt({off})
v_pk_add_f32 v[{z+2}:{z+3}], v[{y+4}:{y+5}], v[{y+6}:{y+7}]
v_pk_add_f32 v[{z}:{z+1}], v[{z}:{z+1}], v[{z+2}:{z+3}]
v_add_f32 v{z}, v{z}, v{z+1}
v_cmp_u_f32 vcc, v{z}, v{LA}
v_or3_b32 v{t+2}, v{L}, v{L+1}, v{L+2}
v_permlane32_swap_b32 v{z}, v{LA}
v_add_f32 v{z}, v{z}, v{LA}
v_mov_b32 v{t}, v{z}""")
            def oover(fb, ov, top):
                fb(f"{ov}:\ns_sub_u32 {sCN2}, {sCN2}, 1\ns_cbranch_scc1 L_exit\ns_mov_b32 {sCNT}, {c.limit}\ns_waitcnt vmcnt(0)")
                self.umax(t, list(range(y, y + 8)) + list(range(L, L + 8)))
                fb(f"v_cmp_eq_u32 vcc, -1, v{t}\ns_cbranch_vccnz {top}\ns_branch {ogen}")
            self.zero_acc()
            a(f"s_mov_b32 {sCN2}, {c.outer}")
            self.poll("o", loads, obody, c.ro if li else (1, 0, 0), shadow if li == 0 else None, bound=c.limit, over=oover)
            a(f"""v_or3_b32 v{t+2}, v{t+2}, v{L+3}, v{L+4}
v_permlane16_swap_b32 v{z}, v{t}
v_add_f32 v{z}, v{z}, v{t}
v_mov_b32 v{LA}, v{z}
v_or3_b32 v{t+2}, v{t+2}, v{L+5}, v{L+6}
v_or_b32 v{t+2}, v{t+2}, v{L+7}
v_permlane32_swap_b32 v{z}, v{LA}
v_rcp_f32 v{LA}, v{LA}
v_cmp_gt_i32 vcc, 0, v{t+2}
v_mul_f32 v{z}, v{z}, v{LA}""")
            self.pack(GA)
            a(f"s_cbranch_vccnz {ogen}\n{onorm}:")
            def ogen_f(fb):
                mloop = self.lab("omloop")
                fb(f"{ogen}:\ns_waitcnt vmcnt(0)\ns_mov_b32 {sCNT}, {c.limit * c.outer}\n{mloop}:\ns_sub_u32 {sCNT}, {sCNT}, 1\ns_cbranch_scc1 L_exit")
                for i in range(2): fb(f"global_load_dwordx4 v[{PM+4*i}:{PM+4*i+3}], {vOSI}, {sSM} offset:{OSTAT[li]+16*i} sc1")
                fb("s_waitcnt vmcnt(0)")
                for i in range(8): fb(f"v_cmp_gt_i32 vcc, 0, v{L+i}\nv_cndmask_b32 v{T2+i}, 0, v{PM+i}, vcc")
                self.umax(t, range(T2, T2 + 8))
                fb(f"v_cmp_eq_u32 vcc, -1, v{t}\ns_cbranch_vccnz {mloop}")
                fb(f"v_max3_f32 v{t}, v{T2}, v{T2+1}, v{T2+2}\nv_max3_f32 v{t}, v{t}, v{T2+3}, v{T2+4}\nv_max3_f32 v{t}, v{t}, v{T2+5}, v{T2+6}\nv_max_f32 v{t}, v{t}, v{T2+7}")
                self.allred(t, t + 1, "v_max_f32")
                for i in range(8): fb(f"v_sub_f32 v{T2+i}, v{T2+i}, v{t}")
                for i in range(8): fb(f"v_exp_f32 v{T2+i}, v{T2+i}")
                fb(f"v_mul_f32 v{GA}, v{T2}, v{y}\nv_mul_f32_e64 v{LA}, v{T2}, |v{L}|")
                for i in range(1, 8): fb(f"v_fmac_f32 v{GA}, v{T2+i}, v{y+i}\nv_fma_f32 v{LA}, v{T2+i}, |v{L+i}|, v{LA}")
                self.allred(LA, t + 1); self.allred(GA, t + 2)
                fb(f"v_rcp_f32 v{LA}, v{LA}\nv_mul_f32 v{GA}, v{GA}, v{LA}")
                self.pack(GA)
                fb(f"s_nop 1\ns_branch {onorm}")
            self.ool(ogen_f)
            st(8)
            if li == 0: a("s_barrier")
            self.gemv(WO, B(3), sc)
            a("s_barrier")
            st(9)
            noffn = self.lab("noffn")
            if li == 0:
                l = self.lab("nocg")
                a(f"s_cmp_lt_u32 s34, 14\ns_cbranch_scc0 {l}")
                self.nops(c.cgd)
                self.colsum_gather(sCG, True); self.colsum_gather(sCG, False)
                a(f"{l}:")
            self.zero_acc()
            a(f"s_barrier\ns_cmp_lt_u32 s34, 14\ns_cbranch_scc0 {noffn}")
            st(12)
            self.rs_gather("gu", B(4), ln=2 * li)
            a(f"v_fma_f32 v{GA}, v{GA}, {vRS}, {vNM}\nv_mul_f32_dpp v{GA}, v{GA}, v{GA} row_ror:12 {DPP}")
            self.pack(GA)
            self.gemv(WD, B(5), sc, lanes=[0, 2, 8, 10], addr=(vDN, vDN2))
            a(f"{noffn}:")
            st(13)
            a("s_barrier")
        self.end(1)
        self.spare = spare0

    def build(self):
        a = self.a
        self.prologue()
        self.s_stream()
        self.c_pre()
        self.x_head()
        self.x_program(False); self.flush()
        self.y_head()
        self.y_program(False); self.flush()
        self.s_layers(); self.flush()
        a("L_fast_end:\nL_Yslow:")
        self.y_program(True); self.flush()
        a("L_Xslow:")
        self.x_program(True); self.flush()
        a("L_exit:\ns_endpgm")
        head = f"""; Fused decode step: 2 x (LayerNorm -> GQA sliding-window attention -> residual -> LayerNorm -> bilinear GLU -> residual)
; @launch grid=(256,1,1) block=(384,1,1) lds={self.c.ldsx or LDS_BYTES}
.amdgcn_target "amdgcn-amd-amdhsa--gfx950"
.text
.globl {KNAME}
.p2align 8
.type {KNAME},@function
{KNAME}:
"""
        tail = f"""
.section .rodata,"a"
.p2align 6
.amdhsa_kernel {KNAME}
  .amdhsa_next_free_vgpr 256
  .amdhsa_next_free_sgpr 102
  .amdhsa_accum_offset 256
  .amdhsa_group_segment_fixed_size 0
  .amdhsa_kernarg_size 96
  .amdhsa_user_sgpr_count 2
  .amdhsa_user_sgpr_kernarg_segment_ptr 1
  .amdhsa_system_sgpr_workgroup_id_x 1
  .amdhsa_float_denorm_mode_32 3
.end_amdhsa_kernel
"""
        return head + a.text() + tail


def make(**kw):
    c = Cfg()
    for k, v in kw.items(): setattr(c, k, v)
    return Gen(c).build()

if __name__ == "__main__":
    kw = {}
    for x in sys.argv[2:]:
        k, v = x.split("=", 1); kw[k] = eval(v)
    open(sys.argv[1], "w").write(make(**kw))
```

```python
import sys, struct
from asmlib import Asm

KNAME = "interleave_layers__sliding_block_cached__glu_gated_bilinear__decode_kernel"
def f2u(x): return struct.unpack("<I", struct.pack("<f", x))[0]

class Cfg:
    debug = False
    stamp_layer = 0
    nt = " nt"
    win = 4
    wins = [4]*16+[6]*6
    wo_at = 24
    limit = 64
    outer = 2000
    limit1 = 64
    force_slow = False
    rs = (3, 60, 40)
    ro = (3, 60, 40)
    g = (3, 100, 200, 0)
    q0 = (3, 200, 500)
    a0 = (3, 300, 500)
    b2x_first = 0
    cgd = 800
    hooks = (0,)
    lnd = 3
    aq = (4, 60, 40)
    prew = 2
    cs_sc = ''
    pace = 200
    touch = 1
    tpol = ' nt'
    xpol = ''
    pfpol = ''
    exp = ''
    rot = 1
    pf0 = 0
    pf0pol = ' nt'
    pf = 6
    b0_late = 1
    fclean = 0
    ldsx = 0
    dbgwg = 0
    cs_late = 1
    tlb = 0
    xd = 40
    bound = 60.0

DPP = "row_mask:0xf bank_mask:0xf"
G_OFF = 0x1000; G_STRIDE = 0x8000
GB_OFF = 0x40000; GB_STRIDE = 0x60000
SM = 0x50000 + 0x1000
AGQ = [-0x1000, -0xC00]; XALL = [-0x800, -0x400, 0x0]; OSTAT = [0x400, 0x800]; XCC = 0xC00
DBG_OFF = 0x400000
NTAGS = 16
L_O = 32768; L_ST = 40960; L_MODE = L_ST + 128; L_CNT = L_ST + 136; L_CN2 = L_ST + 140; L_Q = 41984; L_WQ = L_Q + 1024; L_GU = L_WQ + 16384; L_WD = L_GU + 16384
LDS_BYTES = L_WD + 8192
sX, sK, sV, sWQ, sWO, sWG, sWU, sWD, sOUT, sWS = ("s[4:5]", "s[6:7]", "s[8:9]", "s[10:11]", "s[12:13]",
    "s[16:17]", "s[18:19]", "s[20:21]", "s[22:23]", "s[26:27]")
sB = ["s[36:37]", "s[38:39]", "s[40:41]"]; sCG = "s[42:43]"; sCQ = "s[40:41]"; sSM = "s[46:47]"
sG = ["s[48:49]", "s[50:51]", "s[52:53]", "s[54:55]"]
sE, sT, sCNT, sXCC, sLO, sHI, sONE, sCN2 = "s56", "s57", "s58", "s61", "s62", "s63", "s64", "s65"
sODD = "s[66:67]"; M56 = "s[14:15]"
vMASK, vIN, vPUB, vPUB2, vGIN, vGPUB, vPAIR, vXALL, vOSI, vOSP, vLDS, vLST = ["v%d" % i for i in range(1, 13)]
vX, vCS, vINX, vPR, vMU, vRS, vNM = "v13", "v14", "v15", "v16", "v17", "v18", "v19"
GA = 20; MA = 28; LA = 36; ACC = 40; TMP = 48; T2 = 64; NEG = 72
vZERO, vAQ, vCLR, vXC, vWO, vDN, vDN2, vJ = "v76", "v79", "v78", "v253", "v208", "v209", "v210", "v211"
vX1, vPAIR8 = "v252", "v254"
WA, WB, SPARE = 80, 144, 212
PL = 214; PM = 222; PX = 238; PC = 242; PG = 250


def HB(hop): return sB[1] if hop == 1 else sB[[1, 2, 0][hop % 3]]


class Gen:
    def __init__(self, cfg):
        self.c = cfg; self.a = Asm(); self.tail = []; self.nlab = 0; self.spare = SPARE

    def lab(self, s):
        self.nlab += 1
        return f"L_{s}_{self.nlab}"

    def stamp(self, i):
        if self.c.debug: self.a(f"s_memtime s[{70+2*i}:{71+2*i}]")

    def end(self, slot):
        a = self.a
        if self.c.debug == 3:
            if slot == 0:
                l, l2 = self.lab("nodbg"), self.lab("spin")
                a(f"s_memtime s[100:101]\ns_waitcnt lgkmcnt(0)\ns_cmp_eq_u32 s2, 0\ns_cbranch_scc0 {l}\ns_sub_u32 s31, s{70+2*self.c.dbgwg}, s70\ns_min_u32 s31, s31, 200000")
                a(f"{l2}:\ns_memtime s[98:99]\ns_waitcnt lgkmcnt(0)\ns_sub_u32 s30, s98, s100\ns_cmp_lt_u32 s30, s31\ns_cbranch_scc1 {l2}\n{l}:")
            a("s_endpgm"); return
        if self.c.debug == 2:
            if slot == 0:
                l = self.lab("nodbg")
                a(f"s_memtime s[100:101]\ns_load_dwordx2 s[24:25], s[0:1], 80\ns_waitcnt vmcnt(0) lgkmcnt(0)\ns_cmp_lt_u32 s2, 8\ns_cbranch_scc0 {l}\ns_mov_b64 exec, 1")
                a("s_lshl_b32 s30, s2, 2\nv_mov_b32 v20, s30\nv_mov_b32 v24, s68\nglobal_store_dword v20, v24, s[24:25]")
                a(f"s_cmp_eq_u32 s2, {self.c.dbgwg}\ns_cbranch_scc0 {l}")
                for j, i in enumerate((1, 4, 6, 10, 11, 14, 15)): a(f"s_sub_u32 s31, s{70+2*i}, s70\nv_mov_b32 v{24+j}, s31")
                a("v_mov_b32 v20, 0\nv_mov_b32 v31, 0\nglobal_store_dwordx4 v20, v[24:27], s[24:25] offset:32\nglobal_store_dwordx4 v20, v[28:31], s[24:25] offset:48")
                a(f"{l}:")
            a("s_endpgm"); return
        if self.c.debug:
            a("s_memtime s[100:101]\ns_waitcnt vmcnt(0) lgkmcnt(0)\ns_mov_b64 exec, -1")
            a(f"s_lshl_b32 s30, s2, 9\ns_add_u32 s30, s30, {DBG_OFF + slot*128}")
            a("v_mov_b32 v20, s30\nv_mov_b32 v24, s68")
            for i in range(1, 16): a(f"s_sub_u32 s31, s{70+2*i}, s70\nv_mov_b32 v{24+i}, s31")
            for i in range(4): a(f"global_store_dwordx4 v20, v[{24+4*i}:{27+4*i}], {sWS} offset:{16*i}")
        a("s_endpgm")

    def tag(self, k): self.a(f"s_add_u32 {sT}, {sE}, {k}\ns_and_b32 {sT}, {sT}, 0x3f\ns_or_b32 {sT}, {sT}, 0x40")

    def nops(self, cyc):
        if cyc >= 192:
            self.a(f"s_sleep {cyc // 64}"); return
        while cyc >= 4:
            k = min(cyc // 4, 16); self.a(f"s_nop {k-1}"); cyc -= 4 * k

    def ool(self, fn):
        fb = Asm(); sv, self.a = self.a, fb
        fn(fb)
        self.a = sv
        self.tail.append(fb.text())

    def flush(self):
        while self.tail: self.a(self.tail.pop(0))

    def poll(self, name, loads, body, par, shadow=None, bound=None, over=None, first=True, pace=0):
        a = self.a
        depth, delay, gap = par
        nl = loads.count("global_")
        top, ov = self.lab(name), self.lab(name + "_over")
        a(f"s_mov_b32 {sCNT}, {bound or self.c.limit * self.c.outer}")
        if first:
            self.nops(delay)
            for k in range(depth - 1):
                a(loads); self.nops(gap)
        if shadow:
            skip = self.lab(name + "_in")
            a(loads); shadow(depth * nl); a(f"s_branch {skip}\n{top}:\n{loads}\n{skip}:")
        else:
            a(f"{top}:\n{loads}")
        a(f"s_sub_u32 {sCNT}, {sCNT}, 1\ns_cbranch_scc1 {ov if over else 'L_exit'}")
        self.nops(pace)
        body((depth - 1) * nl)
        a(f"s_cbranch_vccnz {top}")
        if over: self.ool(lambda fb: over(fb, ov, top))

    def allred(self, r, t, op="v_add_f32"):
        self.a(f"""v_mov_b32 v{t}, v{r}
v_permlane32_swap_b32 v{r}, v{t}
{op} v{r}, v{r}, v{t}
v_mov_b32 v{t}, v{r}
v_permlane16_swap_b32 v{r}, v{t}
{op} v{r}, v{r}, v{t}""")

    def rs_loads(self, base, g, n=8):
        return "\n".join(f"global_load_dword v{g+i}, {vIN}, {base} offset:{256*i} sc1" for i in range(n))

    def umax(self, t, regs):
        regs = list(regs)
        self.a(f"v_max3_u32 v{t}, v{regs[0]}, v{regs[1]}, v{regs[2]}")
        for i in range(3, len(regs), 2): self.a(f"v_max3_u32 v{t}, v{t}, v{regs[i]}, v{regs[min(i+1, len(regs)-1)]}")

    def tagged_sum(self, src, n=8):
        a = self.a
        for i in range(n): a(f"v_xor_b32 v{MA+i}, {sT}, v{src+i}")
        a(f"v_or3_b32 v{TMP}, v{MA}, v{MA+1}, v{MA+2}\nv_or3_b32 v{TMP}, v{TMP}, v{MA+3}, v{MA+4}\nv_or3_b32 v{TMP}, v{TMP}, v{MA+5}, v{MA+6}\nv_or_b32 v{TMP}, v{TMP}, v{MA+7}")
        a(f"v_cmp_ne_u32_sdwa vcc, v{TMP}, 0 src0_sel:BYTE_0 src1_sel:DWORD")
        a(f"v_pk_add_f32 v[{GA}:{GA+1}], v[{MA}:{MA+1}], v[{MA+2}:{MA+3}]\nv_pk_add_f32 v[{GA+2}:{GA+3}], v[{MA+4}:{MA+5}], v[{MA+6}:{MA+7}]")
        a(f"v_pk_add_f32 v[{GA}:{GA+1}], v[{GA}:{GA+1}], v[{GA+2}:{GA+3}]\nv_add_f32 v{GA}, v{GA}, v{GA+1}")

    def rs_gather(self, name, base, n=8, post=None, par=None, ln=None):
        z, t, y = GA, TMP, PL
        done = self.lab(name + "_done")
        def reduce(off, test):
            a = self.a
            a(f"s_waitcnt vmcnt({off + n - 4})\nv_pk_add_f32 v[{z}:{z+1}], v[{y}:{y+1}], v[{y+2}:{y+3}]\ns_waitcnt vmcnt({off})")
            if n == 8: a(f"v_pk_add_f32 v[{z+2}:{z+3}], v[{y+4}:{y+5}], v[{y+6}:{y+7}]\nv_pk_add_f32 v[{z}:{z+1}], v[{z}:{z+1}], v[{z+2}:{z+3}]")
            else: a(f"v_pk_add_f32 v[{z}:{z+1}], v[{z}:{z+1}], v[{y+4}:{y+5}]\nv_add_f32 v{z}, v{z}, v{y+6}")
            a(f"v_add_f32 v{z}, v{z}, v{z+1}\nv_mov_b32 v{t}, v{z}")
            if test: a(f"v_cmp_u_f32 vcc, v{z}, v{z}")
            a(f"v_permlane32_swap_b32 v{z}, v{t}\nv_add_f32 v{z}, v{z}, v{t}\nv_mov_b32 v{t}, v{z}")
        def over(fb, ov, top):
            fb(f"{ov}:\ns_sub_u32 {sCN2}, {sCN2}, 1\ns_cbranch_scc1 L_exit\ns_mov_b32 {sCNT}, {self.c.limit}\ns_waitcnt vmcnt(0)")
            self.umax(t, range(y, y + n))
            fb(f"v_cmp_eq_u32 vcc, -1, v{t}\ns_cbranch_vccnz {top}")
            reduce(0, False)
            fb(f"s_branch {done}")
        loads = self.rs_loads(base, PL, n)
        a = self.a
        a(f"s_mov_b32 {sCN2}, {self.c.outer}")
        if ln is None:
            self.poll(name, loads, lambda off: reduce(off, True), par or self.c.rs, bound=self.c.limit, over=over)
        else:
            xl = f"global_load_dwordx4 v[{PX}:{PX+3}], {vXALL}, {sSM} offset:{XALL[ln]} sc1"
            xchk = f"v_max3_u32 v{TMP}, v{PX}, v{PX+1}, v{PX+2}\nv_max_u32 v{TMP}, v{TMP}, v{PX+3}\nv_cmp_eq_u32 vcc, -1, v{TMP}"
            xr, xok = self.lab("xretry"), self.lab("xok")
            a(f"{xl}\ns_mov_b32 {sCNT}, {self.c.limit * self.c.outer}")
            self.nops(self.c.xd)
            a(f"{loads}\ns_waitcnt vmcnt({n})\n{xchk}\ns_cbranch_vccnz {xr}\n{xok}:")
            self.tail.append(f"{xr}:\n{xl}\n{xr}_b:\n{xl}\ns_sub_u32 {sCNT}, {sCNT}, 1\ns_cbranch_scc1 L_exit\ns_waitcnt vmcnt(1)\n{xchk}\ns_cbranch_vccnz {xr}_b\n{loads}\ns_branch {xok}\n")
            self.stats(PX, lambda: a(loads))
            a(f"v_mul_f32 {vNM}, {vMU}, {vRS}\nv_mul_f32_e64 {vNM}, -{vNM}, {vCS}")
            self.poll(name, loads, lambda off: reduce(off, True), (self.c.lnd, 0, 0), bound=self.c.limit, over=over, first=False)
        a(f"{done}:\nv_permlane16_swap_b32 v{z}, v{t}\nv_add_f32 v{z}, v{z}, v{t}")

    def pack(self, r):
        self.a(f"v_mov_b32_dpp v{TMP}, v{r} quad_perm:[1,0,3,2] {DPP}\nv_cvt_pk_bf16_f32 {vPR}, v{r}, v{TMP}")

    def perm_pair(self, W, base, kp):
        W.append([])
        for u in range(4):
            lo = base + 8 * kp + u; hi = lo + 4; s = self.spare
            self.a(f"v_perm_b32 v{s}, v{hi}, v{lo}, {sLO}\nv_perm_b32 v{hi}, v{hi}, v{lo}, {sHI}")
            W[kp] += [s, hi]; self.spare = lo

    def zero_acc(self):
        for j in range(0, 8, 2): self.a(f"v_mov_b64 v[{ACC+j}:{ACC+j+1}], 0")

    def dots(self, W, kp, src=None, lane=None):
        for j in range(8):
            if src: self.a(f"v_dot2c_f32_bf16 v{ACC+j}, {src}, v{W[kp][j]}")
            else: self.a(f"v_dot2c_f32_bf16_dpp v{ACC+j}, {vPR}, v{W[kp][j]} row_newbcast:{2*kp if lane is None else lane} {DPP}")

    def gemv(self, W, base, sc, lanes=None, addr=(vPUB, vPUB2), mask=None):
        a = self.a
        n = len(W)
        d = lambda kp, j: a(f"v_dot2c_f32_bf16_dpp v{ACC+j}, {vPR}, v{W[kp][j]} row_newbcast:{2*kp if lanes is None else lanes[kp]} {DPP}")
        def store(t):
            if mask: a(f"s_mov_b64 exec, {mask}")
            a(f"global_store_dwordx4 {addr[t]}, v[{ACC+4*t}:{ACC+4*t+3}], {base}{sc}")
            if mask: a("s_mov_b64 exec, -1")
        for kp in range(n):
            for j in range(4): d(kp, j)
        for kp in range(n):
            for j in range(4, 8): d(kp, j)
            if kp == 0: store(0)
        store(1)

    def tagged_publish(self, base, sc, mask=None):
        a = self.a
        for j in range(8): a(f"v_bfi_b32 v{ACC+j}, {vMASK}, {sT}, v{ACC+j}")
        if mask: a(f"s_mov_b64 exec, {mask}")
        a(f"global_store_dwordx4 {vPUB}, v[{ACC}:{ACC+3}], {base}{sc}\nglobal_store_dwordx4 {vPUB2}, v[{ACC+4}:{ACC+7}], {base}{sc}")
        if mask: a("s_mov_b64 exec, -1")

    def clear_inbox(self, base, sc):
        self.a(f"global_store_dwordx4 {vINX}, v[{NEG}:{NEG+3}], {base}{sc}\nglobal_store_dwordx4 {vINX}, v[{NEG}:{NEG+3}], {base} offset:1024{sc}")

    def stats(self, x, hook=None):
        a = self.a
        p, q = TMP, TMP + 1
        a(f"v_mov_b32 v{p}, 0\nv_mov_b32 v{q}, 0")
        for i in range(4): a(f"v_dot2c_f32_bf16 v{p}, {sONE}, v{x+i}\nv_dot2c_f32_bf16 v{q}, v{x+i}, v{x+i}")
        a(f"v_mov_b32 v{q+1}, 0x{f2u(1/512.):08x}\nv_mov_b32 v{q+2}, 0x{f2u(1e-5):08x}")
        a(f"v_permlane32_swap_b32 v{p}, v{q}\nv_add_f32 v{p}, v{p}, v{q}\nv_mov_b32 v{q}, v{p}")
        a(f"v_permlane16_swap_b32 v{p}, v{q}\nv_add_f32 v{p}, v{p}, v{q}")
        for i, r in enumerate((8, 4, 2, 1)):
            if hook and i in self.c.hooks: hook()
            a(f"v_add_f32_dpp v{p}, v{p}, v{p} row_ror:{r} {DPP}")
        a(f"v_readlane_b32 s30, v{p}, 0\nv_readlane_b32 s31, v{p}, 32")
        if hook and 4 in self.c.hooks: hook()
        a(f"v_mul_f32 {vMU}, s30, v{q+1}\nv_fma_f32 {vRS}, s31, v{q+1}, v{q+2}")
        a(f"v_fma_f32 {vRS}, -{vMU}, {vMU}, {vRS}\nv_max_f32 {vRS}, {vRS}, v{q+2}\nv_rsq_f32 {vRS}, {vRS}")

    def pair_store(self, base, off, sc):
        self.a(f"s_mov_b64 exec, 0x5555\nglobal_store_dword {vPAIR}, {vPR}, {base} offset:{off}{sc}\ns_mov_b64 exec, -1")

    def lds_weights(self, W, base, vaddr, off, npair, use=None):
        a = self.a
        rd = lambda k: a(f"ds_read_b128 v[{base+4*k}:{base+4*k+3}], {vaddr} offset:{off+1024*k}")
        for k in range(min(8, 2 * npair)): rd(k)
        for kp in range(npair):
            if 2 * kp + 8 < 2 * npair:
                rd(2 * kp + 8); rd(2 * kp + 9); out = 8
            else: out = 2 * npair - 2 * kp - 2
            a(f"s_waitcnt lgkmcnt({out})")
            self.perm_pair(W, base, kp)
            if use: use(kp)

    def prologue(self):
        a = self.a; c = self.c
        if c.debug: a("s_memtime s[70:71]\ns_memrealtime s[68:69]")
        a(f"""s_load_dwordx16 s[4:19], s[0:1], 0
s_load_dwordx8 s[20:27], s[0:1], 64
s_cmpk_ge_u32 s2, 0x100
s_cbranch_scc1 L_exit
v_lshrrev_b32 v1, 6, v0
v_and_b32 v0, 63, v0
s_lshr_b32 s29, s2, 3
v_readfirstlane_b32 s33, v1
s_and_b32 s28, s2, 7
s_and_b32 s34, s29, 15
s_lshr_b32 s35, s29, 4
s_lshl_b32 s60, s34, 5
s_lshl2_add_u32 s60, s35, s60
v_lshlrev_b32 v15, 4, v0
s_cmp_ge_u32 s33, 4
s_cbranch_scc1 L_C0
s_lshl3_add_u32 s32, s33, s60
s_lshl3_add_u32 s30, s32, s28
s_lshl_b32 s30, s30, 10
v_add_u32 v1, s30, v15
s_lshl_b32 s36, s33, 12
s_add_u32 m0, s36, {L_WQ}
s_movk_i32 s3, 0x2000
s_waitcnt lgkmcnt(0)""")
        for i in range(4):
            a(f"global_load_lds_dwordx4 v1, {sWQ}{c.nt}")
            if i < 3: a("s_addk_i32 m0, 0x400\nv_add_u32 v1, s3, v1")
        a(f"""s_branch L_S1
L_C0:
s_cmp_eq_u32 s33, 4
s_cbranch_scc1 L_X0
s_getpc_b64 s[30:31]
s_mulk_i32 s29, {128 * c.pf}
v_lshl_add_u32 v2, v0, 7, s29
s_mov_b64 exec, {(1 << c.pf) - 1}
global_load_dword {vJ}, v2, s[30:31]{c.pfpol}
s_branch L_C
L_X0:
{self.pf0()}s_waitcnt lgkmcnt(0)
global_load_dwordx4 v[32:35], v15, {sX}{c.xpol}
s_branch L_C
L_early_end:""")

    def pf0(self):
        c = self.c
        if not c.pf0: return "s_setprio 3\n"
        return f"s_getpc_b64 s[30:31]\nv_lshlrev_b32 v2, 7, v0\ns_mov_b64 exec, {(1 << c.pf0) - 1 if c.pf0 <= 6 else hex((1 << c.pf0) - 1)}\nglobal_load_dword {vJ}, v2, s[30:31]{c.pf0pol}\ns_mov_b64 exec, -1\n"

    def consts(self):
        self.a("s_mov_b32 s62, 0x05040100\ns_mov_b32 s63, 0x07060302\ns_mov_b32 s64, 0x3f803f80")

    KF, VR, VF, Q, D, P, ON, O, OL, X, T = 16, 48, 80, 112, 128, 136, 140, 144, 176, 184, 192

    def s_stream(self):
        a = self.a; c = self.c
        KF, VR, VF, ON, T = self.KF, self.VR, self.VF, self.ON, self.T
        n = [4]; landed = [-1]
        wins = c.wins
        def signal(off):
            a(f"v_mov_b32 v{T}, 1\ns_mov_b64 s[38:39], exec\ns_mov_b64 exec, 1\nds_add_u32 v{T+12}, v{T} offset:{off}\ns_mov_b64 exec, s[38:39]")
        def throttle():
            w = wins[n[0] - 4]
            if n[0] - w > landed[0]:
                if landed[0] < 3 <= n[0] - w:
                    a(f"s_waitcnt vmcnt({n[0] - 4})")
                    if 'noq' in c.exp: self.stamp(14)
                    a("s_barrier"); self.stamp(1)
                    landed[0] = 3
                if n[0] - w > landed[0]: a(f"s_waitcnt vmcnt({w-1})"); landed[0] = n[0] - w
            if 'noq' in c.exp and n[0] in (4, 8, 12, 16, 20): self.stamp({4: 9, 8: 10, 12: 11, 16: 12, 20: 13}[n[0]])
            if n[0] == c.wo_at: signal(L_CNT)
            n[0] += 1
        a("""L_S1:
s_lshl_b32 s30, s28, 24
s_lshl_b32 s31, s29, 15
s_add_u32 s30, s30, s31
s_add_u32 s30, s30, 0xF00000
s_add_u32 s6, s6, s30
s_addc_u32 s7, s7, 0
s_lshl_b32 s40, s33, 13
s_mov_b32 m0, s40
v_and_b32 v6, 15, v0
v_lshrrev_b32 v7, 4, v0
v_xor_b32 v8, v6, v7
v_lshlrev_b32 v8, 4, v8
v_lshl_add_u32 v9, v7, 8, v8
v_add_u32 v9, s40, v9""")
        if c.rot: a("s_lshl_b32 s37, s29, 2\ns_and_b32 s31, s28, 3\ns_or_b32 s37, s37, s31\ns_lshl_b32 s37, s37, 8\nv_xor_b32 v9, s37, v9")
        else: a("s_mov_b32 s37, 0")
        for i in range(8):
            if i: a(f"s_addk_i32 m0, 0x400\nv_xor_b32 v1, {64*(i&3) + 1024*i}, v9")
            throttle()
            a(f"global_load_lds_dwordx4 {'v1' if i else 'v9'}, {sK}{c.nt}")
            if i == 3:
                a("s_add_u32 s8, s8, s30\ns_addc_u32 s9, s9, 0")
                self.consts()
                a("v_lshlrev_b32 v10, 4, v6\nv_lshl_add_u32 v10, v7, 10, v10\nv_add_u32 v10, s40, v10\nv_xor_b32 v10, s37, v10")
                a("v_lshl_add_u32 v11, v6, 8, v8\nv_add_u32 v11, s40, v11")
                for j in range(1, 4): a(f"v_xor_b32 v{11+j}, {64*j}, v11")
                a("v_lshrrev_b32 v2, 2, v6\nv_lshlrev_b32 v5, 4, v2\nv_lshlrev_b32 v2, 8, v2\nv_lshl_add_u32 v2, v7, 4, v2")
                a(f"s_lshl_b32 s31, s33, 2\ns_add_u32 s31, s31, {L_ST}\nv_add_u32 v5, s31, v5")
                a(f"v_lshlrev_b32 v3, 4, v7\nv_add_u32 v3, s31, v3")
                a(f"s_lshl_b32 s31, s33, 11\ns_add_u32 s31, s31, {L_O}\nv_lshlrev_b32 v4, 2, v0\nv_add_u32 v4, s31, v4")
            if i == 4:
                for k in range(4): a(f"v_mov_b32 v{ON+k}, {sONE}")
                cs = f2u(128**-0.5*1.4426950408889634)
                a(f"v_mov_b32 v{T+6}, 0x{cs:08x}\nv_mov_b32 v{T+7}, 0x{cs:08x}\nv_mov_b32 v{T+5}, 0x{f2u(c.bound):08x}\nv_mov_b32 v{T+12}, 0")
                a(f"v_add_u32 v2, {L_Q}, v2\nv_lshrrev_b32 v{T}, 2, v6")
                for j in range(4): a(f"v_add_u32 v{T+1}, {j}, v{T}\nv_and_b32 v{T+1}, 3, v{T+1}\nv_lshl_add_u32 v{T+8+j}, v{T+1}, 6, v2")
            if i == 5:
                a("""s_mul_i32 s30, s32, 3584
s_mul_i32 s31, s28, 448
s_add_u32 s30, s30, s31
v_and_b32 v184, 31, v0
v_lshl_add_u32 v184, v184, 4, s30
v_cmp_gt_u32 vcc, 32, v0
v_mov_b32 v186, s18
v_mov_b32 v187, s19
v_mov_b32 v188, s16
v_mov_b32 v189, s17
v_cndmask_b32 v186, v186, v188, vcc
v_cndmask_b32 v187, v187, v189, vcc
v_mov_b32 v185, 0
s_mov_b32 s14, 3584
s_mov_b32 s15, 0
v_lshl_add_u64 v[184:185], v[184:185], 0, v[186:187]
s_min_u32 s30, s34, 13
s_lshl_b32 s30, s30, 4
s_mul_i32 s31, s28, 224
s_add_u32 s30, s30, s31
s_lshl2_add_u32 s30, s35, s30
s_lshr_b32 s31, s33, 1
s_lshl3_add_u32 s30, s31, s30
s_and_b32 s31, s33, 1
s_lshl1_add_u32 s30, s31, s30
s_lshl_b32 s30, s30, 10
v_add_u32 v190, s30, v15""")
        for i in range(8):
            if i: a(f"v_xor_b32 v1, {(i>>2)*4096+(i&3)*256}, v10")
            throttle()
            a(f"global_load_dwordx4 v[{VR+4*i}:{VR+4*i+3}], {'v1' if i else 'v10'}, {sV}{c.nt}")
        kread = [False]; vdone = [0]
        def work():
            if landed[0] >= 11 and not kread[0]:
                kread[0] = True
                for t in range(2):
                    for j in range(4): a(f"ds_read_b128 v[{KF+16*t+4*j}:{KF+16*t+4*j+3}], v{11+j} offset:{4096*t}")
            while vdone[0] < 4 and landed[0] >= 13 + 2 * vdone[0]:
                self.vperm(vdone[0]); vdone[0] += 1
        work()
        a(f"s_add_u32 m0, s36, {L_GU}")
        for i in range(4):
            throttle()
            a(f"s_mov_b32 exec_lo, 0x0fffffff\ns_mov_b32 exec_hi, 0x0fffffff\nglobal_load_lds_dwordx4 v[184:185], off{c.nt}\ns_mov_b64 exec, -1")
            if i < 3: a("s_addk_i32 m0, 0x400\nv_lshl_add_u64 v[184:185], v[184:185], 0, s[14:15]")
            else: a(f"s_lshl_b32 s31, s33, 11\ns_add_u32 m0, s31, {L_WD}")
            work()
        for i in range(2):
            throttle()
            a(f"global_load_lds_dwordx4 v190, {sWD} offset:{1024*i}{c.nt}")
            work()
        if c.wo_at >= 26: signal(L_CNT)
        assert kread[0]
        self.vdone = vdone[0]; self.signal = signal
        self.stamp(2)
        a("s_branch L_S2")

    def vperm(self, u):
        for up in range(4):
            for b in range(2):
                self.a(f"v_perm_b32 v{self.VF+4*(2*up+b)+u}, v{self.VR+4*(2*u+1)+up}, v{self.VR+4*(2*u)+up}, {sHI if b else sLO}")

    def s_layers(self):
        a = self.a; c = self.c
        KF, VR, VF, Q, D, P, ON, O, OL, X, T = self.KF, self.VR, self.VF, self.Q, self.D, self.P, self.ON, self.O, self.OL, self.X, self.T
        a("L_S2:")
        for li in range(2):
            if li: a("s_barrier\n" * 4)
            a(f"v_mov_b32 v{T+4}, 0\ns_waitcnt lgkmcnt(0)\ns_barrier")
            self.stamp(3 + 6 * li)
            if 'noq' in c.exp and li == 0:
                a("s_waitcnt vmcnt(0)"); self.stamp(4)
                l = self.lab("x"); a(f"s_cmp_eq_u32 s33, 0\ns_cbranch_scc1 {l}\ns_endpgm\n{l}:"); self.end(2)
            for j in range(4): a(f"ds_read_b128 v[{Q+4*j}:{Q+4*j+3}], v{T+8+j}")
            a(f"ds_write_b32 v5, v{T+4}")
            for j in range(4):
                a(f"s_waitcnt lgkmcnt({4 - j})")
                for t in range(2):
                    cc = f"v[{D+4*t}:{D+4*t+3}]"
                    a(f"v_mfma_f32_16x16x32_bf16 {cc}, v[{KF+16*t+4*j}:{KF+16*t+4*j+3}], v[{Q+4*j}:{Q+4*j+3}], {cc if j else 0}")
            self.stamp(5 + 6 * li)
            for i in range(0, 8, 2): a(f"v_pk_mul_f32 v[{X+i}:{X+i+1}], v[{D+i}:{D+i+1}], v[{T+6}:{T+7}]")
            for i in range(8): a(f"v_exp_f32 v{D+i}, v{X+i}")
            for u in range(4): a(f"v_cvt_pk_bf16_f32 v{P+u}, v{D+2*u}, v{D+2*u+1}")
            self.stamp(6 + 6 * li)
            if li == 0:
                for u in range(self.vdone, 4):
                    a(f"s_waitcnt vmcnt({12 - 2*u})")
                    self.vperm(u)
                self.stamp(4)
            lfb, lback = self.lab("fallback"), self.lab("pv")
            a(f"{lback}:")
            for e in range(8):
                a(f"v_mfma_f32_16x16x32_bf16 v[{O+4*e}:{O+4*e+3}], v[{P}:{P+3}], v[{VF+4*e}:{VF+4*e+3}], 0")
                if e == 0: a(f"v_max3_f32 v{T}, v{X}, v{X+1}, v{X+2}\nv_max3_f32 v{T+1}, v{X+3}, v{X+4}, v{X+5}")
                if e == 1: a(f"v_max3_f32 v{T}, v{T}, v{X+6}, v{X+7}\nv_max_f32 v{T}, v{T}, v{T+1}")
                if e == 2: a(f"v_cmp_gt_f32 vcc, |v{T}|, v{T+5}")
                if e == 3: a(f"v_mfma_f32_16x16x32_bf16 v[{OL}:{OL+3}], v[{P}:{P+3}], v[{ON}:{ON+3}], 0\ns_cbranch_vccnz {lfb}")
                if e == 5: a(f"ds_write2st64_b32 v4, v{O}, v{O+4} offset0:0 offset1:1")
                if e == 7: a(f"ds_write2st64_b32 v4, v{O+8}, v{O+12} offset0:2 offset1:3\nds_write_b32 v3, v{OL} offset:64")
            for e in range(4, 8, 2): a(f"ds_write2st64_b32 v4, v{O+4*e}, v{O+4*e+4} offset0:{e} offset1:{e+1}")
            a("s_waitcnt lgkmcnt(0)")
            self.stamp(7 + 6 * li)
            a("s_barrier")
            if li == 0:
                a("s_waitcnt vmcnt(0)"); self.signal(L_CN2); a("s_waitcnt lgkmcnt(0)"); self.stamp(8)
            def fbk(fb):
                fb(f"{lfb}:\ns_nop 7")
                self.allred(T, T + 1, "v_max_f32")
                for i in range(8): fb(f"v_sub_f32 v{X+i}, v{X+i}, v{T}")
                for i in range(8): fb(f"v_exp_f32 v{D+i}, v{X+i}\nv_mov_b32 v{X+i}, 0")
                for u in range(4): fb(f"v_cvt_pk_bf16_f32 v{P+u}, v{D+2*u}, v{D+2*u+1}")
                fb(f"ds_write_b32 v5, v{T}\ns_nop 7\ns_branch {lback}")
            self.ool(fbk)
        if c.debug:
            l = self.lab("sdone")
            a(f"s_cmp_eq_u32 s33, 0\ns_cbranch_scc1 {l}\ns_endpgm\n{l}:")
        self.end(2)

    def clear_all(self, sc):
        a = self.a
        a(f"s_mov_b32 exec_hi, 0x00ffffff\nglobal_store_dword {vCLR}, v{NEG}, {sSM} offset:{AGQ[0]}{sc}\ns_mov_b64 exec, -1")
        self.clear_inbox(sB[0], sc)

    def c_pre(self):
        a = self.a; c = self.c
        a(f"""L_C:
s_mov_b64 exec, -1
s_lshr_b32 s29, s2, 3
s_waitcnt lgkmcnt(0)
s_load_dword {sE}, {sWS}, 0
s_mul_i32 s59, s28, {GB_STRIDE}
s_add_u32 s59, s59, {GB_OFF}
v_and_b32 v20, 15, v0
v_lshrrev_b32 v21, 4, v0
v_lshlrev_b32 v22, 2, v0
v_lshlrev_b32 {vXALL}, 4, v0
v_lshrrev_b32 v23, 2, v20
v_and_b32 v24, 3, v0
v_lshl_add_u32 v28, v23, 3, v24
v_add_u32 v28, s60, v28
v_lshlrev_b32 {vPAIR}, 1, v28
v_mov_b64 v[76:77], 0
s_lshl_b32 s30, s29, 11
v_add_u32 {vINX}, s30, {vXALL}
v_add_u32 {vIN}, s30, v22
v_mov_b64 v[{NEG}:{NEG+1}], -1
v_mov_b64 v[{NEG+2}:{NEG+3}], -1
s_cmp_eq_u32 s33, 4
s_cbranch_scc0 L_Ypre""")
        a(f"""v_and_b32 v31, 7, v0
v_lshrrev_b32 v25, 1, v31
v_and_b32 v26, 1, v0
v_lshlrev_b32 v25, 4, v25
v_lshl_add_u32 v25, v26, 2, v25
s_lshl_b32 s31, s60, 1
v_add_u32 v25, s31, v25
s_and_b32 s31, s29, 3
s_lshl_b32 s31, s31, 5
s_lshr_b32 s32, s29, 2
s_lshl_b32 s32, s32, 2
s_add_u32 s31, s31, s32
v_lshl_add_u32 v27, v31, 7, s31
v_cmp_gt_u32 vcc, 40, v0
v_lshrrev_b32 {vCLR}, 3, v0
v_lshlrev_b32 {vCLR}, 10, {vCLR}
v_cndmask_b32 v25, v27, v25, vcc
v_add_u32 {vCLR}, {vCLR}, v25
v_and_b32 v25, 6, v0
v_lshlrev_b32 v25, 3, v25
v_lshl_add_u32 v25, v26, 2, v25
s_lshl_b32 s31, s60, 1
v_add_u32 {vPAIR8}, s31, v25
global_load_dword {vX1}, {vPAIR8}, {sX}{c.xpol}""")
        assert OSTAT[0] - AGQ[0] == 5 * 1024 and OSTAT[1] - OSTAT[0] == 1024
        self.bases()
        self.clear_all("")
        if c.touch:
            a(f"v_lshlrev_b32 v29, 16, v21\nv_lshl_add_u32 v29, v20, 7, v29\ns_lshl_b32 s30, s29, 11\nv_add_u32 v29, s30, v29\ns_mov_b32 exec_hi, 0xffff\nglobal_load_dword {vJ}, v29, {sB[0]}{c.tpol}\ns_mov_b64 exec, -1")
            a(f"s_lshl_b32 s30, s29, 8\nv_lshl_add_u32 v29, v0, 7, s30\ns_mov_b64 exec, 3\nglobal_load_dword {vJ}, v29, {sSM} offset:-4096{c.tpol}\ns_mov_b64 exec, -1")
        a(f"s_branch L_Cjoin\nL_Ypre:\nv_mov_b32 {vCLR}, 0\nv_mov_b32 {vPAIR8}, 0")
        if c.tlb:
            nl = c.tlb
            a(f"""s_lshl_b32 s30, s28, 24
s_lshl_b32 s31, s29, 15
s_add_u32 s30, s30, s31
s_add_u32 s30, s30, 0xF00000
v_lshl_add_u32 v25, v0, 13, s30
s_mul_i32 s30, s60, 3584
s_mul_i32 s31, s28, 448
s_add_u32 s30, s30, s31
v_mul_u32_u24 v26, 28672, v0
v_add_u32 v26, s30, v26
s_min_u32 s30, s34, 13
s_lshl_b32 s30, s30, 4
s_mul_i32 s31, s28, 224
s_add_u32 s30, s30, s31
s_lshl_b32 s30, s30, 10
v_lshl_add_u32 v27, v0, 12, s30
s_and_b32 s31, s29, 3
s_lshl_b32 s31, s31, 7
s_lshr_b32 s32, s29, 2
s_add_u32 s31, s31, s32
s_lshl_b32 s32, s28, 9
s_add_u32 s31, s31, s32
s_lshl_b32 s31, s31, 10
v_lshl_add_u32 v29, v0, 15, s31
s_mov_b64 exec, {(1 << nl) - 1}
global_load_dword {vJ}, v26, {sWG} nt
global_load_dword {vJ}, v26, {sWU} nt
global_load_dword {vJ}, v27, {sWD} nt
global_load_dword {vJ}, v25, {sK} nt
global_load_dword {vJ}, v25, {sV} nt
global_load_dword {vJ}, v29, {sWO} nt
s_mov_b64 exec, -1""")
        a(f"global_load_ushort {vJ}, {vPAIR}, {sOUT}")
        self.bases()
        a("L_Cjoin:")
        self.consts()
        a(f"""s_getreg_b32 s61, hwreg(HW_REG_XCC_ID, 0, 4)
v_mov_b32 {vMASK}, 0xff
s_lshl_b32 s31, s29, 10
v_lshrrev_b32 {vGIN}, 3, v0
v_lshlrev_b32 {vGIN}, 7, {vGIN}
v_and_b32 v25, 7, v0
v_lshl_add_u32 {vGIN}, v25, 3, {vGIN}
v_add_u32 {vGIN}, s31, {vGIN}
s_lshl_b32 s32, s28, 7
s_add_u32 s31, s31, s32
v_lshl_add_u32 {vGPUB}, v20, 2, s31
v_lshlrev_b32 {vAQ}, 2, v21
v_sub_u32 {vAQ}, v0, {vAQ}
v_and_b32 {vAQ}, 15, {vAQ}
v_lshl_add_u32 {vAQ}, v21, 4, {vAQ}
v_lshlrev_b32 {vAQ}, 4, {vAQ}
v_lshrrev_b32 v25, 2, v0
v_lshlrev_b32 v25, 11, v25
v_lshl_add_u32 v25, v24, 4, v25
s_lshl_b32 s31, s29, 6
v_add_u32 {vPUB}, s31, v25
v_add_u32 {vPUB2}, 0x8000, {vPUB}
s_mul_i32 s31, s35, 14
s_add_u32 s31, s31, s34
s_lshl_b32 s31, s31, 6
v_add_u32 {vDN}, s31, v25
v_add_u32 {vDN2}, 0x8000, {vDN}
s_and_b32 s31, s29, 3
s_lshl_b32 s32, s31, 8
v_lshl_add_u32 {vOSI}, v21, 5, s32
s_lshl_b32 s31, s31, 5
s_lshr_b32 s32, s29, 2
s_lshl_b32 s32, s32, 2
s_add_u32 s31, s31, s32
v_and_b32 v26, 1, v0
v_and_b32 v27, 3, v23
v_lshlrev_b32 {vOSP}, 8, v27
v_lshl_add_u32 {vOSP}, v26, 7, {vOSP}
v_add_u32 {vOSP}, s31, {vOSP}
s_sub_u32 s31, s33, 4
s_lshl_b32 s31, s31, 10
s_add_u32 s31, s31, {L_O}
v_add_u32 {vLDS}, s31, {vXALL}
v_lshlrev_b32 {vLST}, 4, v27
v_add_u32 {vLST}, {L_ST}, {vLST}
s_mov_b32 s66, 0xaaaaaaaa
s_mov_b32 s67, 0xaaaaaaaa
s_mov_b32 s14, -1
s_mov_b32 s15, 0x00ffffff
s_and_b32 s31, s29, 3
s_lshl_b32 s31, s31, 7
s_lshr_b32 s32, s29, 2
s_add_u32 s31, s31, s32
s_lshl_b32 s32, s28, 9
s_add_u32 s31, s31, s32
s_lshl_b32 s31, s31, 10
v_add_u32 {vWO}, s31, {vXALL}
v_and_b32 {vXC}, 31, v0
v_lshlrev_b32 {vXC}, 2, {vXC}
s_cmp_eq_u32 s33, 4
s_cbranch_scc0 L_Y""")

    def lds_wait(self, off, n):
        l = self.lab("cnt")
        self.a(f"{l}:\nds_read_b32 v{TMP+1}, {vZERO} offset:{off}\ns_sub_u32 {sCN2}, {sCN2}, 1\ns_cbranch_scc1 L_exit\ns_waitcnt lgkmcnt(0)")
        self.a(f"v_cmp_gt_u32 vcc, {n}, v{TMP+1}\ns_cbranch_vccnz {l}")

    def prewrite(self, val):
        self.a(f"v_lshrrev_b32 v{TMP}, 4, v0\nv_lshlrev_b32 v{TMP}, 15, v{TMP}\nv_add_u32 v{TMP}, v{TMP}, {vGPUB}\nv_mov_b32 v{TMP+1}, {val}")
        self.a(f"global_atomic_swap v{TMP}, v{TMP+1}, {sG[0]}")

    def bases(self):
        a = self.a
        a("s_add_u32 s36, s26, s59\ns_addc_u32 s37, s27, 0")
        a(f"s_add_u32 s46, s36, {SM}\ns_addc_u32 s47, s37, 0")
        for i in range(1, 5): a(f"s_add_u32 s{36+2*i}, s36, {0x10000*i}\ns_addc_u32 s{37+2*i}, s37, 0")
        for k in range(4): a(f"s_add_u32 s{48+2*k}, s26, {G_OFF+G_STRIDE*k}\ns_addc_u32 s{49+2*k}, s27, 0")

    def combine(self, li, base, half, sc):
        a = self.a
        gen_c, back_c = self.lab("cgen"), self.lab("cback")
        addr = vPUB2 if half else vPUB
        a(f"ds_read_b128 v[{T2}:{T2+3}], {vLST}")
        for w in range(4): a(f"ds_read_b128 v[{TMP+4*w}:{TMP+4*w+3}], {vLDS} offset:{2048*w}")
        a(f"ds_read_b128 v[{T2+4}:{T2+7}], {vLST} offset:64")
        a(f"s_waitcnt lgkmcnt(3)\nv_or3_b32 v{GA}, v{T2}, v{T2+1}, v{T2+2}")
        a(f"v_pk_add_f32 v[{ACC}:{ACC+1}], v[{TMP}:{TMP+1}], v[{TMP+4}:{TMP+5}]\nv_or_b32 v{GA}, v{GA}, v{T2+3}")
        a(f"v_pk_add_f32 v[{ACC+2}:{ACC+3}], v[{TMP+2}:{TMP+3}], v[{TMP+6}:{TMP+7}]\nv_cmp_ne_u32 vcc, 0, v{GA}\ns_waitcnt lgkmcnt(2)")
        a(f"v_pk_add_f32 v[{ACC}:{ACC+1}], v[{ACC}:{ACC+1}], v[{TMP+8}:{TMP+9}]\nv_pk_add_f32 v[{ACC+2}:{ACC+3}], v[{ACC+2}:{ACC+3}], v[{TMP+10}:{TMP+11}]\ns_waitcnt lgkmcnt(1)")
        a(f"v_pk_add_f32 v[{ACC}:{ACC+1}], v[{ACC}:{ACC+1}], v[{TMP+12}:{TMP+13}]\nv_pk_add_f32 v[{ACC+2}:{ACC+3}], v[{ACC+2}:{ACC+3}], v[{TMP+14}:{TMP+15}]")
        a(f"s_cbranch_vccnz {gen_c}\nglobal_store_dwordx4 {addr}, v[{ACC}:{ACC+3}], {base}{sc}")
        if not half:
            a(f"s_waitcnt lgkmcnt(0)\nv_pk_add_f32 v[{GA}:{GA+1}], v[{T2+4}:{T2+5}], v[{T2+6}:{T2+7}]\nv_add_f32 v{GA}, v{GA}, v{GA+1}")
            a(f"s_mov_b64 exec, 0x2222\n{back_c}:\nglobal_store_dword {vOSP}, v{GA}, {sSM} offset:{OSTAT[li]}{sc}\ns_mov_b64 exec, -1")
        else: a(f"{back_c}:")
        def cgen(fb):
            fb(f"{gen_c}:\ns_waitcnt lgkmcnt(0)")
            fb(f"v_max3_f32 v{GA}, v{T2}, v{T2+1}, v{T2+2}\nv_max_f32 v{GA}, v{GA}, v{T2+3}")
            for w in range(4): fb(f"v_sub_f32 v{T2+w}, v{T2+w}, v{GA}")
            for w in range(4): fb(f"v_exp_f32 v{T2+w}, v{T2+w}")
            for w in range(4):
                for j in range(4):
                    fb(f"v_mul_f32 v{ACC+j}, v{T2}, v{TMP+j}" if w == 0 else f"v_fmac_f32 v{ACC+j}, v{T2+w}, v{TMP+4*w+j}")
            fb(f"global_store_dwordx4 {addr}, v[{ACC}:{ACC+3}], {base}{sc}")
            if not half:
                fb(f"v_mul_f32 v{GA+1}, v{T2}, v{T2+4}")
                for w in range(1, 4): fb(f"v_fmac_f32 v{GA+1}, v{T2+w}, v{T2+4+w}")
                fb(f"v_or_b32 v{GA+1}, 0x80000000, v{GA+1}\nv_cndmask_b32 v{GA}, v{GA}, v{GA+1}, {sODD}\ns_mov_b64 exec, 0x3333")
            fb(f"s_nop 1\ns_branch {back_c}")
        self.ool(cgen)

    def colsum_gather(self, base, issue, wait=True):
        loads = self.rs_loads(base, PC)
        if issue:
            self.a(loads); return
        a = self.a
        top, chk = self.lab("cs"), self.lab("cschk")
        self.tag(1)
        a(f"s_mov_b32 {sCNT}, {self.c.limit * self.c.outer}")
        if wait: a("s_waitcnt vmcnt(0)")
        a(f"{chk}:")
        self.tagged_sum(PC)
        a(f"s_cbranch_vccnz {top}")
        self.tail.append(f"{top}:\n{loads}\ns_waitcnt vmcnt(0)\ns_sub_u32 {sCNT}, {sCNT}, 1\ns_cbranch_scc0 {chk}\ns_endpgm\n")
        self.allred(GA, TMP)
        a(f"v_mov_b32 {vCS}, v{GA}")

    def x_head(self):
        a = self.a
        nt3 = 2 * int(bool(self.c.touch)); pw = int(self.c.prew == 1)
        self.zero_acc()
        if 'noq' in self.c.exp: self.stamp(5)
        a(f"v_add_u32 v{T2}, {L_WQ}, {vXALL}\ns_waitcnt lgkmcnt(0)\ns_barrier")
        self.stamp(1)
        if 'noq' in self.c.exp:
            a("s_barrier"); self.end(0)
        self.WQ = []
        self.lds_weights(self.WQ, WA, f"v{T2}", 0, 8)
        if pw: self.prewrite(0)
        a(f"s_waitcnt vmcnt({3 + nt3 + pw})")
        self.stats(32)
        a(f"v_lshlrev_b32 {vX}, 16, {vX1}\nv_and_b32 {vX1}, 0xffff0000, {vX1}\nv_sub_f32 v{GA}, {vX}, {vMU}\nv_sub_f32 v{GA+1}, {vX1}, {vMU}")
        a(f"v_cvt_pk_bf16_f32 {vPR}, v{GA}, v{GA+1}")
        self.tag(1)
        for kp in range(8): self.dots(self.WQ, kp, lane=kp)
        self.xspare = self.spare
        a(f"s_waitcnt vmcnt({nt3 + pw})\ns_setprio 0")
        self.stamp(2)

    def x_program(self, slow):
        a = self.a; c = self.c
        sc = " sc1" if slow else ""
        self.spare = self.xspare
        if slow:
            self.clear_all(sc)
            a("s_waitcnt vmcnt(0)")
            self.zero_acc()
            for kp in range(8): self.dots(self.WQ, kp, lane=kp)
        self.tagged_publish(sB[1], sc)
        a(f"s_add_u32 s3, {sE}, 1\ns_lshl_b32 s3, s3, 4\ns_add_u32 s32, s3, 16\ns_or_b32 s3, s3, {sXCC}\ns_add_u32 s24, s3, 16")
        def xword():
            a(f"v_mov_b32 v{TMP}, {'s24' if slow else 's3'}\ns_lshl_b32 s31, s29, 2\nv_mov_b32 v{TMP+1}, s31")
            a(f"s_mov_b64 exec, 1\nglobal_store_dword v{TMP+1}, v{TMP}, {sSM} offset:{XCC}{sc}\ns_mov_b64 exec, -1")
        if not slow: xword()
        self.stamp(3)
        def check0(off):
            a(f"s_waitcnt vmcnt({off})\nv_cmp_ne_u32 s[30:31], s3, v{PX}")
            if slow:
                a(f"v_cmp_ne_u32 vcc, s24, v{PX}\nv_and_b32 v{TMP+2}, -16, v{PX}\ns_and_b64 s[30:31], s[30:31], vcc\nv_cmp_ne_u32 vcc, s32, v{TMP+2}")
                a("s_cmp_eq_u64 s[30:31], 0\ns_cselect_b64 s[30:31], 0, vcc")
            self.tagged_sum(PL)
            a("s_or_b64 vcc, vcc, s[30:31]")
        loads = self.rs_loads(sB[1], PL) + f"\nglobal_load_dword v{PX}, {vXC}, {sSM} offset:{XCC} sc1"
        self.zero_acc()
        for kp in range(8): self.dots(self.WQ, kp, sONE)
        self.tagged_publish(sCQ, sc)
        if c.force_slow and not slow: a("s_branch L_Xslow")
        if slow:
            a("s_waitcnt vmcnt(0)")
            xword()
            self.poll("q0", loads, check0, (1, 0, 0))
        else:
            self.poll("q0", loads, check0, c.q0, bound=c.limit1, over=lambda fb, ov, top: fb(f"{ov}:\ns_branch L_Xslow"), pace=c.pace)
        GU = []
        self.allred(GA, TMP)
        a(f"v_mul_f32 v{GA}, v{GA}, {vRS}")
        self.stamp(4)
        for li in range(2):
            h = 5 * li
            B = lambda k: HB(h + k)
            st = (lambda i: self.stamp(i)) if li == c.stamp_layer else (lambda i: None)
            self.pack(GA)
            self.pair_store(sSM, AGQ[li], sc)
            self.clear_inbox(B(1), sc)
            st(5)
            def qbody(off):
                a(f"s_waitcnt vmcnt({off})\nv_max3_u32 v{TMP}, v{PX}, v{PX+1}, v{PX+2}\nv_max_u32 v{TMP}, v{TMP}, v{PX+3}\nv_cmp_eq_u32 vcc, -1, v{TMP}")
            ql = f"global_load_dwordx4 v[{PX}:{PX+3}], {vAQ}, {sSM} offset:{AGQ[li]} sc1"
            if li == 0:
                a(f"v_mov_b32 v{TMP+1}, {int(slow)}\nds_write_b32 {vZERO}, v{TMP+1} offset:{L_MODE}")
                self.colsum_gather(sCQ, True)
                self.poll("aq", ql, qbody, c.a0, pace=c.pace)
            else: self.poll("aq", ql, qbody, c.aq)
            a(f"ds_write_b128 {vXALL}, v[{PX}:{PX+3}] offset:{L_Q}\ns_waitcnt lgkmcnt(0)\ns_barrier")
            if li == 0:
                self.colsum_gather(sCQ, False, wait=False)
                self.clear_inbox(sCQ, sc)
            if li == 0:
                if c.prew == 2: self.prewrite(0)
                if not c.touch: a(f"s_lshl_b32 s30, s29, 8\nv_lshl_add_u32 v{TMP+2}, v0, 7, s30\ns_mov_b64 exec, 3\nglobal_load_dword {vJ}, v{TMP+2}, {sSM} offset:-4096 sc1\ns_mov_b64 exec, -1")
            a("s_barrier")
            st(6)
            self.combine(li, B(2), 0, sc)
            st(7)
            if li == 0:
                a(f"v_lshrrev_b32 v{T2}, 1, v0\nv_lshlrev_b32 v{T2}, 4, v{T2}\nv_and_b32 v{T2+1}, 1, v0\nv_lshl_add_u32 v{T2}, v{T2+1}, 9, v{T2}\nv_add_u32 v{T2}, {L_GU}, v{T2}")
                a(f"s_mov_b32 {sCN2}, {c.limit * c.outer * 4}")
                self.zero_acc()
                if c.b2x_first: a("s_waitcnt vmcnt(0)"); st(8); a("s_barrier")
                self.lds_wait(L_CN2, 4)
                st(9)
                self.lds_weights(GU, WB, f"v{T2}", 0, 8, lambda kp: self.dots(GU, kp, sONE))
                self.tagged_publish(sCG, sc or c.cs_sc, M56)
                st(13)
            if li == 0 and not c.b2x_first: a("s_waitcnt vmcnt(2)\ns_barrier")
            for half in range(2):
                k = 2 * li + half
                last = k == 3
                self.zero_acc()
                self.tag(11 + k)
                a("s_barrier")
                if not last: self.clear_inbox(B(2 + 2 * half), sc) if (li == 0 or half == 0) else None
                self.rs_gather("out", B(3 + 2 * half), 7 if half else 8)
                a(f"v_bfi_b32 v{GA}, {vMASK}, {sT}, v{GA}\ns_mov_b64 exec, 0xffff\nglobal_atomic_swap {vGPUB}, v{GA}, {sG[k]}\ns_mov_b64 exec, -1")
                if li == 0: self.clear_inbox(B(3 + 2 * half), sc)
                st(10 + 4 * half)
                fin = self.lab("fin")
                if not slow and c.fclean:
                    if k == 2 and c.fclean & 1: self.clear_inbox(B(3), " sc1")
                    if last:
                        if not c.fclean & 1: self.clear_inbox(B(3), " sc1")
                        self.clear_inbox(B(4), " sc1"); self.clear_inbox(B(5), " sc1")
                if last: a(f"s_cmp_eq_u32 s28, 0\ns_cbranch_scc0 {fin}")
                depth, delay, gap, gap2 = c.g
                top = self.lab("g")
                gl = f"global_atomic_or_x2 v[{PG}:{PG+1}], {vGIN}, v[76:77], {sG[k]} sc0"
                a(f"s_mov_b32 {sCNT}, {c.limit * c.outer}\ns_mov_b64 vcc, -1")
                self.nops(delay)
                for j in range(depth - 1):
                    a(gl); self.nops(gap)
                a(f"{top}:\ns_mov_b64 exec, vcc\n{gl}\ns_mov_b64 exec, -1\ns_sub_u32 {sCNT}, {sCNT}, 1\ns_cbranch_scc1 L_exit")
                self.nops(gap2)
                a(f"""s_waitcnt vmcnt({depth - 1})
v_xor_b32 v{GA}, {sT}, v{PG}
v_xor_b32 v{GA+1}, {sT}, v{PG+1}
v_or_b32 v{TMP+1}, v{GA}, v{GA+1}
v_cmp_ne_u32_sdwa vcc, v{TMP+1}, 0 src0_sel:BYTE_0 src1_sel:DWORD
v_permlane32_swap_b32 v{GA}, v{GA+1}
v_add_f32 v{GA}, v{GA}, v{GA+1}
v_mov_b32 v{TMP}, v{GA}
s_cbranch_vccnz {top}
v_permlane16_swap_b32 v{GA}, v{TMP}
v_add_f32 v{GA}, v{GA}, v{TMP}
v_add_f32_dpp v{GA}, v{GA}, v{GA} row_ror:8 {DPP}
v_mov_b32 v{GA+1}, v{GA}
v_permlane32_swap_b32 v{GA}, v{GA+1}
v_add_f32 v{GA}, v{GA}, {vX}
v_add_f32 v{GA+1}, v{GA+1}, {vX1}
v_cvt_pk_bf16_f32 {vPR}, v{GA}, v{GA+1}""")
                pst = lambda base, off, s_: a(f"s_mov_b64 exec, 0xff\nglobal_store_dword {vPAIR8}, {vPR}, {base} offset:{off}{s_}\ns_mov_b64 exec, -1")
                if last:
                    pst(sOUT, 0, "")
                    a(f"s_cmp_eq_u32 s29, 0\ns_cbranch_scc0 {fin}")
                    a(f"s_add_u32 s30, {sE}, {NTAGS}\nv_mov_b32 v{TMP}, s30\ns_mov_b64 exec, 1\nglobal_store_dword {vZERO}, v{TMP}, {sWS} sc1\n{fin}:")
                    self.end(0)
                    break
                if half == 0: st(11)
                pst(sSM, XALL[k], sc)
                if half == 0:
                    self.gemv(GU, B(4), sc, lanes=range(8), mask=M56)
                    a(f"s_barrier\nv_lshlrev_b32 {vX}, 16, {vPR}\nv_and_b32 {vX1}, 0xffff0000, {vPR}")
                    st(12)
                else:
                    st2 = (lambda i: self.stamp(i)) if c.stamp_layer == 1 else (lambda i: None)
                    self.gemv(self.WQ, HB(6), sc, lanes=range(8))
                    a(f"v_lshlrev_b32 {vX}, 16, {vPR}\nv_and_b32 {vX1}, 0xffff0000, {vPR}")
                    st2(2)
                    self.rs_gather("q", HB(6), ln=1)
                    a(f"v_fma_f32 v{GA}, v{GA}, {vRS}, {vNM}")
                    st2(4)

    def y_head(self):
        a = self.a; c = self.c
        a(f"L_Y:\nds_write_b64 {vZERO}, v[{TMP}:{TMP+1}] offset:{L_CNT}\nv_add_u32 v{T2}, {L_WD}, {vXALL}\ns_waitcnt lgkmcnt(0)\ns_barrier".replace("L_Y:", f"L_Y:\nv_mov_b64 v[{TMP}:{TMP+1}], 0"))
        self.stamp(1)
        a(f"s_mov_b32 {sCN2}, {c.limit * c.outer * 4}")
        self.spare = SPARE
        for grp in range(4):
            self.lds_wait(L_CNT, grp + 1)
            if grp == 0: a(f"global_load_dwordx4 v[{PC}:{PC+3}], {vINX}, {sCG} sc1\nglobal_load_dwordx4 v[{PC}:{PC+3}], {vINX}, {sCG} offset:1024 sc1")
            for k in range(4 * grp, 4 * grp + 4):
                a(f"global_load_dwordx4 v[{WA+4*k}:{WA+4*k+3}], {vWO}, {sWO}{c.nt}")
                if k < 15: a(f"v_add_u32 {vWO}, 8192, {vWO}")
        self.stamp(2)
        a(f"s_barrier\nds_read_b32 v{TMP+1}, {vZERO} offset:{L_MODE}")
        if 'noq' in self.c.exp: a("s_waitcnt vmcnt(0)"); self.end(1)
        a(f"s_waitcnt lgkmcnt(0)\nv_readfirstlane_b32 s3, v{TMP+1}\ns_cmp_eq_u32 s3, 0\ns_cbranch_scc0 L_Yslow")

    def y_program(self, slow):
        a = self.a; c = self.c
        sc = " sc1" if slow else ""
        spare0 = self.spare
        WO = []; WD = []
        for li in range(2):
            h = 5 * li
            B = lambda k: HB(h + k)
            st = (lambda i: self.stamp(i)) if li == c.stamp_layer else (lambda i: None)
            if li: a("s_barrier")
            a("s_barrier")
            st(6)
            self.combine(li, B(2), 1, sc)
            st(7)
            y, z, t, L = PL, GA, TMP, PM + 8
            loads = "".join(f"global_load_dwordx4 v[{L+4*i}:{L+4*i+3}], {vOSI}, {sSM} offset:{OSTAT[li]+128+16*i} sc1\n" for i in range(2))
            loads += self.rs_loads(B(2), PL)
            def shadow(nafter):
                a(f"v_add_u32 v{T2}, {L_WD}, {vXALL}\ns_mov_b32 {sCN2}, {c.limit * c.outer * 4}")
                self.lds_wait(L_CN2, 4)
                self.lds_weights(WD, WB, f"v{T2}", 0, 4)
                a(f"s_mov_b32 {sCN2}, {c.outer}")
                for kp in range(8):
                    a(f"s_waitcnt vmcnt({14 - 2*kp + 1 + nafter})")
                    self.perm_pair(WO, WA, kp)
            onorm, ogen = self.lab("onorm"), self.lab("ogen")
            def obody(off):
                a(f"""s_waitcnt vmcnt({off + 8})
v_pk_add_f32 v[{LA}:{LA+1}], v[{L}:{L+1}], v[{L+2}:{L+3}]
v_pk_add_f32 v[{LA+2}:{LA+3}], v[{L+4}:{L+5}], v[{L+6}:{L+7}]
v_pk_add_f32 v[{LA}:{LA+1}], v[{LA}:{LA+1}], v[{LA+2}:{LA+3}]
v_add_f32 v{LA}, v{LA}, v{LA+1}
s_waitcnt vmcnt({off + 4})
v_pk_add_f32 v[{z}:{z+1}], v[{y}:{y+1}], v[{y+2}:{y+3}]
s_waitcnt vmcnt({off})
v_pk_add_f32 v[{z+2}:{z+3}], v[{y+4}:{y+5}], v[{y+6}:{y+7}]
v_pk_add_f32 v[{z}:{z+1}], v[{z}:{z+1}], v[{z+2}:{z+3}]
v_add_f32 v{z}, v{z}, v{z+1}
v_cmp_u_f32 vcc, v{z}, v{LA}
v_or3_b32 v{t+2}, v{L}, v{L+1}, v{L+2}
v_permlane32_swap_b32 v{z}, v{LA}
v_add_f32 v{z}, v{z}, v{LA}
v_mov_b32 v{t}, v{z}""")
            def oover(fb, ov, top):
                fb(f"{ov}:\ns_sub_u32 {sCN2}, {sCN2}, 1\ns_cbranch_scc1 L_exit\ns_mov_b32 {sCNT}, {c.limit}\ns_waitcnt vmcnt(0)")
                self.umax(t, list(range(y, y + 8)) + list(range(L, L + 8)))
                fb(f"v_cmp_eq_u32 vcc, -1, v{t}\ns_cbranch_vccnz {top}\ns_branch {ogen}")
            self.zero_acc()
            a(f"s_mov_b32 {sCN2}, {c.outer}")
            self.poll("o", loads, obody, c.ro if li else (1, 0, 0), shadow if li == 0 else None, bound=c.limit, over=oover)
            a(f"""v_or3_b32 v{t+2}, v{t+2}, v{L+3}, v{L+4}
v_permlane16_swap_b32 v{z}, v{t}
v_add_f32 v{z}, v{z}, v{t}
v_mov_b32 v{LA}, v{z}
v_or3_b32 v{t+2}, v{t+2}, v{L+5}, v{L+6}
v_or_b32 v{t+2}, v{t+2}, v{L+7}
v_permlane32_swap_b32 v{z}, v{LA}
v_rcp_f32 v{LA}, v{LA}
v_cmp_gt_i32 vcc, 0, v{t+2}
v_mul_f32 v{z}, v{z}, v{LA}""")
            self.pack(GA)
            a(f"s_cbranch_vccnz {ogen}\n{onorm}:")
            def ogen_f(fb):
                mloop = self.lab("omloop")
                fb(f"{ogen}:\ns_waitcnt vmcnt(0)\ns_mov_b32 {sCNT}, {c.limit * c.outer}\n{mloop}:\ns_sub_u32 {sCNT}, {sCNT}, 1\ns_cbranch_scc1 L_exit")
                for i in range(2): fb(f"global_load_dwordx4 v[{PM+4*i}:{PM+4*i+3}], {vOSI}, {sSM} offset:{OSTAT[li]+16*i} sc1")
                fb("s_waitcnt vmcnt(0)")
                for i in range(8): fb(f"v_cmp_gt_i32 vcc, 0, v{L+i}\nv_cndmask_b32 v{T2+i}, 0, v{PM+i}, vcc")
                self.umax(t, range(T2, T2 + 8))
                fb(f"v_cmp_eq_u32 vcc, -1, v{t}\ns_cbranch_vccnz {mloop}")
                fb(f"v_max3_f32 v{t}, v{T2}, v{T2+1}, v{T2+2}\nv_max3_f32 v{t}, v{t}, v{T2+3}, v{T2+4}\nv_max3_f32 v{t}, v{t}, v{T2+5}, v{T2+6}\nv_max_f32 v{t}, v{t}, v{T2+7}")
                self.allred(t, t + 1, "v_max_f32")
                for i in range(8): fb(f"v_sub_f32 v{T2+i}, v{T2+i}, v{t}")
                for i in range(8): fb(f"v_exp_f32 v{T2+i}, v{T2+i}")
                fb(f"v_mul_f32 v{GA}, v{T2}, v{y}\nv_mul_f32_e64 v{LA}, v{T2}, |v{L}|")
                for i in range(1, 8): fb(f"v_fmac_f32 v{GA}, v{T2+i}, v{y+i}\nv_fma_f32 v{LA}, v{T2+i}, |v{L+i}|, v{LA}")
                self.allred(LA, t + 1); self.allred(GA, t + 2)
                fb(f"v_rcp_f32 v{LA}, v{LA}\nv_mul_f32 v{GA}, v{GA}, v{LA}")
                self.pack(GA)
                fb(f"s_nop 1\ns_branch {onorm}")
            self.ool(ogen_f)
            st(8)
            if li == 0: a("s_barrier")
            self.gemv(WO, B(3), sc)
            a("s_barrier")
            st(9)
            noffn = self.lab("noffn")
            if li == 0:
                l = self.lab("nocg")
                a(f"s_cmp_lt_u32 s34, 14\ns_cbranch_scc0 {l}")
                self.nops(c.cgd)
                self.colsum_gather(sCG, True); self.colsum_gather(sCG, False)
                a(f"{l}:")
            self.zero_acc()
            a(f"s_barrier\ns_cmp_lt_u32 s34, 14\ns_cbranch_scc0 {noffn}")
            st(12)
            self.rs_gather("gu", B(4), ln=2 * li)
            a(f"v_fma_f32 v{GA}, v{GA}, {vRS}, {vNM}\nv_mul_f32_dpp v{GA}, v{GA}, v{GA} row_ror:12 {DPP}")
            self.pack(GA)
            self.gemv(WD, B(5), sc, lanes=[0, 2, 8, 10], addr=(vDN, vDN2))
            a(f"{noffn}:")
            st(13)
            a("s_barrier")
        self.end(1)
        self.spare = spare0

    def build(self):
        a = self.a
        self.prologue()
        self.s_stream()
        self.c_pre()
        self.x_head()
        self.x_program(False); self.flush()
        self.y_head()
        self.y_program(False); self.flush()
        self.s_layers(); self.flush()
        a("L_fast_end:\nL_Yslow:")
        self.y_program(True); self.flush()
        a("L_Xslow:")
        self.x_program(True); self.flush()
        a("L_exit:\ns_endpgm")
        head = f"""; Fused decode step: 2 x (LayerNorm -> GQA sliding-window attention -> residual -> LayerNorm -> bilinear GLU -> residual)
; @launch grid=(256,1,1) block=(384,1,1) lds={self.c.ldsx or LDS_BYTES}
.amdgcn_target "amdgcn-amd-amdhsa--gfx950"
.text
.globl {KNAME}
.p2align 8
.type {KNAME},@function
{KNAME}:
"""
        tail = f"""
.section .rodata,"a"
.p2align 6
.amdhsa_kernel {KNAME}
  .amdhsa_next_free_vgpr 256
  .amdhsa_next_free_sgpr 102
  .amdhsa_accum_offset 256
  .amdhsa_group_segment_fixed_size 0
  .amdhsa_kernarg_size 96
  .amdhsa_user_sgpr_count 2
  .amdhsa_user_sgpr_kernarg_segment_ptr 1
  .amdhsa_system_sgpr_workgroup_id_x 1
  .amdhsa_float_denorm_mode_32 3
.end_amdhsa_kernel
"""
        return head + a.text() + tail


def make(**kw):
    c = Cfg()
    for k, v in kw.items(): setattr(c, k, v)
    return Gen(c).build()

if __name__ == "__main__":
    kw = {}
    for x in sys.argv[2:]:
        k, v = x.split("=", 1); kw[k] = eval(v)
    open(sys.argv[1], "w").write(make(**kw))
```

```python
import sys, struct
from asmlib import Asm

KNAME = "interleave_layers__sliding_block_cached__glu_gated_bilinear__decode_kernel"
def f2u(x): return struct.unpack("<I", struct.pack("<f", x))[0]

class Cfg:
    debug = False
    stamp_layer = 0
    nt = " nt"
    win = 4
    wins = [4]*16+[6]*6
    wo_at = 24
    limit = 64
    outer = 2000
    limit1 = 64
    force_slow = False
    rs = (3, 60, 40)
    ro = (3, 60, 40)
    g = (3, 100, 200, 0)
    q0 = (3, 200, 500)
    a0 = (3, 300, 500)
    b2x_first = 0
    cgd = 800
    hooks = (0,)
    lnd = 3
    aq = (4, 60, 40)
    prew = 2
    cs_sc = ''
    pace = 200
    touch = 1
    tpol = ' nt'
    xpol = ''
    pfpol = ''
    exp = ''
    rot = 1
    pf0 = 0
    pf0pol = ' nt'
    pf = 6
    b0_late = 1
    fclean = 0
    ldsx = 0
    wb = 0
    wbc = 0
    dbgwg = 0
    cs_late = 1
    tlb = 0
    xd = 40
    bound = 60.0

DPP = "row_mask:0xf bank_mask:0xf"
G_OFF = 0x1000; G_STRIDE = 0x8000
GB_OFF = 0x40000; GB_STRIDE = 0x60000
SM = 0x50000 + 0x1000
AGQ = [-0x1000, -0xC00]; XALL = [-0x800, -0x400, 0x0]; OSTAT = [0x400, 0x800]; XCC = 0xC00
DBG_OFF = 0x400000
NTAGS = 16
L_O = 32768; L_ST = 40960; L_MODE = L_ST + 128; L_CNT = L_ST + 136; L_CN2 = L_ST + 140; L_Q = 41984; L_WQ = L_Q + 1024; L_GU = L_WQ + 16384; L_WD = L_GU + 16384
LDS_BYTES = L_WD + 8192
sX, sK, sV, sWQ, sWO, sWG, sWU, sWD, sOUT, sWS = ("s[4:5]", "s[6:7]", "s[8:9]", "s[10:11]", "s[12:13]",
    "s[16:17]", "s[18:19]", "s[20:21]", "s[22:23]", "s[26:27]")
sB = ["s[36:37]", "s[38:39]", "s[40:41]"]; sCG = "s[42:43]"; sCQ = "s[40:41]"; sSM = "s[46:47]"
sG = ["s[48:49]", "s[50:51]", "s[52:53]", "s[54:55]"]
sE, sT, sCNT, sXCC, sLO, sHI, sONE, sCN2 = "s56", "s57", "s58", "s61", "s62", "s63", "s64", "s65"
sODD = "s[66:67]"; M56 = "s[14:15]"
vMASK, vIN, vPUB, vPUB2, vGIN, vGPUB, vPAIR, vXALL, vOSI, vOSP, vLDS, vLST = ["v%d" % i for i in range(1, 13)]
vX, vCS, vINX, vPR, vMU, vRS, vNM = "v13", "v14", "v15", "v16", "v17", "v18", "v19"
GA = 20; MA = 28; LA = 36; ACC = 40; TMP = 48; T2 = 64; NEG = 72
vZERO, vAQ, vCLR, vXC, vWO, vDN, vDN2, vJ = "v76", "v79", "v78", "v253", "v208", "v209", "v210", "v211"
vX1, vPAIR8 = "v252", "v254"
WA, WB, SPARE = 80, 144, 212
PL = 214; PM = 222; PX = 238; PC = 242; PG = 250


def HB(hop): return sB[1] if hop == 1 else sB[[1, 2, 0][hop % 3]]


class Gen:
    def __init__(self, cfg):
        self.c = cfg; self.a = Asm(); self.tail = []; self.nlab = 0; self.spare = SPARE

    def lab(self, s):
        self.nlab += 1
        return f"L_{s}_{self.nlab}"

    def stamp(self, i):
        if self.c.debug: self.a(f"s_memtime s[{70+2*i}:{71+2*i}]")

    def end(self, slot):
        a = self.a
        if self.c.debug == 3:
            if slot == 0:
                l, l2 = self.lab("nodbg"), self.lab("spin")
                a(f"s_memtime s[100:101]\ns_waitcnt lgkmcnt(0)\ns_cmp_eq_u32 s2, 0\ns_cbranch_scc0 {l}\ns_sub_u32 s31, s{70+2*self.c.dbgwg}, s70\ns_min_u32 s31, s31, 200000")
                a(f"{l2}:\ns_memtime s[98:99]\ns_waitcnt lgkmcnt(0)\ns_sub_u32 s30, s98, s100\ns_cmp_lt_u32 s30, s31\ns_cbranch_scc1 {l2}\n{l}:")
            a("s_endpgm"); return
        if self.c.debug == 2:
            if slot == 0:
                l = self.lab("nodbg")
                a(f"s_memtime s[100:101]\ns_load_dwordx2 s[24:25], s[0:1], 80\ns_waitcnt vmcnt(0) lgkmcnt(0)\ns_cmp_lt_u32 s2, 8\ns_cbranch_scc0 {l}\ns_mov_b64 exec, 1")
                a("s_lshl_b32 s30, s2, 2\nv_mov_b32 v20, s30\nv_mov_b32 v24, s68\nglobal_store_dword v20, v24, s[24:25]")
                a(f"s_cmp_eq_u32 s2, {self.c.dbgwg}\ns_cbranch_scc0 {l}")
                for j, i in enumerate((1, 4, 6, 10, 11, 14, 15)): a(f"s_sub_u32 s31, s{70+2*i}, s70\nv_mov_b32 v{24+j}, s31")
                a("v_mov_b32 v20, 0\nv_mov_b32 v31, 0\nglobal_store_dwordx4 v20, v[24:27], s[24:25] offset:32\nglobal_store_dwordx4 v20, v[28:31], s[24:25] offset:48")
                a(f"{l}:")
            a("s_endpgm"); return
        if self.c.debug:
            a("s_memtime s[100:101]\ns_waitcnt vmcnt(0) lgkmcnt(0)\ns_mov_b64 exec, -1")
            a(f"s_lshl_b32 s30, s2, 9\ns_add_u32 s30, s30, {DBG_OFF + slot*128}")
            a("v_mov_b32 v20, s30\nv_mov_b32 v24, s68")
            for i in range(1, 16): a(f"s_sub_u32 s31, s{70+2*i}, s70\nv_mov_b32 v{24+i}, s31")
            for i in range(4): a(f"global_store_dwordx4 v20, v[{24+4*i}:{27+4*i}], {sWS} offset:{16*i}")
        a("s_endpgm")

    def tag(self, k): self.a(f"s_add_u32 {sT}, {sE}, {k}\ns_and_b32 {sT}, {sT}, 0x3f\ns_or_b32 {sT}, {sT}, 0x40")

    def nops(self, cyc):
        if cyc >= 192:
            self.a(f"s_sleep {cyc // 64}"); return
        while cyc >= 4:
            k = min(cyc // 4, 16); self.a(f"s_nop {k-1}"); cyc -= 4 * k

    def ool(self, fn):
        fb = Asm(); sv, self.a = self.a, fb
        fn(fb)
        self.a = sv
        self.tail.append(fb.text())

    def flush(self):
        while self.tail: self.a(self.tail.pop(0))

    def poll(self, name, loads, body, par, shadow=None, bound=None, over=None, first=True, pace=0):
        a = self.a
        depth, delay, gap = par
        nl = loads.count("global_")
        top, ov = self.lab(name), self.lab(name + "_over")
        a(f"s_mov_b32 {sCNT}, {bound or self.c.limit * self.c.outer}")
        if first:
            self.nops(delay)
            for k in range(depth - 1):
                a(loads); self.nops(gap)
        if shadow:
            skip = self.lab(name + "_in")
            a(loads); shadow(depth * nl); a(f"s_branch {skip}\n{top}:\n{loads}\n{skip}:")
        else:
            a(f"{top}:\n{loads}")
        a(f"s_sub_u32 {sCNT}, {sCNT}, 1\ns_cbranch_scc1 {ov if over else 'L_exit'}")
        self.nops(pace)
        body((depth - 1) * nl)
        a(f"s_cbranch_vccnz {top}")
        if over: self.ool(lambda fb: over(fb, ov, top))

    def allred(self, r, t, op="v_add_f32"):
        self.a(f"""v_mov_b32 v{t}, v{r}
v_permlane32_swap_b32 v{r}, v{t}
{op} v{r}, v{r}, v{t}
v_mov_b32 v{t}, v{r}
v_permlane16_swap_b32 v{r}, v{t}
{op} v{r}, v{r}, v{t}""")

    def rs_loads(self, base, g, n=8):
        return "\n".join(f"global_load_dword v{g+i}, {vIN}, {base} offset:{256*i} sc1" for i in range(n))

    def umax(self, t, regs):
        regs = list(regs)
        self.a(f"v_max3_u32 v{t}, v{regs[0]}, v{regs[1]}, v{regs[2]}")
        for i in range(3, len(regs), 2): self.a(f"v_max3_u32 v{t}, v{t}, v{regs[i]}, v{regs[min(i+1, len(regs)-1)]}")

    def tagged_sum(self, src, n=8):
        a = self.a
        for i in range(n): a(f"v_xor_b32 v{MA+i}, {sT}, v{src+i}")
        a(f"v_or3_b32 v{TMP}, v{MA}, v{MA+1}, v{MA+2}\nv_or3_b32 v{TMP}, v{TMP}, v{MA+3}, v{MA+4}\nv_or3_b32 v{TMP}, v{TMP}, v{MA+5}, v{MA+6}\nv_or_b32 v{TMP}, v{TMP}, v{MA+7}")
        a(f"v_cmp_ne_u32_sdwa vcc, v{TMP}, 0 src0_sel:BYTE_0 src1_sel:DWORD")
        a(f"v_pk_add_f32 v[{GA}:{GA+1}], v[{MA}:{MA+1}], v[{MA+2}:{MA+3}]\nv_pk_add_f32 v[{GA+2}:{GA+3}], v[{MA+4}:{MA+5}], v[{MA+6}:{MA+7}]")
        a(f"v_pk_add_f32 v[{GA}:{GA+1}], v[{GA}:{GA+1}], v[{GA+2}:{GA+3}]\nv_add_f32 v{GA}, v{GA}, v{GA+1}")

    def rs_gather(self, name, base, n=8, post=None, par=None, ln=None):
        z, t, y = GA, TMP, PL
        done = self.lab(name + "_done")
        def reduce(off, test):
            a = self.a
            a(f"s_waitcnt vmcnt({off + n - 4})\nv_pk_add_f32 v[{z}:{z+1}], v[{y}:{y+1}], v[{y+2}:{y+3}]\ns_waitcnt vmcnt({off})")
            if n == 8: a(f"v_pk_add_f32 v[{z+2}:{z+3}], v[{y+4}:{y+5}], v[{y+6}:{y+7}]\nv_pk_add_f32 v[{z}:{z+1}], v[{z}:{z+1}], v[{z+2}:{z+3}]")
            else: a(f"v_pk_add_f32 v[{z}:{z+1}], v[{z}:{z+1}], v[{y+4}:{y+5}]\nv_add_f32 v{z}, v{z}, v{y+6}")
            a(f"v_add_f32 v{z}, v{z}, v{z+1}\nv_mov_b32 v{t}, v{z}")
            if test: a(f"v_cmp_u_f32 vcc, v{z}, v{z}")
            a(f"v_permlane32_swap_b32 v{z}, v{t}\nv_add_f32 v{z}, v{z}, v{t}\nv_mov_b32 v{t}, v{z}")
        def over(fb, ov, top):
            fb(f"{ov}:\ns_sub_u32 {sCN2}, {sCN2}, 1\ns_cbranch_scc1 L_exit\ns_mov_b32 {sCNT}, {self.c.limit}\ns_waitcnt vmcnt(0)")
            self.umax(t, range(y, y + n))
            fb(f"v_cmp_eq_u32 vcc, -1, v{t}\ns_cbranch_vccnz {top}")
            reduce(0, False)
            fb(f"s_branch {done}")
        loads = self.rs_loads(base, PL, n)
        a = self.a
        a(f"s_mov_b32 {sCN2}, {self.c.outer}")
        if ln is None:
            self.poll(name, loads, lambda off: reduce(off, True), par or self.c.rs, bound=self.c.limit, over=over)
        else:
            xl = f"global_load_dwordx4 v[{PX}:{PX+3}], {vXALL}, {sSM} offset:{XALL[ln]} sc1"
            xchk = f"v_max3_u32 v{TMP}, v{PX}, v{PX+1}, v{PX+2}\nv_max_u32 v{TMP}, v{TMP}, v{PX+3}\nv_cmp_eq_u32 vcc, -1, v{TMP}"
            xr, xok = self.lab("xretry"), self.lab("xok")
            a(f"{xl}\ns_mov_b32 {sCNT}, {self.c.limit * self.c.outer}")
            self.nops(self.c.xd)
            a(f"{loads}\ns_waitcnt vmcnt({n})\n{xchk}\ns_cbranch_vccnz {xr}\n{xok}:")
            self.tail.append(f"{xr}:\n{xl}\n{xr}_b:\n{xl}\ns_sub_u32 {sCNT}, {sCNT}, 1\ns_cbranch_scc1 L_exit\ns_waitcnt vmcnt(1)\n{xchk}\ns_cbranch_vccnz {xr}_b\n{loads}\ns_branch {xok}\n")
            self.stats(PX, lambda: a(loads))
            a(f"v_mul_f32 {vNM}, {vMU}, {vRS}\nv_mul_f32_e64 {vNM}, -{vNM}, {vCS}")
            self.poll(name, loads, lambda off: reduce(off, True), (self.c.lnd, 0, 0), bound=self.c.limit, over=over, first=False)
        a(f"{done}:\nv_permlane16_swap_b32 v{z}, v{t}\nv_add_f32 v{z}, v{z}, v{t}")

    def pack(self, r):
        self.a(f"v_mov_b32_dpp v{TMP}, v{r} quad_perm:[1,0,3,2] {DPP}\nv_cvt_pk_bf16_f32 {vPR}, v{r}, v{TMP}")

    def perm_pair(self, W, base, kp):
        W.append([])
        for u in range(4):
            lo = base + 8 * kp + u; hi = lo + 4; s = self.spare
            self.a(f"v_perm_b32 v{s}, v{hi}, v{lo}, {sLO}\nv_perm_b32 v{hi}, v{hi}, v{lo}, {sHI}")
            W[kp] += [s, hi]; self.spare = lo

    def zero_acc(self):
        for j in range(0, 8, 2): self.a(f"v_mov_b64 v[{ACC+j}:{ACC+j+1}], 0")

    def dots(self, W, kp, src=None, lane=None):
        for j in range(8):
            if src: self.a(f"v_dot2c_f32_bf16 v{ACC+j}, {src}, v{W[kp][j]}")
            else: self.a(f"v_dot2c_f32_bf16_dpp v{ACC+j}, {vPR}, v{W[kp][j]} row_newbcast:{2*kp if lane is None else lane} {DPP}")

    def gemv(self, W, base, sc, lanes=None, addr=(vPUB, vPUB2), mask=None):
        a = self.a
        n = len(W)
        d = lambda kp, j: a(f"v_dot2c_f32_bf16_dpp v{ACC+j}, {vPR}, v{W[kp][j]} row_newbcast:{2*kp if lanes is None else lanes[kp]} {DPP}")
        def store(t):
            if mask: a(f"s_mov_b64 exec, {mask}")
            a(f"global_store_dwordx4 {addr[t]}, v[{ACC+4*t}:{ACC+4*t+3}], {base}{sc}")
            if mask: a("s_mov_b64 exec, -1")
        for kp in range(n):
            for j in range(4): d(kp, j)
        for kp in range(n):
            for j in range(4, 8): d(kp, j)
            if kp == 0: store(0)
        store(1)

    def tagged_publish(self, base, sc, mask=None):
        a = self.a
        for j in range(8): a(f"v_bfi_b32 v{ACC+j}, {vMASK}, {sT}, v{ACC+j}")
        if mask: a(f"s_mov_b64 exec, {mask}")
        a(f"global_store_dwordx4 {vPUB}, v[{ACC}:{ACC+3}], {base}{sc}\nglobal_store_dwordx4 {vPUB2}, v[{ACC+4}:{ACC+7}], {base}{sc}")
        if mask: a("s_mov_b64 exec, -1")

    def clear_inbox(self, base, sc):
        self.a(f"global_store_dwordx4 {vINX}, v[{NEG}:{NEG+3}], {base}{sc}\nglobal_store_dwordx4 {vINX}, v[{NEG}:{NEG+3}], {base} offset:1024{sc}")

    def stats(self, x, hook=None):
        a = self.a
        p, q = TMP, TMP + 1
        a(f"v_mov_b32 v{p}, 0\nv_mov_b32 v{q}, 0")
        for i in range(4): a(f"v_dot2c_f32_bf16 v{p}, {sONE}, v{x+i}\nv_dot2c_f32_bf16 v{q}, v{x+i}, v{x+i}")
        a(f"v_mov_b32 v{q+1}, 0x{f2u(1/512.):08x}\nv_mov_b32 v{q+2}, 0x{f2u(1e-5):08x}")
        a(f"v_permlane32_swap_b32 v{p}, v{q}\nv_add_f32 v{p}, v{p}, v{q}\nv_mov_b32 v{q}, v{p}")
        a(f"v_permlane16_swap_b32 v{p}, v{q}\nv_add_f32 v{p}, v{p}, v{q}")
        for i, r in enumerate((8, 4, 2, 1)):
            if hook and i in self.c.hooks: hook()
            a(f"v_add_f32_dpp v{p}, v{p}, v{p} row_ror:{r} {DPP}")
        a(f"v_readlane_b32 s30, v{p}, 0\nv_readlane_b32 s31, v{p}, 32")
        if hook and 4 in self.c.hooks: hook()
        a(f"v_mul_f32 {vMU}, s30, v{q+1}\nv_fma_f32 {vRS}, s31, v{q+1}, v{q+2}")
        a(f"v_fma_f32 {vRS}, -{vMU}, {vMU}, {vRS}\nv_max_f32 {vRS}, {vRS}, v{q+2}\nv_rsq_f32 {vRS}, {vRS}")

    def pair_store(self, base, off, sc):
        self.a(f"s_mov_b64 exec, 0x5555\nglobal_store_dword {vPAIR}, {vPR}, {base} offset:{off}{sc}\ns_mov_b64 exec, -1")

    def lds_weights(self, W, base, vaddr, off, npair, use=None):
        a = self.a
        rd = lambda k: a(f"ds_read_b128 v[{base+4*k}:{base+4*k+3}], {vaddr} offset:{off+1024*k}")
        for k in range(min(8, 2 * npair)): rd(k)
        for kp in range(npair):
            if 2 * kp + 8 < 2 * npair:
                rd(2 * kp + 8); rd(2 * kp + 9); out = 8
            else: out = 2 * npair - 2 * kp - 2
            a(f"s_waitcnt lgkmcnt({out})")
            self.perm_pair(W, base, kp)
            if use: use(kp)

    def prologue(self):
        a = self.a; c = self.c
        if c.debug: a("s_memtime s[70:71]\ns_memrealtime s[68:69]")
        a(f"""s_load_dwordx16 s[4:19], s[0:1], 0
s_load_dwordx8 s[20:27], s[0:1], 64
s_cmpk_ge_u32 s2, 0x100
s_cbranch_scc1 L_exit
v_lshrrev_b32 v1, 6, v0
v_and_b32 v0, 63, v0
s_lshr_b32 s29, s2, 3
v_readfirstlane_b32 s33, v1
s_and_b32 s28, s2, 7
s_and_b32 s34, s29, 15
s_lshr_b32 s35, s29, 4
s_lshl_b32 s60, s34, 5
s_lshl2_add_u32 s60, s35, s60
v_lshlrev_b32 v15, 4, v0
s_cmp_ge_u32 s33, 4
s_cbranch_scc1 L_C0
s_lshl3_add_u32 s32, s33, s60
s_lshl3_add_u32 s30, s32, s28
s_lshl_b32 s30, s30, 10
v_add_u32 v1, s30, v15
s_lshl_b32 s36, s33, 12
s_add_u32 m0, s36, {L_WQ}
s_movk_i32 s3, 0x2000
s_waitcnt lgkmcnt(0)""")
        for i in range(4):
            a(f"global_load_lds_dwordx4 v1, {sWQ}{c.nt}")
            if i < 3: a("s_addk_i32 m0, 0x400\nv_add_u32 v1, s3, v1")
        a(f"""s_branch L_S1
L_C0:
s_cmp_eq_u32 s33, 4
s_cbranch_scc1 L_X0
s_getpc_b64 s[30:31]
s_mulk_i32 s29, {128 * c.pf}
v_lshl_add_u32 v2, v0, 7, s29
s_mov_b64 exec, {(1 << c.pf) - 1}
global_load_dword {vJ}, v2, s[30:31]{c.pfpol}
s_branch L_C
L_X0:
{self.pf0()}s_waitcnt lgkmcnt(0)
global_load_dwordx4 v[32:35], v15, {sX}{c.xpol}
s_branch L_C
L_early_end:""")

    def pf0(self):
        c = self.c
        if not c.pf0: return "s_setprio 3\n"
        return f"s_getpc_b64 s[30:31]\nv_lshlrev_b32 v2, 7, v0\ns_mov_b64 exec, {(1 << c.pf0) - 1 if c.pf0 <= 6 else hex((1 << c.pf0) - 1)}\nglobal_load_dword {vJ}, v2, s[30:31]{c.pf0pol}\ns_mov_b64 exec, -1\n"

    def consts(self):
        self.a("s_mov_b32 s62, 0x05040100\ns_mov_b32 s63, 0x07060302\ns_mov_b32 s64, 0x3f803f80")

    KF, VR, VF, Q, D, P, ON, O, OL, X, T = 16, 48, 80, 112, 128, 136, 140, 144, 176, 184, 192

    def s_stream(self):
        a = self.a; c = self.c
        KF, VR, VF, ON, T = self.KF, self.VR, self.VF, self.ON, self.T
        n = [4]; landed = [-1]
        wins = c.wins
        def signal(off):
            a(f"v_mov_b32 v{T}, 1\ns_mov_b64 s[38:39], exec\ns_mov_b64 exec, 1\nds_add_u32 v{T+12}, v{T} offset:{off}\ns_mov_b64 exec, s[38:39]")
        def throttle():
            w = wins[n[0] - 4]
            if n[0] - w > landed[0]:
                if landed[0] < 3 <= n[0] - w:
                    a(f"s_waitcnt vmcnt({n[0] - 4})")
                    if 'noq' in c.exp: self.stamp(14)
                    a("s_barrier"); self.stamp(1)
                    landed[0] = 3
                if n[0] - w > landed[0]: a(f"s_waitcnt vmcnt({w-1})"); landed[0] = n[0] - w
            if 'noq' in c.exp and n[0] in (4, 8, 12, 16, 20): self.stamp({4: 9, 8: 10, 12: 11, 16: 12, 20: 13}[n[0]])
            if n[0] == c.wo_at: signal(L_CNT)
            n[0] += 1
        a("""L_S1:
s_lshl_b32 s30, s28, 24
s_lshl_b32 s31, s29, 15
s_add_u32 s30, s30, s31
s_add_u32 s30, s30, 0xF00000
s_add_u32 s6, s6, s30
s_addc_u32 s7, s7, 0
s_lshl_b32 s40, s33, 13
s_mov_b32 m0, s40
v_and_b32 v6, 15, v0
v_lshrrev_b32 v7, 4, v0
v_xor_b32 v8, v6, v7
v_lshlrev_b32 v8, 4, v8
v_lshl_add_u32 v9, v7, 8, v8
v_add_u32 v9, s40, v9""")
        if c.rot: a("s_lshl_b32 s37, s29, 2\ns_and_b32 s31, s28, 3\ns_or_b32 s37, s37, s31\ns_lshl_b32 s37, s37, 8\nv_xor_b32 v9, s37, v9")
        else: a("s_mov_b32 s37, 0")
        for i in range(8):
            if i: a(f"s_addk_i32 m0, 0x400\nv_xor_b32 v1, {64*(i&3) + 1024*i}, v9")
            throttle()
            a(f"global_load_lds_dwordx4 {'v1' if i else 'v9'}, {sK}{c.nt}")
            if i == 3:
                a("s_add_u32 s8, s8, s30\ns_addc_u32 s9, s9, 0")
                self.consts()
                a("v_lshlrev_b32 v10, 4, v6\nv_lshl_add_u32 v10, v7, 10, v10\nv_add_u32 v10, s40, v10\nv_xor_b32 v10, s37, v10")
                a("v_lshl_add_u32 v11, v6, 8, v8\nv_add_u32 v11, s40, v11")
                for j in range(1, 4): a(f"v_xor_b32 v{11+j}, {64*j}, v11")
                a("v_lshrrev_b32 v2, 2, v6\nv_lshlrev_b32 v5, 4, v2\nv_lshlrev_b32 v2, 8, v2\nv_lshl_add_u32 v2, v7, 4, v2")
                a(f"s_lshl_b32 s31, s33, 2\ns_add_u32 s31, s31, {L_ST}\nv_add_u32 v5, s31, v5")
                a(f"v_lshlrev_b32 v3, 4, v7\nv_add_u32 v3, s31, v3")
                a(f"s_lshl_b32 s31, s33, 11\ns_add_u32 s31, s31, {L_O}\nv_lshlrev_b32 v4, 2, v0\nv_add_u32 v4, s31, v4")
            if i == 4:
                for k in range(4): a(f"v_mov_b32 v{ON+k}, {sONE}")
                cs = f2u(128**-0.5*1.4426950408889634)
                a(f"v_mov_b32 v{T+6}, 0x{cs:08x}\nv_mov_b32 v{T+7}, 0x{cs:08x}\nv_mov_b32 v{T+5}, 0x{f2u(c.bound):08x}\nv_mov_b32 v{T+12}, 0")
                a(f"v_add_u32 v2, {L_Q}, v2\nv_lshrrev_b32 v{T}, 2, v6")
                for j in range(4): a(f"v_add_u32 v{T+1}, {j}, v{T}\nv_and_b32 v{T+1}, 3, v{T+1}\nv_lshl_add_u32 v{T+8+j}, v{T+1}, 6, v2")
            if i == 5:
                a("""s_mul_i32 s30, s32, 3584
s_mul_i32 s31, s28, 448
s_add_u32 s30, s30, s31
v_and_b32 v184, 31, v0
v_lshl_add_u32 v184, v184, 4, s30
v_cmp_gt_u32 vcc, 32, v0
v_mov_b32 v186, s18
v_mov_b32 v187, s19
v_mov_b32 v188, s16
v_mov_b32 v189, s17
v_cndmask_b32 v186, v186, v188, vcc
v_cndmask_b32 v187, v187, v189, vcc
v_mov_b32 v185, 0
s_mov_b32 s14, 3584
s_mov_b32 s15, 0
v_lshl_add_u64 v[184:185], v[184:185], 0, v[186:187]
s_min_u32 s30, s34, 13
s_lshl_b32 s30, s30, 4
s_mul_i32 s31, s28, 224
s_add_u32 s30, s30, s31
s_lshl2_add_u32 s30, s35, s30
s_lshr_b32 s31, s33, 1
s_lshl3_add_u32 s30, s31, s30
s_and_b32 s31, s33, 1
s_lshl1_add_u32 s30, s31, s30
s_lshl_b32 s30, s30, 10
v_add_u32 v190, s30, v15""")
        for i in range(8):
            if i: a(f"v_xor_b32 v1, {(i>>2)*4096+(i&3)*256}, v10")
            throttle()
            a(f"global_load_dwordx4 v[{VR+4*i}:{VR+4*i+3}], {'v1' if i else 'v10'}, {sV}{c.nt}")
        kread = [False]; vdone = [0]
        def work():
            if landed[0] >= 11 and not kread[0]:
                kread[0] = True
                for t in range(2):
                    for j in range(4): a(f"ds_read_b128 v[{KF+16*t+4*j}:{KF+16*t+4*j+3}], v{11+j} offset:{4096*t}")
            while vdone[0] < 4 and landed[0] >= 13 + 2 * vdone[0]:
                self.vperm(vdone[0]); vdone[0] += 1
        work()
        a(f"s_add_u32 m0, s36, {L_GU}")
        for i in range(4):
            throttle()
            a(f"s_mov_b32 exec_lo, 0x0fffffff\ns_mov_b32 exec_hi, 0x0fffffff\nglobal_load_lds_dwordx4 v[184:185], off{c.nt}\ns_mov_b64 exec, -1")
            if i < 3: a("s_addk_i32 m0, 0x400\nv_lshl_add_u64 v[184:185], v[184:185], 0, s[14:15]")
            else: a(f"s_lshl_b32 s31, s33, 11\ns_add_u32 m0, s31, {L_WD}")
            work()
        for i in range(2):
            throttle()
            a(f"global_load_lds_dwordx4 v190, {sWD} offset:{1024*i}{c.nt}")
            work()
        if c.wo_at >= 26: signal(L_CNT)
        assert kread[0]
        self.vdone = vdone[0]; self.signal = signal
        self.stamp(2)
        a("s_branch L_S2")

    def vperm(self, u):
        for up in range(4):
            for b in range(2):
                self.a(f"v_perm_b32 v{self.VF+4*(2*up+b)+u}, v{self.VR+4*(2*u+1)+up}, v{self.VR+4*(2*u)+up}, {sHI if b else sLO}")

    def s_layers(self):
        a = self.a; c = self.c
        KF, VR, VF, Q, D, P, ON, O, OL, X, T = self.KF, self.VR, self.VF, self.Q, self.D, self.P, self.ON, self.O, self.OL, self.X, self.T
        a("L_S2:")
        for li in range(2):
            if li: a("s_barrier\n" * 4)
            a(f"v_mov_b32 v{T+4}, 0\ns_waitcnt lgkmcnt(0)\ns_barrier")
            self.stamp(3 + 6 * li)
            if 'noq' in c.exp and li == 0:
                a("s_waitcnt vmcnt(0)"); self.stamp(4)
                l = self.lab("x"); a(f"s_cmp_eq_u32 s33, 0\ns_cbranch_scc1 {l}\ns_endpgm\n{l}:"); self.end(2)
            for j in range(4): a(f"ds_read_b128 v[{Q+4*j}:{Q+4*j+3}], v{T+8+j}")
            a(f"ds_write_b32 v5, v{T+4}")
            for j in range(4):
                a(f"s_waitcnt lgkmcnt({4 - j})")
                for t in range(2):
                    cc = f"v[{D+4*t}:{D+4*t+3}]"
                    a(f"v_mfma_f32_16x16x32_bf16 {cc}, v[{KF+16*t+4*j}:{KF+16*t+4*j+3}], v[{Q+4*j}:{Q+4*j+3}], {cc if j else 0}")
            self.stamp(5 + 6 * li)
            for i in range(0, 8, 2): a(f"v_pk_mul_f32 v[{X+i}:{X+i+1}], v[{D+i}:{D+i+1}], v[{T+6}:{T+7}]")
            for i in range(8): a(f"v_exp_f32 v{D+i}, v{X+i}")
            for u in range(4): a(f"v_cvt_pk_bf16_f32 v{P+u}, v{D+2*u}, v{D+2*u+1}")
            self.stamp(6 + 6 * li)
            if li == 0:
                for u in range(self.vdone, 4):
                    a(f"s_waitcnt vmcnt({12 - 2*u})")
                    self.vperm(u)
                self.stamp(4)
            lfb, lback = self.lab("fallback"), self.lab("pv")
            a(f"{lback}:")
            for e in range(8):
                a(f"v_mfma_f32_16x16x32_bf16 v[{O+4*e}:{O+4*e+3}], v[{P}:{P+3}], v[{VF+4*e}:{VF+4*e+3}], 0")
                if e == 0: a(f"v_max3_f32 v{T}, v{X}, v{X+1}, v{X+2}\nv_max3_f32 v{T+1}, v{X+3}, v{X+4}, v{X+5}")
                if e == 1: a(f"v_max3_f32 v{T}, v{T}, v{X+6}, v{X+7}\nv_max_f32 v{T}, v{T}, v{T+1}")
                if e == 2: a(f"v_cmp_gt_f32 vcc, |v{T}|, v{T+5}")
                if e == 3: a(f"v_mfma_f32_16x16x32_bf16 v[{OL}:{OL+3}], v[{P}:{P+3}], v[{ON}:{ON+3}], 0\ns_cbranch_vccnz {lfb}")
                if e == 5: a(f"ds_write2st64_b32 v4, v{O}, v{O+4} offset0:0 offset1:1")
                if e == 7: a(f"ds_write2st64_b32 v4, v{O+8}, v{O+12} offset0:2 offset1:3\nds_write_b32 v3, v{OL} offset:64")
            for e in range(4, 8, 2): a(f"ds_write2st64_b32 v4, v{O+4*e}, v{O+4*e+4} offset0:{e} offset1:{e+1}")
            a("s_waitcnt lgkmcnt(0)")
            self.stamp(7 + 6 * li)
            a("s_barrier")
            if li == 0:
                a("s_waitcnt vmcnt(0)"); self.signal(L_CN2); a("s_waitcnt lgkmcnt(0)"); self.stamp(8)
            def fbk(fb):
                fb(f"{lfb}:\ns_nop 7")
                self.allred(T, T + 1, "v_max_f32")
                for i in range(8): fb(f"v_sub_f32 v{X+i}, v{X+i}, v{T}")
                for i in range(8): fb(f"v_exp_f32 v{D+i}, v{X+i}\nv_mov_b32 v{X+i}, 0")
                for u in range(4): fb(f"v_cvt_pk_bf16_f32 v{P+u}, v{D+2*u}, v{D+2*u+1}")
                fb(f"ds_write_b32 v5, v{T}\ns_nop 7\ns_branch {lback}")
            self.ool(fbk)
        if c.debug:
            l = self.lab("sdone")
            a(f"s_cmp_eq_u32 s33, 0\ns_cbranch_scc1 {l}\ns_endpgm\n{l}:")
        self.end(2)

    def clear_all(self, sc):
        a = self.a
        a(f"s_mov_b32 exec_hi, 0x00ffffff\nglobal_store_dword {vCLR}, v{NEG}, {sSM} offset:{AGQ[0]}{sc}\ns_mov_b64 exec, -1")
        self.clear_inbox(sB[0], sc)

    def c_pre(self):
        a = self.a; c = self.c
        a(f"""L_C:
s_mov_b64 exec, -1
s_lshr_b32 s29, s2, 3
s_waitcnt lgkmcnt(0)
s_load_dword {sE}, {sWS}, 0
s_mul_i32 s59, s28, {GB_STRIDE}
s_add_u32 s59, s59, {GB_OFF}
v_and_b32 v20, 15, v0
v_lshrrev_b32 v21, 4, v0
v_lshlrev_b32 v22, 2, v0
v_lshlrev_b32 {vXALL}, 4, v0
v_lshrrev_b32 v23, 2, v20
v_and_b32 v24, 3, v0
v_lshl_add_u32 v28, v23, 3, v24
v_add_u32 v28, s60, v28
v_lshlrev_b32 {vPAIR}, 1, v28
v_mov_b64 v[76:77], 0
s_lshl_b32 s30, s29, 11
v_add_u32 {vINX}, s30, {vXALL}
v_add_u32 {vIN}, s30, v22
v_mov_b64 v[{NEG}:{NEG+1}], -1
v_mov_b64 v[{NEG+2}:{NEG+3}], -1
s_cmp_eq_u32 s33, 4
s_cbranch_scc0 L_Ypre""")
        a(f"""v_and_b32 v31, 7, v0
v_lshrrev_b32 v25, 1, v31
v_and_b32 v26, 1, v0
v_lshlrev_b32 v25, 4, v25
v_lshl_add_u32 v25, v26, 2, v25
s_lshl_b32 s31, s60, 1
v_add_u32 v25, s31, v25
s_and_b32 s31, s29, 3
s_lshl_b32 s31, s31, 5
s_lshr_b32 s32, s29, 2
s_lshl_b32 s32, s32, 2
s_add_u32 s31, s31, s32
v_lshl_add_u32 v27, v31, 7, s31
v_cmp_gt_u32 vcc, 40, v0
v_lshrrev_b32 {vCLR}, 3, v0
v_lshlrev_b32 {vCLR}, 10, {vCLR}
v_cndmask_b32 v25, v27, v25, vcc
v_add_u32 {vCLR}, {vCLR}, v25
v_and_b32 v25, 6, v0
v_lshlrev_b32 v25, 3, v25
v_lshl_add_u32 v25, v26, 2, v25
s_lshl_b32 s31, s60, 1
v_add_u32 {vPAIR8}, s31, v25
global_load_dword {vX1}, {vPAIR8}, {sX}{c.xpol}""")
        assert OSTAT[0] - AGQ[0] == 5 * 1024 and OSTAT[1] - OSTAT[0] == 1024
        self.bases()
        self.clear_all("")
        if c.touch:
            a(f"v_lshlrev_b32 v29, 16, v21\nv_lshl_add_u32 v29, v20, 7, v29\ns_lshl_b32 s30, s29, 11\nv_add_u32 v29, s30, v29\ns_mov_b32 exec_hi, 0xffff\nglobal_load_dword {vJ}, v29, {sB[0]}{c.tpol}\ns_mov_b64 exec, -1")
            a(f"s_lshl_b32 s30, s29, 8\nv_lshl_add_u32 v29, v0, 7, s30\ns_mov_b64 exec, 3\nglobal_load_dword {vJ}, v29, {sSM} offset:-4096{c.tpol}\ns_mov_b64 exec, -1")
        a(f"s_branch L_Cjoin\nL_Ypre:\nv_mov_b32 {vCLR}, 0\nv_mov_b32 {vPAIR8}, 0")
        if c.tlb:
            nl = c.tlb
            a(f"""s_lshl_b32 s30, s28, 24
s_lshl_b32 s31, s29, 15
s_add_u32 s30, s30, s31
s_add_u32 s30, s30, 0xF00000
v_lshl_add_u32 v25, v0, 13, s30
s_mul_i32 s30, s60, 3584
s_mul_i32 s31, s28, 448
s_add_u32 s30, s30, s31
v_mul_u32_u24 v26, 28672, v0
v_add_u32 v26, s30, v26
s_min_u32 s30, s34, 13
s_lshl_b32 s30, s30, 4
s_mul_i32 s31, s28, 224
s_add_u32 s30, s30, s31
s_lshl_b32 s30, s30, 10
v_lshl_add_u32 v27, v0, 12, s30
s_and_b32 s31, s29, 3
s_lshl_b32 s31, s31, 7
s_lshr_b32 s32, s29, 2
s_add_u32 s31, s31, s32
s_lshl_b32 s32, s28, 9
s_add_u32 s31, s31, s32
s_lshl_b32 s31, s31, 10
v_lshl_add_u32 v29, v0, 15, s31
s_mov_b64 exec, {(1 << nl) - 1}
global_load_dword {vJ}, v26, {sWG} nt
global_load_dword {vJ}, v26, {sWU} nt
global_load_dword {vJ}, v27, {sWD} nt
global_load_dword {vJ}, v25, {sK} nt
global_load_dword {vJ}, v25, {sV} nt
global_load_dword {vJ}, v29, {sWO} nt
s_mov_b64 exec, -1""")
        a(f"global_load_ushort {vJ}, {vPAIR}, {sOUT}")
        self.bases()
        a("L_Cjoin:")
        self.consts()
        a(f"""s_getreg_b32 s61, hwreg(HW_REG_XCC_ID, 0, 4)
v_mov_b32 {vMASK}, 0xff
s_lshl_b32 s31, s29, 10
v_lshrrev_b32 {vGIN}, 3, v0
v_lshlrev_b32 {vGIN}, 7, {vGIN}
v_and_b32 v25, 7, v0
v_lshl_add_u32 {vGIN}, v25, 3, {vGIN}
v_add_u32 {vGIN}, s31, {vGIN}
s_lshl_b32 s32, s28, 7
s_add_u32 s31, s31, s32
v_lshl_add_u32 {vGPUB}, v20, 2, s31
v_lshlrev_b32 {vAQ}, 2, v21
v_sub_u32 {vAQ}, v0, {vAQ}
v_and_b32 {vAQ}, 15, {vAQ}
v_lshl_add_u32 {vAQ}, v21, 4, {vAQ}
v_lshlrev_b32 {vAQ}, 4, {vAQ}
v_lshrrev_b32 v25, 2, v0
v_lshlrev_b32 v25, 11, v25
v_lshl_add_u32 v25, v24, 4, v25
s_lshl_b32 s31, s29, 6
v_add_u32 {vPUB}, s31, v25
v_add_u32 {vPUB2}, 0x8000, {vPUB}
s_mul_i32 s31, s35, 14
s_add_u32 s31, s31, s34
s_lshl_b32 s31, s31, 6
v_add_u32 {vDN}, s31, v25
v_add_u32 {vDN2}, 0x8000, {vDN}
s_and_b32 s31, s29, 3
s_lshl_b32 s32, s31, 8
v_lshl_add_u32 {vOSI}, v21, 5, s32
s_lshl_b32 s31, s31, 5
s_lshr_b32 s32, s29, 2
s_lshl_b32 s32, s32, 2
s_add_u32 s31, s31, s32
v_and_b32 v26, 1, v0
v_and_b32 v27, 3, v23
v_lshlrev_b32 {vOSP}, 8, v27
v_lshl_add_u32 {vOSP}, v26, 7, {vOSP}
v_add_u32 {vOSP}, s31, {vOSP}
s_sub_u32 s31, s33, 4
s_lshl_b32 s31, s31, 10
s_add_u32 s31, s31, {L_O}
v_add_u32 {vLDS}, s31, {vXALL}
v_lshlrev_b32 {vLST}, 4, v27
v_add_u32 {vLST}, {L_ST}, {vLST}
s_mov_b32 s66, 0xaaaaaaaa
s_mov_b32 s67, 0xaaaaaaaa
s_mov_b32 s14, -1
s_mov_b32 s15, 0x00ffffff
s_and_b32 s31, s29, 3
s_lshl_b32 s31, s31, 7
s_lshr_b32 s32, s29, 2
s_add_u32 s31, s31, s32
s_lshl_b32 s32, s28, 9
s_add_u32 s31, s31, s32
s_lshl_b32 s31, s31, 10
v_add_u32 {vWO}, s31, {vXALL}
v_and_b32 {vXC}, 31, v0
v_lshlrev_b32 {vXC}, 2, {vXC}
s_cmp_eq_u32 s33, 4
s_cbranch_scc0 L_Y""")

    def lds_wait(self, off, n):
        l = self.lab("cnt")
        self.a(f"{l}:\nds_read_b32 v{TMP+1}, {vZERO} offset:{off}\ns_sub_u32 {sCN2}, {sCN2}, 1\ns_cbranch_scc1 L_exit\ns_waitcnt lgkmcnt(0)")
        self.a(f"v_cmp_gt_u32 vcc, {n}, v{TMP+1}\ns_cbranch_vccnz {l}")

    def prewrite(self, val):
        self.a(f"v_lshrrev_b32 v{TMP}, 4, v0\nv_lshlrev_b32 v{TMP}, 15, v{TMP}\nv_add_u32 v{TMP}, v{TMP}, {vGPUB}\nv_mov_b32 v{TMP+1}, {val}")
        self.a(f"global_atomic_swap v{TMP}, v{TMP+1}, {sG[0]}")

    def bases(self):
        a = self.a
        a("s_add_u32 s36, s26, s59\ns_addc_u32 s37, s27, 0")
        a(f"s_add_u32 s46, s36, {SM}\ns_addc_u32 s47, s37, 0")
        for i in range(1, 5): a(f"s_add_u32 s{36+2*i}, s36, {0x10000*i}\ns_addc_u32 s{37+2*i}, s37, 0")
        for k in range(4): a(f"s_add_u32 s{48+2*k}, s26, {G_OFF+G_STRIDE*k}\ns_addc_u32 s{49+2*k}, s27, 0")

    def combine(self, li, base, half, sc):
        a = self.a
        gen_c, back_c = self.lab("cgen"), self.lab("cback")
        addr = vPUB2 if half else vPUB
        a(f"ds_read_b128 v[{T2}:{T2+3}], {vLST}")
        for w in range(4): a(f"ds_read_b128 v[{TMP+4*w}:{TMP+4*w+3}], {vLDS} offset:{2048*w}")
        a(f"ds_read_b128 v[{T2+4}:{T2+7}], {vLST} offset:64")
        a(f"s_waitcnt lgkmcnt(3)\nv_or3_b32 v{GA}, v{T2}, v{T2+1}, v{T2+2}")
        a(f"v_pk_add_f32 v[{ACC}:{ACC+1}], v[{TMP}:{TMP+1}], v[{TMP+4}:{TMP+5}]\nv_or_b32 v{GA}, v{GA}, v{T2+3}")
        a(f"v_pk_add_f32 v[{ACC+2}:{ACC+3}], v[{TMP+2}:{TMP+3}], v[{TMP+6}:{TMP+7}]\nv_cmp_ne_u32 vcc, 0, v{GA}\ns_waitcnt lgkmcnt(2)")
        a(f"v_pk_add_f32 v[{ACC}:{ACC+1}], v[{ACC}:{ACC+1}], v[{TMP+8}:{TMP+9}]\nv_pk_add_f32 v[{ACC+2}:{ACC+3}], v[{ACC+2}:{ACC+3}], v[{TMP+10}:{TMP+11}]\ns_waitcnt lgkmcnt(1)")
        a(f"v_pk_add_f32 v[{ACC}:{ACC+1}], v[{ACC}:{ACC+1}], v[{TMP+12}:{TMP+13}]\nv_pk_add_f32 v[{ACC+2}:{ACC+3}], v[{ACC+2}:{ACC+3}], v[{TMP+14}:{TMP+15}]")
        a(f"s_cbranch_vccnz {gen_c}\nglobal_store_dwordx4 {addr}, v[{ACC}:{ACC+3}], {base}{sc}")
        if not half:
            a(f"s_waitcnt lgkmcnt(0)\nv_pk_add_f32 v[{GA}:{GA+1}], v[{T2+4}:{T2+5}], v[{T2+6}:{T2+7}]\nv_add_f32 v{GA}, v{GA}, v{GA+1}")
            a(f"s_mov_b64 exec, 0x2222\n{back_c}:\nglobal_store_dword {vOSP}, v{GA}, {sSM} offset:{OSTAT[li]}{sc}\ns_mov_b64 exec, -1")
        else: a(f"{back_c}:")
        def cgen(fb):
            fb(f"{gen_c}:\ns_waitcnt lgkmcnt(0)")
            fb(f"v_max3_f32 v{GA}, v{T2}, v{T2+1}, v{T2+2}\nv_max_f32 v{GA}, v{GA}, v{T2+3}")
            for w in range(4): fb(f"v_sub_f32 v{T2+w}, v{T2+w}, v{GA}")
            for w in range(4): fb(f"v_exp_f32 v{T2+w}, v{T2+w}")
            for w in range(4):
                for j in range(4):
                    fb(f"v_mul_f32 v{ACC+j}, v{T2}, v{TMP+j}" if w == 0 else f"v_fmac_f32 v{ACC+j}, v{T2+w}, v{TMP+4*w+j}")
            fb(f"global_store_dwordx4 {addr}, v[{ACC}:{ACC+3}], {base}{sc}")
            if not half:
                fb(f"v_mul_f32 v{GA+1}, v{T2}, v{T2+4}")
                for w in range(1, 4): fb(f"v_fmac_f32 v{GA+1}, v{T2+w}, v{T2+4+w}")
                fb(f"v_or_b32 v{GA+1}, 0x80000000, v{GA+1}\nv_cndmask_b32 v{GA}, v{GA}, v{GA+1}, {sODD}\ns_mov_b64 exec, 0x3333")
            fb(f"s_nop 1\ns_branch {back_c}")
        self.ool(cgen)

    def colsum_gather(self, base, issue, wait=True):
        loads = self.rs_loads(base, PC)
        if issue:
            self.a(loads); return
        a = self.a
        top, chk = self.lab("cs"), self.lab("cschk")
        self.tag(1)
        a(f"s_mov_b32 {sCNT}, {self.c.limit * self.c.outer}")
        if wait: a("s_waitcnt vmcnt(0)")
        a(f"{chk}:")
        self.tagged_sum(PC)
        a(f"s_cbranch_vccnz {top}")
        self.tail.append(f"{top}:\n{loads}\ns_waitcnt vmcnt(0)\ns_sub_u32 {sCNT}, {sCNT}, 1\ns_cbranch_scc0 {chk}\ns_endpgm\n")
        self.allred(GA, TMP)
        a(f"v_mov_b32 {vCS}, v{GA}")

    def x_head(self):
        a = self.a
        nt3 = 2 * int(bool(self.c.touch)); pw = int(self.c.prew == 1)
        self.zero_acc()
        if 'noq' in self.c.exp: self.stamp(5)
        a(f"v_add_u32 v{T2}, {L_WQ}, {vXALL}\ns_waitcnt lgkmcnt(0)\ns_barrier")
        self.stamp(1)
        if 'noq' in self.c.exp:
            a("s_barrier"); self.end(0)
        self.WQ = []
        self.lds_weights(self.WQ, WA, f"v{T2}", 0, 8)
        if pw: self.prewrite(0)
        a(f"s_waitcnt vmcnt({3 + nt3 + pw})")
        self.stats(32)
        a(f"v_lshlrev_b32 {vX}, 16, {vX1}\nv_and_b32 {vX1}, 0xffff0000, {vX1}\nv_sub_f32 v{GA}, {vX}, {vMU}\nv_sub_f32 v{GA+1}, {vX1}, {vMU}")
        a(f"v_cvt_pk_bf16_f32 {vPR}, v{GA}, v{GA+1}")
        self.tag(1)
        for kp in range(8): self.dots(self.WQ, kp, lane=kp)
        self.xspare = self.spare
        a(f"s_waitcnt vmcnt({nt3 + pw})\ns_setprio 0")
        self.stamp(2)

    def x_program(self, slow):
        a = self.a; c = self.c
        sc = " sc1" if slow else ""
        self.spare = self.xspare
        if slow:
            self.clear_all(sc)
            a("s_waitcnt vmcnt(0)")
            self.zero_acc()
            for kp in range(8): self.dots(self.WQ, kp, lane=kp)
        self.tagged_publish(sB[1], sc)
        a(f"s_add_u32 s3, {sE}, 1\ns_lshl_b32 s3, s3, 4\ns_add_u32 s32, s3, 16\ns_or_b32 s3, s3, {sXCC}\ns_add_u32 s24, s3, 16")
        def xword():
            a(f"v_mov_b32 v{TMP}, {'s24' if slow else 's3'}\ns_lshl_b32 s31, s29, 2\nv_mov_b32 v{TMP+1}, s31")
            a(f"s_mov_b64 exec, 1\nglobal_store_dword v{TMP+1}, v{TMP}, {sSM} offset:{XCC}{sc}\ns_mov_b64 exec, -1")
        if not slow: xword()
        self.stamp(3)
        def check0(off):
            a(f"s_waitcnt vmcnt({off})\nv_cmp_ne_u32 s[30:31], s3, v{PX}")
            if slow:
                a(f"v_cmp_ne_u32 vcc, s24, v{PX}\nv_and_b32 v{TMP+2}, -16, v{PX}\ns_and_b64 s[30:31], s[30:31], vcc\nv_cmp_ne_u32 vcc, s32, v{TMP+2}")
                a("s_cmp_eq_u64 s[30:31], 0\ns_cselect_b64 s[30:31], 0, vcc")
            self.tagged_sum(PL)
            a("s_or_b64 vcc, vcc, s[30:31]")
        loads = self.rs_loads(sB[1], PL) + f"\nglobal_load_dword v{PX}, {vXC}, {sSM} offset:{XCC} sc1"
        self.zero_acc()
        for kp in range(8): self.dots(self.WQ, kp, sONE)
        self.tagged_publish(sCQ, sc)
        if c.force_slow and not slow: a("s_branch L_Xslow")
        if slow:
            a("s_waitcnt vmcnt(0)")
            xword()
            self.poll("q0", loads, check0, (1, 0, 0))
        else:
            self.poll("q0", loads, check0, c.q0, bound=c.limit1, over=lambda fb, ov, top: fb(f"{ov}:\ns_branch L_Xslow"), pace=c.pace)
        GU = []
        self.allred(GA, TMP)
        a(f"v_mul_f32 v{GA}, v{GA}, {vRS}")
        self.stamp(4)
        for li in range(2):
            h = 5 * li
            B = lambda k: HB(h + k)
            st = (lambda i: self.stamp(i)) if li == c.stamp_layer else (lambda i: None)
            self.pack(GA)
            self.pair_store(sSM, AGQ[li], sc)
            self.clear_inbox(B(1), sc)
            st(5)
            def qbody(off):
                a(f"s_waitcnt vmcnt({off})\nv_max3_u32 v{TMP}, v{PX}, v{PX+1}, v{PX+2}\nv_max_u32 v{TMP}, v{TMP}, v{PX+3}\nv_cmp_eq_u32 vcc, -1, v{TMP}")
            ql = f"global_load_dwordx4 v[{PX}:{PX+3}], {vAQ}, {sSM} offset:{AGQ[li]} sc1"
            if li == 0:
                a(f"v_mov_b32 v{TMP+1}, {int(slow)}\nds_write_b32 {vZERO}, v{TMP+1} offset:{L_MODE}")
                self.colsum_gather(sCQ, True)
                self.poll("aq", ql, qbody, c.a0, pace=c.pace)
            else: self.poll("aq", ql, qbody, c.aq)
            a(f"ds_write_b128 {vXALL}, v[{PX}:{PX+3}] offset:{L_Q}\ns_waitcnt lgkmcnt(0)\ns_barrier")
            if li == 0:
                self.colsum_gather(sCQ, False, wait=False)
                self.clear_inbox(sCQ, sc)
            if li == 0:
                if c.prew == 2: self.prewrite(0)
                if not c.touch: a(f"s_lshl_b32 s30, s29, 8\nv_lshl_add_u32 v{TMP+2}, v0, 7, s30\ns_mov_b64 exec, 3\nglobal_load_dword {vJ}, v{TMP+2}, {sSM} offset:-4096 sc1\ns_mov_b64 exec, -1")
            a("s_barrier")
            st(6)
            self.combine(li, B(2), 0, sc)
            st(7)
            if li == 0:
                a(f"v_lshrrev_b32 v{T2}, 1, v0\nv_lshlrev_b32 v{T2}, 4, v{T2}\nv_and_b32 v{T2+1}, 1, v0\nv_lshl_add_u32 v{T2}, v{T2+1}, 9, v{T2}\nv_add_u32 v{T2}, {L_GU}, v{T2}")
                a(f"s_mov_b32 {sCN2}, {c.limit * c.outer * 4}")
                self.zero_acc()
                if c.b2x_first: a("s_waitcnt vmcnt(0)"); st(8); a("s_barrier")
                self.lds_wait(L_CN2, 4)
                st(9)
                self.lds_weights(GU, WB, f"v{T2}", 0, 8, lambda kp: self.dots(GU, kp, sONE))
                self.tagged_publish(sCG, sc or c.cs_sc, M56)
                st(13)
            if li == 0 and not c.b2x_first: a("s_waitcnt vmcnt(2)\ns_barrier")
            for half in range(2):
                k = 2 * li + half
                last = k == 3
                self.zero_acc()
                self.tag(11 + k)
                a("s_barrier")
                if not last: self.clear_inbox(B(2 + 2 * half), sc) if (li == 0 or half == 0) else None
                self.rs_gather("out", B(3 + 2 * half), 7 if half else 8)
                a(f"v_bfi_b32 v{GA}, {vMASK}, {sT}, v{GA}\ns_mov_b64 exec, 0xffff\nglobal_atomic_swap {vGPUB}, v{GA}, {sG[k]}\ns_mov_b64 exec, -1")
                if li == 0: self.clear_inbox(B(3 + 2 * half), sc)
                st(10 + 4 * half)
                fin = self.lab("fin")
                if not slow and c.fclean:
                    if k == 2 and c.fclean & 1: self.clear_inbox(B(3), " sc1")
                    if last:
                        if not c.fclean & 1: self.clear_inbox(B(3), " sc1")
                        self.clear_inbox(B(4), " sc1"); self.clear_inbox(B(5), " sc1")
                if last and c.wb and not slow:
                    l = self.lab("nowb")
                    if c.wb & 1: a(f"s_cmp_eq_u32 s29, {c.wbc}\ns_cbranch_scc0 {l}")
                    if c.wb & 2: a(f"s_cmp_eq_u32 s28, 0\ns_cbranch_scc1 {l}")
                    a(f"buffer_wbl2 sc1\n{l}:")
                if last: a(f"s_cmp_eq_u32 s28, 0\ns_cbranch_scc0 {fin}")
                depth, delay, gap, gap2 = c.g
                top = self.lab("g")
                gl = f"global_atomic_or_x2 v[{PG}:{PG+1}], {vGIN}, v[76:77], {sG[k]} sc0"
                a(f"s_mov_b32 {sCNT}, {c.limit * c.outer}\ns_mov_b64 vcc, -1")
                self.nops(delay)
                for j in range(depth - 1):
                    a(gl); self.nops(gap)
                a(f"{top}:\ns_mov_b64 exec, vcc\n{gl}\ns_mov_b64 exec, -1\ns_sub_u32 {sCNT}, {sCNT}, 1\ns_cbranch_scc1 L_exit")
                self.nops(gap2)
                a(f"""s_waitcnt vmcnt({depth - 1})
v_xor_b32 v{GA}, {sT}, v{PG}
v_xor_b32 v{GA+1}, {sT}, v{PG+1}
v_or_b32 v{TMP+1}, v{GA}, v{GA+1}
v_cmp_ne_u32_sdwa vcc, v{TMP+1}, 0 src0_sel:BYTE_0 src1_sel:DWORD
v_permlane32_swap_b32 v{GA}, v{GA+1}
v_add_f32 v{GA}, v{GA}, v{GA+1}
v_mov_b32 v{TMP}, v{GA}
s_cbranch_vccnz {top}
v_permlane16_swap_b32 v{GA}, v{TMP}
v_add_f32 v{GA}, v{GA}, v{TMP}
v_add_f32_dpp v{GA}, v{GA}, v{GA} row_ror:8 {DPP}
v_mov_b32 v{GA+1}, v{GA}
v_permlane32_swap_b32 v{GA}, v{GA+1}
v_add_f32 v{GA}, v{GA}, {vX}
v_add_f32 v{GA+1}, v{GA+1}, {vX1}
v_cvt_pk_bf16_f32 {vPR}, v{GA}, v{GA+1}""")
                pst = lambda base, off, s_: a(f"s_mov_b64 exec, 0xff\nglobal_store_dword {vPAIR8}, {vPR}, {base} offset:{off}{s_}\ns_mov_b64 exec, -1")
                if last:
                    pst(sOUT, 0, "")
                    a(f"s_cmp_eq_u32 s29, 0\ns_cbranch_scc0 {fin}")
                    a(f"s_add_u32 s30, {sE}, {NTAGS}\nv_mov_b32 v{TMP}, s30\ns_mov_b64 exec, 1\nglobal_store_dword {vZERO}, v{TMP}, {sWS} sc1\n{fin}:")
                    self.end(0)
                    break
                if half == 0: st(11)
                pst(sSM, XALL[k], sc)
                if half == 0:
                    self.gemv(GU, B(4), sc, lanes=range(8), mask=M56)
                    a(f"s_barrier\nv_lshlrev_b32 {vX}, 16, {vPR}\nv_and_b32 {vX1}, 0xffff0000, {vPR}")
                    st(12)
                else:
                    st2 = (lambda i: self.stamp(i)) if c.stamp_layer == 1 else (lambda i: None)
                    self.gemv(self.WQ, HB(6), sc, lanes=range(8))
                    a(f"v_lshlrev_b32 {vX}, 16, {vPR}\nv_and_b32 {vX1}, 0xffff0000, {vPR}")
                    st2(2)
                    self.rs_gather("q", HB(6), ln=1)
                    a(f"v_fma_f32 v{GA}, v{GA}, {vRS}, {vNM}")
                    st2(4)

    def y_head(self):
        a = self.a; c = self.c
        a(f"L_Y:\nds_write_b64 {vZERO}, v[{TMP}:{TMP+1}] offset:{L_CNT}\nv_add_u32 v{T2}, {L_WD}, {vXALL}\ns_waitcnt lgkmcnt(0)\ns_barrier".replace("L_Y:", f"L_Y:\nv_mov_b64 v[{TMP}:{TMP+1}], 0"))
        self.stamp(1)
        a(f"s_mov_b32 {sCN2}, {c.limit * c.outer * 4}")
        self.spare = SPARE
        for grp in range(4):
            self.lds_wait(L_CNT, grp + 1)
            if grp == 0: a(f"global_load_dwordx4 v[{PC}:{PC+3}], {vINX}, {sCG} sc1\nglobal_load_dwordx4 v[{PC}:{PC+3}], {vINX}, {sCG} offset:1024 sc1")
            for k in range(4 * grp, 4 * grp + 4):
                a(f"global_load_dwordx4 v[{WA+4*k}:{WA+4*k+3}], {vWO}, {sWO}{c.nt}")
                if k < 15: a(f"v_add_u32 {vWO}, 8192, {vWO}")
        self.stamp(2)
        a(f"s_barrier\nds_read_b32 v{TMP+1}, {vZERO} offset:{L_MODE}")
        if 'noq' in self.c.exp: a("s_waitcnt vmcnt(0)"); self.end(1)
        a(f"s_waitcnt lgkmcnt(0)\nv_readfirstlane_b32 s3, v{TMP+1}\ns_cmp_eq_u32 s3, 0\ns_cbranch_scc0 L_Yslow")

    def y_program(self, slow):
        a = self.a; c = self.c
        sc = " sc1" if slow else ""
        spare0 = self.spare
        WO = []; WD = []
        for li in range(2):
            h = 5 * li
            B = lambda k: HB(h + k)
            st = (lambda i: self.stamp(i)) if li == c.stamp_layer else (lambda i: None)
            if li: a("s_barrier")
            a("s_barrier")
            st(6)
            self.combine(li, B(2), 1, sc)
            st(7)
            y, z, t, L = PL, GA, TMP, PM + 8
            loads = "".join(f"global_load_dwordx4 v[{L+4*i}:{L+4*i+3}], {vOSI}, {sSM} offset:{OSTAT[li]+128+16*i} sc1\n" for i in range(2))
            loads += self.rs_loads(B(2), PL)
            def shadow(nafter):
                a(f"v_add_u32 v{T2}, {L_WD}, {vXALL}\ns_mov_b32 {sCN2}, {c.limit * c.outer * 4}")
                self.lds_wait(L_CN2, 4)
                self.lds_weights(WD, WB, f"v{T2}", 0, 4)
                a(f"s_mov_b32 {sCN2}, {c.outer}")
                for kp in range(8):
                    a(f"s_waitcnt vmcnt({14 - 2*kp + 1 + nafter})")
                    self.perm_pair(WO, WA, kp)
            onorm, ogen = self.lab("onorm"), self.lab("ogen")
            def obody(off):
                a(f"""s_waitcnt vmcnt({off + 8})
v_pk_add_f32 v[{LA}:{LA+1}], v[{L}:{L+1}], v[{L+2}:{L+3}]
v_pk_add_f32 v[{LA+2}:{LA+3}], v[{L+4}:{L+5}], v[{L+6}:{L+7}]
v_pk_add_f32 v[{LA}:{LA+1}], v[{LA}:{LA+1}], v[{LA+2}:{LA+3}]
v_add_f32 v{LA}, v{LA}, v{LA+1}
s_waitcnt vmcnt({off + 4})
v_pk_add_f32 v[{z}:{z+1}], v[{y}:{y+1}], v[{y+2}:{y+3}]
s_waitcnt vmcnt({off})
v_pk_add_f32 v[{z+2}:{z+3}], v[{y+4}:{y+5}], v[{y+6}:{y+7}]
v_pk_add_f32 v[{z}:{z+1}], v[{z}:{z+1}], v[{z+2}:{z+3}]
v_add_f32 v{z}, v{z}, v{z+1}
v_cmp_u_f32 vcc, v{z}, v{LA}
v_or3_b32 v{t+2}, v{L}, v{L+1}, v{L+2}
v_permlane32_swap_b32 v{z}, v{LA}
v_add_f32 v{z}, v{z}, v{LA}
v_mov_b32 v{t}, v{z}""")
            def oover(fb, ov, top):
                fb(f"{ov}:\ns_sub_u32 {sCN2}, {sCN2}, 1\ns_cbranch_scc1 L_exit\ns_mov_b32 {sCNT}, {c.limit}\ns_waitcnt vmcnt(0)")
                self.umax(t, list(range(y, y + 8)) + list(range(L, L + 8)))
                fb(f"v_cmp_eq_u32 vcc, -1, v{t}\ns_cbranch_vccnz {top}\ns_branch {ogen}")
            self.zero_acc()
            a(f"s_mov_b32 {sCN2}, {c.outer}")
            self.poll("o", loads, obody, c.ro if li else (1, 0, 0), shadow if li == 0 else None, bound=c.limit, over=oover)
            a(f"""v_or3_b32 v{t+2}, v{t+2}, v{L+3}, v{L+4}
v_permlane16_swap_b32 v{z}, v{t}
v_add_f32 v{z}, v{z}, v{t}
v_mov_b32 v{LA}, v{z}
v_or3_b32 v{t+2}, v{t+2}, v{L+5}, v{L+6}
v_or_b32 v{t+2}, v{t+2}, v{L+7}
v_permlane32_swap_b32 v{z}, v{LA}
v_rcp_f32 v{LA}, v{LA}
v_cmp_gt_i32 vcc, 0, v{t+2}
v_mul_f32 v{z}, v{z}, v{LA}""")
            self.pack(GA)
            a(f"s_cbranch_vccnz {ogen}\n{onorm}:")
            def ogen_f(fb):
                mloop = self.lab("omloop")
                fb(f"{ogen}:\ns_waitcnt vmcnt(0)\ns_mov_b32 {sCNT}, {c.limit * c.outer}\n{mloop}:\ns_sub_u32 {sCNT}, {sCNT}, 1\ns_cbranch_scc1 L_exit")
                for i in range(2): fb(f"global_load_dwordx4 v[{PM+4*i}:{PM+4*i+3}], {vOSI}, {sSM} offset:{OSTAT[li]+16*i} sc1")
                fb("s_waitcnt vmcnt(0)")
                for i in range(8): fb(f"v_cmp_gt_i32 vcc, 0, v{L+i}\nv_cndmask_b32 v{T2+i}, 0, v{PM+i}, vcc")
                self.umax(t, range(T2, T2 + 8))
                fb(f"v_cmp_eq_u32 vcc, -1, v{t}\ns_cbranch_vccnz {mloop}")
                fb(f"v_max3_f32 v{t}, v{T2}, v{T2+1}, v{T2+2}\nv_max3_f32 v{t}, v{t}, v{T2+3}, v{T2+4}\nv_max3_f32 v{t}, v{t}, v{T2+5}, v{T2+6}\nv_max_f32 v{t}, v{t}, v{T2+7}")
                self.allred(t, t + 1, "v_max_f32")
                for i in range(8): fb(f"v_sub_f32 v{T2+i}, v{T2+i}, v{t}")
                for i in range(8): fb(f"v_exp_f32 v{T2+i}, v{T2+i}")
                fb(f"v_mul_f32 v{GA}, v{T2}, v{y}\nv_mul_f32_e64 v{LA}, v{T2}, |v{L}|")
                for i in range(1, 8): fb(f"v_fmac_f32 v{GA}, v{T2+i}, v{y+i}\nv_fma_f32 v{LA}, v{T2+i}, |v{L+i}|, v{LA}")
                self.allred(LA, t + 1); self.allred(GA, t + 2)
                fb(f"v_rcp_f32 v{LA}, v{LA}\nv_mul_f32 v{GA}, v{GA}, v{LA}")
                self.pack(GA)
                fb(f"s_nop 1\ns_branch {onorm}")
            self.ool(ogen_f)
            st(8)
            if li == 0: a("s_barrier")
            self.gemv(WO, B(3), sc)
            a("s_barrier")
            st(9)
            noffn = self.lab("noffn")
            if li == 0:
                l = self.lab("nocg")
                a(f"s_cmp_lt_u32 s34, 14\ns_cbranch_scc0 {l}")
                self.nops(c.cgd)
                self.colsum_gather(sCG, True); self.colsum_gather(sCG, False)
                a(f"{l}:")
            self.zero_acc()
            a(f"s_barrier\ns_cmp_lt_u32 s34, 14\ns_cbranch_scc0 {noffn}")
            st(12)
            self.rs_gather("gu", B(4), ln=2 * li)
            a(f"v_fma_f32 v{GA}, v{GA}, {vRS}, {vNM}\nv_mul_f32_dpp v{GA}, v{GA}, v{GA} row_ror:12 {DPP}")
            self.pack(GA)
            self.gemv(WD, B(5), sc, lanes=[0, 2, 8, 10], addr=(vDN, vDN2))
            a(f"{noffn}:")
            st(13)
            a("s_barrier")
        self.end(1)
        self.spare = spare0

    def build(self):
        a = self.a
        self.prologue()
        self.s_stream()
        self.c_pre()
        self.x_head()
        self.x_program(False); self.flush()
        self.y_head()
        self.y_program(False); self.flush()
        self.s_layers(); self.flush()
        a("L_fast_end:\nL_Yslow:")
        self.y_program(True); self.flush()
        a("L_Xslow:")
        self.x_program(True); self.flush()
        a("L_exit:\ns_endpgm")
        head = f"""; Fused decode step: 2 x (LayerNorm -> GQA sliding-window attention -> residual -> LayerNorm -> bilinear GLU -> residual)
; @launch grid=(256,1,1) block=(384,1,1) lds={self.c.ldsx or LDS_BYTES}
.amdgcn_target "amdgcn-amd-amdhsa--gfx950"
.text
.globl {KNAME}
.p2align 8
.type {KNAME},@function
{KNAME}:
"""
        tail = f"""
.section .rodata,"a"
.p2align 6
.amdhsa_kernel {KNAME}
  .amdhsa_next_free_vgpr 256
  .amdhsa_next_free_sgpr 102
  .amdhsa_accum_offset 256
  .amdhsa_group_segment_fixed_size 0
  .amdhsa_kernarg_size 96
  .amdhsa_user_sgpr_count 2
  .amdhsa_user_sgpr_kernarg_segment_ptr 1
  .amdhsa_system_sgpr_workgroup_id_x 1
  .amdhsa_float_denorm_mode_32 3
.end_amdhsa_kernel
"""
        return head + a.text() + tail


def make(**kw):
    c = Cfg()
    for k, v in kw.items(): setattr(c, k, v)
    return Gen(c).build()

if __name__ == "__main__":
    kw = {}
    for x in sys.argv[2:]:
        k, v = x.split("=", 1); kw[k] = eval(v)
    open(sys.argv[1], "w").write(make(**kw))
```

```python
import sys, struct
from asmlib import Asm

KNAME = "interleave_layers__sliding_block_cached__glu_gated_bilinear__decode_kernel"
def f2u(x): return struct.unpack("<I", struct.pack("<f", x))[0]

class Cfg:
    debug = False
    stamp_layer = 0
    nt = " nt"
    win = 4
    wins = [4]*16+[6]*6
    wo_at = 24
    limit = 64
    outer = 2000
    limit1 = 64
    force_slow = False
    rs = (3, 60, 40)
    ro = (3, 60, 40)
    g = (3, 100, 200, 0)
    q0 = (3, 200, 500)
    a0 = (3, 300, 500)
    b2x_first = 0
    cgd = 800
    lp = 0
    lpa = 0
    cq_at = 0
    cqd = 0
    hooks = (0,)
    lnd = 3
    aq = (4, 60, 40)
    prew = 2
    cs_sc = ''
    pace = 200
    touch = 1
    tpol = ' sc1'
    xpol = ''
    pfpol = ''
    exp = ''
    rot = 1
    pf0 = 0
    pf0pol = ' nt'
    pf = 6
    b0_late = 1
    fclean = 0
    ldsx = 0
    dbgwg = 0
    cs_late = 1
    tlb = 0
    xd = 40
    bound = 60.0

DPP = "row_mask:0xf bank_mask:0xf"
G_OFF = 0x1000; G_STRIDE = 0x8000
GB_OFF = 0x40000; GB_STRIDE = 0x30000
IB = 10240
BO = [("s[36:37]", -2048), ("s[36:37]", 0), ("s[36:37]", 2048)]; CQO = ("s[40:41]", 0); CGO = ("s[40:41]", 2048)
SM = 0x28000 + 0x1000
AGQ = [-0x1000, -0xC00]; XALL = [-0x800, -0x400, 0x0]; OSTAT = [0x400, 0x800]; XCC = 0xC00
DBG_OFF = 0x400000
NTAGS = 16
L_O = 32768; L_ST = 40960; L_MODE = L_ST + 128; L_CNT = L_ST + 136; L_CN2 = L_ST + 140; L_Q = 41984; L_WQ = L_Q + 1024; L_GU = L_WQ + 16384; L_WD = L_GU + 16384
LDS_BYTES = L_WD + 8192
sX, sK, sV, sWQ, sWO, sWG, sWU, sWD, sOUT, sWS = ("s[4:5]", "s[6:7]", "s[8:9]", "s[10:11]", "s[12:13]",
    "s[16:17]", "s[18:19]", "s[20:21]", "s[22:23]", "s[26:27]")
sBX = "s[36:37]"; sSM = "s[46:47]"; sS0, sS1 = "s38", "s39"
sG = ["s[48:49]", "s[50:51]", "s[52:53]", "s[54:55]"]
sE, sT, sCNT, sXCC, sLO, sHI, sONE, sCN2 = "s56", "s57", "s58", "s61", "s62", "s63", "s64", "s65"
sODD = "s[66:67]"; M56 = "s[14:15]"
vMASK, vIN, vPUB, vPUBO, vGIN, vGPUB, vPAIR, vXALL, vOSI, vOSP, vLDS, vLST = ["v%d" % i for i in range(1, 13)]
vINX, vPR, vMU, vRS = "v15", "v16", "v17", "v18"
XR = 252; CS = 208; NM = 210; CSQ = 246
GA = 20; MA = 28; LA = 36; ACC = 40; TMP = 48; T2 = 64; NEG = 72
vZERO, vAQ, vCLR, vXC, vWO, vPUBP, vINP, vJ = "v76", "v79", "v78", "v13", "v14", "v19", "v254", "v255"
WA, WB, SPARE = 80, 144, 212
PL = 214; PM = 222; PX = 238; PC = 242; PG = 250; PZ = 213


def HB(hop): return BO[[1, 2, 0][hop % 3]]


class Gen:
    def __init__(self, cfg):
        self.c = cfg; self.a = Asm(); self.tail = []; self.nlab = 0; self.spare = SPARE

    def lab(self, s):
        self.nlab += 1
        return f"L_{s}_{self.nlab}"

    def stamp(self, i):
        if self.c.debug: self.a(f"s_memtime s[{70+2*i}:{71+2*i}]")

    def end(self, slot):
        a = self.a
        if self.c.debug == 2:
            if slot == 0:
                l = self.lab("nodbg")
                a(f"s_memtime s[100:101]\ns_load_dwordx2 s[24:25], s[0:1], 80\ns_waitcnt vmcnt(0) lgkmcnt(0)\ns_cmp_lt_u32 s2, 8\ns_cbranch_scc0 {l}\ns_mov_b64 exec, 1")
                a("s_lshl_b32 s30, s2, 2\nv_mov_b32 v20, s30\nv_mov_b32 v24, s68\nglobal_store_dword v20, v24, s[24:25]")
                a(f"s_cmp_eq_u32 s2, {self.c.dbgwg}\ns_cbranch_scc0 {l}")
                for j, i in enumerate((1, 4, 6, 10, 11, 14, 15)): a(f"s_sub_u32 s31, s{70+2*i}, s70\nv_mov_b32 v{24+j}, s31")
                a("v_mov_b32 v20, 0\nv_mov_b32 v31, 0\nglobal_store_dwordx4 v20, v[24:27], s[24:25] offset:32\nglobal_store_dwordx4 v20, v[28:31], s[24:25] offset:48")
                a(f"{l}:")
            a("s_endpgm"); return
        if self.c.debug:
            a("s_memtime s[100:101]\ns_waitcnt vmcnt(0) lgkmcnt(0)\ns_mov_b64 exec, -1")
            a(f"s_lshl_b32 s30, s2, 9\ns_add_u32 s30, s30, {DBG_OFF + slot*128}")
            a("v_mov_b32 v20, s30\nv_mov_b32 v24, s68")
            for i in range(1, 16): a(f"s_sub_u32 s31, s{70+2*i}, s70\nv_mov_b32 v{24+i}, s31")
            for i in range(4): a(f"global_store_dwordx4 v20, v[{24+4*i}:{27+4*i}], {sWS} offset:{16*i}")
        a("s_endpgm")

    def tag(self, k): self.a(f"s_add_u32 {sT}, {sE}, {k}\ns_and_b32 {sT}, {sT}, 0x3f\ns_or_b32 {sT}, {sT}, 0x40")

    def nops(self, cyc):
        if cyc >= 192:
            self.a(f"s_sleep {cyc // 64}"); return
        while cyc >= 4:
            k = min(cyc // 4, 16); self.a(f"s_nop {k-1}"); cyc -= 4 * k

    def ool(self, fn):
        fb = Asm(); sv, self.a = self.a, fb
        fn(fb)
        self.a = sv
        self.tail.append(fb.text())

    def flush(self):
        while self.tail: self.a(self.tail.pop(0))

    def poll(self, name, loads, body, par, shadow=None, bound=None, over=None, first=True, pace=0):
        a = self.a
        depth, delay, gap = par
        nl = loads.count("global_")
        top, ov = self.lab(name), self.lab(name + "_over")
        a(f"s_mov_b32 {sCNT}, {bound or self.c.limit * self.c.outer}")
        if first:
            self.nops(delay)
            for k in range(depth - 1):
                a(loads); self.nops(gap)
        if shadow:
            skip = self.lab(name + "_in")
            a(loads); shadow(depth * nl); a(f"s_branch {skip}\n{top}:\n{loads}\n{skip}:")
        else:
            a(f"{top}:\n{loads}")
        a(f"s_sub_u32 {sCNT}, {sCNT}, 1\ns_cbranch_scc1 {ov if over else 'L_exit'}")
        self.nops(pace)
        body((depth - 1) * nl)
        a(f"s_cbranch_vccnz {top}")
        if over: self.ool(lambda fb: over(fb, ov, top))

    def allred(self, r, t, op="v_add_f32"):
        self.a(f"""v_mov_b32 v{t}, v{r}
v_permlane32_swap_b32 v{r}, v{t}
{op} v{r}, v{r}, v{t}
v_mov_b32 v{t}, v{r}
v_permlane16_swap_b32 v{r}, v{t}
{op} v{r}, v{r}, v{t}""")

    def rs_loads(self, off, g, part=False):
        b, off = off
        s = "\n".join(f"global_load_dword v{g+i}, {vIN}, {b} offset:{off + 512*i} sc1" for i in range(3))
        if part: return s + f"\ns_mov_b32 exec_hi, 0\nglobal_load_dword v{PZ}, {vIN}, {b} offset:{off + 1536} sc1\ns_mov_b64 exec, -1"
        return s + f"\nglobal_load_dword v{g+3}, {vIN}, {b} offset:{off + 1536} sc1"

    def pair_head(self, z, t, test=None):
        self.a(f"v_permlane32_swap_b32 v{z}, v{z+1}\nv_add_f32 v{z}, v{z}, v{z+1}\nv_mov_b32 v{t}, v{z}")
        if test: self.a(test)

    def pair_tail(self, z, t):
        self.a(f"""v_permlane16_swap_b32 v{z}, v{t}
v_add_f32 v{z}, v{z}, v{t}
v_add_f32_dpp v{z}, v{z}, v{z} row_ror:8 {DPP}
v_mov_b32 v{z+1}, v{z}
v_permlane32_swap_b32 v{z}, v{z+1}""")

    def unpack_sum(self, z, ys):
        for y in ys: self.a(f"v_dot2c_f32_bf16 v{z}, {sS0}, v{y}\nv_dot2c_f32_bf16 v{z+1}, {sS1}, v{y}")

    def umax(self, t, regs):
        regs = list(regs)
        self.a(f"v_max3_u32 v{t}, v{regs[0]}, v{regs[1]}, v{regs[2]}")
        for i in range(3, len(regs), 2): self.a(f"v_max3_u32 v{t}, v{t}, v{regs[i]}, v{regs[min(i+1, len(regs)-1)]}")

    def rs_gather(self, name, off0, part=False, par=None, ln=None, land=PL):
        z, t = GA, TMP
        ys = [land, land + 1, land + 2, PZ if part else land + 3]
        done = self.lab(name + "_done")
        def reduce(off, test):
            a = self.a
            a(f"v_mov_b64 v[{z}:{z+1}], 0\ns_waitcnt vmcnt({off + 2})")
            self.unpack_sum(z, ys[:2])
            a(f"s_waitcnt vmcnt({off + 1})"); self.unpack_sum(z, ys[2:3])
            a(f"s_waitcnt vmcnt({off})"); self.unpack_sum(z, ys[3:])
            self.pair_head(z, t, f"v_cmp_u_f32 vcc, v{z}, v{z}" if test else None)
        def over(fb, ov, top):
            fb(f"{ov}:\ns_sub_u32 {sCN2}, {sCN2}, 1\ns_cbranch_scc1 L_exit\ns_mov_b32 {sCNT}, {self.c.limit}\ns_waitcnt vmcnt(0)")
            self.umax(t, ys)
            fb(f"v_cmp_eq_u32 vcc, -1, v{t}\ns_cbranch_vccnz {top}")
            reduce(0, False)
            fb(f"s_branch {done}")
        loads = self.rs_loads(off0, land, part)
        a = self.a
        a(f"s_mov_b32 {sCN2}, {self.c.outer}")
        if ln is None:
            self.poll(name, loads, lambda off: reduce(off, True), par or self.c.rs, bound=self.c.limit, over=over, pace=self.c.lp)
        else:
            xl = f"global_load_dwordx4 v[{PX}:{PX+3}], {vXALL}, {sSM} offset:{XALL[ln]} sc1"
            xchk = f"v_max3_u32 v{TMP}, v{PX}, v{PX+1}, v{PX+2}\nv_max_u32 v{TMP}, v{TMP}, v{PX+3}\nv_cmp_eq_u32 vcc, -1, v{TMP}"
            xr, xok = self.lab("xretry"), self.lab("xok")
            a(f"{xl}\ns_mov_b32 {sCNT}, {self.c.limit * self.c.outer}")
            self.nops(self.c.xd)
            a(f"{loads}\ns_waitcnt vmcnt(4)\n{xchk}\ns_cbranch_vccnz {xr}\n{xok}:")
            self.tail.append(f"{xr}:\n{xl}\n{xr}_b:\n{xl}\ns_sub_u32 {sCNT}, {sCNT}, 1\ns_cbranch_scc1 L_exit\ns_waitcnt vmcnt(1)\n{xchk}\ns_cbranch_vccnz {xr}_b\n{loads}\ns_branch {xok}\n")
            self.stats(PX, lambda: a(loads))
            a(f"v_mul_f32 v{NM}, {vMU}, {vRS}\nv_mul_f32_e64 v{NM+1}, -v{NM}, v{CS+1}\nv_mul_f32_e64 v{NM}, -v{NM}, v{CS}")
            self.poll(name, loads, lambda off: reduce(off, True), (self.c.lnd, 0, 0), bound=self.c.limit, over=over, first=False, pace=self.c.lp)
        a(f"{done}:")
        self.pair_tail(z, t)
        if ln is not None: a(f"v_fma_f32 v{z}, v{z}, {vRS}, v{NM}\nv_fma_f32 v{z+1}, v{z+1}, {vRS}, v{NM+1}")

    def pack(self): self.a(f"v_cvt_pk_bf16_f32 {vPR}, v{GA}, v{GA+1}")

    def perm_pair(self, W, base, kp):
        W.append([])
        for u in range(4):
            lo = base + 8 * kp + u; hi = lo + 4; s = self.spare
            self.a(f"v_perm_b32 v{s}, v{hi}, v{lo}, {sLO}\nv_perm_b32 v{hi}, v{hi}, v{lo}, {sHI}")
            W[kp] += [s, hi]; self.spare = lo

    def zero_acc(self):
        for j in range(0, 8, 2): self.a(f"v_mov_b64 v[{ACC+j}:{ACC+j+1}], 0")

    def dots(self, W, kp, src=None):
        for j in range(8):
            if src: self.a(f"v_dot2c_f32_bf16 v{ACC+j}, {src}, v{W[kp][j]}")
            else: self.a(f"v_dot2c_f32_bf16_dpp v{ACC+j}, {vPR}, v{W[kp][j]} row_newbcast:{kp} {DPP}")

    def pack_acc(self, d):
        for j in range(4): self.a(f"v_cvt_pk_bf16_f32 v{d+j}, v{ACC+2*j}, v{ACC+2*j+1}")

    def publish(self, src, off, sc, mask=None):
        a = self.a
        if mask: a(f"s_mov_b64 exec, {mask}")
        a(f"global_store_dwordx4 {vPUB}, v[{src}:{src+3}], {off[0]} offset:{off[1]}{sc}")
        if mask: a("s_mov_b64 exec, -1")

    def gemv(self, W, off, sc, mask=None):
        for kp in range(len(W)): self.dots(W, kp)
        self.pack_acc(TMP)
        self.publish(TMP, off, sc, mask)

    def clear_inbox(self, off, sc):
        self.a(f"global_store_dwordx4 {vINX}, v[{NEG}:{NEG+3}], {off[0]} offset:{off[1]}{sc}")

    def stats(self, x, hook=None):
        a = self.a
        p, q = TMP, TMP + 1
        a(f"v_mov_b32 v{p}, 0\nv_mov_b32 v{q}, 0")
        for i in range(4): a(f"v_dot2c_f32_bf16 v{p}, {sONE}, v{x+i}\nv_dot2c_f32_bf16 v{q}, v{x+i}, v{x+i}")
        a(f"v_mov_b32 v{q+1}, 0x{f2u(1/512.):08x}\nv_mov_b32 v{q+2}, 0x{f2u(1e-5):08x}")
        a(f"v_permlane32_swap_b32 v{p}, v{q}\nv_add_f32 v{p}, v{p}, v{q}\nv_mov_b32 v{q}, v{p}")
        a(f"v_permlane16_swap_b32 v{p}, v{q}\nv_add_f32 v{p}, v{p}, v{q}")
        for i, r in enumerate((8, 4, 2, 1)):
            if hook and i in self.c.hooks: hook()
            a(f"v_add_f32_dpp v{p}, v{p}, v{p} row_ror:{r} {DPP}")
        a(f"v_readlane_b32 s30, v{p}, 0\nv_readlane_b32 s31, v{p}, 32")
        if hook and 4 in self.c.hooks: hook()
        a(f"v_mul_f32 {vMU}, s30, v{q+1}\nv_fma_f32 {vRS}, s31, v{q+1}, v{q+2}")
        a(f"v_fma_f32 {vRS}, -{vMU}, {vMU}, {vRS}\nv_max_f32 {vRS}, {vRS}, v{q+2}\nv_rsq_f32 {vRS}, {vRS}")

    def pair_store(self, base, off, sc):
        self.a(f"s_mov_b64 exec, 0xff\nglobal_store_dword {vPAIR}, {vPR}, {base} offset:{off}{sc}\ns_mov_b64 exec, -1")

    def lds_weights(self, W, base, vaddr, off, npair, use=None):
        a = self.a
        rd = lambda k: a(f"ds_read_b128 v[{base+4*k}:{base+4*k+3}], {vaddr} offset:{off+1024*k}")
        for k in range(min(8, 2 * npair)): rd(k)
        for kp in range(npair):
            if 2 * kp + 8 < 2 * npair:
                rd(2 * kp + 8); rd(2 * kp + 9); out = 8
            else: out = 2 * npair - 2 * kp - 2
            a(f"s_waitcnt lgkmcnt({out})")
            self.perm_pair(W, base, kp)
            if use: use(kp)

    def prologue(self):
        a = self.a; c = self.c
        if c.debug: a("s_memtime s[70:71]\ns_memrealtime s[68:69]")
        a(f"""s_load_dwordx16 s[4:19], s[0:1], 0
s_load_dwordx8 s[20:27], s[0:1], 64
s_cmpk_ge_u32 s2, 0x100
s_cbranch_scc1 L_exit
v_lshrrev_b32 v1, 6, v0
v_and_b32 v0, 63, v0
s_lshr_b32 s29, s2, 3
v_readfirstlane_b32 s33, v1
s_and_b32 s28, s2, 7
s_lshl_b32 s60, s29, 4
v_lshlrev_b32 v15, 4, v0
s_cmp_ge_u32 s33, 4
s_cbranch_scc1 L_C0
s_lshl2_add_u32 s32, s33, s60
s_lshl3_add_u32 s30, s32, s28
s_lshl_b32 s30, s30, 10
v_add_u32 v1, s30, v15
s_lshl_b32 s36, s33, 12
s_add_u32 m0, s36, {L_WQ}
s_movk_i32 s3, 0x2000
s_waitcnt lgkmcnt(0)""")
        for i in range(4):
            a(f"global_load_lds_dwordx4 v1, {sWQ}{c.nt}")
            if i < 3: a("s_addk_i32 m0, 0x400\nv_add_u32 v1, s3, v1")
        a(f"""s_branch L_S1
L_C0:
s_cmp_eq_u32 s33, 4
s_cbranch_scc1 L_X0
s_getpc_b64 s[30:31]
s_mulk_i32 s29, {128 * c.pf}
v_lshl_add_u32 v2, v0, 7, s29
s_mov_b64 exec, {(1 << c.pf) - 1}
global_load_dword {vJ}, v2, s[30:31]{c.pfpol}
s_branch L_C
L_X0:
{self.pf0()}s_waitcnt lgkmcnt(0)
global_load_dwordx4 v[32:35], v15, {sX}{c.xpol}
s_branch L_C
L_early_end:""")

    def pf0(self):
        c = self.c
        if not c.pf0: return "s_setprio 3\n"
        return f"s_getpc_b64 s[30:31]\nv_lshlrev_b32 v2, 7, v0\ns_mov_b64 exec, {(1 << c.pf0) - 1 if c.pf0 <= 6 else hex((1 << c.pf0) - 1)}\nglobal_load_dword {vJ}, v2, s[30:31]{c.pf0pol}\ns_mov_b64 exec, -1\n"

    def consts(self):
        self.a("s_mov_b32 s62, 0x05040100\ns_mov_b32 s63, 0x07060302\ns_mov_b32 s64, 0x3f803f80")

    KF, VR, VF, Q, D, P, ON, O, OL, X, T = 16, 48, 80, 112, 128, 136, 140, 144, 176, 184, 192

    def s_stream(self):
        a = self.a; c = self.c
        KF, VR, VF, ON, T = self.KF, self.VR, self.VF, self.ON, self.T
        n = [4]; landed = [-1]
        wins = c.wins
        def signal(off):
            a(f"v_mov_b32 v{T}, 1\ns_mov_b64 s[38:39], exec\ns_mov_b64 exec, 1\nds_add_u32 v{T+12}, v{T} offset:{off}\ns_mov_b64 exec, s[38:39]")
        def throttle():
            w = wins[n[0] - 4]
            if n[0] - w > landed[0]:
                if landed[0] < 3 <= n[0] - w:
                    a(f"s_waitcnt vmcnt({n[0] - 4})")
                    if 'noq' in c.exp: self.stamp(14)
                    a("s_barrier"); self.stamp(1)
                    landed[0] = 3
                if n[0] - w > landed[0]: a(f"s_waitcnt vmcnt({w-1})"); landed[0] = n[0] - w
            if 'noq' in c.exp and n[0] in (4, 8, 12, 16, 20): self.stamp({4: 9, 8: 10, 12: 11, 16: 12, 20: 13}[n[0]])
            if n[0] == c.wo_at: signal(L_CNT)
            n[0] += 1
        a("""L_S1:
s_lshl_b32 s30, s28, 24
s_lshl_b32 s31, s29, 15
s_add_u32 s30, s30, s31
s_add_u32 s30, s30, 0xF00000
s_add_u32 s6, s6, s30
s_addc_u32 s7, s7, 0
s_lshl_b32 s40, s33, 13
s_mov_b32 m0, s40
v_and_b32 v6, 15, v0
v_lshrrev_b32 v7, 4, v0
v_xor_b32 v8, v6, v7
v_lshlrev_b32 v8, 4, v8
v_lshl_add_u32 v9, v7, 8, v8
v_add_u32 v9, s40, v9""")
        if c.rot: a("s_lshl_b32 s37, s29, 2\ns_and_b32 s31, s28, 3\ns_or_b32 s37, s37, s31\ns_lshl_b32 s37, s37, 8\nv_xor_b32 v9, s37, v9")
        else: a("s_mov_b32 s37, 0")
        for i in range(8):
            if i: a(f"s_addk_i32 m0, 0x400\nv_xor_b32 v1, {64*(i&3) + 1024*i}, v9")
            throttle()
            a(f"global_load_lds_dwordx4 {'v1' if i else 'v9'}, {sK}{c.nt}")
            if i == 3:
                a("s_add_u32 s8, s8, s30\ns_addc_u32 s9, s9, 0")
                self.consts()
                a("v_lshlrev_b32 v10, 4, v6\nv_lshl_add_u32 v10, v7, 10, v10\nv_add_u32 v10, s40, v10\nv_xor_b32 v10, s37, v10")
                a("v_lshl_add_u32 v11, v6, 8, v8\nv_add_u32 v11, s40, v11")
                for j in range(1, 4): a(f"v_xor_b32 v{11+j}, {64*j}, v11")
                a("v_lshrrev_b32 v2, 2, v6\nv_lshlrev_b32 v5, 4, v2\nv_lshlrev_b32 v2, 8, v2\nv_lshl_add_u32 v2, v7, 4, v2")
                a(f"s_lshl_b32 s31, s33, 2\ns_add_u32 s31, s31, {L_ST}\nv_add_u32 v5, s31, v5")
                a(f"v_lshlrev_b32 v3, 4, v7\nv_add_u32 v3, s31, v3")
                a(f"s_lshl_b32 s31, s33, 11\ns_add_u32 s31, s31, {L_O}\nv_lshlrev_b32 v4, 2, v0\nv_add_u32 v4, s31, v4")
            if i == 4:
                for k in range(4): a(f"v_mov_b32 v{ON+k}, {sONE}")
                cs = f2u(128**-0.5*1.4426950408889634)
                a(f"v_mov_b32 v{T+6}, 0x{cs:08x}\nv_mov_b32 v{T+7}, 0x{cs:08x}\nv_mov_b32 v{T+5}, 0x{f2u(c.bound):08x}\nv_mov_b32 v{T+12}, 0")
                a(f"v_add_u32 v2, {L_Q}, v2\nv_lshrrev_b32 v{T}, 2, v6")
                for j in range(4): a(f"v_add_u32 v{T+1}, {j}, v{T}\nv_and_b32 v{T+1}, 3, v{T+1}\nv_lshl_add_u32 v{T+8+j}, v{T+1}, 6, v2")
            if i == 5:
                a("""s_mul_i32 s30, s32, 3584
s_mul_i32 s31, s28, 448
s_add_u32 s30, s30, s31
v_and_b32 v184, 31, v0
v_lshl_add_u32 v184, v184, 4, s30
v_cmp_gt_u32 vcc, 32, v0
v_mov_b32 v186, s18
v_mov_b32 v187, s19
v_mov_b32 v188, s16
v_mov_b32 v189, s17
v_cndmask_b32 v186, v186, v188, vcc
v_cndmask_b32 v187, v187, v189, vcc
v_mov_b32 v185, 0
s_mov_b32 s14, 3584
s_mov_b32 s15, 0
v_lshl_add_u64 v[184:185], v[184:185], 0, v[186:187]
s_min_u32 s30, s29, 27
s_mul_i32 s31, s28, 224
s_lshl3_add_u32 s30, s30, s31
s_lshl1_add_u32 s30, s33, s30
s_lshl_b32 s30, s30, 10
v_add_u32 v190, s30, v15""")
        for i in range(8):
            if i: a(f"v_xor_b32 v1, {(i>>2)*4096+(i&3)*256}, v10")
            throttle()
            a(f"global_load_dwordx4 v[{VR+4*i}:{VR+4*i+3}], {'v1' if i else 'v10'}, {sV}{c.nt}")
        kread = [False]; vdone = [0]
        def work():
            if landed[0] >= 11 and not kread[0]:
                kread[0] = True
                for t in range(2):
                    for j in range(4): a(f"ds_read_b128 v[{KF+16*t+4*j}:{KF+16*t+4*j+3}], v{11+j} offset:{4096*t}")
            while vdone[0] < 4 and landed[0] >= 13 + 2 * vdone[0]:
                self.vperm(vdone[0]); vdone[0] += 1
        work()
        a(f"s_add_u32 m0, s36, {L_GU}")
        for i in range(4):
            throttle()
            a(f"s_mov_b32 exec_lo, 0x0fffffff\ns_mov_b32 exec_hi, 0x0fffffff\nglobal_load_lds_dwordx4 v[184:185], off{c.nt}\ns_mov_b64 exec, -1")
            if i < 3: a("s_addk_i32 m0, 0x400\nv_lshl_add_u64 v[184:185], v[184:185], 0, s[14:15]")
            else: a(f"s_lshl_b32 s31, s33, 11\ns_add_u32 m0, s31, {L_WD}")
            work()
        for i in range(2):
            throttle()
            a(f"global_load_lds_dwordx4 v190, {sWD} offset:{1024*i}{c.nt}")
            work()
        if c.wo_at >= 26: signal(L_CNT)
        assert kread[0]
        self.vdone = vdone[0]; self.signal = signal
        self.stamp(2)
        a("s_branch L_S2")

    def vperm(self, u):
        for up in range(4):
            for b in range(2):
                self.a(f"v_perm_b32 v{self.VF+4*(2*up+b)+u}, v{self.VR+4*(2*u+1)+up}, v{self.VR+4*(2*u)+up}, {sHI if b else sLO}")

    def s_layers(self):
        a = self.a; c = self.c
        KF, VR, VF, Q, D, P, ON, O, OL, X, T = self.KF, self.VR, self.VF, self.Q, self.D, self.P, self.ON, self.O, self.OL, self.X, self.T
        a("L_S2:")
        for li in range(2):
            if li: a("s_barrier\n" * 3)
            a(f"v_mov_b32 v{T+4}, 0\ns_waitcnt lgkmcnt(0)\ns_barrier")
            self.stamp(3 + 6 * li)
            if 'noq' in c.exp and li == 0:
                a("s_waitcnt vmcnt(0)"); self.stamp(4)
                l = self.lab("x"); a(f"s_cmp_eq_u32 s33, 0\ns_cbranch_scc1 {l}\ns_endpgm\n{l}:"); self.end(2)
            for j in range(4): a(f"ds_read_b128 v[{Q+4*j}:{Q+4*j+3}], v{T+8+j}")
            a(f"ds_write_b32 v5, v{T+4}")
            for j in range(4):
                a(f"s_waitcnt lgkmcnt({4 - j})")
                for t in range(2):
                    cc = f"v[{D+4*t}:{D+4*t+3}]"
                    a(f"v_mfma_f32_16x16x32_bf16 {cc}, v[{KF+16*t+4*j}:{KF+16*t+4*j+3}], v[{Q+4*j}:{Q+4*j+3}], {cc if j else 0}")
            self.stamp(5 + 6 * li)
            for i in range(0, 8, 2): a(f"v_pk_mul_f32 v[{X+i}:{X+i+1}], v[{D+i}:{D+i+1}], v[{T+6}:{T+7}]")
            for i in range(8): a(f"v_exp_f32 v{D+i}, v{X+i}")
            for u in range(4): a(f"v_cvt_pk_bf16_f32 v{P+u}, v{D+2*u}, v{D+2*u+1}")
            self.stamp(6 + 6 * li)
            if li == 0:
                for u in range(self.vdone, 4):
                    a(f"s_waitcnt vmcnt({12 - 2*u})")
                    self.vperm(u)
                self.stamp(4)
            lfb, lback = self.lab("fallback"), self.lab("pv")
            a(f"{lback}:")
            for e in range(8):
                a(f"v_mfma_f32_16x16x32_bf16 v[{O+4*e}:{O+4*e+3}], v[{P}:{P+3}], v[{VF+4*e}:{VF+4*e+3}], 0")
                if e == 0: a(f"v_max3_f32 v{T}, v{X}, v{X+1}, v{X+2}\nv_max3_f32 v{T+1}, v{X+3}, v{X+4}, v{X+5}")
                if e == 1: a(f"v_max3_f32 v{T}, v{T}, v{X+6}, v{X+7}\nv_max_f32 v{T}, v{T}, v{T+1}")
                if e == 2: a(f"v_cmp_gt_f32 vcc, |v{T}|, v{T+5}")
                if e == 3: a(f"v_mfma_f32_16x16x32_bf16 v[{OL}:{OL+3}], v[{P}:{P+3}], v[{ON}:{ON+3}], 0\ns_cbranch_vccnz {lfb}")
                if e == 5: a(f"ds_write2st64_b32 v4, v{O}, v{O+4} offset0:0 offset1:1")
                if e == 7: a(f"ds_write2st64_b32 v4, v{O+8}, v{O+12} offset0:2 offset1:3\nds_write_b32 v3, v{OL} offset:64")
            for e in range(4, 8, 2): a(f"ds_write2st64_b32 v4, v{O+4*e}, v{O+4*e+4} offset0:{e} offset1:{e+1}")
            a("s_waitcnt lgkmcnt(0)")
            self.stamp(7 + 6 * li)
            a("s_barrier")
            if li == 0:
                a("s_waitcnt vmcnt(0)"); self.signal(L_CN2); a("s_waitcnt lgkmcnt(0)"); self.stamp(8)
            def fbk(fb):
                fb(f"{lfb}:\ns_nop 7")
                self.allred(T, T + 1, "v_max_f32")
                for i in range(8): fb(f"v_sub_f32 v{X+i}, v{X+i}, v{T}")
                for i in range(8): fb(f"v_exp_f32 v{D+i}, v{X+i}\nv_mov_b32 v{X+i}, 0")
                for u in range(4): fb(f"v_cvt_pk_bf16_f32 v{P+u}, v{D+2*u}, v{D+2*u+1}")
                fb(f"ds_write_b32 v5, v{T}\ns_nop 7\ns_branch {lback}")
            self.ool(fbk)
        if c.debug:
            l = self.lab("sdone")
            a(f"s_cmp_eq_u32 s33, 0\ns_cbranch_scc1 {l}\ns_endpgm\n{l}:")
        self.end(2)

    def clear_all(self, sc):
        a = self.a
        a(f"s_mov_b32 exec_hi, 0x00ffffff\nglobal_store_dword {vCLR}, v{NEG}, {sSM} offset:{AGQ[0]}{sc}\ns_mov_b64 exec, -1")
        for off in (BO[0], CQO, CGO): self.clear_inbox(off, sc)

    def c_pre(self):
        a = self.a; c = self.c
        a(f"""L_C:
s_mov_b64 exec, -1
s_lshr_b32 s29, s2, 3
s_waitcnt lgkmcnt(0)
s_load_dword {sE}, {sWS}, 0
s_mul_i32 s59, s28, {GB_STRIDE}
s_add_u32 s59, s59, {GB_OFF}
v_and_b32 v25, 7, v0
s_lshl_b32 s35, s29, 5
v_lshl_add_u32 {vPAIR}, v25, 2, s35
v_lshlrev_b32 {vXALL}, 4, v0
v_lshrrev_b32 v23, 3, v0
s_lshr_b32 s30, s29, 1
s_mul_i32 s3, s30, {IB}
s_and_b32 s30, s29, 1
s_lshl_b32 s30, s30, 5
s_add_u32 s34, s3, s30
v_lshrrev_b32 v22, 1, v0
v_lshl_add_u32 {vINX}, v22, 6, s34
v_and_b32 v26, 1, v0
v_lshl_add_u32 {vINX}, v26, 4, {vINX}
v_mov_b64 v[{NEG}:{NEG+1}], -1
v_mov_b64 v[{NEG+2}:{NEG+3}], -1
s_and_b32 s31, s29, 7
s_lshl_b32 s31, s31, 4
s_lshr_b32 s32, s29, 3
s_lshl2_add_u32 s60, s32, s31
v_lshl_add_u32 v27, v25, 7, s60
v_cmp_gt_u32 vcc, 40, v0
v_lshlrev_b32 {vCLR}, 10, v23
s_add_u32 s46, s26, s59
s_addc_u32 s47, s27, 0
v_cndmask_b32 v27, v27, {vPAIR}, vcc
v_add_u32 {vCLR}, {vCLR}, v27
s_add_u32 s36, s46, 2048
s_addc_u32 s37, s47, 0
s_add_u32 s40, s46, 6144
s_addc_u32 s41, s47, 0
s_add_u32 s46, s46, {SM}
s_addc_u32 s47, s47, 0
s_cmp_eq_u32 s33, 4
s_cbranch_scc0 L_Ypre
global_load_dword v{XR+1}, {vPAIR}, {sX}{c.xpol}""")
        assert OSTAT[0] - AGQ[0] == 5 * 1024 and OSTAT[1] - OSTAT[0] == 1024
        self.clear_all("")
        a(f"s_mul_i32 s30, s30, 160\ns_add_u32 s30, s30, s3\nv_lshl_add_u32 v29, v0, 7, s30\ns_mov_b32 exec_hi, 0xff\nglobal_load_dword {vJ}, v29, {sBX} offset:-2048{c.tpol}")
        a(f"s_lshl_b32 s30, s29, 8\nv_lshl_add_u32 v29, v0, 7, s30\ns_mov_b64 exec, 3\nglobal_load_dword {vJ}, v29, {sSM} offset:-4096{c.tpol}\ns_mov_b64 exec, -1")
        a(f"s_branch L_Cjoin\nL_Ypre:\nglobal_load_dword {vJ}, {vPAIR}, {sOUT}\nL_Cjoin:")
        self.consts()
        for k in range(4): a(f"s_add_u32 s{48+2*k}, s26, {G_OFF+G_STRIDE*k}\ns_addc_u32 s{49+2*k}, s27, 0")
        a(f"""s_getreg_b32 s61, hwreg(HW_REG_XCC_ID, 0, 4)
s_movk_i32 {sS0}, 0x3f80
s_mov_b32 {sS1}, 0x3f800000
v_mov_b32 {vMASK}, 0xff
v_mov_b64 v[76:77], 0
v_mov_b32 v{PZ}, 0
v_and_b32 v20, 15, v0
v_lshrrev_b32 v21, 4, v0
v_and_b32 v24, 3, v0
v_lshl_add_u32 {vIN}, v25, 2, s34
v_lshl_add_u32 {vIN}, v23, 6, {vIN}
s_lshl_b32 s31, s29, 10
v_lshl_add_u32 {vGPUB}, v25, 3, s31
v_lshl_add_u32 {vGIN}, v23, 7, {vGPUB}
s_lshl_b32 s32, s28, 7
v_add_u32 {vGPUB}, s32, {vGPUB}
v_lshlrev_b32 {vAQ}, 2, v21
v_sub_u32 {vAQ}, v0, {vAQ}
v_and_b32 {vAQ}, 15, {vAQ}
v_lshl_add_u32 {vAQ}, v21, 4, {vAQ}
v_lshlrev_b32 {vAQ}, 4, {vAQ}
v_lshrrev_b32 v22, 2, v0
v_mul_u32_u24 v22, {IB}, v22
v_lshl_add_u32 v22, v24, 4, v22
s_lshl_b32 s35, s29, 6
v_add_u32 {vPUB}, s35, v22
v_lshl_add_u32 {vINP}, v23, 6, s34
v_lshl_add_u32 {vINP}, v26, 3, {vINP}
v_bfe_u32 v22, v0, 1, 1
v_lshl_add_u32 {vINP}, v22, 11, {vINP}
v_bfe_u32 v22, v0, 2, 1
v_lshl_add_u32 {vINP}, v22, 4, {vINP}
s_sub_u32 s30, s33, 4
s_mul_i32 s31, s30, {8 * IB}
s_add_u32 s31, s31, s35
v_mul_u32_u24 v22, {IB}, v23
v_lshl_add_u32 v22, v25, 3, v22
v_add_u32 {vPUBO}, s31, v22
s_and_b32 s31, s29, 3
s_lshl_b32 s32, s31, 8
v_lshl_add_u32 {vOSI}, v23, 4, s32
v_bfe_u32 v27, v0, 2, 2
v_lshlrev_b32 {vOSP}, 8, v27
v_lshl_add_u32 {vOSP}, v26, 7, {vOSP}
v_add_u32 {vOSP}, s60, {vOSP}
s_lshl_b32 s31, s30, 10
s_add_u32 s31, s31, {L_O}
v_add_u32 {vLDS}, s31, {vXALL}
v_lshlrev_b32 {vLST}, 4, v27
v_add_u32 {vLST}, {L_ST}, {vLST}
s_mov_b32 s66, 0xaaaaaaaa
s_mov_b32 s67, 0xaaaaaaaa
s_mov_b32 s14, -1
s_mov_b32 s15, 0x00ffffff
s_and_b32 s31, s29, 3
s_lshl_b32 s31, s31, 7
s_lshr_b32 s32, s29, 2
s_add_u32 s31, s31, s32
s_lshl_b32 s32, s28, 9
s_add_u32 s31, s31, s32
s_lshl_b32 s31, s31, 10
v_add_u32 {vWO}, s31, {vXALL}
v_and_b32 {vXC}, 31, v0
v_lshlrev_b32 {vXC}, 2, {vXC}
s_cmp_eq_u32 s33, 4
s_cbranch_scc0 L_Y""")

    def lds_wait(self, off, n):
        l = self.lab("cnt")
        self.a(f"{l}:\nds_read_b32 v{TMP+1}, {vZERO} offset:{off}\ns_sub_u32 {sCN2}, {sCN2}, 1\ns_cbranch_scc1 L_exit\ns_waitcnt lgkmcnt(0)")
        self.a(f"v_cmp_gt_u32 vcc, {n}, v{TMP+1}\ns_cbranch_vccnz {l}")

    def prewrite(self):
        self.a(f"v_lshrrev_b32 v{TMP}, 3, v0\nv_lshlrev_b32 v{TMP}, 15, v{TMP}\nv_add_u32 v{TMP}, v{TMP}, {vGPUB}")
        self.a(f"s_mov_b32 exec_hi, 0\nglobal_atomic_swap_x2 v{TMP}, v[76:77], {sG[0]}\ns_mov_b64 exec, -1")

    def combine(self, li, base, half, sc):
        a = self.a
        gen_c, back_c = self.lab("cgen"), self.lab("cback")
        ost = f"v_cvt_pk_bf16_f32 v{ACC}, v{ACC}, v{ACC+1}\nv_cvt_pk_bf16_f32 v{ACC+1}, v{ACC+2}, v{ACC+3}\nglobal_store_dwordx2 {vPUBO}, v[{ACC}:{ACC+1}], {base[0]} offset:{base[1]}{sc}"
        a(f"ds_read_b128 v[{T2}:{T2+3}], {vLST}")
        for w in range(4): a(f"ds_read_b128 v[{TMP+4*w}:{TMP+4*w+3}], {vLDS} offset:{2048*w}")
        a(f"ds_read_b128 v[{T2+4}:{T2+7}], {vLST} offset:64")
        a(f"s_waitcnt lgkmcnt(3)\nv_or3_b32 v{GA}, v{T2}, v{T2+1}, v{T2+2}")
        a(f"v_pk_add_f32 v[{ACC}:{ACC+1}], v[{TMP}:{TMP+1}], v[{TMP+4}:{TMP+5}]\nv_or_b32 v{GA}, v{GA}, v{T2+3}")
        a(f"v_pk_add_f32 v[{ACC+2}:{ACC+3}], v[{TMP+2}:{TMP+3}], v[{TMP+6}:{TMP+7}]\nv_cmp_ne_u32 vcc, 0, v{GA}\ns_waitcnt lgkmcnt(2)")
        a(f"v_pk_add_f32 v[{ACC}:{ACC+1}], v[{ACC}:{ACC+1}], v[{TMP+8}:{TMP+9}]\nv_pk_add_f32 v[{ACC+2}:{ACC+3}], v[{ACC+2}:{ACC+3}], v[{TMP+10}:{TMP+11}]\ns_waitcnt lgkmcnt(1)")
        a(f"v_pk_add_f32 v[{ACC}:{ACC+1}], v[{ACC}:{ACC+1}], v[{TMP+12}:{TMP+13}]\nv_pk_add_f32 v[{ACC+2}:{ACC+3}], v[{ACC+2}:{ACC+3}], v[{TMP+14}:{TMP+15}]")
        a(f"s_cbranch_vccnz {gen_c}\n{ost}")
        if not half:
            a(f"s_waitcnt lgkmcnt(0)\nv_pk_add_f32 v[{GA}:{GA+1}], v[{T2+4}:{T2+5}], v[{T2+6}:{T2+7}]\nv_add_f32 v{GA}, v{GA}, v{GA+1}")
            a(f"s_mov_b64 exec, 0x2222\n{back_c}:\nglobal_store_dword {vOSP}, v{GA}, {sSM} offset:{OSTAT[li]}{sc}\ns_mov_b64 exec, -1")
        else: a(f"{back_c}:")
        def cgen(fb):
            fb(f"{gen_c}:\ns_waitcnt lgkmcnt(0)")
            fb(f"v_max3_f32 v{GA}, v{T2}, v{T2+1}, v{T2+2}\nv_max_f32 v{GA}, v{GA}, v{T2+3}")
            for w in range(4): fb(f"v_sub_f32 v{T2+w}, v{T2+w}, v{GA}")
            for w in range(4): fb(f"v_exp_f32 v{T2+w}, v{T2+w}")
            for w in range(4):
                for j in range(4):
                    fb(f"v_mul_f32 v{ACC+j}, v{T2}, v{TMP+j}" if w == 0 else f"v_fmac_f32 v{ACC+j}, v{T2+w}, v{TMP+4*w+j}")
            fb(ost)
            if not half:
                fb(f"v_mul_f32 v{GA+1}, v{T2}, v{T2+4}")
                for w in range(1, 4): fb(f"v_fmac_f32 v{GA+1}, v{T2+w}, v{T2+4+w}")
                fb(f"v_or_b32 v{GA+1}, 0x80000000, v{GA+1}\nv_cndmask_b32 v{GA}, v{GA}, v{GA+1}, {sODD}\ns_mov_b64 exec, 0x3333")
            fb(f"s_nop 1\ns_branch {back_c}")
        self.ool(cgen)

    def colsum_gather(self, off):
        self.rs_gather("cs", off, par=(1, 0, 0), land=PC)
        self.a(f"v_mov_b64 v[{CS}:{CS+1}], v[{GA}:{GA+1}]")

    def x_head(self):
        a = self.a
        nt3 = 2
        self.zero_acc()
        if 'noq' in self.c.exp: self.stamp(5)
        a(f"v_add_u32 v{T2}, {L_WQ}, {vXALL}\ns_waitcnt lgkmcnt(0)\ns_barrier")
        self.stamp(1)
        if 'noq' in self.c.exp:
            a("s_barrier"); self.end(0)
        self.WQ = []
        self.lds_weights(self.WQ, WA, f"v{T2}", 0, 8)
        a(f"s_waitcnt vmcnt({4 + nt3})")
        self.stats(32)
        a(f"v_lshlrev_b32 v{XR}, 16, v{XR+1}\nv_and_b32 v{XR+1}, 0xffff0000, v{XR+1}\nv_sub_f32 v{GA}, v{XR}, {vMU}\nv_sub_f32 v{GA+1}, v{XR+1}, {vMU}")
        self.pack()
        self.tag(1)
        for kp in range(8): self.dots(self.WQ, kp)
        self.xspare = self.spare
        a(f"s_waitcnt vmcnt({nt3})\ns_setprio 0")
        self.stamp(2)

    def x_program(self, slow):
        a = self.a; c = self.c
        sc = " sc1" if slow else ""
        self.spare = self.xspare
        if slow:
            self.clear_all(sc)
            a("s_waitcnt vmcnt(0)")
            self.zero_acc()
            for kp in range(8): self.dots(self.WQ, kp)
        for j in range(8): a(f"v_bfi_b32 v{ACC+j}, {vMASK}, {sT}, v{ACC+j}")
        for t in range(2): self.publish(ACC + 4 * t, BO[1 + t], sc)
        a(f"s_add_u32 s3, {sE}, 1\ns_lshl_b32 s3, s3, 4\ns_add_u32 s32, s3, 16\ns_or_b32 s3, s3, {sXCC}\ns_add_u32 s24, s3, 16")
        def xword():
            a(f"v_mov_b32 v{TMP}, {'s24' if slow else 's3'}\ns_lshl_b32 s31, s29, 2\nv_mov_b32 v{TMP+1}, s31")
            a(f"s_mov_b64 exec, 1\nglobal_store_dword v{TMP+1}, v{TMP}, {sSM} offset:{XCC}{sc}\ns_mov_b64 exec, -1")
        if not slow: xword()
        self.stamp(3)
        def check0(off):
            a(f"s_waitcnt vmcnt({off})\nv_cmp_ne_u32 s[30:31], s3, v{PX}")
            if slow:
                a(f"v_cmp_ne_u32 vcc, s24, v{PX}\nv_and_b32 v{TMP+2}, -16, v{PX}\ns_and_b64 s[30:31], s[30:31], vcc\nv_cmp_ne_u32 vcc, s32, v{TMP+2}")
                a("s_cmp_eq_u64 s[30:31], 0\ns_cselect_b64 s[30:31], 0, vcc")
            for i in range(8): a(f"v_xor_b32 v{MA+i}, {sT}, v{PL+i}")
            a(f"v_or3_b32 v{TMP}, v{MA}, v{MA+1}, v{MA+2}\nv_or3_b32 v{TMP}, v{TMP}, v{MA+3}, v{MA+4}\nv_or3_b32 v{TMP}, v{TMP}, v{MA+5}, v{MA+6}\nv_or_b32 v{TMP}, v{TMP}, v{MA+7}")
            a(f"v_cmp_ne_u32_sdwa vcc, v{TMP}, 0 src0_sel:BYTE_0 src1_sel:DWORD")
            a(f"v_pk_add_f32 v[{GA}:{GA+1}], v[{MA}:{MA+1}], v[{MA+2}:{MA+3}]\nv_pk_add_f32 v[{GA+2}:{GA+3}], v[{MA+4}:{MA+5}], v[{MA+6}:{MA+7}]")
            a(f"v_pk_add_f32 v[{GA}:{GA+1}], v[{GA}:{GA+1}], v[{GA+2}:{GA+3}]\ns_or_b64 vcc, vcc, s[30:31]")
        loads = "".join(f"global_load_dwordx2 v[{PL+2*i}:{PL+2*i+1}], {vINP}, {sBX} offset:{BO[1][1] + 512*i} sc1\n" for i in range(4))
        loads += f"global_load_dword v{PX}, {vXC}, {sSM} offset:{XCC} sc1"
        if slow:
            a("s_waitcnt vmcnt(0)")
            xword()
            self.poll("q0", loads, check0, (1, 0, 0))
        else:
            self.zero_acc()
            for kp in range(8): self.dots(self.WQ, kp, sONE)
            self.pack_acc(CSQ)
            if c.force_slow: a("s_branch L_Xslow")
            self.poll("q0", loads, check0, c.q0, bound=c.limit1, over=lambda fb, ov, top: fb(f"{ov}:\ns_branch L_Xslow"), pace=c.pace)
        GU = []
        self.pair_head(GA, TMP); self.pair_tail(GA, TMP)
        a(f"v_mul_f32 v{GA}, v{GA}, {vRS}\nv_mul_f32 v{GA+1}, v{GA+1}, {vRS}")
        self.stamp(4)
        for li in range(2):
            h = 5 * li
            B = lambda k: HB(h + k)
            st = (lambda i: self.stamp(i)) if li == c.stamp_layer else (lambda i: None)
            self.pack()
            self.pair_store(sSM, AGQ[li], sc)
            if li == 0: self.clear_inbox(BO[1], sc); self.clear_inbox(BO[2], sc); self.publish(CSQ, CQO, sc)
            st(5)
            def qbody(off):
                a(f"s_waitcnt vmcnt({off})\nv_max3_u32 v{TMP}, v{PX}, v{PX+1}, v{PX+2}\nv_max_u32 v{TMP}, v{TMP}, v{PX+3}\nv_cmp_eq_u32 vcc, -1, v{TMP}")
            ql = f"global_load_dwordx4 v[{PX}:{PX+3}], {vAQ}, {sSM} offset:{AGQ[li]} sc1"
            if li == 0:
                a(f"v_mov_b32 v{TMP+1}, {int(slow)}\nds_write_b32 {vZERO}, v{TMP+1} offset:{L_MODE}")
                self.poll("aq", ql, qbody, c.a0, pace=c.pace)
            else: self.poll("aq", ql, qbody, c.aq, pace=c.lpa)
            a(f"ds_write_b128 {vXALL}, v[{PX}:{PX+3}] offset:{L_Q}\ns_waitcnt lgkmcnt(0)\ns_barrier")
            if li == 1: self.clear_inbox(BO[1], sc); a("s_waitcnt vmcnt(0)")
            if li == 0: self.prewrite()
            a("s_barrier")
            st(6)
            self.combine(li, B(2), 0, sc)
            st(7)
            if li == 0:
                a(f"v_lshrrev_b32 v{T2}, 1, v0\nv_lshlrev_b32 v{T2}, 4, v{T2}\nv_and_b32 v{T2+1}, 1, v0\nv_lshl_add_u32 v{T2}, v{T2+1}, 9, v{T2}\nv_add_u32 v{T2}, {L_GU}, v{T2}")
                a(f"s_mov_b32 {sCN2}, {c.limit * c.outer * 4}")
                self.zero_acc()
                self.lds_wait(L_CN2, 4)
                st(9)
                self.lds_weights(GU, WB, f"v{T2}", 0, 8, lambda kp: self.dots(GU, kp, sONE))
                self.pack_acc(TMP); self.publish(TMP, CGO, sc, M56)
                if c.cq_at == 0: self.colsum_gather(CQO)
                st(13)
            for half in range(2):
                k = 2 * li + half
                last = k == 3
                self.zero_acc()
                self.tag(11 + k)
                a("s_barrier")
                self.rs_gather("out", B(3 + 2 * half), part=half == 1)
                a(f"v_bfi_b32 v{GA}, {vMASK}, {sT}, v{GA}\nv_bfi_b32 v{GA+1}, {vMASK}, {sT}, v{GA+1}\ns_mov_b64 exec, 0xff\nglobal_atomic_swap_x2 {vGPUB}, v[{GA}:{GA+1}], {sG[k]}\ns_mov_b64 exec, -1")
                if not last: self.clear_inbox(B(2 + 2 * half), sc)
                if li == 0: self.clear_inbox(B(3 + 2 * half), sc)
                st(10 + 4 * half)
                fin = self.lab("fin")
                if last: a(f"s_cmp_eq_u32 s28, 0\ns_cbranch_scc0 {fin}")
                depth, delay, gap, gap2 = c.g
                top = self.lab("g")
                gl = f"global_atomic_or_x2 v[{PG}:{PG+1}], {vGIN}, v[76:77], {sG[k]} sc0"
                a(f"s_mov_b32 {sCNT}, {c.limit * c.outer}\ns_mov_b64 vcc, -1")
                self.nops(delay)
                for j in range(depth - 1):
                    a(gl); self.nops(gap)
                a(f"{top}:\ns_mov_b64 exec, vcc\n{gl}\ns_mov_b64 exec, -1\ns_sub_u32 {sCNT}, {sCNT}, 1\ns_cbranch_scc1 L_exit")
                self.nops(gap2)
                a(f"""s_waitcnt vmcnt({depth - 1})
v_xor_b32 v{GA}, {sT}, v{PG}
v_xor_b32 v{GA+1}, {sT}, v{PG+1}
v_or_b32 v{TMP+1}, v{GA}, v{GA+1}
v_cmp_ne_u32_sdwa vcc, v{TMP+1}, 0 src0_sel:BYTE_0 src1_sel:DWORD
v_permlane32_swap_b32 v{GA}, v{GA+1}
v_add_f32 v{GA}, v{GA}, v{GA+1}
v_mov_b32 v{TMP}, v{GA}
s_cbranch_vccnz {top}
v_permlane16_swap_b32 v{GA}, v{TMP}
v_add_f32 v{GA}, v{GA}, v{TMP}
v_add_f32_dpp v{GA}, v{GA}, v{GA} row_ror:8 {DPP}
v_mov_b32 v{GA+1}, v{GA}
v_permlane32_swap_b32 v{GA}, v{GA+1}
v_pk_add_f32 v[{GA}:{GA+1}], v[{GA}:{GA+1}], v[{XR}:{XR+1}]
v_cvt_pk_bf16_f32 {vPR}, v{GA}, v{GA+1}""")
                pst = self.pair_store
                xupd = f"v_lshlrev_b32 v{XR}, 16, {vPR}\nv_and_b32 v{XR+1}, 0xffff0000, {vPR}"
                if last:
                    pst(sOUT, 0, "")
                    a(f"s_cmp_eq_u32 s29, 0\ns_cbranch_scc0 {fin}")
                    a(f"s_add_u32 s30, {sE}, {NTAGS}\nv_mov_b32 v{TMP}, s30\ns_mov_b64 exec, 1\nglobal_store_dword {vZERO}, v{TMP}, {sWS} sc1\n{fin}:")
                    self.end(0)
                    break
                if half == 0: st(11)
                pst(sSM, XALL[k], sc)
                if half == 0:
                    self.gemv(GU, B(4), sc, mask=M56)
                    a(f"s_barrier\n{xupd}")
                    st(12)
                    if li == 0:
                        self.nops(c.cqd); self.colsum_gather(CQO) if c.cq_at == 1 else None
                else:
                    st2 = (lambda i: self.stamp(i)) if c.stamp_layer == 1 else (lambda i: None)
                    self.gemv(self.WQ, HB(6), sc)
                    a(xupd)
                    st2(2)
                    self.rs_gather("q", HB(6), ln=1)
                    st2(4)

    def y_head(self):
        a = self.a; c = self.c
        a(f"L_Y:\nds_write_b64 {vZERO}, v[{TMP}:{TMP+1}] offset:{L_CNT}\nv_add_u32 v{T2}, {L_WD}, {vXALL}\ns_waitcnt lgkmcnt(0)\ns_barrier".replace("L_Y:", f"L_Y:\nv_mov_b64 v[{TMP}:{TMP+1}], 0"))
        self.stamp(1)
        a(f"s_mov_b32 {sCN2}, {c.limit * c.outer * 4}")
        self.spare = SPARE
        for grp in range(4):
            self.lds_wait(L_CNT, grp + 1)
            for k in range(4 * grp, 4 * grp + 4):
                a(f"global_load_dwordx4 v[{WA+4*k}:{WA+4*k+3}], {vWO}, {sWO}{c.nt}")
                if k < 15: a(f"v_add_u32 {vWO}, 8192, {vWO}")
        self.stamp(2)
        a(f"s_barrier\nds_read_b32 v{TMP+1}, {vZERO} offset:{L_MODE}")
        if 'noq' in self.c.exp: a("s_waitcnt vmcnt(0)"); self.end(1)
        a(f"s_waitcnt lgkmcnt(0)\nv_readfirstlane_b32 s3, v{TMP+1}\ns_cmp_eq_u32 s3, 0\ns_cbranch_scc0 L_Yslow")

    def y_program(self, slow):
        a = self.a; c = self.c
        sc = " sc1" if slow else ""
        spare0 = self.spare
        WO = []; WD = []
        for li in range(2):
            h = 5 * li
            B = lambda k: HB(h + k)
            st = (lambda i: self.stamp(i)) if li == c.stamp_layer else (lambda i: None)
            if li: a("s_barrier")
            a("s_barrier")
            st(6)
            self.combine(li, B(2), 1, sc)
            st(7)
            y, z, t, L, lt = PL, GA, TMP, PM + 4, LA + 2
            loads = f"global_load_dwordx4 v[{L}:{L+3}], {vOSI}, {sSM} offset:{OSTAT[li]+128} sc1\n" + self.rs_loads(B(2), PL)
            def shadow(nafter):
                a(f"v_add_u32 v{T2}, {L_WD}, {vXALL}\ns_mov_b32 {sCN2}, {c.limit * c.outer * 4}")
                self.lds_wait(L_CN2, 4)
                self.lds_weights(WD, WB, f"v{T2}", 0, 4)
                a(f"s_mov_b32 {sCN2}, {c.outer}")
                for kp in range(8):
                    a(f"s_waitcnt vmcnt({14 - 2*kp + 1 + nafter})")
                    self.perm_pair(WO, WA, kp)
            onorm, ogen = self.lab("onorm"), self.lab("ogen")
            def obody(off):
                a(f"""v_mov_b64 v[{z}:{z+1}], 0
s_waitcnt vmcnt({off + 4})
v_pk_add_f32 v[{LA}:{LA+1}], v[{L}:{L+1}], v[{L+2}:{L+3}]
v_add_f32 v{LA}, v{LA}, v{LA+1}
v_mov_b32 v{lt}, v{LA}
s_waitcnt vmcnt({off + 2})""")
                self.unpack_sum(z, [y])
                a(f"v_permlane32_swap_b32 v{LA}, v{lt}")
                self.unpack_sum(z, [y + 1])
                a(f"v_add_f32 v{LA}, v{LA}, v{lt}\nv_mov_b32 v{lt}, v{LA}\ns_waitcnt vmcnt({off})")
                self.unpack_sum(z, [y + 2, y + 3])
                a(f"""v_permlane16_swap_b32 v{LA}, v{lt}
v_add_f32 v{LA}, v{LA}, v{lt}
v_or3_b32 v{t+2}, v{L}, v{L+1}, v{L+2}
v_permlane32_swap_b32 v{z}, v{z+1}
v_add_f32 v{z}, v{z}, v{z+1}
v_mov_b32 v{t}, v{z}
v_add_f32_dpp v{LA}, v{LA}, v{LA} row_ror:8 {DPP}
v_cmp_u_f32 vcc, v{z}, v{LA}
v_permlane16_swap_b32 v{z}, v{t}
v_add_f32 v{z}, v{z}, v{t}
v_rcp_f32 v{LA}, v{LA}""")
            def oover(fb, ov, top):
                fb(f"{ov}:\ns_sub_u32 {sCN2}, {sCN2}, 1\ns_cbranch_scc1 L_exit\ns_mov_b32 {sCNT}, {c.limit}\ns_waitcnt vmcnt(0)")
                self.umax(t, list(range(y, y + 4)) + list(range(L, L + 4)))
                fb(f"v_cmp_eq_u32 vcc, -1, v{t}\ns_cbranch_vccnz {top}\ns_branch {ogen}")
            self.zero_acc()
            a(f"s_mov_b32 {sCN2}, {c.outer}")
            self.poll("o", loads, obody, c.ro if li else (1, 0, 0), shadow if li == 0 else None, bound=c.limit, over=oover, pace=c.lp)
            a(f"""v_add_f32_dpp v{z}, v{z}, v{z} row_ror:8 {DPP}
v_mov_b32 v{z+1}, v{z}
v_or_b32 v{t+2}, v{t+2}, v{L+3}
v_cmp_gt_i32 vcc, 0, v{t+2}
v_permlane32_swap_b32 v{z}, v{z+1}
v_mul_f32 v{z}, v{z}, v{LA}
v_mul_f32 v{z+1}, v{z+1}, v{LA}""")
            self.pack()
            a(f"s_cbranch_vccnz {ogen}\n{onorm}:")
            def ogen_f(fb):
                mloop = self.lab("omloop")
                fb(f"{ogen}:\ns_waitcnt vmcnt(0)\ns_mov_b32 {sCNT}, {c.limit * c.outer}\n{mloop}:\ns_sub_u32 {sCNT}, {sCNT}, 1\ns_cbranch_scc1 L_exit")
                fb(f"global_load_dwordx4 v[{PM}:{PM+3}], {vOSI}, {sSM} offset:{OSTAT[li]} sc1\ns_waitcnt vmcnt(0)")
                for i in range(4): fb(f"v_cmp_gt_i32 vcc, 0, v{L+i}\nv_cndmask_b32 v{T2+i}, 0, v{PM+i}, vcc")
                self.umax(t, range(T2, T2 + 4))
                fb(f"v_cmp_eq_u32 vcc, -1, v{t}\ns_cbranch_vccnz {mloop}")
                fb(f"v_max3_f32 v{t}, v{T2}, v{T2+1}, v{T2+2}\nv_max_f32 v{t}, v{t}, v{T2+3}")
                self.allred(t, t + 1, "v_max_f32")
                fb(f"v_max_f32_dpp v{t}, v{t}, v{t} row_ror:8 {DPP}")
                for i in range(4): fb(f"v_sub_f32 v{T2+i}, v{T2+i}, v{t}")
                for i in range(4): fb(f"v_exp_f32 v{T2+i}, v{T2+i}")
                fb(f"v_mov_b64 v[{z}:{z+1}], 0\nv_mov_b32 v{LA}, 0")
                for i in range(4):
                    fb(f"v_lshlrev_b32 v{t}, 16, v{y+i}\nv_and_b32 v{t+1}, 0xffff0000, v{y+i}\nv_fmac_f32 v{z}, v{T2+i}, v{t}\nv_fmac_f32 v{z+1}, v{T2+i}, v{t+1}\nv_fma_f32 v{LA}, v{T2+i}, |v{L+i}|, v{LA}")
                self.allred(LA, t + 1)
                fb(f"v_add_f32_dpp v{LA}, v{LA}, v{LA} row_ror:8 {DPP}")
                self.pair_head(z, t); self.pair_tail(z, t)
                fb(f"v_rcp_f32 v{LA}, v{LA}\nv_mul_f32 v{z}, v{z}, v{LA}\nv_mul_f32 v{z+1}, v{z+1}, v{LA}")
                self.pack()
                fb(f"s_nop 1\ns_branch {onorm}")
            self.ool(ogen_f)
            st(8)
            self.gemv(WO, B(3), sc)
            a("s_barrier")
            st(9)
            noffn = self.lab("noffn")
            if li == 0:
                l = self.lab("nocg")
                a(f"s_cmp_lt_u32 s29, 28\ns_cbranch_scc0 {l}")
                self.nops(c.cgd)
                self.colsum_gather(CGO)
                a(f"{l}:")
            self.zero_acc()
            a(f"s_barrier\ns_cmp_lt_u32 s29, 28\ns_cbranch_scc0 {noffn}")
            st(12)
            self.rs_gather("gu", B(4), ln=2 * li)
            a(f"v_mul_f32_dpp v{GA}, v{GA}, v{GA} row_ror:4 {DPP}\nv_mul_f32_dpp v{GA+1}, v{GA+1}, v{GA+1} row_ror:4 {DPP}")
            self.pack()
            self.gemv(WD, B(5), sc)
            a(f"{noffn}:")
            st(13)
            a("s_barrier")
        self.end(1)
        self.spare = spare0

    def build(self):
        a = self.a
        self.prologue()
        self.s_stream()
        self.c_pre()
        self.x_head()
        self.x_program(False); self.flush()
        self.y_head()
        self.y_program(False); self.flush()
        self.s_layers(); self.flush()
        a("L_fast_end:\nL_Yslow:")
        self.y_program(True); self.flush()
        a("L_Xslow:")
        self.x_program(True); self.flush()
        a("L_exit:\ns_endpgm")
        head = f"""; Fused decode step: 2 x (LayerNorm -> GQA sliding-window attention -> residual -> LayerNorm -> bilinear GLU -> residual)
; @launch grid=(256,1,1) block=(384,1,1) lds={self.c.ldsx or LDS_BYTES}
.amdgcn_target "amdgcn-amd-amdhsa--gfx950"
.text
.globl {KNAME}
.p2align 8
.type {KNAME},@function
{KNAME}:
"""
        tail = f"""
.section .rodata,"a"
.p2align 6
.amdhsa_kernel {KNAME}
  .amdhsa_next_free_vgpr 256
  .amdhsa_next_free_sgpr 102
  .amdhsa_accum_offset 256
  .amdhsa_group_segment_fixed_size 0
  .amdhsa_kernarg_size 96
  .amdhsa_user_sgpr_count 2
  .amdhsa_user_sgpr_kernarg_segment_ptr 1
  .amdhsa_system_sgpr_workgroup_id_x 1
  .amdhsa_float_denorm_mode_32 3
.end_amdhsa_kernel
"""
        return head + a.text() + tail


def make(**kw):
    c = Cfg()
    for k, v in kw.items(): setattr(c, k, v)
    return Gen(c).build()

if __name__ == "__main__":
    kw = {}
    for x in sys.argv[2:]:
        k, v = x.split("=", 1); kw[k] = eval(v)
    open(sys.argv[1], "w").write(make(**kw))
```

```python
import sys, struct
from asmlib import Asm

KNAME = "interleave_layers__sliding_block_cached__glu_gated_bilinear__decode_kernel"
def f2u(x): return struct.unpack("<I", struct.pack("<f", x))[0]

class Cfg:
    debug = False
    stamp_layer = 0
    nt = " nt"
    win = 4
    wins = [4]*22
    wo_at = 26
    limit = 64
    outer = 2000
    limit1 = 64
    force_slow = False
    rs = (3, 120, 60)
    ro = (3, 120, 60)
    g = (3, 80, 200, 0)
    q0 = (3, 200, 500)
    a0 = (3, 300, 500)
    b2x_first = 0
    cgd = 800
    xq = (100, 60, 2)
    xg = (340, 70, 3)
    xh = 5
    rpre = 0
    nfill = 2
    lnoff = 1
    aq = (3, 130, 55)
    prew = 2
    cs_sc = ''
    pace = 200
    touch = 1
    tpol = ' nt'
    xpol = ''
    pfpol = ''
    exp = ''
    rot = 1
    pf0 = 0
    pf0pol = ' nt'
    pf = 6
    b0_late = 1
    fclean = 0
    ldsx = 0
    gform = 1
    sgemv = 1
    qkov = 1
    fing = 4
    opol = ''
    gl = (3, 150, 120, 0)
    help = ()
    hpol = ' nt'
    wb = 0
    wbc = 0
    dbgwg = 0
    dbgfrom = 0
    dbgfix = 0
    cs_late = 1
    tlb = 0
    xd = 200
    bound = 60.0

DPP = "row_mask:0xf bank_mask:0xf"
G_OFF = 0x1000; G_STRIDE = 0x8000
GB_OFF = 0x40000; GB_STRIDE = 0x60000
SM = 0x50000 + 0x1000
AGQ = [-0x1000, -0xC00]; XALL = [-0x800, -0x400, 0x0]; OSTAT = [0x400, 0x800]; XCC = 0xC00
DBG_OFF = 0x400000
NTAGS = 16
L_O = 32768; L_ST = 40960; L_MODE = L_ST + 128; L_CNT = L_ST + 136; L_CN2 = L_ST + 140; L_Q = 41984; L_WQ = L_Q + 1024; L_GU = L_WQ + 16384; L_WD = L_GU + 16384
LDS_BYTES = L_WD + 8192
sX, sK, sV, sWQ, sWO, sWG, sWU, sWD, sOUT, sWS = ("s[4:5]", "s[6:7]", "s[8:9]", "s[10:11]", "s[12:13]",
    "s[16:17]", "s[18:19]", "s[20:21]", "s[22:23]", "s[26:27]")
sB = ["s[36:37]", "s[38:39]", "s[40:41]"]; sCG = "s[42:43]"; sCQ = "s[40:41]"; sSM = "s[46:47]"
sG = ["s[48:49]", "s[50:51]", "s[52:53]", "s[54:55]"]
sE, sT, sCNT, sXCC, sLO, sHI, sONE, sCN2 = "s56", "s57", "s58", "s61", "s62", "s63", "s64", "s65"
sODD = "s[66:67]"; M56 = "s[14:15]"
vMASK, vIN, vPUB, vPUB2, vGIN, vGPUB, vPAIR, vXALL, vOSI, vOSP, vLDS, vLST = ["v%d" % i for i in range(1, 13)]
vX, vCS, vINX, vPR, vMU, vRS, vNM = "v13", "v14", "v15", "v16", "v17", "v18", "v19"
GA = 20; MA = 28; LA = 36; ACC = 40; TMP = 48; T2 = 64; NEG = 72
vZERO, vAQ, vCLR, vXC, vWO, vDN, vDN2, vJ = "v76", "v79", "v78", "v253", "v208", "v209", "v210", "v211"
vX1, vPAIR8 = "v252", "v254"
WA, WB, SPARE = 80, 144, 212
PL = 214; PM = 222; PX = 238; PC = 242; PG = 250


def HB(hop): return sB[1] if hop == 1 else sB[[1, 2, 0][hop % 3]]


class Gen:
    def __init__(self, cfg):
        self.c = cfg; self.a = Asm(); self.tail = []; self.nlab = 0; self.spare = SPARE

    def lab(self, s):
        self.nlab += 1
        return f"L_{s}_{self.nlab}"

    def stamp(self, i):
        if self.c.debug: self.a(f"s_memtime s[{70+2*i}:{71+2*i}]")

    def end(self, slot):
        a = self.a
        if self.c.debug == 3:
            if slot == 0:
                l, l2 = self.lab("nodbg"), self.lab("spin")
                a(f"s_memtime s[100:101]\ns_waitcnt lgkmcnt(0)\ns_cmp_eq_u32 s2, {self.c.fing}\ns_cbranch_scc0 {l}\ns_sub_u32 s31, s{70+2*self.c.dbgwg}, s{70+2*self.c.dbgfrom}\ns_min_u32 s31, s31, 200000")
                if self.c.dbgfix: a(f"s_mov_b32 s31, {self.c.dbgfix}")
                a(f"{l2}:\ns_memtime s[98:99]\ns_waitcnt lgkmcnt(0)\ns_sub_u32 s30, s98, s100\ns_cmp_lt_u32 s30, s31\ns_cbranch_scc1 {l2}\n{l}:")
            a("s_endpgm"); return
        if self.c.debug == 2:
            if slot == 0:
                l = self.lab("nodbg")
                a(f"s_memtime s[100:101]\ns_load_dwordx2 s[24:25], s[0:1], 80\ns_waitcnt vmcnt(0) lgkmcnt(0)\ns_cmp_lt_u32 s2, 8\ns_cbranch_scc0 {l}\ns_mov_b64 exec, 1")
                a("s_lshl_b32 s30, s2, 2\nv_mov_b32 v20, s30\nv_mov_b32 v24, s68\nglobal_store_dword v20, v24, s[24:25]")
                a(f"s_cmp_eq_u32 s2, {self.c.dbgwg}\ns_cbranch_scc0 {l}")
                for j, i in enumerate((1, 4, 6, 10, 11, 14, 15)): a(f"s_sub_u32 s31, s{70+2*i}, s70\nv_mov_b32 v{24+j}, s31")
                a("v_mov_b32 v20, 0\nv_mov_b32 v31, 0\nglobal_store_dwordx4 v20, v[24:27], s[24:25] offset:32\nglobal_store_dwordx4 v20, v[28:31], s[24:25] offset:48")
                a(f"{l}:")
            a("s_endpgm"); return
        if self.c.debug:
            a("s_memtime s[100:101]\ns_waitcnt vmcnt(0) lgkmcnt(0)\ns_mov_b64 exec, -1")
            a(f"s_lshl_b32 s30, s2, 9\ns_add_u32 s30, s30, {DBG_OFF + slot*128}")
            a("v_mov_b32 v20, s30\nv_mov_b32 v24, s68")
            for i in range(1, 16): a(f"s_sub_u32 s31, s{70+2*i}, s70\nv_mov_b32 v{24+i}, s31")
            for i in range(4): a(f"global_store_dwordx4 v20, v[{24+4*i}:{27+4*i}], {sWS} offset:{16*i}")
        a("s_endpgm")

    def tag(self, k): self.a(f"s_add_u32 {sT}, {sE}, {k}\ns_and_b32 {sT}, {sT}, 0x3f\ns_or_b32 {sT}, {sT}, 0x40")

    def nops(self, cyc):
        if cyc >= 192:
            self.a(f"s_sleep {cyc // 64}"); return
        while cyc >= 4:
            k = min(cyc // 4, 16); self.a(f"s_nop {k-1}"); cyc -= 4 * k

    def ool(self, fn):
        fb = Asm(); sv, self.a = self.a, fb
        fn(fb)
        self.a = sv
        self.tail.append(fb.text())

    def flush(self):
        while self.tail: self.a(self.tail.pop(0))

    def poll(self, name, loads, body, par, shadow=None, bound=None, over=None, first=True, pace=0):
        a = self.a
        depth, delay, gap = par
        nl = loads.count("global_")
        top, ov = self.lab(name), self.lab(name + "_over")
        a(f"s_mov_b32 {sCNT}, {bound or self.c.limit * self.c.outer}")
        if first:
            self.nops(delay)
            for k in range(depth - 1):
                a(loads); self.nops(gap)
        if shadow:
            skip = self.lab(name + "_in")
            a(loads); shadow(depth * nl); a(f"s_branch {skip}\n{top}:\n{loads}\n{skip}:")
        else:
            a(f"{top}:\n{loads}")
        a(f"s_sub_u32 {sCNT}, {sCNT}, 1\ns_cbranch_scc1 {ov if over else 'L_exit'}")
        self.nops(pace)
        body((depth - 1) * nl)
        a(f"s_cbranch_vccnz {top}")
        if over: self.ool(lambda fb: over(fb, ov, top))

    def allred(self, r, t, op="v_add_f32"):
        self.a(f"""v_mov_b32 v{t}, v{r}
v_permlane32_swap_b32 v{r}, v{t}
{op} v{r}, v{r}, v{t}
v_mov_b32 v{t}, v{r}
v_permlane16_swap_b32 v{r}, v{t}
{op} v{r}, v{r}, v{t}""")

    def rs_loads(self, base, g, n=8):
        return "\n".join(f"global_load_dword v{g+i}, {vIN}, {base} offset:{256*i} sc1" for i in range(n))

    def umax(self, t, regs):
        regs = list(regs)
        self.a(f"v_max3_u32 v{t}, v{regs[0]}, v{regs[1]}, v{regs[2]}")
        for i in range(3, len(regs), 2): self.a(f"v_max3_u32 v{t}, v{t}, v{regs[i]}, v{regs[min(i+1, len(regs)-1)]}")

    def tagged_sum(self, src, n=8):
        a = self.a
        for i in range(n): a(f"v_xor_b32 v{MA+i}, {sT}, v{src+i}")
        a(f"v_or3_b32 v{TMP}, v{MA}, v{MA+1}, v{MA+2}\nv_or3_b32 v{TMP}, v{TMP}, v{MA+3}, v{MA+4}\nv_or3_b32 v{TMP}, v{TMP}, v{MA+5}, v{MA+6}\nv_or_b32 v{TMP}, v{TMP}, v{MA+7}")
        a(f"v_cmp_ne_u32_sdwa vcc, v{TMP}, 0 src0_sel:BYTE_0 src1_sel:DWORD")
        a(f"v_pk_add_f32 v[{GA}:{GA+1}], v[{MA}:{MA+1}], v[{MA+2}:{MA+3}]\nv_pk_add_f32 v[{GA+2}:{GA+3}], v[{MA+4}:{MA+5}], v[{MA+6}:{MA+7}]")
        a(f"v_pk_add_f32 v[{GA}:{GA+1}], v[{GA}:{GA+1}], v[{GA+2}:{GA+3}]\nv_add_f32 v{GA}, v{GA}, v{GA+1}")

    def xload(self, ln): return f"global_load_dwordx4 v[{PX}:{PX+3}], {vXALL}, {sSM} offset:{XALL[ln]} sc1"

    def rs_gather(self, name, base, n=8, post=None, par=None, ln=None, xafter=None):
        z, t, y = GA, TMP, PL
        done = self.lab(name + "_done")
        def reduce(off, test):
            a = self.a
            a(f"s_waitcnt vmcnt({off + n - 4})\nv_pk_add_f32 v[{z}:{z+1}], v[{y}:{y+1}], v[{y+2}:{y+3}]\ns_waitcnt vmcnt({off})")
            if n == 8: a(f"v_pk_add_f32 v[{z+2}:{z+3}], v[{y+4}:{y+5}], v[{y+6}:{y+7}]\nv_pk_add_f32 v[{z}:{z+1}], v[{z}:{z+1}], v[{z+2}:{z+3}]")
            else: a(f"v_pk_add_f32 v[{z}:{z+1}], v[{z}:{z+1}], v[{y+4}:{y+5}]\nv_add_f32 v{z}, v{z}, v{y+6}")
            a(f"v_add_f32 v{z}, v{z}, v{z+1}\nv_mov_b32 v{t}, v{z}")
            if test: a(f"v_cmp_u_f32 vcc, v{z}, v{z}")
            a(f"v_permlane32_swap_b32 v{z}, v{t}\nv_add_f32 v{z}, v{z}, v{t}\nv_mov_b32 v{t}, v{z}")
        def over(fb, ov, top):
            fb(f"{ov}:\ns_sub_u32 {sCN2}, {sCN2}, 1\ns_cbranch_scc1 L_exit\ns_mov_b32 {sCNT}, {self.c.limit}\ns_waitcnt vmcnt(0)")
            self.umax(t, range(y, y + n))
            fb(f"v_cmp_eq_u32 vcc, -1, v{t}\ns_cbranch_vccnz {top}")
            reduce(0, False)
            fb(f"s_branch {done}")
        loads = self.rs_loads(base, PL, n)
        a = self.a
        a(f"s_mov_b32 {sCN2}, {self.c.outer}")
        if ln is None:
            self.poll(name, loads, lambda off: reduce(off, True), par or self.c.rs, bound=self.c.limit, over=over)
        else:
            xl = self.xload(ln)
            xchk = f"v_max3_u32 v{TMP}, v{PX}, v{PX+1}, v{PX+2}\nv_max_u32 v{TMP}, v{TMP}, v{PX+3}\nv_cmp_eq_u32 vcc, -1, v{TMP}"
            xr, xok, top, ov = self.lab("xretry"), self.lab("xok"), self.lab(name), self.lab(name + "_over")
            delay, gap, K = self.c.xq if name == "q" else self.c.xg
            a(f"s_mov_b32 {sCNT}, {self.c.limit * self.c.outer}")
            self.stats_pre()
            self.nops(delay)
            for j in range(K):
                a(xl)
                if j < K - 1: self.nops(gap)
            pre = self.c.rpre
            if pre: self.nops(pre - 1); a(loads)
            cnts = [cn + (n if pre else 0) for cn in ([K + xafter] if xafter is not None else []) + list(range(K - 1, -1, -1))]
            for j, cn in enumerate(cnts):
                a(f"s_waitcnt vmcnt({cn})\n{xchk}")
                a(f"s_cbranch_vccz {xok}" if j < len(cnts) - 1 else f"s_cbranch_vccnz {xr}")
            a(f"{xok}:")
            self.tail.append(f"{xr}:\n{xl}\ns_nop 15\n{xr}_b:\n{xl}\ns_sub_u32 {sCNT}, {sCNT}, 1\ns_cbranch_scc1 L_exit\ns_waitcnt vmcnt(1)\n{xchk}\ns_cbranch_vccnz {xr}_b\ns_branch {xok}\n")
            if self.c.stamp_layer == 1 and ln >= 1:
                self.stamp(8 if ln == 1 else 3)
                if self.c.debug: a(f"s_sub_u32 s72, {self.c.limit * self.c.outer + 1000}, {sCNT}\ns_add_u32 s72, s72, s70")
            self.stats(PX, loads.split("\n") * self.c.nfill)
            a(f"s_mov_b32 {sCNT}, {self.c.limit}\nv_mul_f32 {vNM}, {vMU}, {vRS}\nv_mul_f32_e64 {vNM}, -{vNM}, {vCS}")
            if self.c.stamp_layer == 1 and ln >= 1: self.stamp(9 if ln == 1 else 4)
            a(f"{top}_c:")
            reduce(n * self.c.lnoff, True)
            a(f"s_cbranch_vccnz {top}")
            self.tail.append(f"{top}:\n{loads}\ns_sub_u32 {sCNT}, {sCNT}, 1\ns_cbranch_scc0 {top}_c\ns_branch {ov}\n")
            self.ool(lambda fb: over(fb, ov, top))
        a(f"{done}:\nv_permlane16_swap_b32 v{z}, v{t}\nv_add_f32 v{z}, v{z}, v{t}")

    def pack(self, r):
        self.a(f"v_mov_b32_dpp v{TMP}, v{r} quad_perm:[1,0,3,2] {DPP}\nv_cvt_pk_bf16_f32 {vPR}, v{r}, v{TMP}")

    def perm_pair(self, W, base, kp):
        W.append([])
        for u in range(4):
            lo = base + 8 * kp + u; hi = lo + 4; s = self.spare
            self.a(f"v_perm_b32 v{s}, v{hi}, v{lo}, {sLO}\nv_perm_b32 v{hi}, v{hi}, v{lo}, {sHI}")
            W[kp] += [s, hi]; self.spare = lo

    def zero_acc(self):
        for j in range(0, 8, 2): self.a(f"v_mov_b64 v[{ACC+j}:{ACC+j+1}], 0")

    def dots(self, W, kp, src=None, lane=None):
        for j in range(8):
            if src: self.a(f"v_dot2c_f32_bf16 v{ACC+j}, {src}, v{W[kp][j]}")
            else: self.a(f"v_dot2c_f32_bf16_dpp v{ACC+j}, {vPR}, v{W[kp][j]} row_newbcast:{2*kp if lane is None else lane} {DPP}")

    def gemv(self, W, base, sc, lanes=None, addr=(vPUB, vPUB2), mask=None, hook=None):
        a = self.a
        n = len(W)
        lane = lambda kp: 2 * kp if lanes is None else lanes[kp]
        if self.c.sgemv:
            rl = [f"v_readlane_b32 s{4+kp}, {vPR}, {lane(kp)}" for kp in range(n)]
            for _ in range(3): a(rl.pop(0))
            def d(kp, j):
                a(f"v_dot2c_f32_bf16 v{ACC+j}, s{4+kp}, v{W[kp][j]}")
                if rl and j == 1: a(rl.pop(0))
        else:
            d = lambda kp, j: a(f"v_dot2c_f32_bf16_dpp v{ACC+j}, {vPR}, v{W[kp][j]} row_newbcast:{lane(kp)} {DPP}")
        def store(t):
            if mask: a(f"s_mov_b64 exec, {mask}")
            a(f"global_store_dwordx4 {addr[t]}, v[{ACC+4*t}:{ACC+4*t+3}], {base}{sc}")
            if mask: a("s_mov_b64 exec, -1")
        for kp in range(n):
            for j in range(4): d(kp, j)
        for kp in range(n):
            for j in range(4, 8): d(kp, j)
            if kp == 0: store(0)
            if hook and kp == hook[0]: a(hook[1])
        store(1)

    def tagged_publish(self, base, sc, mask=None):
        a = self.a
        for j in range(8): a(f"v_bfi_b32 v{ACC+j}, {vMASK}, {sT}, v{ACC+j}")
        if mask: a(f"s_mov_b64 exec, {mask}")
        a(f"global_store_dwordx4 {vPUB}, v[{ACC}:{ACC+3}], {base}{sc}\nglobal_store_dwordx4 {vPUB2}, v[{ACC+4}:{ACC+7}], {base}{sc}")
        if mask: a("s_mov_b64 exec, -1")

    def clear_inbox(self, base, sc):
        self.a(f"global_store_dwordx4 {vINX}, v[{NEG}:{NEG+3}], {base}{sc}\nglobal_store_dwordx4 {vINX}, v[{NEG}:{NEG+3}], {base} offset:1024{sc}")

    def stats_pre(self):
        p, q = TMP + 4, TMP + 5
        self.a(f"v_mov_b64 v[{p}:{q}], 0\nv_mov_b32 v{q+1}, 0x{f2u(1/512.):08x}\nv_mov_b32 v{q+2}, 0x{f2u(1e-5):08x}")

    def stats(self, x, fill=()):
        a = self.a
        p, q = TMP + 4, TMP + 5
        fill = list(fill)
        def gap(n):
            for _ in range(n):
                if fill: a(fill.pop(0))
        for i in range(4): a(f"v_dot2c_f32_bf16 v{p}, {sONE}, v{x+i}\nv_dot2c_f32_bf16 v{q}, v{x+i}, v{x+i}")
        gap(3)
        a(f"v_permlane32_swap_b32 v{p}, v{q}\nv_add_f32 v{p}, v{p}, v{q}\nv_mov_b32 v{q}, v{p}")
        gap(2)
        a(f"v_permlane16_swap_b32 v{p}, v{q}\nv_add_f32 v{p}, v{p}, v{q}")
        for r in (8, 4, 2, 1):
            gap(2); a(f"v_add_f32_dpp v{p}, v{p}, v{p} row_ror:{r} {DPP}")
        gap(1)
        a(f"v_readlane_b32 s30, v{p}, 0\nv_readlane_b32 s31, v{p}, 32")
        gap(1)
        a(f"v_mul_f32 {vMU}, s30, v{q+1}\nv_fma_f32 {vRS}, s31, v{q+1}, v{q+2}")
        a(f"v_fma_f32 {vRS}, -{vMU}, {vMU}, {vRS}\nv_max_f32 {vRS}, {vRS}, v{q+2}\nv_rsq_f32 {vRS}, {vRS}")
        gap(len(fill))

    def pair_store(self, base, off, sc):
        self.a(f"s_mov_b64 exec, 0x5555\nglobal_store_dword {vPAIR}, {vPR}, {base} offset:{off}{sc}\ns_mov_b64 exec, -1")

    def lds_weights(self, W, base, vaddr, off, npair, use=None):
        a = self.a
        rd = lambda k: a(f"ds_read_b128 v[{base+4*k}:{base+4*k+3}], {vaddr} offset:{off+1024*k}")
        for k in range(min(8, 2 * npair)): rd(k)
        for kp in range(npair):
            if 2 * kp + 8 < 2 * npair:
                rd(2 * kp + 8); rd(2 * kp + 9); out = 8
            else: out = 2 * npair - 2 * kp - 2
            a(f"s_waitcnt lgkmcnt({out})")
            self.perm_pair(W, base, kp)
            if use: use(kp)

    def prologue(self):
        a = self.a; c = self.c
        if 'empty' in c.exp: a("s_endpgm")
        if c.debug: a("s_memtime s[70:71]\ns_memrealtime s[68:69]")
        a(f"""s_load_dwordx16 s[4:19], s[0:1], 0
s_load_dwordx8 s[20:27], s[0:1], 64
s_cmpk_ge_u32 s2, 0x100
s_cbranch_scc1 L_exit
v_lshrrev_b32 v1, 6, v0
v_and_b32 v0, 63, v0
s_lshr_b32 s29, s2, 3
v_readfirstlane_b32 s33, v1
s_and_b32 s28, s2, 7
s_and_b32 s34, s29, 15
s_lshr_b32 s35, s29, 4
s_lshl_b32 s60, s34, 5
s_lshl2_add_u32 s60, s35, s60
v_lshlrev_b32 v15, 4, v0
s_cmp_ge_u32 s33, 4
s_cbranch_scc1 L_C0
s_lshl3_add_u32 s32, s33, s60
s_lshl3_add_u32 s30, s32, s28
s_lshl_b32 s30, s30, 10
v_add_u32 v1, s30, v15
s_lshl_b32 s36, s33, 12
s_add_u32 m0, s36, {L_WQ}
s_movk_i32 s3, 0x2000
s_waitcnt lgkmcnt(0)""")
        for i in range(4):
            a(f"global_load_lds_dwordx4 v1, {sWQ}{c.nt}")
            if i < 3: a("s_addk_i32 m0, 0x400\nv_add_u32 v1, s3, v1")
        a(f"""s_branch L_S1
L_C0:
s_cmp_eq_u32 s33, 4
s_cbranch_scc1 L_X0
s_getpc_b64 s[30:31]
s_mulk_i32 s29, {128 * c.pf}
v_lshl_add_u32 v2, v0, 7, s29
s_mov_b64 exec, {(1 << c.pf) - 1}
global_load_dword {vJ}, v2, s[30:31]{c.pfpol}
s_branch L_C
L_X0:
{self.pf0()}s_waitcnt lgkmcnt(0)
global_load_dwordx4 v[32:35], v15, {sX}{c.xpol}
s_branch L_C
L_early_end:""")

    def pf0(self):
        c = self.c
        if not c.pf0: return "s_setprio 3\n"
        return f"s_getpc_b64 s[30:31]\nv_lshlrev_b32 v2, 7, v0\ns_mov_b64 exec, {(1 << c.pf0) - 1 if c.pf0 <= 6 else hex((1 << c.pf0) - 1)}\nglobal_load_dword {vJ}, v2, s[30:31]{c.pf0pol}\ns_mov_b64 exec, -1\n"

    def consts(self):
        self.a("s_mov_b32 s62, 0x05040100\ns_mov_b32 s63, 0x07060302\ns_mov_b32 s64, 0x3f803f80")

    KF, VR, VF, Q, D, P, ON, O, OL, X, T = 16, 48, 80, 112, 128, 136, 140, 144, 176, 184, 192

    def s_stream(self):
        a = self.a; c = self.c
        KF, VR, VF, ON, T = self.KF, self.VR, self.VF, self.ON, self.T
        n = [4]; landed = [-1]
        wins = c.wins
        def signal(off):
            a(f"v_mov_b32 v{T}, 1\ns_mov_b64 s[38:39], exec\ns_mov_b64 exec, 1\nds_add_u32 v{T+12}, v{T} offset:{off}\ns_mov_b64 exec, s[38:39]")
        def throttle():
            w = wins[n[0] - 4]
            if n[0] - w > landed[0]:
                if landed[0] < 3 <= n[0] - w:
                    a(f"s_waitcnt vmcnt({n[0] - 4})")
                    if 'noq' in c.exp: self.stamp(14)
                    a("s_barrier"); self.stamp(1)
                    landed[0] = 3
                if n[0] - w > landed[0]: a(f"s_waitcnt vmcnt({w-1})"); landed[0] = n[0] - w
            if 'noq' in c.exp and n[0] in (4, 8, 12, 16, 20): self.stamp({4: 9, 8: 10, 12: 11, 16: 12, 20: 13}[n[0]])
            if n[0] == c.wo_at: signal(L_CNT)
            n[0] += 1
        a("""L_S1:
s_lshl_b32 s30, s28, 24
s_lshl_b32 s31, s29, 15
s_add_u32 s30, s30, s31
s_add_u32 s30, s30, 0xF00000
s_add_u32 s6, s6, s30
s_addc_u32 s7, s7, 0
s_lshl_b32 s40, s33, 13
s_mov_b32 m0, s40
v_and_b32 v6, 15, v0
v_lshrrev_b32 v7, 4, v0
v_xor_b32 v8, v6, v7
v_lshlrev_b32 v8, 4, v8
v_lshl_add_u32 v9, v7, 8, v8
v_add_u32 v9, s40, v9""")
        if c.rot: a("s_lshl_b32 s37, s29, 2\ns_and_b32 s31, s28, 3\ns_or_b32 s37, s37, s31\ns_lshl_b32 s37, s37, 8\nv_xor_b32 v9, s37, v9")
        else: a("s_mov_b32 s37, 0")
        for i in range(8):
            if i: a(f"s_addk_i32 m0, 0x400\nv_xor_b32 v1, {64*(i&3) + 1024*i}, v9")
            throttle()
            a(f"global_load_lds_dwordx4 {'v1' if i else 'v9'}, {sK}{c.nt}")
            if i == 3:
                a("s_add_u32 s8, s8, s30\ns_addc_u32 s9, s9, 0")
                self.consts()
                a("v_lshlrev_b32 v10, 4, v6\nv_lshl_add_u32 v10, v7, 10, v10\nv_add_u32 v10, s40, v10\nv_xor_b32 v10, s37, v10")
                a("v_lshl_add_u32 v11, v6, 8, v8\nv_add_u32 v11, s40, v11")
                for j in range(1, 4): a(f"v_xor_b32 v{11+j}, {64*j}, v11")
                a("v_lshrrev_b32 v2, 2, v6\nv_lshlrev_b32 v5, 4, v2\nv_lshlrev_b32 v2, 8, v2\nv_lshl_add_u32 v2, v7, 4, v2")
                a(f"s_lshl_b32 s31, s33, 2\ns_add_u32 s31, s31, {L_ST}\nv_add_u32 v5, s31, v5")
                a(f"v_lshlrev_b32 v3, 4, v7\nv_add_u32 v3, s31, v3")
                a(f"s_lshl_b32 s31, s33, 11\ns_add_u32 s31, s31, {L_O}\nv_lshlrev_b32 v4, 2, v0\nv_add_u32 v4, s31, v4")
            if i == 4:
                for k in range(4): a(f"v_mov_b32 v{ON+k}, {sONE}")
                cs = f2u(128**-0.5*1.4426950408889634)
                a(f"v_mov_b32 v{T+6}, 0x{cs:08x}\nv_mov_b32 v{T+7}, 0x{cs:08x}\nv_mov_b32 v{T+5}, 0x{f2u(c.bound):08x}\nv_mov_b32 v{T+12}, 0")
                a(f"v_add_u32 v2, {L_Q}, v2\nv_lshrrev_b32 v{T}, 2, v6")
                for j in range(4): a(f"v_add_u32 v{T+1}, {j}, v{T}\nv_and_b32 v{T+1}, 3, v{T+1}\nv_lshl_add_u32 v{T+8+j}, v{T+1}, 6, v2")
            if i == 5:
                a("""s_mul_i32 s30, s32, 3584
s_mul_i32 s31, s28, 448
s_add_u32 s30, s30, s31
v_and_b32 v184, 31, v0
v_lshl_add_u32 v184, v184, 4, s30
v_cmp_gt_u32 vcc, 32, v0
v_mov_b32 v186, s18
v_mov_b32 v187, s19
v_mov_b32 v188, s16
v_mov_b32 v189, s17
v_cndmask_b32 v186, v186, v188, vcc
v_cndmask_b32 v187, v187, v189, vcc
v_mov_b32 v185, 0
s_mov_b32 s14, 3584
s_mov_b32 s15, 0
v_lshl_add_u64 v[184:185], v[184:185], 0, v[186:187]
s_min_u32 s30, s34, 13
s_lshl_b32 s30, s30, 4
s_mul_i32 s31, s28, 224
s_add_u32 s30, s30, s31
s_lshl2_add_u32 s30, s35, s30
s_lshr_b32 s31, s33, 1
s_lshl3_add_u32 s30, s31, s30
s_and_b32 s31, s33, 1
s_lshl1_add_u32 s30, s31, s30
s_lshl_b32 s30, s30, 10
v_add_u32 v190, s30, v15""")
        for i in range(8):
            if i: a(f"v_xor_b32 v1, {(i>>2)*4096+(i&3)*256}, v10")
            throttle()
            a(f"global_load_dwordx4 v[{VR+4*i}:{VR+4*i+3}], {'v1' if i else 'v10'}, {sV}{c.nt}")
        kread = [False]; vdone = [0]
        def work():
            if landed[0] >= 11 and not kread[0]:
                kread[0] = True
                for t in range(2):
                    for j in range(4): a(f"ds_read_b128 v[{KF+16*t+4*j}:{KF+16*t+4*j+3}], v{11+j} offset:{4096*t}")
            while vdone[0] < 4 and landed[0] >= 13 + 2 * vdone[0]:
                self.vperm(vdone[0]); vdone[0] += 1
        work()
        a(f"s_add_u32 m0, s36, {L_GU}")
        for i in range(4):
            throttle()
            a(f"s_mov_b32 exec_lo, 0x0fffffff\ns_mov_b32 exec_hi, 0x0fffffff\nglobal_load_lds_dwordx4 v[184:185], off{c.nt}\ns_mov_b64 exec, -1")
            if i < 3: a("s_addk_i32 m0, 0x400\nv_lshl_add_u64 v[184:185], v[184:185], 0, s[14:15]")
            else: a(f"s_lshl_b32 s31, s33, 11\ns_add_u32 m0, s31, {L_WD}")
            work()
        for i in range(2):
            throttle()
            a(f"global_load_lds_dwordx4 v190, {sWD} offset:{1024*i}{c.nt}")
            work()
        if c.wo_at >= 26: signal(L_CNT)
        assert kread[0]
        self.vdone = vdone[0]; self.signal = signal
        self.stamp(2)
        a("s_branch L_S2")

    def vperm(self, u):
        for up in range(4):
            for b in range(2):
                self.a(f"v_perm_b32 v{self.VF+4*(2*up+b)+u}, v{self.VR+4*(2*u+1)+up}, v{self.VR+4*(2*u)+up}, {sHI if b else sLO}")

    def s_layers(self):
        a = self.a; c = self.c
        KF, VR, VF, Q, D, P, ON, O, OL, X, T = self.KF, self.VR, self.VF, self.Q, self.D, self.P, self.ON, self.O, self.OL, self.X, self.T
        a("L_S2:")
        for li in range(2):
            if li and any(f"stop{i}" in c.exp for i in range(3)): a("s_endpgm")
            if li: a("s_barrier\n" * 4)
            a(f"v_mov_b32 v{T+4}, 0\ns_waitcnt lgkmcnt(0)\ns_barrier")
            self.stamp(3 + 6 * li)
            if 'noq' in c.exp and li == 0:
                a("s_waitcnt vmcnt(0)"); self.stamp(4)
                l = self.lab("x"); a(f"s_cmp_eq_u32 s33, 0\ns_cbranch_scc1 {l}\ns_endpgm\n{l}:"); self.end(2)
            for j in range(4): a(f"ds_read_b128 v[{Q+4*j}:{Q+4*j+3}], v{T+8+j}")
            a(f"ds_write_b32 v5, v{T+4}")
            mf = lambda t, j: a(f"v_mfma_f32_16x16x32_bf16 v[{D+4*t}:{D+4*t+3}], v[{KF+16*t+4*j}:{KF+16*t+4*j+3}], v[{Q+4*j}:{Q+4*j+3}], " + (f"v[{D+4*t}:{D+4*t+3}]" if j else "0"))
            mul = lambda i: a(f"v_pk_mul_f32 v[{X+i}:{X+i+1}], v[{D+i}:{D+i+1}], v[{T+6}:{T+7}]")
            if c.qkov:
                for j in range(4):
                    a(f"s_waitcnt lgkmcnt({4 - j})"); mf(0, j)
                for j in range(4): mf(1, j)
                mul(0); mul(2)
                for i in range(4): a(f"v_exp_f32 v{D+i}, v{X+i}")
                mul(4); mul(6)
                for i in range(4, 8): a(f"v_exp_f32 v{D+i}, v{X+i}")
            else:
                for j in range(4):
                    a(f"s_waitcnt lgkmcnt({4 - j})"); mf(0, j); mf(1, j)
                self.stamp(5 + 6 * li)
                for i in range(0, 8, 2): mul(i)
                for i in range(8): a(f"v_exp_f32 v{D+i}, v{X+i}")
            for u in range(4): a(f"v_cvt_pk_bf16_f32 v{P+u}, v{D+2*u}, v{D+2*u+1}")
            self.stamp(6 + 6 * li)
            if li == 0:
                for u in range(self.vdone, 4):
                    a(f"s_waitcnt vmcnt({12 - 2*u})")
                    self.vperm(u)
                self.stamp(4)
            lfb, lback = self.lab("fallback"), self.lab("pv")
            a(f"{lback}:")
            for e in range(8):
                a(f"v_mfma_f32_16x16x32_bf16 v[{O+4*e}:{O+4*e+3}], v[{P}:{P+3}], v[{VF+4*e}:{VF+4*e+3}], 0")
                if e == 0: a(f"v_max3_f32 v{T}, v{X}, v{X+1}, v{X+2}\nv_max3_f32 v{T+1}, v{X+3}, v{X+4}, v{X+5}")
                if e == 1: a(f"v_max3_f32 v{T}, v{T}, v{X+6}, v{X+7}\nv_max_f32 v{T}, v{T}, v{T+1}")
                if e == 2: a(f"v_cmp_gt_f32 vcc, |v{T}|, v{T+5}")
                if e == 3: a(f"v_mfma_f32_16x16x32_bf16 v[{OL}:{OL+3}], v[{P}:{P+3}], v[{ON}:{ON+3}], 0\ns_cbranch_vccnz {lfb}")
                if e == 5: a(f"ds_write2st64_b32 v4, v{O}, v{O+4} offset0:0 offset1:1")
                if e == 7: a(f"ds_write2st64_b32 v4, v{O+8}, v{O+12} offset0:2 offset1:3\nds_write_b32 v3, v{OL} offset:64")
            for e in range(4, 8, 2): a(f"ds_write2st64_b32 v4, v{O+4*e}, v{O+4*e+4} offset0:{e} offset1:{e+1}")
            a("s_waitcnt lgkmcnt(0)")
            self.stamp(7 + 6 * li)
            a("s_barrier")
            if li == 0:
                a("s_waitcnt vmcnt(0)"); self.signal(L_CN2); a("s_waitcnt lgkmcnt(0)"); self.stamp(8)
            def fbk(fb):
                fb(f"{lfb}:\ns_nop 7")
                self.allred(T, T + 1, "v_max_f32")
                for i in range(8): fb(f"v_sub_f32 v{X+i}, v{X+i}, v{T}")
                for i in range(8): fb(f"v_exp_f32 v{D+i}, v{X+i}\nv_mov_b32 v{X+i}, 0")
                for u in range(4): fb(f"v_cvt_pk_bf16_f32 v{P+u}, v{D+2*u}, v{D+2*u+1}")
                fb(f"ds_write_b32 v5, v{T}\ns_nop 7\ns_branch {lback}")
            self.ool(fbk)
        if c.debug:
            l = self.lab("sdone")
            a(f"s_cmp_eq_u32 s33, 0\ns_cbranch_scc1 {l}\ns_endpgm\n{l}:")
        self.end(2)

    def clear_all(self, sc):
        a = self.a
        a(f"s_mov_b32 exec_hi, 0x00ffffff\nglobal_store_dword {vCLR}, v{NEG}, {sSM} offset:{AGQ[0]}{sc}\ns_mov_b64 exec, -1")
        self.clear_inbox(sB[0], sc)

    def c_pre(self):
        a = self.a; c = self.c
        a(f"""L_C:
s_mov_b64 exec, -1
s_lshr_b32 s29, s2, 3
s_waitcnt lgkmcnt(0)
s_load_dword {sE}, {sWS}, 0
s_mul_i32 s59, s28, {GB_STRIDE}
s_add_u32 s59, s59, {GB_OFF}
v_and_b32 v20, 15, v0
v_lshrrev_b32 v21, 4, v0
v_lshlrev_b32 v22, 2, v0
v_lshlrev_b32 {vXALL}, 4, v0
v_lshrrev_b32 v23, 2, v20
v_and_b32 v24, 3, v0
v_lshl_add_u32 v28, v23, 3, v24
v_add_u32 v28, s60, v28
v_lshlrev_b32 {vPAIR}, 1, v28
v_mov_b64 v[76:77], 0
s_lshl_b32 s30, s29, 11
v_add_u32 {vINX}, s30, {vXALL}
v_add_u32 {vIN}, s30, v22
v_mov_b64 v[{NEG}:{NEG+1}], -1
v_mov_b64 v[{NEG+2}:{NEG+3}], -1
s_cmp_eq_u32 s33, 4
s_cbranch_scc0 L_Ypre""")
        a(f"""v_and_b32 v31, 7, v0
v_lshrrev_b32 v25, 1, v31
v_and_b32 v26, 1, v0
v_lshlrev_b32 v25, 4, v25
v_lshl_add_u32 v25, v26, 2, v25
s_lshl_b32 s31, s60, 1
v_add_u32 v25, s31, v25
s_and_b32 s31, s29, 3
s_lshl_b32 s31, s31, 5
s_lshr_b32 s32, s29, 2
s_lshl_b32 s32, s32, 2
s_add_u32 s31, s31, s32
v_lshl_add_u32 v27, v31, 7, s31
v_cmp_gt_u32 vcc, 40, v0
v_lshrrev_b32 {vCLR}, 3, v0
v_lshlrev_b32 {vCLR}, 10, {vCLR}
v_cndmask_b32 v25, v27, v25, vcc
v_add_u32 {vCLR}, {vCLR}, v25
v_and_b32 v25, 6, v0
v_lshlrev_b32 v25, 3, v25
v_lshl_add_u32 v25, v26, 2, v25
s_lshl_b32 s31, s60, 1
v_add_u32 {vPAIR8}, s31, v25
global_load_dword {vX1}, {vPAIR8}, {sX}{c.xpol}""")
        assert OSTAT[0] - AGQ[0] == 5 * 1024 and OSTAT[1] - OSTAT[0] == 1024
        self.bases()
        self.clear_all("")
        if c.touch:
            a(f"v_lshlrev_b32 v29, 16, v21\nv_lshl_add_u32 v29, v20, 7, v29\ns_lshl_b32 s30, s29, 11\nv_add_u32 v29, s30, v29\ns_mov_b32 exec_hi, 0xffff\nglobal_load_dword {vJ}, v29, {sB[0]}{c.tpol}\ns_mov_b64 exec, -1")
            a(f"s_lshl_b32 s30, s29, 8\nv_lshl_add_u32 v29, v0, 7, s30\ns_mov_b64 exec, 3\nglobal_load_dword {vJ}, v29, {sSM} offset:-4096{c.tpol}\ns_mov_b64 exec, -1")
        a(f"s_branch L_Cjoin\nL_Ypre:\nv_mov_b32 {vCLR}, 0\nv_mov_b32 {vPAIR8}, 0")
        if c.tlb:
            nl = c.tlb
            a(f"""s_lshl_b32 s30, s28, 24
s_lshl_b32 s31, s29, 15
s_add_u32 s30, s30, s31
s_add_u32 s30, s30, 0xF00000
v_lshl_add_u32 v25, v0, 13, s30
s_mul_i32 s30, s60, 3584
s_mul_i32 s31, s28, 448
s_add_u32 s30, s30, s31
v_mul_u32_u24 v26, 28672, v0
v_add_u32 v26, s30, v26
s_min_u32 s30, s34, 13
s_lshl_b32 s30, s30, 4
s_mul_i32 s31, s28, 224
s_add_u32 s30, s30, s31
s_lshl_b32 s30, s30, 10
v_lshl_add_u32 v27, v0, 12, s30
s_and_b32 s31, s29, 3
s_lshl_b32 s31, s31, 7
s_lshr_b32 s32, s29, 2
s_add_u32 s31, s31, s32
s_lshl_b32 s32, s28, 9
s_add_u32 s31, s31, s32
s_lshl_b32 s31, s31, 10
v_lshl_add_u32 v29, v0, 15, s31
s_mov_b64 exec, {(1 << nl) - 1}
global_load_dword {vJ}, v26, {sWG} nt
global_load_dword {vJ}, v26, {sWU} nt
global_load_dword {vJ}, v27, {sWD} nt
global_load_dword {vJ}, v25, {sK} nt
global_load_dword {vJ}, v25, {sV} nt
global_load_dword {vJ}, v29, {sWO} nt
s_mov_b64 exec, -1""")
        a(f"global_load_ushort {vJ}, {vPAIR}, {sOUT}")
        self.bases()
        a("L_Cjoin:")
        self.consts()
        a(f"""s_getreg_b32 s61, hwreg(HW_REG_XCC_ID, 0, 4)
v_mov_b32 {vMASK}, 0xff
s_lshl_b32 s31, s29, 10
v_lshrrev_b32 {vGIN}, 3, v0
v_lshlrev_b32 {vGIN}, 7, {vGIN}
v_and_b32 v25, 7, v0
v_lshl_add_u32 {vGIN}, v25, 3, {vGIN}
v_add_u32 {vGIN}, s31, {vGIN}
s_lshl_b32 s32, s28, 7
s_add_u32 s31, s31, s32
v_lshl_add_u32 {vGPUB}, v20, 2, s31
v_lshlrev_b32 {vAQ}, 2, v21
v_sub_u32 {vAQ}, v0, {vAQ}
v_and_b32 {vAQ}, 15, {vAQ}
v_lshl_add_u32 {vAQ}, v21, 4, {vAQ}
v_lshlrev_b32 {vAQ}, 4, {vAQ}
v_lshrrev_b32 v25, 2, v0
v_lshlrev_b32 v25, 11, v25
v_lshl_add_u32 v25, v24, 4, v25
s_lshl_b32 s31, s29, 6
v_add_u32 {vPUB}, s31, v25
v_add_u32 {vPUB2}, 0x8000, {vPUB}
s_mul_i32 s31, s35, 14
s_add_u32 s31, s31, s34
s_lshl_b32 s31, s31, 6
v_add_u32 {vDN}, s31, v25
v_add_u32 {vDN2}, 0x8000, {vDN}
s_and_b32 s31, s29, 3
s_lshl_b32 s32, s31, 8
v_lshl_add_u32 {vOSI}, v21, 5, s32
s_lshl_b32 s31, s31, 5
s_lshr_b32 s32, s29, 2
s_lshl_b32 s32, s32, 2
s_add_u32 s31, s31, s32
v_and_b32 v26, 1, v0
v_and_b32 v27, 3, v23
v_lshlrev_b32 {vOSP}, 8, v27
v_lshl_add_u32 {vOSP}, v26, 7, {vOSP}
v_add_u32 {vOSP}, s31, {vOSP}
s_sub_u32 s31, s33, 4
s_lshl_b32 s31, s31, 10
s_add_u32 s31, s31, {L_O}
v_add_u32 {vLDS}, s31, {vXALL}
v_lshlrev_b32 {vLST}, 4, v27
v_add_u32 {vLST}, {L_ST}, {vLST}
s_mov_b32 s66, 0xaaaaaaaa
s_mov_b32 s67, 0xaaaaaaaa
s_mov_b32 s14, -1
s_mov_b32 s15, 0x00ffffff
s_and_b32 s31, s29, 3
s_lshl_b32 s31, s31, 7
s_lshr_b32 s32, s29, 2
s_add_u32 s31, s31, s32
s_lshl_b32 s32, s28, 9
s_add_u32 s31, s31, s32
s_lshl_b32 s31, s31, 10
v_add_u32 {vWO}, s31, {vXALL}
v_and_b32 {vXC}, 31, v0
v_lshlrev_b32 {vXC}, 2, {vXC}
s_cmp_eq_u32 s33, 4
s_cbranch_scc0 L_Y""")

    def lds_wait(self, off, n):
        l = self.lab("cnt")
        self.a(f"{l}:\nds_read_b32 v{TMP+1}, {vZERO} offset:{off}\ns_sub_u32 {sCN2}, {sCN2}, 1\ns_cbranch_scc1 L_exit\ns_waitcnt lgkmcnt(0)")
        self.a(f"v_cmp_gt_u32 vcc, {n}, v{TMP+1}\ns_cbranch_vccnz {l}")

    def prewrite(self, val):
        self.a(f"v_lshrrev_b32 v{TMP}, 4, v0\nv_lshlrev_b32 v{TMP}, 15, v{TMP}\nv_add_u32 v{TMP}, v{TMP}, {vGPUB}\nv_mov_b32 v{TMP+1}, {val}")
        self.a(f"global_atomic_swap v{TMP}, v{TMP+1}, {sG[0]}")

    def bases(self):
        a = self.a
        a("s_add_u32 s36, s26, s59\ns_addc_u32 s37, s27, 0")
        a(f"s_add_u32 s46, s36, {SM}\ns_addc_u32 s47, s37, 0")
        for i in range(1, 5): a(f"s_add_u32 s{36+2*i}, s36, {0x10000*i}\ns_addc_u32 s{37+2*i}, s37, 0")
        for k in range(4): a(f"s_add_u32 s{48+2*k}, s26, {G_OFF+G_STRIDE*k}\ns_addc_u32 s{49+2*k}, s27, 0")

    def combine(self, li, base, half, sc):
        a = self.a
        gen_c, back_c = self.lab("cgen"), self.lab("cback")
        addr = vPUB2 if half else vPUB
        a(f"ds_read_b128 v[{T2}:{T2+3}], {vLST}")
        if not half: a(f"ds_read_b128 v[{T2+4}:{T2+7}], {vLST} offset:64")
        for w in range(4): a(f"ds_read_b128 v[{TMP+4*w}:{TMP+4*w+3}], {vLDS} offset:{2048*w}")
        a(f"s_waitcnt lgkmcnt(4)\nv_or3_b32 v{GA+2}, v{T2}, v{T2+1}, v{T2+2}\nv_or_b32 v{GA+2}, v{GA+2}, v{T2+3}\nv_cmp_ne_u32 vcc, 0, v{GA+2}")
        lst = f"global_store_dword {vOSP}, v{GA}, {sSM} offset:{OSTAT[li]}{sc}\ns_mov_b64 exec, -1"
        if not half: a(f"v_pk_add_f32 v[{GA}:{GA+1}], v[{T2+4}:{T2+5}], v[{T2+6}:{T2+7}]\nv_add_f32 v{GA}, v{GA}, v{GA+1}")
        a(f"s_waitcnt lgkmcnt(2)\nv_pk_add_f32 v[{ACC}:{ACC+1}], v[{TMP}:{TMP+1}], v[{TMP+4}:{TMP+5}]\ns_cbranch_vccnz {gen_c}")
        if not half: a(f"s_mov_b64 exec, 0x2222\n{lst}")
        a(f"v_pk_add_f32 v[{ACC+2}:{ACC+3}], v[{TMP+2}:{TMP+3}], v[{TMP+6}:{TMP+7}]\ns_waitcnt lgkmcnt(1)")
        a(f"v_pk_add_f32 v[{ACC}:{ACC+1}], v[{ACC}:{ACC+1}], v[{TMP+8}:{TMP+9}]\nv_pk_add_f32 v[{ACC+2}:{ACC+3}], v[{ACC+2}:{ACC+3}], v[{TMP+10}:{TMP+11}]\ns_waitcnt lgkmcnt(0)")
        a(f"v_pk_add_f32 v[{ACC}:{ACC+1}], v[{ACC}:{ACC+1}], v[{TMP+12}:{TMP+13}]\nv_pk_add_f32 v[{ACC+2}:{ACC+3}], v[{ACC+2}:{ACC+3}], v[{TMP+14}:{TMP+15}]")
        a(f"{back_c}:\nglobal_store_dwordx4 {addr}, v[{ACC}:{ACC+3}], {base}{sc}")
        def cgen(fb):
            fb(f"{gen_c}:\ns_waitcnt lgkmcnt(0)")
            fb(f"v_max3_f32 v{GA}, v{T2}, v{T2+1}, v{T2+2}\nv_max_f32 v{GA}, v{GA}, v{T2+3}")
            for w in range(4): fb(f"v_sub_f32 v{T2+w}, v{T2+w}, v{GA}")
            for w in range(4): fb(f"v_exp_f32 v{T2+w}, v{T2+w}")
            for w in range(4):
                for j in range(4):
                    fb(f"v_mul_f32 v{ACC+j}, v{T2}, v{TMP+j}" if w == 0 else f"v_fmac_f32 v{ACC+j}, v{T2+w}, v{TMP+4*w+j}")
            if not half:
                fb(f"v_mul_f32 v{GA+1}, v{T2}, v{T2+4}")
                for w in range(1, 4): fb(f"v_fmac_f32 v{GA+1}, v{T2+w}, v{T2+4+w}")
                fb(f"v_or_b32 v{GA+1}, 0x80000000, v{GA+1}\nv_cndmask_b32 v{GA}, v{GA}, v{GA+1}, {sODD}\ns_mov_b64 exec, 0x3333\n{lst}")
            fb(f"s_nop 1\ns_branch {back_c}")
        self.ool(cgen)

    def colsum_gather(self, base, issue, wait=True):
        loads = self.rs_loads(base, PC)
        if issue:
            self.a(loads); return
        a = self.a
        top, chk = self.lab("cs"), self.lab("cschk")
        self.tag(1)
        a(f"s_mov_b32 {sCNT}, {self.c.limit * self.c.outer}")
        if wait: a("s_waitcnt vmcnt(0)")
        a(f"{chk}:")
        self.tagged_sum(PC)
        a(f"s_cbranch_vccnz {top}")
        self.tail.append(f"{top}:\n{loads}\ns_waitcnt vmcnt(0)\ns_sub_u32 {sCNT}, {sCNT}, 1\ns_cbranch_scc0 {chk}\ns_endpgm\n")
        self.allred(GA, TMP)
        a(f"v_mov_b32 {vCS}, v{GA}")

    def x_head(self):
        a = self.a
        nt3 = 2 * int(bool(self.c.touch)); pw = int(self.c.prew == 1)
        self.zero_acc()
        if 'noq' in self.c.exp: self.stamp(5)
        a(f"v_add_u32 v{T2}, {L_WQ}, {vXALL}\ns_waitcnt lgkmcnt(0)\ns_barrier")
        self.stamp(1)
        if 'noq' in self.c.exp:
            a("s_barrier"); self.end(0)
        self.WQ = []
        self.lds_weights(self.WQ, WA, f"v{T2}", 0, 8)
        if pw: self.prewrite(0)
        a(f"s_waitcnt vmcnt({3 + nt3 + pw})")
        self.stats_pre(); self.stats(32)
        a(f"v_lshlrev_b32 {vX}, 16, {vX1}\nv_and_b32 {vX1}, 0xffff0000, {vX1}\nv_sub_f32 v{GA}, {vX}, {vMU}\nv_sub_f32 v{GA+1}, {vX1}, {vMU}")
        a(f"v_cvt_pk_bf16_f32 {vPR}, v{GA}, v{GA+1}")
        self.tag(1)
        for kp in range(8): self.dots(self.WQ, kp, lane=kp)
        self.xspare = self.spare
        a(f"s_waitcnt vmcnt({nt3 + pw})\ns_setprio 0")
        self.stamp(2)

    def x_program(self, slow):
        a = self.a; c = self.c
        sc = " sc1" if slow else ""
        self.spare = self.xspare
        if slow:
            self.clear_all(sc)
            a("s_waitcnt vmcnt(0)")
            self.zero_acc()
            for kp in range(8): self.dots(self.WQ, kp, lane=kp)
        self.tagged_publish(sB[1], sc)
        a(f"s_add_u32 s3, {sE}, 1\ns_lshl_b32 s3, s3, 4\ns_add_u32 s32, s3, 16\ns_or_b32 s3, s3, {sXCC}\ns_add_u32 s24, s3, 16")
        def xword():
            a(f"v_mov_b32 v{TMP}, {'s24' if slow else 's3'}\ns_lshl_b32 s31, s29, 2\nv_mov_b32 v{TMP+1}, s31")
            a(f"s_mov_b64 exec, 1\nglobal_store_dword v{TMP+1}, v{TMP}, {sSM} offset:{XCC}{sc}\ns_mov_b64 exec, -1")
        if not slow: xword()
        self.stamp(3)
        def check0(off):
            a(f"s_waitcnt vmcnt({off})\nv_cmp_ne_u32 s[30:31], s3, v{PX}")
            if slow:
                a(f"v_cmp_ne_u32 vcc, s24, v{PX}\nv_and_b32 v{TMP+2}, -16, v{PX}\ns_and_b64 s[30:31], s[30:31], vcc\nv_cmp_ne_u32 vcc, s32, v{TMP+2}")
                a("s_cmp_eq_u64 s[30:31], 0\ns_cselect_b64 s[30:31], 0, vcc")
            self.tagged_sum(PL)
            a("s_or_b64 vcc, vcc, s[30:31]")
        loads = self.rs_loads(sB[1], PL) + f"\nglobal_load_dword v{PX}, {vXC}, {sSM} offset:{XCC} sc1"
        self.zero_acc()
        for kp in range(8): self.dots(self.WQ, kp, sONE)
        self.tagged_publish(sCQ, sc)
        if c.force_slow and not slow: a("s_branch L_Xslow")
        if slow:
            a("s_waitcnt vmcnt(0)")
            xword()
            self.poll("q0", loads, check0, (1, 0, 0))
        else:
            self.poll("q0", loads, check0, c.q0, bound=c.limit1, over=lambda fb, ov, top: fb(f"{ov}:\ns_branch L_Xslow"), pace=c.pace)
        GU = []
        self.allred(GA, TMP)
        a(f"v_mul_f32 v{GA}, v{GA}, {vRS}")
        self.stamp(4)
        for li in range(2):
            h = 5 * li
            B = lambda k: HB(h + k)
            st = (lambda i: self.stamp(i)) if li == c.stamp_layer else (lambda i: None)
            self.pack(GA)
            self.pair_store(sSM, AGQ[li], sc)
            self.clear_inbox(B(1), sc)
            st(5)
            def qbody(off):
                a(f"s_waitcnt vmcnt({off})\nv_max3_u32 v{TMP}, v{PX}, v{PX+1}, v{PX+2}\nv_max_u32 v{TMP}, v{TMP}, v{PX+3}\nv_cmp_eq_u32 vcc, -1, v{TMP}")
            ql = f"global_load_dwordx4 v[{PX}:{PX+3}], {vAQ}, {sSM} offset:{AGQ[li]} sc1"
            if li == 0:
                a(f"v_mov_b32 v{TMP+1}, {int(slow)}\nds_write_b32 {vZERO}, v{TMP+1} offset:{L_MODE}")
                self.colsum_gather(sCQ, True)
                self.poll("aq", ql, qbody, c.a0, pace=c.pace)
            else: self.poll("aq", ql, qbody, c.aq)
            a(f"ds_write_b128 {vXALL}, v[{PX}:{PX+3}] offset:{L_Q}\ns_waitcnt lgkmcnt(0)\ns_barrier")
            if li == 0:
                self.colsum_gather(sCQ, False, wait=False)
                self.clear_inbox(sCQ, sc)
            if li == 0:
                if c.prew == 2: self.prewrite(0)
                if not c.touch: a(f"s_lshl_b32 s30, s29, 8\nv_lshl_add_u32 v{TMP+2}, v0, 7, s30\ns_mov_b64 exec, 3\nglobal_load_dword {vJ}, v{TMP+2}, {sSM} offset:-4096 sc1\ns_mov_b64 exec, -1")
            a("s_barrier")
            st(6)
            self.combine(li, B(2), 0, sc)
            st(7)
            if li == 0:
                a(f"v_lshrrev_b32 v{T2}, 1, v0\nv_lshlrev_b32 v{T2}, 4, v{T2}\nv_and_b32 v{T2+1}, 1, v0\nv_lshl_add_u32 v{T2}, v{T2+1}, 9, v{T2}\nv_add_u32 v{T2}, {L_GU}, v{T2}")
                a(f"s_mov_b32 {sCN2}, {c.limit * c.outer * 4}")
                self.zero_acc()
                if c.b2x_first: a("s_waitcnt vmcnt(0)"); st(8); a("s_barrier")
                self.lds_wait(L_CN2, 4)
                st(9)
                self.lds_weights(GU, WB, f"v{T2}", 0, 8, lambda kp: self.dots(GU, kp, sONE))
                self.tagged_publish(sCG, sc or c.cs_sc, M56)
                st(13)
            if li == 0 and not c.b2x_first: a("s_waitcnt vmcnt(2)\ns_barrier")
            for half in range(2):
                k = 2 * li + half
                last = k == 3
                self.zero_acc()
                self.tag(11 + k)
                a("s_barrier")
                if f"stop{2*k}" in c.exp: a("s_endpgm")
                if not last: self.clear_inbox(B(2 + 2 * half), sc) if (li == 0 or half == 0) else None
                self.rs_gather("out", B(3 + 2 * half), 7 if half else 8)
                a(f"v_bfi_b32 v{GA}, {vMASK}, {sT}, v{GA}\ns_mov_b64 exec, 0xffff\nglobal_atomic_swap {vGPUB}, v{GA}, {sG[k]}\ns_mov_b64 exec, -1")
                if li == 0: self.clear_inbox(B(3 + 2 * half), sc)
                st(10 + 4 * half)
                fin = self.lab("fin")
                if k == 2:
                    l = self.lab("noep")
                    a(f"s_cmp_eq_u32 s2, 0\ns_cbranch_scc0 {l}\ns_add_u32 s30, {sE}, {NTAGS}\nv_mov_b32 v{TMP}, s30\ns_mov_b64 exec, 1\nglobal_store_dword {vZERO}, v{TMP}, {sWS} sc1\ns_mov_b64 exec, -1\n{l}:")
                if not slow and c.fclean:
                    if k == 2 and c.fclean & 1: self.clear_inbox(B(3), " sc1")
                    if last:
                        if not c.fclean & 1: self.clear_inbox(B(3), " sc1")
                        self.clear_inbox(B(4), " sc1"); self.clear_inbox(B(5), " sc1")
                if last and c.wb and not slow:
                    l = self.lab("nowb")
                    if c.wb & 1: a(f"s_cmp_eq_u32 s29, {c.wbc}\ns_cbranch_scc0 {l}")
                    if c.wb & 2: a(f"s_cmp_eq_u32 s28, 0\ns_cbranch_scc1 {l}")
                    a(f"buffer_wbl2 sc1\n{l}:")
                if last and "stop7" in c.exp: a("s_endpgm")
                if last and c.fing < 8: a(f"s_cmp_eq_u32 s28, {c.fing}\ns_cbranch_scc0 {fin}")
                elif last: a(f"s_and_b32 s30, s29, 7\ns_cmp_eq_u32 s28, s30\ns_cbranch_scc0 {fin}")
                depth, delay, gap, gap2 = c.gl if last else c.g
                top = self.lab("g")
                gl = f"global_atomic_or_x2 v[{PG}:{PG+1}], {vGIN}, v[76:77], {sG[k]} sc0"
                a(f"s_mov_b32 {sCNT}, {c.limit * c.outer}\ns_mov_b64 vcc, -1")
                self.nops(delay)
                if c.gform == 0:
                    for j in range(depth - 1):
                        a(gl); self.nops(gap)
                    a(f"{top}:\ns_mov_b64 exec, vcc\n{gl}\ns_mov_b64 exec, -1\ns_sub_u32 {sCNT}, {sCNT}, 1\ns_cbranch_scc1 L_exit")
                else:
                    for j in range(depth):
                        a(gl)
                        if j < depth - 1: self.nops(gap)
                    a(f"{top}_c:")
                    self.tail.append(f"{top}:\ns_mov_b64 exec, vcc\n{gl}\ns_mov_b64 exec, -1\ns_sub_u32 {sCNT}, {sCNT}, 1\ns_cbranch_scc0 {top}_c\ns_endpgm\n")
                a(f"""s_waitcnt vmcnt({depth - 1})
v_xor_b32 v{GA}, {sT}, v{PG}
v_xor_b32 v{GA+1}, {sT}, v{PG+1}
v_or_b32 v{TMP+1}, v{GA}, v{GA+1}
v_cmp_ne_u32_sdwa vcc, v{TMP+1}, 0 src0_sel:BYTE_0 src1_sel:DWORD
v_permlane32_swap_b32 v{GA}, v{GA+1}
v_add_f32 v{GA}, v{GA}, v{GA+1}
v_mov_b32 v{TMP}, v{GA}
s_cbranch_vccnz {top}
v_permlane16_swap_b32 v{GA}, v{TMP}
v_add_f32 v{GA}, v{GA}, v{TMP}
v_add_f32_dpp v{GA}, v{GA}, v{GA} row_ror:8 {DPP}
v_mov_b32 v{GA+1}, v{GA}
v_permlane32_swap_b32 v{GA}, v{GA+1}
v_add_f32 v{GA}, v{GA}, {vX}
v_add_f32 v{GA+1}, v{GA+1}, {vX1}
v_cvt_pk_bf16_f32 {vPR}, v{GA}, v{GA+1}""")
                pst = lambda base, off, s_: a(f"s_mov_b64 exec, 0xff\nglobal_store_dword {vPAIR8}, {vPR}, {base} offset:{off}{s_}\ns_mov_b64 exec, -1")
                if last:
                    if "noout" not in c.exp: pst(sOUT, 0, c.opol)
                    a(f"{fin}:")
                    self.end(0)
                    break
                if half == 0: st(11)
                elif c.stamp_layer == 1: self.stamp(13)
                pst(sSM, XALL[k], sc)
                if half == 0:
                    a("s_barrier")
                    if f"stop{2*k+1}" in c.exp: a("s_endpgm")
                    self.gemv(GU, B(4), sc, lanes=range(8), mask=M56)
                    a(f"v_lshlrev_b32 {vX}, 16, {vPR}\nv_and_b32 {vX1}, 0xffff0000, {vPR}")
                    st(12)
                else:
                    st2 = (lambda i: self.stamp(i)) if c.stamp_layer == 1 else (lambda i: None)
                    self.gemv(self.WQ, HB(6), sc, lanes=range(8), hook=(c.xh, self.xload(1)))
                    a(f"v_lshlrev_b32 {vX}, 16, {vPR}\nv_and_b32 {vX1}, 0xffff0000, {vPR}")
                    st2(2)
                    self.rs_gather("q", HB(6), ln=1, xafter=1)
                    a(f"v_fma_f32 v{GA}, v{GA}, {vRS}, {vNM}")
                    st2(4)

    def y_head(self):
        a = self.a; c = self.c
        a(f"L_Y:\nds_write_b64 {vZERO}, v[{TMP}:{TMP+1}] offset:{L_CNT}\nv_add_u32 v{T2}, {L_WD}, {vXALL}\ns_waitcnt lgkmcnt(0)\ns_barrier".replace("L_Y:", f"L_Y:\nv_mov_b64 v[{TMP}:{TMP+1}], 0"))
        self.stamp(1)
        a(f"s_mov_b32 {sCN2}, {c.limit * c.outer * 4}")
        self.spare = SPARE
        for grp in range(4):
            self.lds_wait(L_CNT, grp + 1)
            if grp == 0: a(f"global_load_dwordx4 v[{PC}:{PC+3}], {vINX}, {sCG} sc1\nglobal_load_dwordx4 v[{PC}:{PC+3}], {vINX}, {sCG} offset:1024 sc1")
            for k in range(4 * grp, 4 * grp + 4):
                a(f"global_load_dwordx4 v[{WA+4*k}:{WA+4*k+3}], {vWO}, {sWO}{c.nt}")
                if k < 15: a(f"v_add_u32 {vWO}, 8192, {vWO}")
        for x in c.help:
            a(f"""s_xor_b32 s30, s29, {x}
s_and_b32 s31, s30, 3
s_lshl_b32 s31, s31, 7
s_lshr_b32 s30, s30, 2
s_add_u32 s31, s31, s30
s_lshl_b32 s30, s28, 9
s_add_u32 s31, s31, s30
s_lshl_b32 s31, s31, 10
s_add_u32 s31, s31, 65536
v_lshrrev_b32 v{TMP}, 3, v0
v_lshlrev_b32 v{TMP}, 13, v{TMP}
v_and_b32 v{TMP+1}, 7, v0
v_lshl_add_u32 v{TMP}, v{TMP+1}, 7, v{TMP}
v_add_u32 v{TMP}, s31, v{TMP}
global_load_dword {vJ}, v{TMP}, {sWO}{c.hpol}""")
        self.stamp(2)
        a(f"s_barrier\nds_read_b32 v{TMP+1}, {vZERO} offset:{L_MODE}")
        if 'noq' in self.c.exp: a("s_waitcnt vmcnt(0)"); self.end(1)
        a(f"s_waitcnt lgkmcnt(0)\nv_readfirstlane_b32 s3, v{TMP+1}\ns_cmp_eq_u32 s3, 0\ns_cbranch_scc0 L_Yslow")

    def y_program(self, slow):
        a = self.a; c = self.c
        sc = " sc1" if slow else ""
        spare0 = self.spare
        WO = []; WD = []
        for li in range(2):
            h = 5 * li
            B = lambda k: HB(h + k)
            st = (lambda i: self.stamp(i)) if li == c.stamp_layer else (lambda i: None)
            if li: a("s_barrier")
            a("s_barrier")
            st(6)
            self.combine(li, B(2), 1, sc)
            st(7)
            y, z, t, L = PL, GA, TMP, PM + 8
            loads = "".join(f"global_load_dwordx4 v[{L+4*i}:{L+4*i+3}], {vOSI}, {sSM} offset:{OSTAT[li]+128+16*i} sc1\n" for i in range(2))
            loads += self.rs_loads(B(2), PL)
            def shadow(nafter):
                a(f"v_add_u32 v{T2}, {L_WD}, {vXALL}\ns_mov_b32 {sCN2}, {c.limit * c.outer * 4}")
                self.lds_wait(L_CN2, 4)
                self.lds_weights(WD, WB, f"v{T2}", 0, 4)
                a(f"s_mov_b32 {sCN2}, {c.outer}")
                for kp in range(8):
                    a(f"s_waitcnt vmcnt({14 - 2*kp + 1 + len(c.help) + nafter})")
                    self.perm_pair(WO, WA, kp)
            onorm, ogen = self.lab("onorm"), self.lab("ogen")
            def obody(off):
                a(f"""s_waitcnt vmcnt({off + 4})
v_pk_add_f32 v[{z}:{z+1}], v[{y}:{y+1}], v[{y+2}:{y+3}]
v_pk_add_f32 v[{LA}:{LA+1}], v[{L}:{L+1}], v[{L+2}:{L+3}]
v_pk_add_f32 v[{LA+2}:{LA+3}], v[{L+4}:{L+5}], v[{L+6}:{L+7}]
v_pk_add_f32 v[{LA}:{LA+1}], v[{LA}:{LA+1}], v[{LA+2}:{LA+3}]
v_add_f32 v{LA}, v{LA}, v{LA+1}
s_waitcnt vmcnt({off})
v_pk_add_f32 v[{z+2}:{z+3}], v[{y+4}:{y+5}], v[{y+6}:{y+7}]
v_pk_add_f32 v[{z}:{z+1}], v[{z}:{z+1}], v[{z+2}:{z+3}]
v_add_f32 v{z}, v{z}, v{z+1}
v_cmp_u_f32 vcc, v{z}, v{LA}
v_or3_b32 v{t+2}, v{L}, v{L+1}, v{L+2}
v_permlane32_swap_b32 v{z}, v{LA}
v_add_f32 v{z}, v{z}, v{LA}
v_mov_b32 v{t}, v{z}""")
            def oover(fb, ov, top):
                fb(f"{ov}:\ns_sub_u32 {sCN2}, {sCN2}, 1\ns_cbranch_scc1 L_exit\ns_mov_b32 {sCNT}, {c.limit}\ns_waitcnt vmcnt(0)")
                self.umax(t, list(range(y, y + 8)) + list(range(L, L + 8)))
                fb(f"v_cmp_eq_u32 vcc, -1, v{t}\ns_cbranch_vccnz {top}\ns_branch {ogen}")
            self.zero_acc()
            a(f"s_mov_b32 {sCN2}, {c.outer}")
            self.poll("o", loads, obody, c.ro if li else (1, 0, 0), shadow if li == 0 else None, bound=c.limit, over=oover)
            a(f"""v_or3_b32 v{t+2}, v{t+2}, v{L+3}, v{L+4}
v_permlane16_swap_b32 v{z}, v{t}
v_add_f32 v{z}, v{z}, v{t}
v_mov_b32 v{LA}, v{z}
v_or3_b32 v{t+2}, v{t+2}, v{L+5}, v{L+6}
v_or_b32 v{t+2}, v{t+2}, v{L+7}
v_permlane32_swap_b32 v{z}, v{LA}
v_rcp_f32 v{LA}, v{LA}
v_cmp_gt_i32 vcc, 0, v{t+2}
v_mul_f32 v{z}, v{z}, v{LA}""")
            self.pack(GA)
            a(f"s_cbranch_vccnz {ogen}\n{onorm}:")
            def ogen_f(fb):
                mloop = self.lab("omloop")
                fb(f"{ogen}:\ns_waitcnt vmcnt(0)\ns_mov_b32 {sCNT}, {c.limit * c.outer}\n{mloop}:\ns_sub_u32 {sCNT}, {sCNT}, 1\ns_cbranch_scc1 L_exit")
                for i in range(2): fb(f"global_load_dwordx4 v[{PM+4*i}:{PM+4*i+3}], {vOSI}, {sSM} offset:{OSTAT[li]+16*i} sc1")
                fb("s_waitcnt vmcnt(0)")
                for i in range(8): fb(f"v_cmp_gt_i32 vcc, 0, v{L+i}\nv_cndmask_b32 v{T2+i}, 0, v{PM+i}, vcc")
                self.umax(t, range(T2, T2 + 8))
                fb(f"v_cmp_eq_u32 vcc, -1, v{t}\ns_cbranch_vccnz {mloop}")
                fb(f"v_max3_f32 v{t}, v{T2}, v{T2+1}, v{T2+2}\nv_max3_f32 v{t}, v{t}, v{T2+3}, v{T2+4}\nv_max3_f32 v{t}, v{t}, v{T2+5}, v{T2+6}\nv_max_f32 v{t}, v{t}, v{T2+7}")
                self.allred(t, t + 1, "v_max_f32")
                for i in range(8): fb(f"v_sub_f32 v{T2+i}, v{T2+i}, v{t}")
                for i in range(8): fb(f"v_exp_f32 v{T2+i}, v{T2+i}")
                fb(f"v_mul_f32 v{GA}, v{T2}, v{y}\nv_mul_f32_e64 v{LA}, v{T2}, |v{L}|")
                for i in range(1, 8): fb(f"v_fmac_f32 v{GA}, v{T2+i}, v{y+i}\nv_fma_f32 v{LA}, v{T2+i}, |v{L+i}|, v{LA}")
                self.allred(LA, t + 1); self.allred(GA, t + 2)
                fb(f"v_rcp_f32 v{LA}, v{LA}\nv_mul_f32 v{GA}, v{GA}, v{LA}")
                self.pack(GA)
                fb(f"s_nop 1\ns_branch {onorm}")
            self.ool(ogen_f)
            st(8)
            if li == 0: a("s_barrier")
            self.gemv(WO, B(3), sc)
            a("s_barrier")
            if f"stop{4*li}" in c.exp: a("s_endpgm")
            st(9)
            noffn = self.lab("noffn")
            if li == 0:
                l = self.lab("nocg")
                a(f"s_cmp_lt_u32 s34, 14\ns_cbranch_scc0 {l}")
                self.nops(c.cgd)
                self.colsum_gather(sCG, True); self.colsum_gather(sCG, False)
                a(f"{l}:")
            self.zero_acc()
            a(f"s_barrier")
            if f"stop{4*li+1}" in c.exp: a("s_endpgm")
            a(f"s_cmp_lt_u32 s34, 14\ns_cbranch_scc0 {noffn}")
            st(12)
            self.rs_gather("gu", B(4), ln=2 * li)
            st(5)
            a(f"v_fma_f32 v{GA}, v{GA}, {vRS}, {vNM}\nv_mul_f32_dpp v{GA}, v{GA}, v{GA} row_ror:12 {DPP}")
            self.pack(GA)
            self.gemv(WD, B(5), sc, lanes=[0, 2, 8, 10], addr=(vDN, vDN2))
            a(f"{noffn}:")
            st(13)
            a("s_barrier")
            if f"stop{4*li+2}" in c.exp: a("s_endpgm")
        self.end(1)
        self.spare = spare0

    def build(self):
        a = self.a
        self.prologue()
        self.s_stream()
        self.c_pre()
        self.x_head()
        self.x_program(False); self.flush()
        self.y_head()
        self.y_program(False); self.flush()
        self.s_layers(); self.flush()
        a("L_fast_end:\nL_Yslow:")
        self.y_program(True); self.flush()
        a("L_Xslow:")
        self.x_program(True); self.flush()
        a("L_exit:\ns_endpgm")
        head = f"""; Fused decode step: 2 x (LayerNorm -> GQA sliding-window attention -> residual -> LayerNorm -> bilinear GLU -> residual)
; @launch grid=(256,1,1) block=(384,1,1) lds={self.c.ldsx or LDS_BYTES}
.amdgcn_target "amdgcn-amd-amdhsa--gfx950"
.text
.globl {KNAME}
.p2align 8
.type {KNAME},@function
{KNAME}:
"""
        tail = f"""
.section .rodata,"a"
.p2align 6
.amdhsa_kernel {KNAME}
  .amdhsa_next_free_vgpr 256
  .amdhsa_next_free_sgpr 102
  .amdhsa_accum_offset 256
  .amdhsa_group_segment_fixed_size 0
  .amdhsa_kernarg_size 96
  .amdhsa_user_sgpr_count 2
  .amdhsa_user_sgpr_kernarg_segment_ptr 1
  .amdhsa_system_sgpr_workgroup_id_x 1
  .amdhsa_float_denorm_mode_32 3
.end_amdhsa_kernel
"""
        return head + a.text() + tail


def make(**kw):
    c = Cfg()
    for k, v in kw.items(): setattr(c, k, v)
    return Gen(c).build()

if __name__ == "__main__":
    kw = {}
    for x in sys.argv[2:]:
        k, v = x.split("=", 1); kw[k] = eval(v)
    open(sys.argv[1], "w").write(make(**kw))
```

```python
import sys, struct
from asmlib import Asm

KNAME = "interleave_layers__sliding_block_cached__glu_gated_bilinear__decode_kernel"
def f2u(x): return struct.unpack("<I", struct.pack("<f", x))[0]

class Cfg:
    debug = False
    stamp_layer = 0
    nt = " nt"
    win = 4
    wins = [4]*22
    wo_at = 26
    limit = 64
    outer = 2000
    limit1 = 64
    force_slow = False
    rs = (3, 120, 60)
    ro = (3, 120, 60)
    g = (3, 80, 200, 0)
    q0 = (3, 200, 500)
    a0 = (3, 300, 500)
    b2x_first = 0
    cgd = 800
    xq = (100, 60, 2)
    xg = (340, 70, 3)
    xh = 5
    rpre = 0
    nfill = 2
    lnoff = 1
    aq = (3, 130, 55)
    prew = 2
    cs_sc = ''
    pace = 200
    touch = 1
    tpol = ' nt'
    xpol = ''
    pfpol = ''
    exp = ''
    rot = 1
    pf0 = 0
    pf0pol = ' nt'
    pf = 6
    b0_late = 1
    fclean = 0
    ldsx = 0
    gform = 1
    dbgpar = 0
    fown = 1
    fod = 0
    probe = 2
    gthr = 0
    bpar = 0
    band = 0
    bsh = 13
    gpar = 1
    gand = 1
    gexec = 's_mov_b32 exec_hi, 0'
    sgemv = 1
    qkov = 1
    fing = 4
    opol = ''
    gl = (3, 150, 120, 0)
    help = ()
    hpol = ' nt'
    wb = 0
    wbc = 0
    dbgwg = 0
    dbgfrom = 0
    dbgfix = 0
    cs_late = 1
    tlb = 0
    xd = 200
    bound = 60.0

DPP = "row_mask:0xf bank_mask:0xf"
G_OFF = 0x10000; G_STRIDE = 0x10000
GB_OFF = 0x100000; GB_STRIDE = 0x100000
BSTR = 0x20000
SM = 0xa0000 + 0x1000
AGQ = [-0x1000, -0xC00]; XALL = [-0x800, -0x400, 0x0]; OSTAT = [0x400, 0x800]; XCC = 0xC00; PARR = 0xD00
DBG_OFF = 0xa00000
NTAGS = 16
PROBE = 0x80000
L_O = 32768; L_ST = 40960; L_MODE = L_ST + 128; L_CNT = L_ST + 136; L_CN2 = L_ST + 140; L_PAR = L_ST + 144; L_Q = 41984; L_WQ = L_Q + 1024; L_GU = L_WQ + 16384; L_WD = L_GU + 16384
LDS_BYTES = L_WD + 8192
sX, sK, sV, sWQ, sWO, sWG, sWU, sWD, sOUT, sWS = ("s[4:5]", "s[6:7]", "s[8:9]", "s[10:11]", "s[12:13]",
    "s[16:17]", "s[18:19]", "s[20:21]", "s[22:23]", "s[26:27]")
sB = ["s[36:37]", "s[38:39]", "s[40:41]"]; sCG = "s[42:43]"; sCQ = "s[40:41]"; sSM = "s[46:47]"
sG = ["s[48:49]", "s[50:51]", "s[52:53]", "s[54:55]"]
sE, sT, sCNT, sXCC, sLO, sHI, sONE, sCN2 = "s56", "s57", "s58", "s61", "s62", "s63", "s64", "s65"
sODD = "s[66:67]"; M56 = "s[14:15]"
vMASK, vIN, vPUB, vPUB2, vGIN, vGPUB, vPAIR, vXALL, vOSI, vOSP, vLDS, vLST = ["v%d" % i for i in range(1, 13)]
vX, vCS, vINX, vPR, vMU, vRS, vNM = "v13", "v14", "v15", "v16", "v17", "v18", "v19"
GA = 20; MA = 28; LA = 36; ACC = 40; TMP = 48; T2 = 64; NEG = 72
vZERO, vAQ, vCLR, vXC, vWO, vDN, vDN2, vJ = "v76", "v79", "v78", "v253", "v208", "v209", "v210", "v211"
vX1, vPAIR8 = "v252", "v254"
WA, WB, SPARE = 80, 144, 212
PL = 214; PM = 222; PX = 238; PC = 242; PG = 250


def HB(hop): return sB[1] if hop == 1 else sB[[1, 2, 0][hop % 3]]


class Gen:
    def __init__(self, cfg):
        self.c = cfg; self.a = Asm(); self.tail = []; self.nlab = 0; self.spare = SPARE

    def lab(self, s):
        self.nlab += 1
        return f"L_{s}_{self.nlab}"

    def stamp(self, i):
        if self.c.debug: self.a(f"s_memtime s[{70+2*i}:{71+2*i}]")

    def end(self, slot):
        a = self.a
        if self.c.debug == 3:
            if slot == 0:
                l, l2 = self.lab("nodbg"), self.lab("spin")
                a(f"s_memtime s[100:101]\ns_waitcnt lgkmcnt(0)\ns_cmp_eq_u32 s2, {self.c.fing}\ns_cbranch_scc0 {l}\ns_sub_u32 s31, s{70+2*self.c.dbgwg}, s{70+2*self.c.dbgfrom}\ns_min_u32 s31, s31, 200000")
                if self.c.dbgfix: a(f"s_mov_b32 s31, {self.c.dbgfix}")
                a(f"{l2}:\ns_memtime s[98:99]\ns_waitcnt lgkmcnt(0)\ns_sub_u32 s30, s98, s100\ns_cmp_lt_u32 s30, s31\ns_cbranch_scc1 {l2}\n{l}:")
            a("s_endpgm"); return
        if self.c.debug == 2:
            if slot == 0:
                l = self.lab("nodbg")
                a(f"s_memtime s[100:101]\ns_load_dwordx2 s[24:25], s[0:1], 80\ns_waitcnt vmcnt(0) lgkmcnt(0)\ns_cmp_lt_u32 s2, 8\ns_cbranch_scc0 {l}\ns_mov_b64 exec, 1")
                a("s_lshl_b32 s30, s2, 2\nv_mov_b32 v20, s30\nv_mov_b32 v24, s68\nglobal_store_dword v20, v24, s[24:25]")
                a(f"s_cmp_eq_u32 s2, {self.c.dbgwg}\ns_cbranch_scc0 {l}")
                for j, i in enumerate((1, 4, 6, 10, 11, 14, 15)): a(f"s_sub_u32 s31, s{70+2*i}, s70\nv_mov_b32 v{24+j}, s31")
                a("v_mov_b32 v20, 0\nv_mov_b32 v31, 0\nglobal_store_dwordx4 v20, v[24:27], s[24:25] offset:32\nglobal_store_dwordx4 v20, v[28:31], s[24:25] offset:48")
                a(f"{l}:")
            a("s_endpgm"); return
        if self.c.debug:
            a("s_memtime s[100:101]\ns_waitcnt vmcnt(0) lgkmcnt(0)\ns_mov_b64 exec, -1")
            a(f"s_lshl_b32 s30, s2, 9\ns_add_u32 s30, s30, {DBG_OFF + slot*128}")
            a("v_mov_b32 v20, s30\nv_mov_b32 v24, s68")
            for i in range(1, 16): a(f"s_sub_u32 s31, s{70+2*i}, s70\nv_mov_b32 v{24+i}, s31")
            for i in range(4): a(f"global_store_dwordx4 v20, v[{24+4*i}:{27+4*i}], {sWS} offset:{16*i}")
        a("s_endpgm")

    def tag(self, k): self.a(f"s_add_u32 {sT}, {sE}, {k}\ns_and_b32 {sT}, {sT}, 0x3f\ns_or_b32 {sT}, {sT}, 0x40")

    def nops(self, cyc):
        if cyc >= 192:
            self.a(f"s_sleep {cyc // 64}"); return
        while cyc >= 4:
            k = min(cyc // 4, 16); self.a(f"s_nop {k-1}"); cyc -= 4 * k

    def ool(self, fn):
        fb = Asm(); sv, self.a = self.a, fb
        fn(fb)
        self.a = sv
        self.tail.append(fb.text())

    def flush(self):
        while self.tail: self.a(self.tail.pop(0))

    def poll(self, name, loads, body, par, shadow=None, bound=None, over=None, first=True, pace=0):
        a = self.a
        depth, delay, gap = par
        nl = loads.count("global_")
        top, ov = self.lab(name), self.lab(name + "_over")
        a(f"s_mov_b32 {sCNT}, {bound or self.c.limit * self.c.outer}")
        if first:
            self.nops(delay)
            for k in range(depth - 1):
                a(loads); self.nops(gap)
        if shadow:
            skip = self.lab(name + "_in")
            a(loads); shadow(depth * nl); a(f"s_branch {skip}\n{top}:\n{loads}\n{skip}:")
        else:
            a(f"{top}:\n{loads}")
        a(f"s_sub_u32 {sCNT}, {sCNT}, 1\ns_cbranch_scc1 {ov if over else 'L_exit'}")
        self.nops(pace)
        body((depth - 1) * nl)
        a(f"s_cbranch_vccnz {top}")
        if over: self.ool(lambda fb: over(fb, ov, top))

    def allred(self, r, t, op="v_add_f32"):
        self.a(f"""v_mov_b32 v{t}, v{r}
v_permlane32_swap_b32 v{r}, v{t}
{op} v{r}, v{r}, v{t}
v_mov_b32 v{t}, v{r}
v_permlane16_swap_b32 v{r}, v{t}
{op} v{r}, v{r}, v{t}""")

    def rs_loads(self, base, g, n=8):
        return "\n".join(f"global_load_dword v{g+i}, {vIN}, {base} offset:{256*i} sc1" for i in range(n))

    def umax(self, t, regs):
        regs = list(regs)
        self.a(f"v_max3_u32 v{t}, v{regs[0]}, v{regs[1]}, v{regs[2]}")
        for i in range(3, len(regs), 2): self.a(f"v_max3_u32 v{t}, v{t}, v{regs[i]}, v{regs[min(i+1, len(regs)-1)]}")

    def tagged_sum(self, src, n=8):
        a = self.a
        for i in range(n): a(f"v_xor_b32 v{MA+i}, {sT}, v{src+i}")
        a(f"v_or3_b32 v{TMP}, v{MA}, v{MA+1}, v{MA+2}\nv_or3_b32 v{TMP}, v{TMP}, v{MA+3}, v{MA+4}\nv_or3_b32 v{TMP}, v{TMP}, v{MA+5}, v{MA+6}\nv_or_b32 v{TMP}, v{TMP}, v{MA+7}")
        a(f"v_cmp_ne_u32_sdwa vcc, v{TMP}, 0 src0_sel:BYTE_0 src1_sel:DWORD")
        a(f"v_pk_add_f32 v[{GA}:{GA+1}], v[{MA}:{MA+1}], v[{MA+2}:{MA+3}]\nv_pk_add_f32 v[{GA+2}:{GA+3}], v[{MA+4}:{MA+5}], v[{MA+6}:{MA+7}]")
        a(f"v_pk_add_f32 v[{GA}:{GA+1}], v[{GA}:{GA+1}], v[{GA+2}:{GA+3}]\nv_add_f32 v{GA}, v{GA}, v{GA+1}")

    def xload(self, ln): return f"global_load_dwordx4 v[{PX}:{PX+3}], {vXALL}, {sSM} offset:{XALL[ln]} sc1"

    def rs_gather(self, name, base, n=8, post=None, par=None, ln=None, xafter=None, mid=None):
        z, t, y = GA, TMP, PL
        done = self.lab(name + "_done")
        def reduce(off, test):
            a = self.a
            a(f"s_waitcnt vmcnt({off + n - 4})\nv_pk_add_f32 v[{z}:{z+1}], v[{y}:{y+1}], v[{y+2}:{y+3}]\ns_waitcnt vmcnt({off})")
            if n == 8: a(f"v_pk_add_f32 v[{z+2}:{z+3}], v[{y+4}:{y+5}], v[{y+6}:{y+7}]\nv_pk_add_f32 v[{z}:{z+1}], v[{z}:{z+1}], v[{z+2}:{z+3}]")
            else: a(f"v_pk_add_f32 v[{z}:{z+1}], v[{z}:{z+1}], v[{y+4}:{y+5}]\nv_add_f32 v{z}, v{z}, v{y+6}")
            a(f"v_add_f32 v{z}, v{z}, v{z+1}\nv_mov_b32 v{t}, v{z}")
            if test: a(f"v_cmp_u_f32 vcc, v{z}, v{z}")
            a(f"v_permlane32_swap_b32 v{z}, v{t}\nv_add_f32 v{z}, v{z}, v{t}\nv_mov_b32 v{t}, v{z}")
        def over(fb, ov, top):
            fb(f"{ov}:\ns_sub_u32 {sCN2}, {sCN2}, 1\ns_cbranch_scc1 L_exit\ns_mov_b32 {sCNT}, {self.c.limit}\ns_waitcnt vmcnt(0)")
            self.umax(t, range(y, y + n))
            fb(f"v_cmp_eq_u32 vcc, -1, v{t}\ns_cbranch_vccnz {top}")
            reduce(0, False)
            fb(f"s_branch {done}")
        loads = self.rs_loads(base, PL, n)
        a = self.a
        a(f"s_mov_b32 {sCN2}, {self.c.outer}")
        if ln is None:
            self.poll(name, loads, lambda off: reduce(off, True), par or self.c.rs, bound=self.c.limit, over=over)
        else:
            xl = self.xload(ln)
            xchk = f"v_max3_u32 v{TMP}, v{PX}, v{PX+1}, v{PX+2}\nv_max_u32 v{TMP}, v{TMP}, v{PX+3}\nv_cmp_eq_u32 vcc, -1, v{TMP}"
            xr, xok, top, ov = self.lab("xretry"), self.lab("xok"), self.lab(name), self.lab(name + "_over")
            delay, gap, K = self.c.xq if name == "q" else self.c.xg
            a(f"s_mov_b32 {sCNT}, {self.c.limit * self.c.outer}")
            self.stats_pre()
            self.nops(delay)
            for j in range(K):
                a(xl)
                if j < K - 1: self.nops(gap)
            pre = self.c.rpre
            if pre: self.nops(pre - 1); a(loads)
            cnts = [cn + (n if pre else 0) for cn in ([K + xafter] if xafter is not None else []) + list(range(K - 1, -1, -1))]
            for j, cn in enumerate(cnts):
                a(f"s_waitcnt vmcnt({cn})\n{xchk}")
                a(f"s_cbranch_vccz {xok}" if j < len(cnts) - 1 else f"s_cbranch_vccnz {xr}")
            a(f"{xok}:")
            self.tail.append(f"{xr}:\n{xl}\ns_nop 15\n{xr}_b:\n{xl}\ns_sub_u32 {sCNT}, {sCNT}, 1\ns_cbranch_scc1 L_exit\ns_waitcnt vmcnt(1)\n{xchk}\ns_cbranch_vccnz {xr}_b\ns_branch {xok}\n")
            if self.c.stamp_layer == 1 and ln >= 1:
                self.stamp(8 if ln == 1 else 3)
                if self.c.debug: a(f"s_sub_u32 s72, {self.c.limit * self.c.outer + 1000}, {sCNT}\ns_add_u32 s72, s72, s70")
            self.stats(PX, loads.split("\n") * self.c.nfill)
            a(f"s_mov_b32 {sCNT}, {self.c.limit}\nv_mul_f32 {vNM}, {vMU}, {vRS}\nv_mul_f32_e64 {vNM}, -{vNM}, {vCS}")
            if self.c.stamp_layer == 1 and ln >= 1: self.stamp(9 if ln == 1 else 4)
            a(f"{top}_c:")
            reduce(n * self.c.lnoff, True)
            a(f"s_cbranch_vccnz {top}")
            self.tail.append(f"{top}:\n{loads}\ns_sub_u32 {sCNT}, {sCNT}, 1\ns_cbranch_scc0 {top}_c\ns_branch {ov}\n")
            self.ool(lambda fb: over(fb, ov, top))
        a(f"{done}:")
        if mid: a(mid)
        a(f"v_permlane16_swap_b32 v{z}, v{t}\nv_add_f32 v{z}, v{z}, v{t}")

    def pack(self, r):
        self.a(f"v_mov_b32_dpp v{TMP}, v{r} quad_perm:[1,0,3,2] {DPP}\nv_cvt_pk_bf16_f32 {vPR}, v{r}, v{TMP}")

    def perm_pair(self, W, base, kp):
        W.append([])
        for u in range(4):
            lo = base + 8 * kp + u; hi = lo + 4; s = self.spare
            self.a(f"v_perm_b32 v{s}, v{hi}, v{lo}, {sLO}\nv_perm_b32 v{hi}, v{hi}, v{lo}, {sHI}")
            W[kp] += [s, hi]; self.spare = lo

    def zero_acc(self):
        for j in range(0, 8, 2): self.a(f"v_mov_b64 v[{ACC+j}:{ACC+j+1}], 0")

    def dots(self, W, kp, src=None, lane=None):
        for j in range(8):
            if src: self.a(f"v_dot2c_f32_bf16 v{ACC+j}, {src}, v{W[kp][j]}")
            else: self.a(f"v_dot2c_f32_bf16_dpp v{ACC+j}, {vPR}, v{W[kp][j]} row_newbcast:{2*kp if lane is None else lane} {DPP}")

    def gemv(self, W, base, sc, lanes=None, addr=(vPUB, vPUB2), mask=None, hook=None):
        a = self.a
        n = len(W)
        lane = lambda kp: 2 * kp if lanes is None else lanes[kp]
        if self.c.sgemv:
            rl = [f"v_readlane_b32 s{4+kp}, {vPR}, {lane(kp)}" for kp in range(n)]
            for _ in range(3): a(rl.pop(0))
            def d(kp, j):
                a(f"v_dot2c_f32_bf16 v{ACC+j}, s{4+kp}, v{W[kp][j]}")
                if rl and j == 1: a(rl.pop(0))
        else:
            d = lambda kp, j: a(f"v_dot2c_f32_bf16_dpp v{ACC+j}, {vPR}, v{W[kp][j]} row_newbcast:{lane(kp)} {DPP}")
        def store(t):
            if mask: a(f"s_mov_b64 exec, {mask}")
            a(f"global_store_dwordx4 {addr[t]}, v[{ACC+4*t}:{ACC+4*t+3}], {base}{sc}")
            if mask: a("s_mov_b64 exec, -1")
        for kp in range(n):
            for j in range(4): d(kp, j)
        for kp in range(n):
            for j in range(4, 8): d(kp, j)
            if kp == 0: store(0)
            if hook and kp == hook[0]: a(hook[1])
        store(1)

    def tagged_publish(self, base, sc, mask=None):
        a = self.a
        for j in range(8): a(f"v_bfi_b32 v{ACC+j}, {vMASK}, {sT}, v{ACC+j}")
        if mask: a(f"s_mov_b64 exec, {mask}")
        a(f"global_store_dwordx4 {vPUB}, v[{ACC}:{ACC+3}], {base}{sc}\nglobal_store_dwordx4 {vPUB2}, v[{ACC+4}:{ACC+7}], {base}{sc}")
        if mask: a("s_mov_b64 exec, -1")

    def clear_inbox(self, base, sc):
        self.a(f"global_store_dwordx4 {vINX}, v[{NEG}:{NEG+3}], {base}{sc}\nglobal_store_dwordx4 {vINX}, v[{NEG}:{NEG+3}], {base} offset:1024{sc}")

    def stats_pre(self):
        p, q = TMP + 4, TMP + 5
        self.a(f"v_mov_b64 v[{p}:{q}], 0\nv_mov_b32 v{q+1}, 0x{f2u(1/512.):08x}\nv_mov_b32 v{q+2}, 0x{f2u(1e-5):08x}")

    def stats(self, x, fill=()):
        a = self.a
        p, q = TMP + 4, TMP + 5
        fill = list(fill)
        def gap(n):
            for _ in range(n):
                if fill: a(fill.pop(0))
        for i in range(4): a(f"v_dot2c_f32_bf16 v{p}, {sONE}, v{x+i}\nv_dot2c_f32_bf16 v{q}, v{x+i}, v{x+i}")
        gap(3)
        a(f"v_permlane32_swap_b32 v{p}, v{q}\nv_add_f32 v{p}, v{p}, v{q}\nv_mov_b32 v{q}, v{p}")
        gap(2)
        a(f"v_permlane16_swap_b32 v{p}, v{q}\nv_add_f32 v{p}, v{p}, v{q}")
        for r in (8, 4, 2, 1):
            gap(2); a(f"v_add_f32_dpp v{p}, v{p}, v{p} row_ror:{r} {DPP}")
        gap(1)
        a(f"v_readlane_b32 s30, v{p}, 0\nv_readlane_b32 s31, v{p}, 32")
        gap(1)
        a(f"v_mul_f32 {vMU}, s30, v{q+1}\nv_fma_f32 {vRS}, s31, v{q+1}, v{q+2}")
        a(f"v_fma_f32 {vRS}, -{vMU}, {vMU}, {vRS}\nv_max_f32 {vRS}, {vRS}, v{q+2}\nv_rsq_f32 {vRS}, {vRS}")
        gap(len(fill))

    def pair_store(self, base, off, sc):
        self.a(f"s_mov_b64 exec, 0x5555\nglobal_store_dword {vPAIR}, {vPR}, {base} offset:{off}{sc}\ns_mov_b64 exec, -1")

    def lds_weights(self, W, base, vaddr, off, npair, use=None):
        a = self.a
        rd = lambda k: a(f"ds_read_b128 v[{base+4*k}:{base+4*k+3}], {vaddr} offset:{off+1024*k}")
        for k in range(min(8, 2 * npair)): rd(k)
        for kp in range(npair):
            if 2 * kp + 8 < 2 * npair:
                rd(2 * kp + 8); rd(2 * kp + 9); out = 8
            else: out = 2 * npair - 2 * kp - 2
            a(f"s_waitcnt lgkmcnt({out})")
            self.perm_pair(W, base, kp)
            if use: use(kp)

    def prologue(self):
        a = self.a; c = self.c
        if 'empty' in c.exp: a("s_endpgm")
        if c.debug: a("s_memtime s[70:71]\ns_memrealtime s[68:69]")
        a(f"""s_load_dwordx16 s[4:19], s[0:1], 0
s_load_dwordx8 s[20:27], s[0:1], 64
s_cmpk_ge_u32 s2, 0x100
s_cbranch_scc1 L_exit
v_lshrrev_b32 v1, 6, v0
v_and_b32 v0, 63, v0
s_lshr_b32 s29, s2, 3
v_readfirstlane_b32 s33, v1
s_and_b32 s28, s2, 7
s_and_b32 s34, s29, 15
s_lshr_b32 s35, s29, 4
s_lshl_b32 s60, s34, 5
s_lshl2_add_u32 s60, s35, s60
v_lshlrev_b32 v15, 4, v0
s_cmp_ge_u32 s33, 4
s_cbranch_scc1 L_C0
s_lshl3_add_u32 s32, s33, s60
s_lshl3_add_u32 s30, s32, s28
s_lshl_b32 s30, s30, 10
v_add_u32 v1, s30, v15
s_lshl_b32 s36, s33, 12
s_add_u32 m0, s36, {L_WQ}
s_movk_i32 s3, 0x2000
s_waitcnt lgkmcnt(0)""")
        for i in range(4):
            a(f"global_load_lds_dwordx4 v1, {sWQ}{c.nt}")
            if i < 3: a("s_addk_i32 m0, 0x400\nv_add_u32 v1, s3, v1")
        a(f"""s_branch L_S1
L_C0:
s_cmp_eq_u32 s33, 4
s_cbranch_scc1 L_X0
s_getpc_b64 s[30:31]
s_mulk_i32 s29, {128 * c.pf}
v_lshl_add_u32 v2, v0, 7, s29
s_mov_b64 exec, {(1 << c.pf) - 1}
global_load_dword {vJ}, v2, s[30:31]{c.pfpol}
s_branch L_C
L_X0:
{self.pf0()}s_waitcnt lgkmcnt(0)
global_load_dwordx4 v[32:35], v15, {sX}{c.xpol}
s_branch L_C
L_early_end:""")

    def pf0(self):
        c = self.c
        if not c.pf0: return "s_setprio 3\n"
        return f"s_getpc_b64 s[30:31]\nv_lshlrev_b32 v2, 7, v0\ns_mov_b64 exec, {(1 << c.pf0) - 1 if c.pf0 <= 6 else hex((1 << c.pf0) - 1)}\nglobal_load_dword {vJ}, v2, s[30:31]{c.pf0pol}\ns_mov_b64 exec, -1\n"

    def consts(self):
        self.a("s_mov_b32 s62, 0x05040100\ns_mov_b32 s63, 0x07060302\ns_mov_b32 s64, 0x3f803f80")

    KF, VR, VF, Q, D, P, ON, O, OL, X, T = 16, 48, 80, 112, 128, 136, 140, 144, 176, 184, 192

    def s_stream(self):
        a = self.a; c = self.c
        KF, VR, VF, ON, T = self.KF, self.VR, self.VF, self.ON, self.T
        n = [4]; landed = [-1]
        wins = c.wins
        def signal(off):
            a(f"v_mov_b32 v{T}, 1\ns_mov_b64 s[38:39], exec\ns_mov_b64 exec, 1\nds_add_u32 v{T+12}, v{T} offset:{off}\ns_mov_b64 exec, s[38:39]")
        def throttle():
            w = wins[n[0] - 4]
            if n[0] - w > landed[0]:
                if landed[0] < 3 <= n[0] - w:
                    a(f"s_waitcnt vmcnt({n[0] - 4})")
                    if 'noq' in c.exp: self.stamp(14)
                    a("s_barrier"); self.stamp(1)
                    landed[0] = 3
                if n[0] - w > landed[0]: a(f"s_waitcnt vmcnt({w-1})"); landed[0] = n[0] - w
            if 'noq' in c.exp and n[0] in (4, 8, 12, 16, 20): self.stamp({4: 9, 8: 10, 12: 11, 16: 12, 20: 13}[n[0]])
            if n[0] == c.wo_at: signal(L_CNT)
            n[0] += 1
        a("""L_S1:
s_lshl_b32 s30, s28, 24
s_lshl_b32 s31, s29, 15
s_add_u32 s30, s30, s31
s_add_u32 s30, s30, 0xF00000
s_add_u32 s6, s6, s30
s_addc_u32 s7, s7, 0
s_lshl_b32 s40, s33, 13
s_mov_b32 m0, s40
v_and_b32 v6, 15, v0
v_lshrrev_b32 v7, 4, v0
v_xor_b32 v8, v6, v7
v_lshlrev_b32 v8, 4, v8
v_lshl_add_u32 v9, v7, 8, v8
v_add_u32 v9, s40, v9""")
        if c.rot: a("s_lshl_b32 s37, s29, 2\ns_and_b32 s31, s28, 3\ns_or_b32 s37, s37, s31\ns_lshl_b32 s37, s37, 8\nv_xor_b32 v9, s37, v9")
        else: a("s_mov_b32 s37, 0")
        for i in range(8):
            if i: a(f"s_addk_i32 m0, 0x400\nv_xor_b32 v1, {64*(i&3) + 1024*i}, v9")
            throttle()
            a(f"global_load_lds_dwordx4 {'v1' if i else 'v9'}, {sK}{c.nt}")
            if i == 3:
                a("s_add_u32 s8, s8, s30\ns_addc_u32 s9, s9, 0")
                self.consts()
                a("v_lshlrev_b32 v10, 4, v6\nv_lshl_add_u32 v10, v7, 10, v10\nv_add_u32 v10, s40, v10\nv_xor_b32 v10, s37, v10")
                a("v_lshl_add_u32 v11, v6, 8, v8\nv_add_u32 v11, s40, v11")
                for j in range(1, 4): a(f"v_xor_b32 v{11+j}, {64*j}, v11")
                a("v_lshrrev_b32 v2, 2, v6\nv_lshlrev_b32 v5, 4, v2\nv_lshlrev_b32 v2, 8, v2\nv_lshl_add_u32 v2, v7, 4, v2")
                a(f"s_lshl_b32 s31, s33, 2\ns_add_u32 s31, s31, {L_ST}\nv_add_u32 v5, s31, v5")
                a(f"v_lshlrev_b32 v3, 4, v7\nv_add_u32 v3, s31, v3")
                a(f"s_lshl_b32 s31, s33, 11\ns_add_u32 s31, s31, {L_O}\nv_lshlrev_b32 v4, 2, v0\nv_add_u32 v4, s31, v4")
            if i == 4:
                for k in range(4): a(f"v_mov_b32 v{ON+k}, {sONE}")
                cs = f2u(128**-0.5*1.4426950408889634)
                a(f"v_mov_b32 v{T+6}, 0x{cs:08x}\nv_mov_b32 v{T+7}, 0x{cs:08x}\nv_mov_b32 v{T+5}, 0x{f2u(c.bound):08x}\nv_mov_b32 v{T+12}, 0")
                a(f"v_add_u32 v2, {L_Q}, v2\nv_lshrrev_b32 v{T}, 2, v6")
                for j in range(4): a(f"v_add_u32 v{T+1}, {j}, v{T}\nv_and_b32 v{T+1}, 3, v{T+1}\nv_lshl_add_u32 v{T+8+j}, v{T+1}, 6, v2")
            if i == 5:
                a("""s_mul_i32 s30, s32, 3584
s_mul_i32 s31, s28, 448
s_add_u32 s30, s30, s31
v_and_b32 v184, 31, v0
v_lshl_add_u32 v184, v184, 4, s30
v_cmp_gt_u32 vcc, 32, v0
v_mov_b32 v186, s18
v_mov_b32 v187, s19
v_mov_b32 v188, s16
v_mov_b32 v189, s17
v_cndmask_b32 v186, v186, v188, vcc
v_cndmask_b32 v187, v187, v189, vcc
v_mov_b32 v185, 0
s_mov_b32 s14, 3584
s_mov_b32 s15, 0
v_lshl_add_u64 v[184:185], v[184:185], 0, v[186:187]
s_min_u32 s30, s34, 13
s_lshl_b32 s30, s30, 4
s_mul_i32 s31, s28, 224
s_add_u32 s30, s30, s31
s_lshl2_add_u32 s30, s35, s30
s_lshr_b32 s31, s33, 1
s_lshl3_add_u32 s30, s31, s30
s_and_b32 s31, s33, 1
s_lshl1_add_u32 s30, s31, s30
s_lshl_b32 s30, s30, 10
v_add_u32 v190, s30, v15""")
        for i in range(8):
            if i: a(f"v_xor_b32 v1, {(i>>2)*4096+(i&3)*256}, v10")
            throttle()
            a(f"global_load_dwordx4 v[{VR+4*i}:{VR+4*i+3}], {'v1' if i else 'v10'}, {sV}{c.nt}")
        kread = [False]; vdone = [0]
        def work():
            if landed[0] >= 11 and not kread[0]:
                kread[0] = True
                for t in range(2):
                    for j in range(4): a(f"ds_read_b128 v[{KF+16*t+4*j}:{KF+16*t+4*j+3}], v{11+j} offset:{4096*t}")
            while vdone[0] < 4 and landed[0] >= 13 + 2 * vdone[0]:
                self.vperm(vdone[0]); vdone[0] += 1
        work()
        a(f"s_add_u32 m0, s36, {L_GU}")
        for i in range(4):
            throttle()
            a(f"s_mov_b32 exec_lo, 0x0fffffff\ns_mov_b32 exec_hi, 0x0fffffff\nglobal_load_lds_dwordx4 v[184:185], off{c.nt}\ns_mov_b64 exec, -1")
            if i < 3: a("s_addk_i32 m0, 0x400\nv_lshl_add_u64 v[184:185], v[184:185], 0, s[14:15]")
            else: a(f"s_lshl_b32 s31, s33, 11\ns_add_u32 m0, s31, {L_WD}")
            work()
        for i in range(2):
            throttle()
            a(f"global_load_lds_dwordx4 v190, {sWD} offset:{1024*i}{c.nt}")
            work()
        if c.wo_at >= 26: signal(L_CNT)
        assert kread[0]
        self.vdone = vdone[0]; self.signal = signal
        self.stamp(2)
        a("s_branch L_S2")

    def vperm(self, u):
        for up in range(4):
            for b in range(2):
                self.a(f"v_perm_b32 v{self.VF+4*(2*up+b)+u}, v{self.VR+4*(2*u+1)+up}, v{self.VR+4*(2*u)+up}, {sHI if b else sLO}")

    def s_layers(self):
        a = self.a; c = self.c
        KF, VR, VF, Q, D, P, ON, O, OL, X, T = self.KF, self.VR, self.VF, self.Q, self.D, self.P, self.ON, self.O, self.OL, self.X, self.T
        a("L_S2:")
        for li in range(2):
            if li and any(f"stop{i}" in c.exp for i in range(4)): a("s_endpgm")
            if li: a("s_barrier\n" * 4)
            a(f"v_mov_b32 v{T+4}, 0\ns_waitcnt lgkmcnt(0)\ns_barrier")
            self.stamp(3 + 6 * li)
            if li == 1 and "stop8" in c.exp: a("s_endpgm")
            if 'noq' in c.exp and li == 0:
                a("s_waitcnt vmcnt(0)"); self.stamp(4)
                l = self.lab("x"); a(f"s_cmp_eq_u32 s33, 0\ns_cbranch_scc1 {l}\ns_endpgm\n{l}:"); self.end(2)
            for j in range(4): a(f"ds_read_b128 v[{Q+4*j}:{Q+4*j+3}], v{T+8+j}")
            a(f"ds_write_b32 v5, v{T+4}")
            mf = lambda t, j: a(f"v_mfma_f32_16x16x32_bf16 v[{D+4*t}:{D+4*t+3}], v[{KF+16*t+4*j}:{KF+16*t+4*j+3}], v[{Q+4*j}:{Q+4*j+3}], " + (f"v[{D+4*t}:{D+4*t+3}]" if j else "0"))
            mul = lambda i: a(f"v_pk_mul_f32 v[{X+i}:{X+i+1}], v[{D+i}:{D+i+1}], v[{T+6}:{T+7}]")
            if c.qkov:
                for j in range(4):
                    a(f"s_waitcnt lgkmcnt({4 - j})"); mf(0, j)
                for j in range(4): mf(1, j)
                mul(0); mul(2)
                for i in range(4): a(f"v_exp_f32 v{D+i}, v{X+i}")
                mul(4); mul(6)
                for i in range(4, 8): a(f"v_exp_f32 v{D+i}, v{X+i}")
            else:
                for j in range(4):
                    a(f"s_waitcnt lgkmcnt({4 - j})"); mf(0, j); mf(1, j)
                self.stamp(5 + 6 * li)
                for i in range(0, 8, 2): mul(i)
                for i in range(8): a(f"v_exp_f32 v{D+i}, v{X+i}")
            for u in range(4): a(f"v_cvt_pk_bf16_f32 v{P+u}, v{D+2*u}, v{D+2*u+1}")
            self.stamp(6 + 6 * li)
            if li == 0:
                for u in range(self.vdone, 4):
                    a(f"s_waitcnt vmcnt({12 - 2*u})")
                    self.vperm(u)
                self.stamp(4)
            lfb, lback = self.lab("fallback"), self.lab("pv")
            a(f"{lback}:")
            for e in range(8):
                a(f"v_mfma_f32_16x16x32_bf16 v[{O+4*e}:{O+4*e+3}], v[{P}:{P+3}], v[{VF+4*e}:{VF+4*e+3}], 0")
                if e == 0: a(f"v_max3_f32 v{T}, v{X}, v{X+1}, v{X+2}\nv_max3_f32 v{T+1}, v{X+3}, v{X+4}, v{X+5}")
                if e == 1: a(f"v_max3_f32 v{T}, v{T}, v{X+6}, v{X+7}\nv_max_f32 v{T}, v{T}, v{T+1}")
                if e == 2: a(f"v_cmp_gt_f32 vcc, |v{T}|, v{T+5}")
                if e == 3: a(f"v_mfma_f32_16x16x32_bf16 v[{OL}:{OL+3}], v[{P}:{P+3}], v[{ON}:{ON+3}], 0\ns_cbranch_vccnz {lfb}")
                if e == 5: a(f"ds_write2st64_b32 v4, v{O}, v{O+4} offset0:0 offset1:1")
                if e == 7: a(f"ds_write2st64_b32 v4, v{O+8}, v{O+12} offset0:2 offset1:3\nds_write_b32 v3, v{OL} offset:64")
            for e in range(4, 8, 2): a(f"ds_write2st64_b32 v4, v{O+4*e}, v{O+4*e+4} offset0:{e} offset1:{e+1}")
            a("s_waitcnt lgkmcnt(0)")
            self.stamp(7 + 6 * li)
            a("s_barrier")
            if li == 0:
                a("s_waitcnt vmcnt(0)"); self.signal(L_CN2); a("s_waitcnt lgkmcnt(0)"); self.stamp(8)
            def fbk(fb):
                fb(f"{lfb}:\ns_nop 7")
                self.allred(T, T + 1, "v_max_f32")
                for i in range(8): fb(f"v_sub_f32 v{X+i}, v{X+i}, v{T}")
                for i in range(8): fb(f"v_exp_f32 v{D+i}, v{X+i}\nv_mov_b32 v{X+i}, 0")
                for u in range(4): fb(f"v_cvt_pk_bf16_f32 v{P+u}, v{D+2*u}, v{D+2*u+1}")
                fb(f"ds_write_b32 v5, v{T}\ns_nop 7\ns_branch {lback}")
            self.ool(fbk)
        if c.debug:
            l = self.lab("sdone")
            a(f"s_cmp_eq_u32 s33, 0\ns_cbranch_scc1 {l}\ns_endpgm\n{l}:")
        self.end(2)

    def clear_all(self, sc):
        a = self.a
        a(f"s_mov_b32 exec_hi, 0x00ffffff\nglobal_store_dword {vCLR}, v{NEG}, {sSM} offset:{AGQ[0]}{sc}\ns_mov_b64 exec, -1")
        self.clear_inbox(sB[0], sc)

    def c_pre(self):
        a = self.a; c = self.c
        a(f"""L_C:
s_mov_b64 exec, -1
s_lshr_b32 s29, s2, 3
s_waitcnt lgkmcnt(0)
s_load_dword {sE}, {sWS}, 0
s_mul_i32 s59, s28, {GB_STRIDE}
s_add_u32 s59, s59, {GB_OFF}
v_and_b32 v20, 15, v0
v_lshrrev_b32 v21, 4, v0
v_lshlrev_b32 v22, 2, v0
v_lshlrev_b32 {vXALL}, 4, v0
v_lshrrev_b32 v23, 2, v20
v_and_b32 v24, 3, v0
v_lshl_add_u32 v28, v23, 3, v24
v_add_u32 v28, s60, v28
v_lshlrev_b32 {vPAIR}, 1, v28
v_mov_b64 v[76:77], 0
s_lshr_b32 s30, s59, 21
s_lshr_b32 s31, s28, 2
s_xor_b32 s30, s30, s31
s_xor_b32 s30, s30, {c.bpar}
s_and_b32 s30, s30, {c.band}
s_lshl_b32 s30, s30, 13
s_add_u32 s59, s59, s30
s_lshr_b32 s3, s29, 2
s_lshl_b32 s3, s3, {c.bsh}
s_and_b32 s30, s29, 3
s_lshl_b32 s30, s30, 11
s_add_u32 s3, s3, s30
v_add_u32 {vINX}, s3, {vXALL}
v_add_u32 {vIN}, s3, v22
v_mov_b64 v[{NEG}:{NEG+1}], -1
v_mov_b64 v[{NEG+2}:{NEG+3}], -1
s_cmp_eq_u32 s33, 4
s_cbranch_scc0 L_Ypre""")
        a(f"""v_and_b32 v31, 7, v0
v_lshrrev_b32 v25, 1, v31
v_and_b32 v26, 1, v0
v_lshlrev_b32 v25, 4, v25
v_lshl_add_u32 v25, v26, 2, v25
s_lshl_b32 s31, s60, 1
v_add_u32 v25, s31, v25
s_and_b32 s31, s29, 3
s_lshl_b32 s31, s31, 5
s_lshr_b32 s32, s29, 2
s_lshl_b32 s32, s32, 2
s_add_u32 s31, s31, s32
v_lshl_add_u32 v27, v31, 7, s31
v_cmp_gt_u32 vcc, 40, v0
v_lshrrev_b32 {vCLR}, 3, v0
v_lshlrev_b32 {vCLR}, 10, {vCLR}
v_cndmask_b32 v25, v27, v25, vcc
v_add_u32 {vCLR}, {vCLR}, v25
v_and_b32 v25, 6, v0
v_lshlrev_b32 v25, 3, v25
v_lshl_add_u32 v25, v26, 2, v25
s_lshl_b32 s31, s60, 1
v_add_u32 {vPAIR8}, s31, v25
global_load_dword {vX1}, {vPAIR8}, {sX}{c.xpol}""")
        assert OSTAT[0] - AGQ[0] == 5 * 1024 and OSTAT[1] - OSTAT[0] == 1024
        self.bases()
        self.clear_all("")
        if c.touch:
            a(f"v_lshlrev_b32 v29, 17, v21\nv_lshl_add_u32 v29, v20, 7, v29\nv_add_u32 v29, s3, v29\ns_mov_b32 exec_hi, 0xffff\nglobal_load_dword {vJ}, v29, {sB[0]}{c.tpol}\ns_mov_b64 exec, -1")
            a(f"s_lshl_b32 s30, s29, 8\nv_lshl_add_u32 v29, v0, 7, s30\ns_mov_b64 exec, 3\nglobal_load_dword {vJ}, v29, {sSM} offset:-4096{c.tpol}\ns_mov_b64 exec, -1")
        a(f"s_branch L_Cjoin\nL_Ypre:\nv_mov_b32 {vCLR}, 0\nv_mov_b32 {vPAIR8}, 0")
        if c.tlb:
            nl = c.tlb
            a(f"""s_lshl_b32 s30, s28, 24
s_lshl_b32 s31, s29, 15
s_add_u32 s30, s30, s31
s_add_u32 s30, s30, 0xF00000
v_lshl_add_u32 v25, v0, 13, s30
s_mul_i32 s30, s60, 3584
s_mul_i32 s31, s28, 448
s_add_u32 s30, s30, s31
v_mul_u32_u24 v26, 28672, v0
v_add_u32 v26, s30, v26
s_min_u32 s30, s34, 13
s_lshl_b32 s30, s30, 4
s_mul_i32 s31, s28, 224
s_add_u32 s30, s30, s31
s_lshl_b32 s30, s30, 10
v_lshl_add_u32 v27, v0, 12, s30
s_and_b32 s31, s29, 3
s_lshl_b32 s31, s31, 7
s_lshr_b32 s32, s29, 2
s_add_u32 s31, s31, s32
s_lshl_b32 s32, s28, 9
s_add_u32 s31, s31, s32
s_lshl_b32 s31, s31, 10
v_lshl_add_u32 v29, v0, 15, s31
s_mov_b64 exec, {(1 << nl) - 1}
global_load_dword {vJ}, v26, {sWG} nt
global_load_dword {vJ}, v26, {sWU} nt
global_load_dword {vJ}, v27, {sWD} nt
global_load_dword {vJ}, v25, {sK} nt
global_load_dword {vJ}, v25, {sV} nt
global_load_dword {vJ}, v29, {sWO} nt
s_mov_b64 exec, -1""")
        a(f"global_load_ushort {vJ}, {vPAIR}, {sOUT}")
        self.bases()
        a("L_Cjoin:")
        self.consts()
        a(f"""s_getreg_b32 s61, hwreg(HW_REG_XCC_ID, 0, 4)
v_mov_b32 {vMASK}, 0xff
s_lshr_b32 s31, s29, 3
s_lshl_b32 s31, s31, 14
s_and_b32 s32, s29, 7
s_lshl_b32 s32, s32, 10
s_add_u32 s31, s31, s32
v_lshrrev_b32 {vGIN}, 3, v0
v_lshlrev_b32 {vGIN}, 7, {vGIN}
v_and_b32 v25, 7, v0
v_lshl_add_u32 {vGIN}, v25, 3, {vGIN}
v_add_u32 {vGIN}, s31, {vGIN}
s_lshl_b32 s32, s28, 7
s_add_u32 s31, s31, s32
v_lshl_add_u32 {vGPUB}, v20, 2, s31
v_and_b32 v26, 1, v21
v_lshl_add_u32 {vGPUB}, v26, 13, {vGPUB}
v_lshlrev_b32 {vAQ}, 2, v21
v_sub_u32 {vAQ}, v0, {vAQ}
v_and_b32 {vAQ}, 15, {vAQ}
v_lshl_add_u32 {vAQ}, v21, 4, {vAQ}
v_lshlrev_b32 {vAQ}, 4, {vAQ}
v_lshlrev_b32 v25, {c.bsh}, v21
v_lshl_add_u32 v25, v23, 11, v25
v_lshl_add_u32 v25, v24, 4, v25
s_lshl_b32 s31, s29, 6
v_add_u32 {vPUB}, s31, v25
v_add_u32 {vPUB2}, {4 << c.bsh}, {vPUB}
s_mul_i32 s31, s35, 14
s_add_u32 s31, s31, s34
s_lshl_b32 s31, s31, 6
v_add_u32 {vDN}, s31, v25
v_add_u32 {vDN2}, {4 << c.bsh}, {vDN}
s_and_b32 s31, s29, 3
s_lshl_b32 s32, s31, 8
v_lshl_add_u32 {vOSI}, v21, 5, s32
s_lshl_b32 s31, s31, 5
s_lshr_b32 s32, s29, 2
s_lshl_b32 s32, s32, 2
s_add_u32 s31, s31, s32
v_and_b32 v26, 1, v0
v_and_b32 v27, 3, v23
v_lshlrev_b32 {vOSP}, 8, v27
v_lshl_add_u32 {vOSP}, v26, 7, {vOSP}
v_add_u32 {vOSP}, s31, {vOSP}
s_sub_u32 s31, s33, 4
s_lshl_b32 s31, s31, 10
s_add_u32 s31, s31, {L_O}
v_add_u32 {vLDS}, s31, {vXALL}
v_lshlrev_b32 {vLST}, 4, v27
v_add_u32 {vLST}, {L_ST}, {vLST}
s_mov_b32 s66, 0xaaaaaaaa
s_mov_b32 s67, 0xaaaaaaaa
s_mov_b32 s14, -1
s_mov_b32 s15, 0x00ffffff
s_and_b32 s31, s29, 3
s_lshl_b32 s31, s31, 7
s_lshr_b32 s32, s29, 2
s_add_u32 s31, s31, s32
s_lshl_b32 s32, s28, 9
s_add_u32 s31, s31, s32
s_lshl_b32 s31, s31, 10
v_add_u32 {vWO}, s31, {vXALL}
v_and_b32 {vXC}, 31, v0
v_lshlrev_b32 {vXC}, 2, {vXC}
s_cmp_eq_u32 s33, 4
s_cbranch_scc0 L_Y""")

    def lds_wait(self, off, n):
        l = self.lab("cnt")
        self.a(f"{l}:\nds_read_b32 v{TMP+1}, {vZERO} offset:{off}\ns_sub_u32 {sCN2}, {sCN2}, 1\ns_cbranch_scc1 L_exit\ns_waitcnt lgkmcnt(0)")
        self.a(f"v_cmp_gt_u32 vcc, {n}, v{TMP+1}\ns_cbranch_vccnz {l}")

    def prewrite(self, val):
        self.a(f"v_lshrrev_b32 v{TMP}, 5, v0\nv_lshlrev_b32 v{TMP}, 16, v{TMP}\nv_add_u32 v{TMP}, v{TMP}, {vGPUB}")
        self.a(f"global_atomic_swap v{TMP}, {vZERO}, {sG[0]}\nglobal_atomic_swap v{TMP}, {vZERO}, {sG[2]}")

    def bases(self):
        a = self.a
        a("s_add_u32 s36, s26, s59\ns_addc_u32 s37, s27, 0")
        a(f"s_add_u32 s46, s36, {SM}\ns_addc_u32 s47, s37, 0")
        for i in range(1, 5): a(f"s_add_u32 s{36+2*i}, s36, {BSTR*i}\ns_addc_u32 s{37+2*i}, s37, 0")
        for k in range(4): a(f"s_add_u32 s{48+2*k}, s26, {G_OFF+G_STRIDE*k}\ns_addc_u32 s{49+2*k}, s27, 0")

    def combine(self, li, base, half, sc):
        a = self.a
        gen_c, back_c = self.lab("cgen"), self.lab("cback")
        addr = vPUB2 if half else vPUB
        a(f"ds_read_b128 v[{T2}:{T2+3}], {vLST}")
        if not half: a(f"ds_read_b128 v[{T2+4}:{T2+7}], {vLST} offset:64")
        for w in range(4): a(f"ds_read_b128 v[{TMP+4*w}:{TMP+4*w+3}], {vLDS} offset:{2048*w}")
        a(f"s_waitcnt lgkmcnt(4)\nv_or3_b32 v{GA+2}, v{T2}, v{T2+1}, v{T2+2}\nv_or_b32 v{GA+2}, v{GA+2}, v{T2+3}\nv_cmp_ne_u32 vcc, 0, v{GA+2}")
        lst = f"global_store_dword {vOSP}, v{GA}, {sSM} offset:{OSTAT[li]}{sc}\ns_mov_b64 exec, -1"
        if not half: a(f"v_pk_add_f32 v[{GA}:{GA+1}], v[{T2+4}:{T2+5}], v[{T2+6}:{T2+7}]\nv_add_f32 v{GA}, v{GA}, v{GA+1}")
        a(f"s_waitcnt lgkmcnt(2)\nv_pk_add_f32 v[{ACC}:{ACC+1}], v[{TMP}:{TMP+1}], v[{TMP+4}:{TMP+5}]\ns_cbranch_vccnz {gen_c}")
        if not half: a(f"s_mov_b64 exec, 0x2222\n{lst}")
        a(f"v_pk_add_f32 v[{ACC+2}:{ACC+3}], v[{TMP+2}:{TMP+3}], v[{TMP+6}:{TMP+7}]\ns_waitcnt lgkmcnt(1)")
        a(f"v_pk_add_f32 v[{ACC}:{ACC+1}], v[{ACC}:{ACC+1}], v[{TMP+8}:{TMP+9}]\nv_pk_add_f32 v[{ACC+2}:{ACC+3}], v[{ACC+2}:{ACC+3}], v[{TMP+10}:{TMP+11}]\ns_waitcnt lgkmcnt(0)")
        a(f"v_pk_add_f32 v[{ACC}:{ACC+1}], v[{ACC}:{ACC+1}], v[{TMP+12}:{TMP+13}]\nv_pk_add_f32 v[{ACC+2}:{ACC+3}], v[{ACC+2}:{ACC+3}], v[{TMP+14}:{TMP+15}]")
        a(f"{back_c}:\nglobal_store_dwordx4 {addr}, v[{ACC}:{ACC+3}], {base}{sc}")
        def cgen(fb):
            fb(f"{gen_c}:\ns_waitcnt lgkmcnt(0)")
            fb(f"v_max3_f32 v{GA}, v{T2}, v{T2+1}, v{T2+2}\nv_max_f32 v{GA}, v{GA}, v{T2+3}")
            for w in range(4): fb(f"v_sub_f32 v{T2+w}, v{T2+w}, v{GA}")
            for w in range(4): fb(f"v_exp_f32 v{T2+w}, v{T2+w}")
            for w in range(4):
                for j in range(4):
                    fb(f"v_mul_f32 v{ACC+j}, v{T2}, v{TMP+j}" if w == 0 else f"v_fmac_f32 v{ACC+j}, v{T2+w}, v{TMP+4*w+j}")
            if not half:
                fb(f"v_mul_f32 v{GA+1}, v{T2}, v{T2+4}")
                for w in range(1, 4): fb(f"v_fmac_f32 v{GA+1}, v{T2+w}, v{T2+4+w}")
                fb(f"v_or_b32 v{GA+1}, 0x80000000, v{GA+1}\nv_cndmask_b32 v{GA}, v{GA}, v{GA+1}, {sODD}\ns_mov_b64 exec, 0x3333\n{lst}")
            fb(f"s_nop 1\ns_branch {back_c}")
        self.ool(cgen)

    def colsum_gather(self, base, issue, wait=True):
        loads = self.rs_loads(base, PC)
        if issue:
            self.a(loads); return
        a = self.a
        top, chk = self.lab("cs"), self.lab("cschk")
        self.tag(1)
        a(f"s_mov_b32 {sCNT}, {self.c.limit * self.c.outer}")
        if wait: a("s_waitcnt vmcnt(0)")
        a(f"{chk}:")
        self.tagged_sum(PC)
        a(f"s_cbranch_vccnz {top}")
        self.tail.append(f"{top}:\n{loads}\ns_waitcnt vmcnt(0)\ns_sub_u32 {sCNT}, {sCNT}, 1\ns_cbranch_scc0 {chk}\ns_endpgm\n")
        self.allred(GA, TMP)
        a(f"v_mov_b32 {vCS}, v{GA}")

    def x_head(self):
        a = self.a
        nt3 = 2 * int(bool(self.c.touch)); pw = int(self.c.prew == 1)
        self.zero_acc()
        if 'noq' in self.c.exp: self.stamp(5)
        a(f"v_add_u32 v{T2}, {L_WQ}, {vXALL}\ns_waitcnt lgkmcnt(0)\ns_barrier")
        self.stamp(1)
        if 'noq' in self.c.exp:
            a("s_barrier"); self.end(0)
        self.WQ = []
        self.lds_weights(self.WQ, WA, f"v{T2}", 0, 8)
        if pw: self.prewrite(0)
        a(f"s_waitcnt vmcnt({3 + nt3 + pw})")
        self.stats_pre(); self.stats(32)
        a(f"v_lshlrev_b32 {vX}, 16, {vX1}\nv_and_b32 {vX1}, 0xffff0000, {vX1}\nv_sub_f32 v{GA}, {vX}, {vMU}\nv_sub_f32 v{GA+1}, {vX1}, {vMU}")
        a(f"v_cvt_pk_bf16_f32 {vPR}, v{GA}, v{GA+1}")
        self.tag(1)
        for kp in range(8): self.dots(self.WQ, kp, lane=kp)
        self.xspare = self.spare
        a(f"s_waitcnt vmcnt({nt3 + pw})\ns_setprio 0")
        self.stamp(2)

    def x_program(self, slow):
        a = self.a; c = self.c
        sc = " sc1" if slow else ""
        self.spare = self.xspare
        if slow:
            self.clear_all(sc)
            a("s_waitcnt vmcnt(0)")
            self.zero_acc()
            for kp in range(8): self.dots(self.WQ, kp, lane=kp)
        self.tagged_publish(sB[1], sc)
        a(f"s_add_u32 s3, {sE}, 1\ns_lshl_b32 s3, s3, 4\ns_add_u32 s32, s3, 16\ns_or_b32 s3, s3, {sXCC}\ns_add_u32 s24, s3, 16")
        def xword():
            a(f"v_mov_b32 v{TMP}, {'s24' if slow else 's3'}\ns_lshl_b32 s31, s29, 2\nv_mov_b32 v{TMP+1}, s31")
            a(f"s_mov_b64 exec, 1\nglobal_store_dword v{TMP+1}, v{TMP}, {sSM} offset:{XCC}{sc}\ns_mov_b64 exec, -1")
        if not slow: xword()
        self.stamp(3)
        def check0(off):
            a(f"s_waitcnt vmcnt({off})\nv_cmp_ne_u32 s[30:31], s3, v{PX}")
            if slow:
                a(f"v_cmp_ne_u32 vcc, s24, v{PX}\nv_and_b32 v{TMP+2}, -16, v{PX}\ns_and_b64 s[30:31], s[30:31], vcc\nv_cmp_ne_u32 vcc, s32, v{TMP+2}")
                a("s_cmp_eq_u64 s[30:31], 0\ns_cselect_b64 s[30:31], 0, vcc")
            self.tagged_sum(PL)
            a("s_or_b64 vcc, vcc, s[30:31]")
        loads = self.rs_loads(sB[1], PL) + f"\nglobal_load_dword v{PX}, {vXC}, {sSM} offset:{XCC} sc1"
        self.zero_acc()
        for kp in range(8): self.dots(self.WQ, kp, sONE)
        self.tagged_publish(sCQ, sc)
        if c.force_slow and not slow: a("s_branch L_Xslow")
        if slow:
            a("s_waitcnt vmcnt(0)")
            xword()
            self.poll("q0", loads, check0, (1, 0, 0))
        else:
            self.poll("q0", loads, check0, c.q0, bound=c.limit1, over=lambda fb, ov, top: fb(f"{ov}:\ns_branch L_Xslow"), pace=c.pace)
        GU = []
        self.allred(GA, TMP)
        a(f"v_mul_f32 v{GA}, v{GA}, {vRS}")
        self.stamp(4)
        for li in range(2):
            h = 5 * li
            B = lambda k: HB(h + k)
            st = (lambda i: self.stamp(i)) if li == c.stamp_layer else (lambda i: None)
            self.pack(GA)
            self.pair_store(sSM, AGQ[li], sc)
            self.clear_inbox(B(1), sc)
            st(5)
            def qbody(off):
                a(f"s_waitcnt vmcnt({off})\nv_max3_u32 v{TMP}, v{PX}, v{PX+1}, v{PX+2}\nv_max_u32 v{TMP}, v{TMP}, v{PX+3}\nv_cmp_eq_u32 vcc, -1, v{TMP}")
            ql = f"global_load_dwordx4 v[{PX}:{PX+3}], {vAQ}, {sSM} offset:{AGQ[li]} sc1"
            if li == 0:
                a(f"v_mov_b32 v{TMP+1}, {int(slow)}\nds_write_b32 {vZERO}, v{TMP+1} offset:{L_MODE}")
                self.colsum_gather(sCQ, True)
                self.poll("aq", ql, qbody, c.a0, pace=c.pace)
            else: self.poll("aq", ql, qbody, c.aq)
            a(f"ds_write_b128 {vXALL}, v[{PX}:{PX+3}] offset:{L_Q}\ns_waitcnt lgkmcnt(0)\ns_barrier")
            if li == 1 and "stop8" in c.exp: a("s_endpgm")
            if li == 0:
                self.colsum_gather(sCQ, False, wait=False)
                self.clear_inbox(sCQ, sc)
            if li == 0:
                if c.prew == 2: self.prewrite(0)
                if not c.touch: a(f"s_lshl_b32 s30, s29, 8\nv_lshl_add_u32 v{TMP+2}, v0, 7, s30\ns_mov_b64 exec, 3\nglobal_load_dword {vJ}, v{TMP+2}, {sSM} offset:-4096 sc1\ns_mov_b64 exec, -1")
            a("s_barrier")
            st(6)
            self.combine(li, B(2), 0, sc)
            if li == 1 and "stop9" in c.exp: a("s_endpgm")
            st(7)
            if li == 0:
                a(f"v_lshrrev_b32 v{T2}, 1, v0\nv_lshlrev_b32 v{T2}, 4, v{T2}\nv_and_b32 v{T2+1}, 1, v0\nv_lshl_add_u32 v{T2}, v{T2+1}, 9, v{T2}\nv_add_u32 v{T2}, {L_GU}, v{T2}")
                a(f"s_mov_b32 {sCN2}, {c.limit * c.outer * 4}")
                self.zero_acc()
                if c.b2x_first: a("s_waitcnt vmcnt(0)"); st(8); a("s_barrier")
                self.lds_wait(L_CN2, 4)
                st(9)
                self.lds_weights(GU, WB, f"v{T2}", 0, 8, lambda kp: self.dots(GU, kp, sONE))
                self.tagged_publish(sCG, sc or c.cs_sc, M56)
                st(13)
            if li == 0 and not c.b2x_first: a("s_waitcnt vmcnt(2)\ns_barrier")
            for half in range(2):
                k = 2 * li + half
                last = k == 3
                self.zero_acc()
                self.tag(11 + k)
                a("s_barrier")
                if f"stop{2*k}" in c.exp: a("s_endpgm")
                if not last: self.clear_inbox(B(2 + 2 * half), sc) if (li == 0 or half == 0) else None
                if last and c.fown:
                    a(f"v_and_b32 v{T2}, 7, v0\nv_lshlrev_b32 v{T2}, 3, v{T2}\ns_mov_b64 s[24:25], 0xff\ns_lshl_b64 s[24:25], s[24:25], {8 * c.fing}")
                self.rs_gather("out", B(3 + 2 * half), 7 if half else 8, mid=f"s_cmp_eq_u32 s28, {c.fing}" if last and c.fown else None)
                gpub = f"{c.gexec}\nglobal_atomic_swap {vGPUB}, v{GA}, {sG[k]}\ns_mov_b64 exec, -1"
                a(f"v_bfi_b32 v{GA}, {vMASK}, {sT}, v{GA}")
                own = last and c.fown
                if own:
                    l = self.lab("lastpub")
                    a(f"s_cbranch_scc0 {l}")
                    self.ool(lambda fb: (fb(f"{l}:\n{gpub}"), self.end(0)))
                else: a(gpub)
                if li == 0: self.clear_inbox(B(3 + 2 * half), sc)
                st(10 + 4 * half)
                fin = self.lab("fin")
                if k == 2:
                    l = self.lab("noep")
                    a(f"s_cmp_eq_u32 s2, 0\ns_cbranch_scc0 {l}\ns_add_u32 s30, {sE}, {NTAGS}\nv_mov_b32 v{TMP}, s30\ns_mov_b64 exec, 1\nglobal_store_dword {vZERO}, v{TMP}, {sWS} sc1\ns_mov_b64 exec, -1\n{l}:")
                if not slow and c.fclean:
                    if k == 2 and c.fclean & 1: self.clear_inbox(B(3), " sc1")
                    if last:
                        if not c.fclean & 1: self.clear_inbox(B(3), " sc1")
                        self.clear_inbox(B(4), " sc1"); self.clear_inbox(B(5), " sc1")
                if last and c.wb and not slow:
                    l = self.lab("nowb")
                    if c.wb & 1: a(f"s_cmp_eq_u32 s29, {c.wbc}\ns_cbranch_scc0 {l}")
                    if c.wb & 2: a(f"s_cmp_eq_u32 s28, 0\ns_cbranch_scc1 {l}")
                    a(f"buffer_wbl2 sc1\n{l}:")
                if last and "stop7" in c.exp: a("s_endpgm")
                if own: pass
                elif last and c.fing < 8: a(f"s_cmp_eq_u32 s28, {c.fing}\ns_cbranch_scc0 {fin}")
                elif last: a(f"s_and_b32 s30, s29, 7\ns_cmp_eq_u32 s28, s30\ns_cbranch_scc0 {fin}")
                depth, delay, gap, gap2 = c.gl if last else c.g
                top = self.lab("g")
                gl = f"global_atomic_or_x2 v[{PG}:{PG+1}], {vGIN}, v[76:77], {sG[k]} sc0"
                if own:
                    gl0 = gl; gl = f"s_mov_b64 exec, vcc\n{gl0}\ns_mov_b64 exec, -1"
                    a(f"s_not_b64 vcc, s[24:25]")
                    self.nops(c.fod)
                    a(f"{gl}\nds_bpermute_b32 v{T2+2}, v{T2}, v{GA}\nds_bpermute_b32 v{T2+3}, v{T2}, v{GA} offset:4\ns_mov_b32 {sCNT}, {c.limit * c.outer}")
                    a(f"s_waitcnt lgkmcnt(0)\ns_mov_b64 exec, s[24:25]\nv_mov_b64 v[{PG}:{PG+1}], v[{T2+2}:{T2+3}]\ns_mov_b64 exec, -1")
                else: a(f"s_mov_b32 {sCNT}, {c.limit * c.outer}\ns_mov_b64 vcc, -1")
                if k == 0:
                    a(f"ds_read_b32 v{TMP}, {vZERO} offset:{L_PAR}\ns_lshr_b32 s30, {sXCC}, 2\ns_waitcnt lgkmcnt(0)\nv_readfirstlane_b32 s31, v{TMP}")
                    a(f"s_cmp_gt_i32 s31, {c.gthr}\ns_cselect_b32 s31, 0, 1\ns_xor_b32 s30, s30, s31\ns_and_b32 s30, s30, 1\ns_lshl_b32 s30, s30, 13\nv_add_u32 {vGIN}, s30, {vGIN}")
                    if c.dbgpar: a(f"s_load_dwordx2 s[44:45], s[0:1], 80\ns_waitcnt lgkmcnt(0)\ns_cmp_eq_u32 s2, 4\ns_cbranch_scc0 {top}_np\nglobal_store_dword {vZERO}, v{TMP}, s[44:45]\n{top}_np:")
                    delay = 0
                self.nops(delay)
                if c.gform == 0:
                    for j in range(depth - 1):
                        a(gl); self.nops(gap)
                    a(f"{top}:\ns_mov_b64 exec, vcc\n{gl}\ns_mov_b64 exec, -1\ns_sub_u32 {sCNT}, {sCNT}, 1\ns_cbranch_scc1 L_exit")
                else:
                    for j in range(1 if own else 0, depth):
                        a(gl)
                        if j < depth - 1: self.nops(gap)
                    if own: gl = gl0
                    a(f"{top}_c:")
                    self.tail.append(f"{top}:\ns_mov_b64 exec, vcc\n{gl}\ns_mov_b64 exec, -1\ns_sub_u32 {sCNT}, {sCNT}, 1\ns_cbranch_scc0 {top}_c\ns_endpgm\n")
                a(f"""s_waitcnt vmcnt({depth - 1})
v_xor_b32 v{GA}, {sT}, v{PG}
v_xor_b32 v{GA+1}, {sT}, v{PG+1}
v_or_b32 v{TMP+1}, v{GA}, v{GA+1}
v_cmp_ne_u32_sdwa vcc, v{TMP+1}, 0 src0_sel:BYTE_0 src1_sel:DWORD
v_permlane32_swap_b32 v{GA}, v{GA+1}
v_add_f32 v{GA}, v{GA}, v{GA+1}
v_mov_b32 v{TMP}, v{GA}
s_cbranch_vccnz {top}
v_permlane16_swap_b32 v{GA}, v{TMP}
v_add_f32 v{GA}, v{GA}, v{TMP}
v_add_f32_dpp v{GA}, v{GA}, v{GA} row_ror:8 {DPP}
v_mov_b32 v{GA+1}, v{GA}
v_permlane32_swap_b32 v{GA}, v{GA+1}
v_add_f32 v{GA}, v{GA}, {vX}
v_add_f32 v{GA+1}, v{GA+1}, {vX1}
v_cvt_pk_bf16_f32 {vPR}, v{GA}, v{GA+1}""")
                pst = lambda base, off, s_: a(f"s_mov_b64 exec, 0xff\nglobal_store_dword {vPAIR8}, {vPR}, {base} offset:{off}{s_}\ns_mov_b64 exec, -1")
                if last:
                    if "noout" not in c.exp: pst(sOUT, 0, c.opol)
                    a(f"{fin}:")
                    self.end(0)
                    break
                if half == 0: st(11)
                elif c.stamp_layer == 1: self.stamp(13)
                pst(sSM, XALL[k], sc)
                if half == 0:
                    a("s_barrier")
                    if f"stop{2*k+1}" in c.exp: a("s_endpgm")
                    self.gemv(GU, B(4), sc, lanes=range(8), mask=M56)
                    a(f"v_lshlrev_b32 {vX}, 16, {vPR}\nv_and_b32 {vX1}, 0xffff0000, {vPR}")
                    st(12)
                else:
                    st2 = (lambda i: self.stamp(i)) if c.stamp_layer == 1 else (lambda i: None)
                    self.gemv(self.WQ, HB(6), sc, lanes=range(8), hook=(c.xh, self.xload(1)))
                    a(f"v_lshlrev_b32 {vX}, 16, {vPR}\nv_and_b32 {vX1}, 0xffff0000, {vPR}")
                    st2(2)
                    if "stop3" in c.exp: a("s_endpgm")
                    self.rs_gather("q", HB(6), ln=1, xafter=1)
                    a(f"v_fma_f32 v{GA}, v{GA}, {vRS}, {vNM}")
                    st2(4)

    def y_head(self):
        a = self.a; c = self.c
        a(f"L_Y:\nds_write_b64 {vZERO}, v[{TMP}:{TMP+1}] offset:{L_CNT}\nv_add_u32 v{T2}, {L_WD}, {vXALL}\ns_waitcnt lgkmcnt(0)\ns_barrier".replace("L_Y:", f"L_Y:\nv_mov_b64 v[{TMP}:{TMP+1}], 0"))
        self.stamp(1)
        if c.probe:
            a(f"s_lshl_b32 s30, s28, 14\ns_and_b32 s31, s29, 15\ns_lshl_b32 s31, s31, 8\ns_add_u32 s30, s30, s31\ns_lshr_b32 s31, s29, 4\ns_lshl_b32 s31, s31, 17\ns_add_u32 s30, s30, s31\ns_add_u32 s30, s30, {PROBE}\ns_add_u32 s16, s26, s30\ns_addc_u32 s17, s27, 0")
            a("s_load_dword s20, s[16:17], 64\ns_mov_b32 s8, 0\ns_waitcnt lgkmcnt(0)\ns_memtime s[18:19]\ns_waitcnt lgkmcnt(0)")
            for i, off in enumerate((8192, 128, 4096, 8192 + 128, 8192 + 4096, 4096 + 128, 12288+128, 0)[:2 * c.probe]):
                a(f"s_load_dword s20, s[16:17], {off}\ns_waitcnt lgkmcnt(0)\ns_memtime s[6:7]\ns_waitcnt lgkmcnt(0)\ns_sub_u32 s9, s6, s18\ns_mov_b32 s18, s6")
                a(f"{'s_sub_u32' if off & 8192 else 's_add_u32'} s8, s8, s9")
                if c.debug and i & 1: a(f"s_add_u32 s{70 + 2*(3, 4, 10, 11)[i >> 1]}, s70, s8\ns_add_u32 s{70 + 2*(3, 4, 10, 11)[i >> 1]}, s{70 + 2*(3, 4, 10, 11)[i >> 1]}, 50000")
        a(f"s_sub_u32 s9, 0, s8\ns_cmp_ge_u32 {sXCC}, 4\ns_cselect_b32 s8, s8, s9\ns_min_i32 s8, s8, 0x3fff\ns_max_i32 s8, s8, -0x3fff")
        a(f"v_mov_b32 v{TMP}, s8\nds_write_b32 {vZERO}, v{TMP} offset:{L_PAR}\ns_add_u32 s25, {sE}, 3\ns_and_b32 s25, s25, 0xffff\ns_lshl_b32 s24, s8, 16\ns_or_b32 s24, s24, s25")
        a(f"v_mov_b32 v{TMP}, s24\ns_lshl_b32 s30, s29, 2\nv_mov_b32 v{TMP+1}, s30\ns_mov_b64 exec, 1\nglobal_store_dword v{TMP+1}, v{TMP}, {sSM} offset:{PARR}\ns_mov_b64 exec, -1")
        a(f"s_mov_b32 {sCN2}, {c.limit * c.outer * 4}")
        self.spare = SPARE
        for grp in range(4):
            self.lds_wait(L_CNT, grp + 1)
            if grp == 0: a(f"global_load_dwordx4 v[{PC}:{PC+3}], {vINX}, {sCG} sc1\nglobal_load_dwordx4 v[{PC}:{PC+3}], {vINX}, {sCG} offset:1024 sc1")
            for k in range(4 * grp, 4 * grp + 4):
                a(f"global_load_dwordx4 v[{WA+4*k}:{WA+4*k+3}], {vWO}, {sWO}{c.nt}")
                if k < 15: a(f"v_add_u32 {vWO}, 8192, {vWO}")
        for x in c.help:
            a(f"""s_xor_b32 s30, s29, {x}
s_and_b32 s31, s30, 3
s_lshl_b32 s31, s31, 7
s_lshr_b32 s30, s30, 2
s_add_u32 s31, s31, s30
s_lshl_b32 s30, s28, 9
s_add_u32 s31, s31, s30
s_lshl_b32 s31, s31, 10
s_add_u32 s31, s31, 65536
v_lshrrev_b32 v{TMP}, 3, v0
v_lshlrev_b32 v{TMP}, 13, v{TMP}
v_and_b32 v{TMP+1}, 7, v0
v_lshl_add_u32 v{TMP}, v{TMP+1}, 7, v{TMP}
v_add_u32 v{TMP}, s31, v{TMP}
global_load_dword {vJ}, v{TMP}, {sWO}{c.hpol}""")
        self.stamp(2)
        a(f"s_barrier\nds_read_b32 v{TMP+1}, {vZERO} offset:{L_MODE}")
        if 'noq' in self.c.exp: a("s_waitcnt vmcnt(0)"); self.end(1)
        a(f"s_waitcnt lgkmcnt(0)\nv_readfirstlane_b32 s3, v{TMP+1}\ns_cmp_eq_u32 s3, 0\ns_cbranch_scc0 L_Yslow")

    def y_program(self, slow):
        a = self.a; c = self.c
        sc = " sc1" if slow else ""
        spare0 = self.spare
        WO = []; WD = []
        for li in range(2):
            h = 5 * li
            B = lambda k: HB(h + k)
            st = (lambda i: self.stamp(i)) if li == c.stamp_layer else (lambda i: None)
            if li: a("s_barrier")
            if li == 1 and "stop8" in c.exp: a("s_endpgm")
            a("s_barrier")
            st(6)
            self.combine(li, B(2), 1, sc)
            if li == 1 and "stop9" in c.exp: a("s_endpgm")
            st(7)
            if li == 0: a(f"global_load_dword v{PG}, {vXC}, {sSM} offset:{PARR} sc1")
            y, z, t, L = PL, GA, TMP, PM + 8
            loads = "".join(f"global_load_dwordx4 v[{L+4*i}:{L+4*i+3}], {vOSI}, {sSM} offset:{OSTAT[li]+128+16*i} sc1\n" for i in range(2))
            loads += self.rs_loads(B(2), PL)
            def shadow(nafter):
                a(f"v_add_u32 v{T2}, {L_WD}, {vXALL}\ns_mov_b32 {sCN2}, {c.limit * c.outer * 4}")
                self.lds_wait(L_CN2, 4)
                self.lds_weights(WD, WB, f"v{T2}", 0, 4)
                a(f"s_mov_b32 {sCN2}, {c.outer}")
                for kp in range(8):
                    a(f"s_waitcnt vmcnt({14 - 2*kp + 2 + len(c.help) + nafter})")
                    self.perm_pair(WO, WA, kp)
            onorm, ogen = self.lab("onorm"), self.lab("ogen")
            def obody(off):
                a(f"""s_waitcnt vmcnt({off + 4})
v_pk_add_f32 v[{z}:{z+1}], v[{y}:{y+1}], v[{y+2}:{y+3}]
v_pk_add_f32 v[{LA}:{LA+1}], v[{L}:{L+1}], v[{L+2}:{L+3}]
v_pk_add_f32 v[{LA+2}:{LA+3}], v[{L+4}:{L+5}], v[{L+6}:{L+7}]
v_pk_add_f32 v[{LA}:{LA+1}], v[{LA}:{LA+1}], v[{LA+2}:{LA+3}]
v_add_f32 v{LA}, v{LA}, v{LA+1}
s_waitcnt vmcnt({off})
v_pk_add_f32 v[{z+2}:{z+3}], v[{y+4}:{y+5}], v[{y+6}:{y+7}]
v_pk_add_f32 v[{z}:{z+1}], v[{z}:{z+1}], v[{z+2}:{z+3}]
v_add_f32 v{z}, v{z}, v{z+1}
v_cmp_u_f32 vcc, v{z}, v{LA}
v_or3_b32 v{t+2}, v{L}, v{L+1}, v{L+2}
v_permlane32_swap_b32 v{z}, v{LA}
v_add_f32 v{z}, v{z}, v{LA}
v_mov_b32 v{t}, v{z}""")
            def oover(fb, ov, top):
                fb(f"{ov}:\ns_sub_u32 {sCN2}, {sCN2}, 1\ns_cbranch_scc1 L_exit\ns_mov_b32 {sCNT}, {c.limit}\ns_waitcnt vmcnt(0)")
                self.umax(t, list(range(y, y + 8)) + list(range(L, L + 8)))
                fb(f"v_cmp_eq_u32 vcc, -1, v{t}\ns_cbranch_vccnz {top}\ns_branch {ogen}")
            self.zero_acc()
            a(f"s_mov_b32 {sCN2}, {c.outer}")
            self.poll("o", loads, obody, c.ro if li else (1, 0, 0), shadow if li == 0 else None, bound=c.limit, over=oover)
            a(f"""v_or3_b32 v{t+2}, v{t+2}, v{L+3}, v{L+4}
v_permlane16_swap_b32 v{z}, v{t}
v_add_f32 v{z}, v{z}, v{t}
v_mov_b32 v{LA}, v{z}
v_or3_b32 v{t+2}, v{t+2}, v{L+5}, v{L+6}
v_or_b32 v{t+2}, v{t+2}, v{L+7}
v_permlane32_swap_b32 v{z}, v{LA}
v_rcp_f32 v{LA}, v{LA}
v_cmp_gt_i32 vcc, 0, v{t+2}
v_mul_f32 v{z}, v{z}, v{LA}""")
            self.pack(GA)
            a(f"s_cbranch_vccnz {ogen}\n{onorm}:")
            def ogen_f(fb):
                mloop = self.lab("omloop")
                fb(f"{ogen}:\ns_waitcnt vmcnt(0)\ns_mov_b32 {sCNT}, {c.limit * c.outer}\n{mloop}:\ns_sub_u32 {sCNT}, {sCNT}, 1\ns_cbranch_scc1 L_exit")
                for i in range(2): fb(f"global_load_dwordx4 v[{PM+4*i}:{PM+4*i+3}], {vOSI}, {sSM} offset:{OSTAT[li]+16*i} sc1")
                fb("s_waitcnt vmcnt(0)")
                for i in range(8): fb(f"v_cmp_gt_i32 vcc, 0, v{L+i}\nv_cndmask_b32 v{T2+i}, 0, v{PM+i}, vcc")
                self.umax(t, range(T2, T2 + 8))
                fb(f"v_cmp_eq_u32 vcc, -1, v{t}\ns_cbranch_vccnz {mloop}")
                fb(f"v_max3_f32 v{t}, v{T2}, v{T2+1}, v{T2+2}\nv_max3_f32 v{t}, v{t}, v{T2+3}, v{T2+4}\nv_max3_f32 v{t}, v{t}, v{T2+5}, v{T2+6}\nv_max_f32 v{t}, v{t}, v{T2+7}")
                self.allred(t, t + 1, "v_max_f32")
                for i in range(8): fb(f"v_sub_f32 v{T2+i}, v{T2+i}, v{t}")
                for i in range(8): fb(f"v_exp_f32 v{T2+i}, v{T2+i}")
                fb(f"v_mul_f32 v{GA}, v{T2}, v{y}\nv_mul_f32_e64 v{LA}, v{T2}, |v{L}|")
                for i in range(1, 8): fb(f"v_fmac_f32 v{GA}, v{T2+i}, v{y+i}\nv_fma_f32 v{LA}, v{T2+i}, |v{L+i}|, v{LA}")
                self.allred(LA, t + 1); self.allred(GA, t + 2)
                fb(f"v_rcp_f32 v{LA}, v{LA}\nv_mul_f32 v{GA}, v{GA}, v{LA}")
                self.pack(GA)
                fb(f"s_nop 1\ns_branch {onorm}")
            self.ool(ogen_f)
            st(8)
            if li == 0: a("s_barrier")
            self.gemv(WO, B(3), sc)
            a("s_barrier")
            if f"stop{4*li}" in c.exp: a("s_endpgm")
            st(9)
            noffn = self.lab("noffn")
            if li == 0:
                a(f"v_and_b32 v{TMP+1}, 0xffff, v{PG}\nv_cmp_eq_u32 vcc, s25, v{TMP+1}\nv_ashrrev_i32 v{TMP}, 16, v{PG}\nv_cndmask_b32 v{TMP}, 0, v{TMP}, vcc")
                for r in (8, 4, 2, 1): a(f"v_add_u32_dpp v{TMP}, v{TMP}, v{TMP} row_ror:{r} {DPP}")
                a(f"v_mov_b32 v{TMP+1}, v{TMP}\nv_permlane16_swap_b32 v{TMP}, v{TMP+1}\nv_add_u32 v{TMP}, v{TMP}, v{TMP+1}\ns_ashr_i32 s30, s24, 16\nv_add_u32 v{TMP}, s30, v{TMP}\nds_write_b32 {vZERO}, v{TMP} offset:{L_PAR}")
                l = self.lab("nocg")
                a(f"s_cmp_lt_u32 s34, 14\ns_cbranch_scc0 {l}")
                self.nops(c.cgd)
                self.colsum_gather(sCG, True); self.colsum_gather(sCG, False)
                a(f"{l}:")
            self.zero_acc()
            a(f"s_barrier")
            if f"stop{4*li+1}" in c.exp: a("s_endpgm")
            a(f"s_cmp_lt_u32 s34, 14\ns_cbranch_scc0 {noffn}")
            st(12)
            self.rs_gather("gu", B(4), ln=2 * li)
            st(5)
            a(f"v_fma_f32 v{GA}, v{GA}, {vRS}, {vNM}\nv_mul_f32_dpp v{GA}, v{GA}, v{GA} row_ror:12 {DPP}")
            self.pack(GA)
            self.gemv(WD, B(5), sc, lanes=[0, 2, 8, 10], addr=(vDN, vDN2))
            a(f"{noffn}:")
            st(13)
            a("s_barrier")
            if f"stop{4*li+2}" in c.exp or (li == 0 and "stop3" in c.exp): a("s_endpgm")
        self.end(1)
        self.spare = spare0

    def build(self):
        a = self.a
        self.prologue()
        self.s_stream()
        self.c_pre()
        self.x_head()
        self.x_program(False); self.flush()
        self.y_head()
        self.y_program(False); self.flush()
        self.s_layers(); self.flush()
        a("L_fast_end:\nL_Yslow:")
        self.y_program(True); self.flush()
        a("L_Xslow:")
        self.x_program(True); self.flush()
        a("L_exit:\ns_endpgm")
        head = f"""; Fused decode step: 2 x (LayerNorm -> GQA sliding-window attention -> residual -> LayerNorm -> bilinear GLU -> residual)
; @launch grid=(256,1,1) block=(384,1,1) lds={self.c.ldsx or LDS_BYTES}
.amdgcn_target "amdgcn-amd-amdhsa--gfx950"
.text
.globl {KNAME}
.p2align 8
.type {KNAME},@function
{KNAME}:
"""
        tail = f"""
.section .rodata,"a"
.p2align 6
.amdhsa_kernel {KNAME}
  .amdhsa_next_free_vgpr 256
  .amdhsa_next_free_sgpr 102
  .amdhsa_accum_offset 256
  .amdhsa_group_segment_fixed_size 0
  .amdhsa_kernarg_size 96
  .amdhsa_user_sgpr_count 2
  .amdhsa_user_sgpr_kernarg_segment_ptr 1
  .amdhsa_system_sgpr_workgroup_id_x 1
  .amdhsa_float_denorm_mode_32 3
.end_amdhsa_kernel
"""
        return head + a.text() + tail


def make(**kw):
    c = Cfg()
    for k, v in kw.items(): setattr(c, k, v)
    return Gen(c).build()

if __name__ == "__main__":
    kw = {}
    for x in sys.argv[2:]:
        k, v = x.split("=", 1); kw[k] = eval(v)
    open(sys.argv[1], "w").write(make(**kw))
```

```python
import sys, struct
from asmlib import Asm

KNAME = "interleave_layers__sliding_block_cached__glu_gated_bilinear__decode_kernel"
def f2u(x): return struct.unpack("<I", struct.pack("<f", x))[0]

class Cfg:
    debug = False
    stamp_layer = 0
    nt = " nt"
    win = 4
    wins = [4]*14+[5]*8
    wo_at = 25
    limit = 64
    outer = 2000
    limit1 = 64
    force_slow = False
    rs = (3, 80, 60)
    ro = (3, 80, 60)
    g = (3, 80, 200, 0)
    q0 = (3, 200, 500)
    a0 = (3, 300, 500)
    b2x_first = 0
    cgd = 800
    xq = (60, 60, 2)
    xg = (340, 70, 3)
    xh = 7
    rpre = 0
    nfill = 2
    lnoff = 1
    aq = (3, 130, 55)
    prew = 2
    cs_sc = ''
    pace = 200
    touch = 1
    tpol = ' sc1'
    xpol = ''
    pfpol = ''
    exp = ''
    rot = 1
    pf0 = 0
    pf0pol = ' nt'
    pf = 6
    b0_late = 1
    fclean = 0
    ldsx = 0
    gform = 1
    clrl = 0
    clrq = 0
    dbgpar = 0
    fown = 1
    fod = 0
    probe = 2
    gthr = 0
    bpar = 0
    band = 0
    bsh = 13
    gpar = 1
    gand = 1
    gexec = 's_mov_b32 exec_hi, 0'
    sgemv = 1
    qkov = 1
    fing = 4
    opol = ''
    gl = (3, 150, 120, 0)
    help = ()
    hpol = ' nt'
    wb = 0
    wbc = 0
    dbgwg = 0
    dbgfrom = 0
    dbgfix = 0
    cs_late = 1
    tlb = 0
    xd = 200
    bound = 60.0

DPP = "row_mask:0xf bank_mask:0xf"
G_OFF = 0x10000; G_STRIDE = 0x10000
GB_OFF = 0x100000; GB_STRIDE = 0x30000
IB = 10240
sB = [("s[36:37]", -2048), ("s[36:37]", 0), ("s[36:37]", 2048)]; sCQ = ("s[40:41]", 0); sCG = ("s[40:41]", 2048)
SM = 0x28000 + 0x1000
AGQ = [-0x1000, -0xC00]; XALL = [-0x800, -0x400, 0x0]; OSTAT = [0x400, 0x800]; XCC = 0xC00; PARR = 0xD00
DBG_OFF = 0xa00000
NTAGS = 16
PROBE = 0x80000
L_O = 32768; L_ST = 40960; L_MODE = L_ST + 128; L_CNT = L_ST + 136; L_CN2 = L_ST + 140; L_PAR = L_ST + 144; L_Q = 41984; L_WQ = L_Q + 1024; L_GU = L_WQ + 16384; L_WD = L_GU + 16384
LDS_BYTES = L_WD + 8192
sX, sK, sV, sWQ, sWO, sWG, sWU, sWD, sOUT, sWS = ("s[4:5]", "s[6:7]", "s[8:9]", "s[10:11]", "s[12:13]",
    "s[16:17]", "s[18:19]", "s[20:21]", "s[22:23]", "s[26:27]")
sSM = "s[46:47]"
sG = ["s[48:49]", "s[50:51]", "s[52:53]", "s[54:55]"]
sE, sT, sCNT, sXCC, sLO, sHI, sONE, sCN2 = "s56", "s57", "s58", "s61", "s62", "s63", "s64", "s65"
sODD = "s[66:67]"; M56 = "s[14:15]"
vMASK, vIN, vPUB, vPUBO, vGIN, vGPUB, vPAIR, vXALL, vOSI, vOSP, vLDS, vLST = ["v%d" % i for i in range(1, 13)]
vX, vCS, vINX, vPR, vMU, vRS, vNM = "v13", "v14", "v15", "v16", "v17", "v18", "v19"
GA = 20; MA = 28; LA = 36; ACC = 40; TMP = 48; T2 = 64; NEG = 72
vZERO, vAQ, vCLR, vXC, vWO, vINP, vDN2, vJ = "v76", "v79", "v78", "v253", "v208", "v209", "v210", "v211"
vX1, vPAIR8 = "v252", "v254"
WA, WB, SPARE = 80, 144, 212
PL = 214; PM = 222; PX = 238; CSQ = 242; PG = 250


def HB(hop): return sB[[1, 2, 0][hop % 3]]


class Gen:
    def __init__(self, cfg):
        self.c = cfg; self.a = Asm(); self.tail = []; self.nlab = 0; self.spare = SPARE

    def lab(self, s):
        self.nlab += 1
        return f"L_{s}_{self.nlab}"

    def stamp(self, i):
        if self.c.debug: self.a(f"s_memtime s[{70+2*i}:{71+2*i}]")

    def end(self, slot):
        a = self.a
        if self.c.debug == 3:
            if slot == 0:
                l, l2 = self.lab("nodbg"), self.lab("spin")
                a(f"s_memtime s[100:101]\ns_waitcnt lgkmcnt(0)\ns_cmp_eq_u32 s2, {self.c.fing}\ns_cbranch_scc0 {l}\ns_sub_u32 s31, s{70+2*self.c.dbgwg}, s{70+2*self.c.dbgfrom}\ns_min_u32 s31, s31, 200000")
                if self.c.dbgfix: a(f"s_mov_b32 s31, {self.c.dbgfix}")
                a(f"{l2}:\ns_memtime s[98:99]\ns_waitcnt lgkmcnt(0)\ns_sub_u32 s30, s98, s100\ns_cmp_lt_u32 s30, s31\ns_cbranch_scc1 {l2}\n{l}:")
            a("s_endpgm"); return
        if self.c.debug == 2:
            if slot == 0:
                l = self.lab("nodbg")
                a(f"s_memtime s[100:101]\ns_load_dwordx2 s[24:25], s[0:1], 80\ns_waitcnt vmcnt(0) lgkmcnt(0)\ns_cmp_lt_u32 s2, 8\ns_cbranch_scc0 {l}\ns_mov_b64 exec, 1")
                a("s_lshl_b32 s30, s2, 2\nv_mov_b32 v20, s30\nv_mov_b32 v24, s68\nglobal_store_dword v20, v24, s[24:25]")
                a(f"s_cmp_eq_u32 s2, {self.c.dbgwg}\ns_cbranch_scc0 {l}")
                for j, i in enumerate((1, 4, 6, 10, 11, 14, 15)): a(f"s_sub_u32 s31, s{70+2*i}, s70\nv_mov_b32 v{24+j}, s31")
                a("v_mov_b32 v20, 0\nv_mov_b32 v31, 0\nglobal_store_dwordx4 v20, v[24:27], s[24:25] offset:32\nglobal_store_dwordx4 v20, v[28:31], s[24:25] offset:48")
                a(f"{l}:")
            a("s_endpgm"); return
        if self.c.debug:
            a("s_memtime s[100:101]\ns_waitcnt vmcnt(0) lgkmcnt(0)\ns_mov_b64 exec, -1")
            a(f"s_lshl_b32 s30, s2, 9\ns_add_u32 s30, s30, {DBG_OFF + slot*128}")
            a("v_mov_b32 v20, s30\nv_mov_b32 v24, s68")
            for i in range(1, 16): a(f"s_sub_u32 s31, s{70+2*i}, s70\nv_mov_b32 v{24+i}, s31")
            for i in range(4): a(f"global_store_dwordx4 v20, v[{24+4*i}:{27+4*i}], {sWS} offset:{16*i}")
        a("s_endpgm")

    def tag(self, k): self.a(f"s_add_u32 {sT}, {sE}, {k}\ns_and_b32 {sT}, {sT}, 0x3f\ns_or_b32 {sT}, {sT}, 0x40")

    def nops(self, cyc):
        if cyc >= 192:
            self.a(f"s_sleep {cyc // 64}"); return
        while cyc >= 4:
            k = min(cyc // 4, 16); self.a(f"s_nop {k-1}"); cyc -= 4 * k

    def ool(self, fn):
        fb = Asm(); sv, self.a = self.a, fb
        fn(fb)
        self.a = sv
        self.tail.append(fb.text())

    def flush(self):
        while self.tail: self.a(self.tail.pop(0))

    def poll(self, name, loads, body, par, shadow=None, bound=None, over=None, first=True, pace=0):
        a = self.a
        depth, delay, gap = par
        nl = loads.count("global_")
        top, ov = self.lab(name), self.lab(name + "_over")
        a(f"s_mov_b32 {sCNT}, {bound or self.c.limit * self.c.outer}")
        if first:
            self.nops(delay)
            for k in range(depth - 1):
                a(loads); self.nops(gap)
        if shadow:
            skip = self.lab(name + "_in")
            a(loads); shadow(depth * nl); a(f"s_branch {skip}\n{top}:\n{loads}\n{skip}:")
        else:
            a(f"{top}:\n{loads}")
        a(f"s_sub_u32 {sCNT}, {sCNT}, 1\ns_cbranch_scc1 {ov if over else 'L_exit'}")
        self.nops(pace)
        body((depth - 1) * nl)
        a(f"s_cbranch_vccnz {top}")
        if over: self.ool(lambda fb: over(fb, ov, top))

    def allred(self, r, t, op="v_add_f32"):
        self.a(f"""v_mov_b32 v{t}, v{r}
v_permlane32_swap_b32 v{r}, v{t}
{op} v{r}, v{r}, v{t}
v_mov_b32 v{t}, v{r}
v_permlane16_swap_b32 v{r}, v{t}
{op} v{r}, v{r}, v{t}""")

    def rs_loads(self, base, g, n=8):
        return "\n".join(f"global_load_short_d16_hi v{g+i}, {vIN}, {base[0]} offset:{base[1] + 256*i} sc1" for i in range(n))

    def umax(self, t, regs):
        regs = list(regs)
        self.a(f"v_max3_u32 v{t}, v{regs[0]}, v{regs[1]}, v{regs[2]}")
        for i in range(3, len(regs), 2): self.a(f"v_max3_u32 v{t}, v{t}, v{regs[i]}, v{regs[min(i+1, len(regs)-1)]}")

    def tagged_sum(self, src, n=8):
        a = self.a
        for i in range(n): a(f"v_xor_b32 v{MA+i}, {sT}, v{src+i}")
        a(f"v_or3_b32 v{TMP}, v{MA}, v{MA+1}, v{MA+2}\nv_or3_b32 v{TMP}, v{TMP}, v{MA+3}, v{MA+4}\nv_or3_b32 v{TMP}, v{TMP}, v{MA+5}, v{MA+6}\nv_or_b32 v{TMP}, v{TMP}, v{MA+7}")
        a(f"v_cmp_ne_u32_sdwa vcc, v{TMP}, 0 src0_sel:BYTE_0 src1_sel:DWORD")
        a(f"v_pk_add_f32 v[{GA}:{GA+1}], v[{MA}:{MA+1}], v[{MA+2}:{MA+3}]\nv_pk_add_f32 v[{GA+2}:{GA+3}], v[{MA+4}:{MA+5}], v[{MA+6}:{MA+7}]")
        a(f"v_pk_add_f32 v[{GA}:{GA+1}], v[{GA}:{GA+1}], v[{GA+2}:{GA+3}]\nv_add_f32 v{GA}, v{GA}, v{GA+1}")

    def xload(self, ln): return f"global_load_dwordx4 v[{PX}:{PX+3}], {vXALL}, {sSM} offset:{XALL[ln]} sc1"

    def rs_gather(self, name, base, n=8, post=None, par=None, ln=None, xafter=None, mid=None):
        z, t, y = GA, TMP, PL
        done = self.lab(name + "_done")
        def reduce(off, test):
            a = self.a
            a(f"s_waitcnt vmcnt({off + n - 4})\nv_pk_add_f32 v[{z}:{z+1}], v[{y}:{y+1}], v[{y+2}:{y+3}]\ns_waitcnt vmcnt({off})")
            if n == 8: a(f"v_pk_add_f32 v[{z+2}:{z+3}], v[{y+4}:{y+5}], v[{y+6}:{y+7}]\nv_pk_add_f32 v[{z}:{z+1}], v[{z}:{z+1}], v[{z+2}:{z+3}]")
            else: a(f"v_pk_add_f32 v[{z}:{z+1}], v[{z}:{z+1}], v[{y+4}:{y+5}]\nv_add_f32 v{z}, v{z}, v{y+6}")
            a(f"v_add_f32 v{z}, v{z}, v{z+1}\nv_mov_b32 v{t}, v{z}")
            if test: a(f"v_cmp_u_f32 vcc, v{z}, v{z}")
            a(f"v_permlane32_swap_b32 v{z}, v{t}\nv_add_f32 v{z}, v{z}, v{t}\nv_mov_b32 v{t}, v{z}")
        def over(fb, ov, top):
            fb(f"{ov}:\ns_sub_u32 {sCN2}, {sCN2}, 1\ns_cbranch_scc1 L_exit\ns_mov_b32 {sCNT}, {self.c.limit}\ns_waitcnt vmcnt(0)")
            self.umax(t, range(y, y + n))
            fb(f"v_cmp_eq_u32 vcc, 0xffff0000, v{t}\ns_cbranch_vccnz {top}")
            reduce(0, False)
            fb(f"s_branch {done}")
        loads = self.rs_loads(base, PL, n)
        a = self.a
        a(f"s_mov_b32 {sCN2}, {self.c.outer}")
        if ln is None:
            self.poll(name, loads, lambda off: reduce(off, True), par or self.c.rs, bound=self.c.limit, over=over)
        else:
            xl = self.xload(ln)
            xchk = f"v_max3_u32 v{TMP}, v{PX}, v{PX+1}, v{PX+2}\nv_max_u32 v{TMP}, v{TMP}, v{PX+3}\nv_cmp_eq_u32 vcc, -1, v{TMP}"
            xr, xok, top, ov = self.lab("xretry"), self.lab("xok"), self.lab(name), self.lab(name + "_over")
            delay, gap, K = self.c.xq if name == "q" else self.c.xg
            a(f"s_mov_b32 {sCNT}, {self.c.limit * self.c.outer}")
            self.stats_pre()
            self.nops(delay)
            for j in range(K):
                a(xl)
                if j < K - 1: self.nops(gap)
            pre = self.c.rpre
            if pre: self.nops(pre - 1); a(loads)
            cnts = [cn + (n if pre else 0) for cn in ([K + xafter] if xafter is not None else []) + list(range(K - 1, -1, -1))]
            for j, cn in enumerate(cnts):
                a(f"s_waitcnt vmcnt({cn})\n{xchk}")
                a(f"s_cbranch_vccz {xok}" if j < len(cnts) - 1 else f"s_cbranch_vccnz {xr}")
            a(f"{xok}:")
            self.tail.append(f"{xr}:\n{xl}\ns_nop 15\n{xr}_b:\n{xl}\ns_sub_u32 {sCNT}, {sCNT}, 1\ns_cbranch_scc1 L_exit\ns_waitcnt vmcnt(1)\n{xchk}\ns_cbranch_vccnz {xr}_b\ns_branch {xok}\n")
            if self.c.stamp_layer == 1 and ln >= 1:
                self.stamp(8 if ln == 1 else 3)
                if self.c.debug: a(f"s_sub_u32 s72, {self.c.limit * self.c.outer + 1000}, {sCNT}\ns_add_u32 s72, s72, s70")
            self.stats(PX, loads.split("\n") * self.c.nfill)
            a(f"s_mov_b32 {sCNT}, {self.c.limit}\nv_mul_f32 {vNM}, {vMU}, {vRS}\nv_mul_f32_e64 {vNM}, -{vNM}, {vCS}")
            if self.c.stamp_layer == 1 and ln >= 1: self.stamp(9 if ln == 1 else 4)
            a(f"{top}_c:")
            reduce(n * self.c.lnoff, True)
            a(f"s_cbranch_vccnz {top}")
            self.tail.append(f"{top}:\n{loads}\ns_sub_u32 {sCNT}, {sCNT}, 1\ns_cbranch_scc0 {top}_c\ns_branch {ov}\n")
            self.ool(lambda fb: over(fb, ov, top))
        a(f"{done}:")
        if mid: a(mid)
        a(f"v_permlane16_swap_b32 v{z}, v{t}\nv_add_f32 v{z}, v{z}, v{t}")

    def pack(self, r):
        self.a(f"v_mov_b32_dpp v{TMP}, v{r} quad_perm:[1,0,3,2] {DPP}\nv_cvt_pk_bf16_f32 {vPR}, v{r}, v{TMP}")

    def perm_pair(self, W, base, kp):
        W.append([])
        for u in range(4):
            lo = base + 8 * kp + u; hi = lo + 4; s = self.spare
            self.a(f"v_perm_b32 v{s}, v{hi}, v{lo}, {sLO}\nv_perm_b32 v{hi}, v{hi}, v{lo}, {sHI}")
            W[kp] += [s, hi]; self.spare = lo

    def zero_acc(self):
        for j in range(0, 8, 2): self.a(f"v_mov_b64 v[{ACC+j}:{ACC+j+1}], 0")

    def dots(self, W, kp, src=None, lane=None):
        for j in range(8):
            if src: self.a(f"v_dot2c_f32_bf16 v{ACC+j}, {src}, v{W[kp][j]}")
            else: self.a(f"v_dot2c_f32_bf16_dpp v{ACC+j}, {vPR}, v{W[kp][j]} row_newbcast:{2*kp if lane is None else lane} {DPP}")

    def gemv(self, W, base, sc, lanes=None, mask=None, hook=None):
        a = self.a
        n = len(W)
        lane = lambda kp: 2 * kp if lanes is None else lanes[kp]
        if self.c.sgemv:
            rl = [f"v_readlane_b32 s{4+kp}, {vPR}, {lane(kp)}" for kp in range(n)]
            for _ in range(3): a(rl.pop(0))
            def d(kp, j):
                a(f"v_dot2c_f32_bf16 v{ACC+j}, s{4+kp}, v{W[kp][j]}")
                if rl and j == 1: a(rl.pop(0))
        else:
            d = lambda kp, j: a(f"v_dot2c_f32_bf16_dpp v{ACC+j}, {vPR}, v{W[kp][j]} row_newbcast:{lane(kp)} {DPP}")
        for kp in range(n):
            for j in range(8): d(kp, j)
            if hook and kp == hook[0]: a(hook[1])
        self.pack_acc(TMP)
        self.publish(TMP, base, sc, mask)

    def pack_acc(self, d):
        for j in range(4): self.a(f"v_cvt_pk_bf16_f32 v{d+j}, v{ACC+2*j}, v{ACC+2*j+1}")

    def publish(self, src, base, sc, mask=None):
        a = self.a
        if mask: a(f"s_mov_b64 exec, {mask}")
        a(f"global_store_dwordx4 {vPUB}, v[{src}:{src+3}], {base[0]} offset:{base[1]}{sc}")
        if mask: a("s_mov_b64 exec, -1")

    def clear_inbox(self, base, sc):
        self.a(f"global_store_dwordx4 {vINX}, v[{NEG}:{NEG+3}], {base[0]} offset:{base[1]}{sc}")

    def stats_pre(self):
        p, q = TMP + 4, TMP + 5
        self.a(f"v_mov_b64 v[{p}:{q}], 0\nv_mov_b32 v{q+1}, 0x{f2u(1/512.):08x}\nv_mov_b32 v{q+2}, 0x{f2u(1e-5):08x}")

    def stats(self, x, fill=()):
        a = self.a
        p, q = TMP + 4, TMP + 5
        fill = list(fill)
        def gap(n):
            for _ in range(n):
                if fill: a(fill.pop(0))
        for i in range(4): a(f"v_dot2c_f32_bf16 v{p}, {sONE}, v{x+i}\nv_dot2c_f32_bf16 v{q}, v{x+i}, v{x+i}")
        gap(3)
        a(f"v_permlane32_swap_b32 v{p}, v{q}\nv_add_f32 v{p}, v{p}, v{q}\nv_mov_b32 v{q}, v{p}")
        gap(2)
        a(f"v_permlane16_swap_b32 v{p}, v{q}\nv_add_f32 v{p}, v{p}, v{q}")
        for r in (8, 4, 2, 1):
            gap(2); a(f"v_add_f32_dpp v{p}, v{p}, v{p} row_ror:{r} {DPP}")
        gap(1)
        a(f"v_readlane_b32 s30, v{p}, 0\nv_readlane_b32 s31, v{p}, 32")
        gap(1)
        a(f"v_mul_f32 {vMU}, s30, v{q+1}\nv_fma_f32 {vRS}, s31, v{q+1}, v{q+2}")
        a(f"v_fma_f32 {vRS}, -{vMU}, {vMU}, {vRS}\nv_max_f32 {vRS}, {vRS}, v{q+2}\nv_rsq_f32 {vRS}, {vRS}")
        gap(len(fill))

    def pair_store(self, base, off, sc):
        self.a(f"s_mov_b64 exec, 0x5555\nglobal_store_dword {vPAIR}, {vPR}, {base} offset:{off}{sc}\ns_mov_b64 exec, -1")

    def lds_weights(self, W, base, vaddr, off, npair, use=None):
        a = self.a
        rd = lambda k: a(f"ds_read_b128 v[{base+4*k}:{base+4*k+3}], {vaddr} offset:{off+1024*k}")
        for k in range(min(8, 2 * npair)): rd(k)
        for kp in range(npair):
            if 2 * kp + 8 < 2 * npair:
                rd(2 * kp + 8); rd(2 * kp + 9); out = 8
            else: out = 2 * npair - 2 * kp - 2
            a(f"s_waitcnt lgkmcnt({out})")
            self.perm_pair(W, base, kp)
            if use: use(kp)

    def prologue(self):
        a = self.a; c = self.c
        if 'empty' in c.exp: a("s_endpgm")
        if c.debug: a("s_memtime s[70:71]\ns_memrealtime s[68:69]")
        a(f"""s_load_dwordx16 s[4:19], s[0:1], 0
s_load_dwordx8 s[20:27], s[0:1], 64
s_cmpk_ge_u32 s2, 0x100
s_cbranch_scc1 L_exit
v_lshrrev_b32 v1, 6, v0
v_and_b32 v0, 63, v0
s_lshr_b32 s29, s2, 3
v_readfirstlane_b32 s33, v1
s_and_b32 s28, s2, 7
s_lshl_b32 s60, s29, 4
v_lshlrev_b32 v15, 4, v0
s_cmp_ge_u32 s33, 4
s_cbranch_scc1 L_C0
s_lshl2_add_u32 s32, s33, s60
s_lshl3_add_u32 s30, s32, s28
s_lshl_b32 s30, s30, 10
v_add_u32 v1, s30, v15
s_lshl_b32 s36, s33, 12
s_add_u32 m0, s36, {L_WQ}
s_movk_i32 s3, 0x2000
s_waitcnt lgkmcnt(0)""")
        for i in range(4):
            a(f"global_load_lds_dwordx4 v1, {sWQ}{c.nt}")
            if i < 3: a("s_addk_i32 m0, 0x400\nv_add_u32 v1, s3, v1")
        a(f"""s_branch L_S1
L_C0:
s_cmp_eq_u32 s33, 4
s_cbranch_scc1 L_X0
s_getpc_b64 s[30:31]
s_mulk_i32 s29, {128 * c.pf}
v_lshl_add_u32 v2, v0, 7, s29
s_mov_b64 exec, {(1 << c.pf) - 1}
global_load_dword {vJ}, v2, s[30:31]{c.pfpol}
s_branch L_C
L_X0:
{self.pf0()}s_waitcnt lgkmcnt(0)
global_load_dwordx4 v[32:35], v15, {sX}{c.xpol}
s_branch L_C
L_early_end:""")

    def pf0(self):
        c = self.c
        if not c.pf0: return "s_setprio 3\n"
        return f"s_getpc_b64 s[30:31]\nv_lshlrev_b32 v2, 7, v0\ns_mov_b64 exec, {(1 << c.pf0) - 1 if c.pf0 <= 6 else hex((1 << c.pf0) - 1)}\nglobal_load_dword {vJ}, v2, s[30:31]{c.pf0pol}\ns_mov_b64 exec, -1\n"

    def consts(self):
        self.a("s_mov_b32 s62, 0x05040100\ns_mov_b32 s63, 0x07060302\ns_mov_b32 s64, 0x3f803f80")

    KF, VR, VF, Q, D, P, ON, O, OL, X, T = 16, 48, 80, 112, 128, 136, 140, 144, 176, 184, 192

    def s_stream(self):
        a = self.a; c = self.c
        KF, VR, VF, ON, T = self.KF, self.VR, self.VF, self.ON, self.T
        n = [4]; landed = [-1]
        wins = c.wins
        def signal(off):
            a(f"v_mov_b32 v{T}, 1\ns_mov_b64 s[38:39], exec\ns_mov_b64 exec, 1\nds_add_u32 v{T+12}, v{T} offset:{off}\ns_mov_b64 exec, s[38:39]")
        def throttle():
            w = wins[n[0] - 4]
            if n[0] - w > landed[0]:
                if landed[0] < 3 <= n[0] - w:
                    a(f"s_waitcnt vmcnt({n[0] - 4})")
                    if 'noq' in c.exp: self.stamp(14)
                    a("s_barrier"); self.stamp(1)
                    landed[0] = 3
                if n[0] - w > landed[0]: a(f"s_waitcnt vmcnt({w-1})"); landed[0] = n[0] - w
            if 'noq' in c.exp and n[0] in (4, 8, 12, 16, 20): self.stamp({4: 9, 8: 10, 12: 11, 16: 12, 20: 13}[n[0]])
            if n[0] == c.wo_at: signal(L_CNT)
            n[0] += 1
        a("""L_S1:
s_lshl_b32 s30, s28, 24
s_lshl_b32 s31, s29, 15
s_add_u32 s30, s30, s31
s_add_u32 s30, s30, 0xF00000
s_add_u32 s6, s6, s30
s_addc_u32 s7, s7, 0
s_lshl_b32 s40, s33, 13
s_mov_b32 m0, s40
v_and_b32 v6, 15, v0
v_lshrrev_b32 v7, 4, v0
v_xor_b32 v8, v6, v7
v_lshlrev_b32 v8, 4, v8
v_lshl_add_u32 v9, v7, 8, v8
v_add_u32 v9, s40, v9""")
        if c.rot: a("s_lshl_b32 s37, s29, 2\ns_and_b32 s31, s28, 3\ns_or_b32 s37, s37, s31\ns_lshl_b32 s37, s37, 8\nv_xor_b32 v9, s37, v9")
        else: a("s_mov_b32 s37, 0")
        for i in range(8):
            if i: a(f"s_addk_i32 m0, 0x400\nv_xor_b32 v1, {64*(i&3) + 1024*i}, v9")
            throttle()
            a(f"global_load_lds_dwordx4 {'v1' if i else 'v9'}, {sK}{c.nt}")
            if i == 3:
                a("s_add_u32 s8, s8, s30\ns_addc_u32 s9, s9, 0")
                self.consts()
                a("v_lshlrev_b32 v10, 4, v6\nv_lshl_add_u32 v10, v7, 10, v10\nv_add_u32 v10, s40, v10\nv_xor_b32 v10, s37, v10")
                a("v_lshl_add_u32 v11, v6, 8, v8\nv_add_u32 v11, s40, v11")
                for j in range(1, 4): a(f"v_xor_b32 v{11+j}, {64*j}, v11")
                a("v_lshrrev_b32 v2, 2, v6\nv_lshlrev_b32 v5, 4, v2\nv_lshlrev_b32 v2, 8, v2\nv_lshl_add_u32 v2, v7, 4, v2")
                a(f"s_lshl_b32 s31, s33, 2\ns_add_u32 s31, s31, {L_ST}\nv_add_u32 v5, s31, v5")
                a(f"v_lshlrev_b32 v3, 4, v7\nv_add_u32 v3, s31, v3")
                a(f"s_lshl_b32 s31, s33, 11\ns_add_u32 s31, s31, {L_O}\nv_lshlrev_b32 v4, 2, v0\nv_add_u32 v4, s31, v4")
            if i == 4:
                for k in range(4): a(f"v_mov_b32 v{ON+k}, {sONE}")
                cs = f2u(128**-0.5*1.4426950408889634)
                a(f"v_mov_b32 v{T+6}, 0x{cs:08x}\nv_mov_b32 v{T+7}, 0x{cs:08x}\nv_mov_b32 v{T+5}, 0x{f2u(c.bound):08x}\nv_mov_b32 v{T+12}, 0")
                a(f"v_add_u32 v2, {L_Q}, v2\nv_lshrrev_b32 v{T}, 2, v6")
                for j in range(4): a(f"v_add_u32 v{T+1}, {j}, v{T}\nv_and_b32 v{T+1}, 3, v{T+1}\nv_lshl_add_u32 v{T+8+j}, v{T+1}, 6, v2")
            if i == 5:
                a("""s_mul_i32 s30, s32, 3584
s_mul_i32 s31, s28, 448
s_add_u32 s30, s30, s31
v_and_b32 v184, 31, v0
v_lshl_add_u32 v184, v184, 4, s30
v_cmp_gt_u32 vcc, 32, v0
v_mov_b32 v186, s18
v_mov_b32 v187, s19
v_mov_b32 v188, s16
v_mov_b32 v189, s17
v_cndmask_b32 v186, v186, v188, vcc
v_cndmask_b32 v187, v187, v189, vcc
v_mov_b32 v185, 0
s_mov_b32 s14, 3584
s_mov_b32 s15, 0
v_lshl_add_u64 v[184:185], v[184:185], 0, v[186:187]
s_min_u32 s30, s29, 27
s_mul_i32 s31, s28, 224
s_lshl3_add_u32 s30, s30, s31
s_lshl1_add_u32 s30, s33, s30
s_lshl_b32 s30, s30, 10
v_add_u32 v190, s30, v15""")
        for i in range(8):
            if i: a(f"v_xor_b32 v1, {(i>>2)*4096+(i&3)*256}, v10")
            throttle()
            a(f"global_load_dwordx4 v[{VR+4*i}:{VR+4*i+3}], {'v1' if i else 'v10'}, {sV}{c.nt}")
        kread = [False]; vdone = [0]
        def work():
            if landed[0] >= 11 and not kread[0]:
                kread[0] = True
                for t in range(2):
                    for j in range(4): a(f"ds_read_b128 v[{KF+16*t+4*j}:{KF+16*t+4*j+3}], v{11+j} offset:{4096*t}")
            while vdone[0] < 4 and landed[0] >= 13 + 2 * vdone[0]:
                self.vperm(vdone[0]); vdone[0] += 1
        work()
        a(f"s_add_u32 m0, s36, {L_GU}")
        for i in range(4):
            throttle()
            a(f"s_mov_b32 exec_lo, 0x0fffffff\ns_mov_b32 exec_hi, 0x0fffffff\nglobal_load_lds_dwordx4 v[184:185], off{c.nt}\ns_mov_b64 exec, -1")
            if i < 3: a("s_addk_i32 m0, 0x400\nv_lshl_add_u64 v[184:185], v[184:185], 0, s[14:15]")
            else: a(f"s_lshl_b32 s31, s33, 11\ns_add_u32 m0, s31, {L_WD}")
            work()
        for i in range(2):
            throttle()
            a(f"global_load_lds_dwordx4 v190, {sWD} offset:{1024*i}{c.nt}")
            work()
        if c.wo_at >= 26: signal(L_CNT)
        assert kread[0]
        self.vdone = vdone[0]; self.signal = signal
        self.stamp(2)
        a("s_branch L_S2")

    def vperm(self, u):
        for up in range(4):
            for b in range(2):
                self.a(f"v_perm_b32 v{self.VF+4*(2*up+b)+u}, v{self.VR+4*(2*u+1)+up}, v{self.VR+4*(2*u)+up}, {sHI if b else sLO}")

    def s_layers(self):
        a = self.a; c = self.c
        KF, VR, VF, Q, D, P, ON, O, OL, X, T = self.KF, self.VR, self.VF, self.Q, self.D, self.P, self.ON, self.O, self.OL, self.X, self.T
        a("L_S2:")
        for li in range(2):
            if li and any(f"stop{i}" in c.exp for i in range(4)): a("s_endpgm")
            if li: a("s_barrier\n" * 3)
            a(f"v_mov_b32 v{T+4}, 0\ns_waitcnt lgkmcnt(0)\ns_barrier")
            self.stamp(3 + 6 * li)
            if li == 1 and "stop8" in c.exp: a("s_endpgm")
            if 'noq' in c.exp and li == 0:
                a("s_waitcnt vmcnt(0)"); self.stamp(4)
                l = self.lab("x"); a(f"s_cmp_eq_u32 s33, 0\ns_cbranch_scc1 {l}\ns_endpgm\n{l}:"); self.end(2)
            for j in range(4): a(f"ds_read_b128 v[{Q+4*j}:{Q+4*j+3}], v{T+8+j}")
            a(f"ds_write_b32 v5, v{T+4}")
            mf = lambda t, j: a(f"v_mfma_f32_16x16x32_bf16 v[{D+4*t}:{D+4*t+3}], v[{KF+16*t+4*j}:{KF+16*t+4*j+3}], v[{Q+4*j}:{Q+4*j+3}], " + (f"v[{D+4*t}:{D+4*t+3}]" if j else "0"))
            mul = lambda i: a(f"v_pk_mul_f32 v[{X+i}:{X+i+1}], v[{D+i}:{D+i+1}], v[{T+6}:{T+7}]")
            if c.qkov:
                for j in range(4):
                    a(f"s_waitcnt lgkmcnt({4 - j})"); mf(0, j)
                for j in range(4): mf(1, j)
                mul(0); mul(2)
                for i in range(4): a(f"v_exp_f32 v{D+i}, v{X+i}")
                mul(4); mul(6)
                for i in range(4, 8): a(f"v_exp_f32 v{D+i}, v{X+i}")
            else:
                for j in range(4):
                    a(f"s_waitcnt lgkmcnt({4 - j})"); mf(0, j); mf(1, j)
                self.stamp(5 + 6 * li)
                for i in range(0, 8, 2): mul(i)
                for i in range(8): a(f"v_exp_f32 v{D+i}, v{X+i}")
            for u in range(4): a(f"v_cvt_pk_bf16_f32 v{P+u}, v{D+2*u}, v{D+2*u+1}")
            self.stamp(6 + 6 * li)
            if li == 0:
                for u in range(self.vdone, 4):
                    a(f"s_waitcnt vmcnt({12 - 2*u})")
                    self.vperm(u)
                self.stamp(4)
            lfb, lback = self.lab("fallback"), self.lab("pv")
            a(f"{lback}:")
            for e in range(8):
                a(f"v_mfma_f32_16x16x32_bf16 v[{O+4*e}:{O+4*e+3}], v[{P}:{P+3}], v[{VF+4*e}:{VF+4*e+3}], 0")
                if e == 0: a(f"v_max3_f32 v{T}, v{X}, v{X+1}, v{X+2}\nv_max3_f32 v{T+1}, v{X+3}, v{X+4}, v{X+5}")
                if e == 1: a(f"v_max3_f32 v{T}, v{T}, v{X+6}, v{X+7}\nv_max_f32 v{T}, v{T}, v{T+1}")
                if e == 2: a(f"v_cmp_gt_f32 vcc, |v{T}|, v{T+5}")
                if e == 3: a(f"v_mfma_f32_16x16x32_bf16 v[{OL}:{OL+3}], v[{P}:{P+3}], v[{ON}:{ON+3}], 0\ns_cbranch_vccnz {lfb}")
                if e == 5: a(f"ds_write2st64_b32 v4, v{O}, v{O+4} offset0:0 offset1:1")
                if e == 7: a(f"ds_write2st64_b32 v4, v{O+8}, v{O+12} offset0:2 offset1:3\nds_write_b32 v3, v{OL} offset:64")
            for e in range(4, 8, 2): a(f"ds_write2st64_b32 v4, v{O+4*e}, v{O+4*e+4} offset0:{e} offset1:{e+1}")
            a("s_waitcnt lgkmcnt(0)")
            self.stamp(7 + 6 * li)
            a("s_barrier")
            if li == 0:
                a("s_waitcnt vmcnt(0)"); self.signal(L_CN2); a("s_waitcnt lgkmcnt(0)"); self.stamp(8)
            def fbk(fb):
                fb(f"{lfb}:\ns_nop 7")
                self.allred(T, T + 1, "v_max_f32")
                for i in range(8): fb(f"v_sub_f32 v{X+i}, v{X+i}, v{T}")
                for i in range(8): fb(f"v_exp_f32 v{D+i}, v{X+i}\nv_mov_b32 v{X+i}, 0")
                for u in range(4): fb(f"v_cvt_pk_bf16_f32 v{P+u}, v{D+2*u}, v{D+2*u+1}")
                fb(f"ds_write_b32 v5, v{T}\ns_nop 7\ns_branch {lback}")
            self.ool(fbk)
        if c.debug:
            l = self.lab("sdone")
            a(f"s_cmp_eq_u32 s33, 0\ns_cbranch_scc1 {l}\ns_endpgm\n{l}:")
        self.end(2)

    def clear_all(self, sc):
        a = self.a
        a(f"s_mov_b32 exec_hi, 0x00ffffff\nglobal_store_dword {vCLR}, v{NEG}, {sSM} offset:{AGQ[0]}{sc}\ns_mov_b64 exec, -1")
        for b in (sB[0], sCQ, sCG): self.clear_inbox(b, sc)

    def c_pre(self):
        a = self.a; c = self.c
        a(f"""L_C:
s_mov_b64 exec, -1
s_lshr_b32 s29, s2, 3
s_waitcnt lgkmcnt(0)
s_load_dword {sE}, {sWS}, 0
s_mul_i32 s59, s28, {GB_STRIDE}
s_add_u32 s59, s59, {GB_OFF}
v_and_b32 v31, 7, v0
s_lshl_b32 s35, s29, 5
v_lshl_add_u32 {vPAIR8}, v31, 2, s35
v_lshlrev_b32 {vXALL}, 4, v0
s_lshr_b32 s30, s29, 1
s_mul_i32 s3, s30, {IB}
s_and_b32 s30, s29, 1
s_lshl_b32 s30, s30, 5
s_add_u32 s34, s3, s30
v_lshrrev_b32 v22, 1, v0
v_lshl_add_u32 {vINX}, v22, 6, s34
v_and_b32 v26, 1, v0
v_lshl_add_u32 {vINX}, v26, 4, {vINX}
v_mov_b64 v[{NEG}:{NEG+1}], -1
v_mov_b64 v[{NEG+2}:{NEG+3}], -1
s_and_b32 s31, s29, 3
s_lshl_b32 s31, s31, 5
s_lshr_b32 s32, s29, 2
s_lshl2_add_u32 s60, s32, s31
v_lshl_add_u32 v27, v31, 7, s60
v_cmp_gt_u32 vcc, 40, v0
v_lshrrev_b32 {vCLR}, 3, v0
v_lshlrev_b32 {vCLR}, 10, {vCLR}
v_cndmask_b32 v27, v27, {vPAIR8}, vcc
v_add_u32 {vCLR}, {vCLR}, v27
s_add_u32 s46, s26, s59
s_addc_u32 s47, s27, 0
s_add_u32 s36, s46, 2048
s_addc_u32 s37, s47, 0
s_add_u32 s40, s46, 6144
s_addc_u32 s41, s47, 0
s_add_u32 s46, s46, {SM}
s_addc_u32 s47, s47, 0
s_cmp_eq_u32 s33, 4
s_cbranch_scc0 L_Ypre
global_load_dword {vX1}, {vPAIR8}, {sX}{c.xpol}""")
        assert OSTAT[0] - AGQ[0] == 5 * 1024 and OSTAT[1] - OSTAT[0] == 1024
        self.clear_all("")
        a(f"s_mul_i32 s30, s30, 160\ns_add_u32 s30, s30, s3\nv_lshl_add_u32 v29, v0, 7, s30\ns_mov_b32 exec_hi, 0xff\nglobal_load_dword {vJ}, v29, s[36:37] offset:-2048{c.tpol}")
        a(f"s_lshl_b32 s30, s29, 8\nv_lshl_add_u32 v29, v0, 7, s30\ns_mov_b64 exec, 3\nglobal_load_dword {vJ}, v29, {sSM} offset:-4096{c.tpol}\ns_mov_b64 exec, -1")
        a(f"s_branch L_Cjoin\nL_Ypre:\nglobal_load_dword {vJ}, {vPAIR8}, {sOUT}")
        a("L_Cjoin:")
        self.consts()
        for k in range(4): a(f"s_add_u32 s{48+2*k}, s26, {G_OFF+G_STRIDE*k}\ns_addc_u32 s{49+2*k}, s27, 0")
        for i in range(0, 8, 2): a(f"v_mov_b64 v[{PL+i}:{PL+i+1}], 0")
        a(f"""s_getreg_b32 s61, hwreg(HW_REG_XCC_ID, 0, 4)
v_mov_b64 v[76:77], 0
v_and_b32 v20, 15, v0
v_lshrrev_b32 v21, 4, v0
v_lshrrev_b32 v23, 2, v20
v_and_b32 v24, 3, v0
v_lshrrev_b32 {vPAIR}, 1, v20
v_lshl_add_u32 {vPAIR}, {vPAIR}, 2, s35
v_lshl_add_u32 v22, v21, 6, s34
v_lshl_add_u32 {vIN}, v20, 1, v22
v_lshl_add_u32 {vINP}, v24, 2, v22
v_bfe_u32 v22, v0, 2, 1
v_lshl_add_u32 {vINP}, v22, 11, {vINP}
v_bfe_u32 v22, v0, 3, 1
v_lshl_add_u32 {vINP}, v22, 4, {vINP}
v_mov_b32 {vMASK}, 0xff
s_lshr_b32 s31, s29, 3
s_lshl_b32 s31, s31, 14
s_and_b32 s32, s29, 7
s_lshl_b32 s32, s32, 10
s_add_u32 s31, s31, s32
v_lshrrev_b32 {vGIN}, 3, v0
v_lshlrev_b32 {vGIN}, 7, {vGIN}
v_and_b32 v25, 7, v0
v_lshl_add_u32 {vGIN}, v25, 3, {vGIN}
v_add_u32 {vGIN}, s31, {vGIN}
s_lshl_b32 s32, s28, 7
s_add_u32 s31, s31, s32
v_lshl_add_u32 {vGPUB}, v20, 2, s31
v_and_b32 v26, 1, v21
v_lshl_add_u32 {vGPUB}, v26, 13, {vGPUB}
v_lshlrev_b32 {vAQ}, 2, v21
v_sub_u32 {vAQ}, v0, {vAQ}
v_and_b32 {vAQ}, 15, {vAQ}
v_lshl_add_u32 {vAQ}, v21, 4, {vAQ}
v_lshlrev_b32 {vAQ}, 4, {vAQ}
v_lshrrev_b32 v22, 2, v0
v_mul_u32_u24 v22, {IB}, v22
v_lshl_add_u32 v22, v24, 4, v22
s_lshl_b32 s32, s29, 6
v_add_u32 {vPUB}, s32, v22
s_sub_u32 s31, s33, 4
s_mul_i32 s31, s31, {8 * IB}
s_add_u32 s31, s31, s32
v_lshrrev_b32 v22, 3, v0
v_mul_u32_u24 v22, {IB}, v22
v_lshl_add_u32 v22, v31, 3, v22
v_add_u32 {vPUBO}, s31, v22
s_and_b32 s31, s29, 3
s_lshl_b32 s32, s31, 8
v_lshl_add_u32 {vOSI}, v21, 5, s32
s_lshl_b32 s31, s31, 5
s_lshr_b32 s32, s29, 2
s_lshl_b32 s32, s32, 2
s_add_u32 s31, s31, s32
v_and_b32 v26, 1, v0
v_and_b32 v27, 3, v23
v_lshlrev_b32 {vOSP}, 8, v27
v_lshl_add_u32 {vOSP}, v26, 7, {vOSP}
v_add_u32 {vOSP}, s31, {vOSP}
s_sub_u32 s31, s33, 4
s_lshl_b32 s31, s31, 10
s_add_u32 s31, s31, {L_O}
v_add_u32 {vLDS}, s31, {vXALL}
v_lshlrev_b32 {vLST}, 4, v27
v_add_u32 {vLST}, {L_ST}, {vLST}
s_mov_b32 s66, 0xaaaaaaaa
s_mov_b32 s67, 0xaaaaaaaa
s_mov_b32 s14, -1
s_mov_b32 s15, 0x00ffffff
s_and_b32 s31, s29, 3
s_lshl_b32 s31, s31, 7
s_lshr_b32 s32, s29, 2
s_add_u32 s31, s31, s32
s_lshl_b32 s32, s28, 9
s_add_u32 s31, s31, s32
s_lshl_b32 s31, s31, 10
v_add_u32 {vWO}, s31, {vXALL}
v_and_b32 {vXC}, 31, v0
v_lshlrev_b32 {vXC}, 2, {vXC}
s_cmp_eq_u32 s33, 4
s_cbranch_scc0 L_Y""")

    def lds_wait(self, off, n):
        l = self.lab("cnt")
        self.a(f"{l}:\nds_read_b32 v{TMP+1}, {vZERO} offset:{off}\ns_sub_u32 {sCN2}, {sCN2}, 1\ns_cbranch_scc1 L_exit\ns_waitcnt lgkmcnt(0)")
        self.a(f"v_cmp_gt_u32 vcc, {n}, v{TMP+1}\ns_cbranch_vccnz {l}")

    def prewrite(self, val):
        self.a(f"v_lshrrev_b32 v{TMP}, 5, v0\nv_lshlrev_b32 v{TMP}, 16, v{TMP}\nv_add_u32 v{TMP}, v{TMP}, {vGPUB}")
        self.a(f"global_atomic_swap v{TMP}, {vZERO}, {sG[0]}\nglobal_atomic_swap v{TMP}, {vZERO}, {sG[2]}")

    def combine(self, li, base, half, sc):
        a = self.a
        gen_c, back_c = self.lab("cgen"), self.lab("cback")
        a(f"ds_read_b128 v[{T2}:{T2+3}], {vLST}")
        if not half: a(f"ds_read_b128 v[{T2+4}:{T2+7}], {vLST} offset:64")
        for w in range(4): a(f"ds_read_b128 v[{TMP+4*w}:{TMP+4*w+3}], {vLDS} offset:{2048*w}")
        a(f"s_waitcnt lgkmcnt(4)\nv_or3_b32 v{GA+2}, v{T2}, v{T2+1}, v{T2+2}\nv_or_b32 v{GA+2}, v{GA+2}, v{T2+3}\nv_cmp_ne_u32 vcc, 0, v{GA+2}")
        lst = f"global_store_dword {vOSP}, v{GA}, {sSM} offset:{OSTAT[li]}{sc}\ns_mov_b64 exec, -1"
        if not half: a(f"v_pk_add_f32 v[{GA}:{GA+1}], v[{T2+4}:{T2+5}], v[{T2+6}:{T2+7}]\nv_add_f32 v{GA}, v{GA}, v{GA+1}")
        a(f"s_waitcnt lgkmcnt(2)\nv_pk_add_f32 v[{ACC}:{ACC+1}], v[{TMP}:{TMP+1}], v[{TMP+4}:{TMP+5}]\ns_cbranch_vccnz {gen_c}")
        if not half: a(f"s_mov_b64 exec, 0x2222\n{lst}")
        a(f"v_pk_add_f32 v[{ACC+2}:{ACC+3}], v[{TMP+2}:{TMP+3}], v[{TMP+6}:{TMP+7}]\ns_waitcnt lgkmcnt(1)")
        a(f"v_pk_add_f32 v[{ACC}:{ACC+1}], v[{ACC}:{ACC+1}], v[{TMP+8}:{TMP+9}]\nv_pk_add_f32 v[{ACC+2}:{ACC+3}], v[{ACC+2}:{ACC+3}], v[{TMP+10}:{TMP+11}]\ns_waitcnt lgkmcnt(0)")
        a(f"v_pk_add_f32 v[{ACC}:{ACC+1}], v[{ACC}:{ACC+1}], v[{TMP+12}:{TMP+13}]\nv_pk_add_f32 v[{ACC+2}:{ACC+3}], v[{ACC+2}:{ACC+3}], v[{TMP+14}:{TMP+15}]")
        a(f"{back_c}:\nv_cvt_pk_bf16_f32 v{ACC}, v{ACC}, v{ACC+1}\nv_cvt_pk_bf16_f32 v{ACC+1}, v{ACC+2}, v{ACC+3}\nglobal_store_dwordx2 {vPUBO}, v[{ACC}:{ACC+1}], {base[0]} offset:{base[1]}{sc}")
        def cgen(fb):
            fb(f"{gen_c}:\ns_waitcnt lgkmcnt(0)")
            fb(f"v_max3_f32 v{GA}, v{T2}, v{T2+1}, v{T2+2}\nv_max_f32 v{GA}, v{GA}, v{T2+3}")
            for w in range(4): fb(f"v_sub_f32 v{T2+w}, v{T2+w}, v{GA}")
            for w in range(4): fb(f"v_exp_f32 v{T2+w}, v{T2+w}")
            for w in range(4):
                for j in range(4):
                    fb(f"v_mul_f32 v{ACC+j}, v{T2}, v{TMP+j}" if w == 0 else f"v_fmac_f32 v{ACC+j}, v{T2+w}, v{TMP+4*w+j}")
            if not half:
                fb(f"v_mul_f32 v{GA+1}, v{T2}, v{T2+4}")
                for w in range(1, 4): fb(f"v_fmac_f32 v{GA+1}, v{T2+w}, v{T2+4+w}")
                fb(f"v_or_b32 v{GA+1}, 0x80000000, v{GA+1}\nv_cndmask_b32 v{GA}, v{GA}, v{GA+1}, {sODD}\ns_mov_b64 exec, 0x3333\n{lst}")
            fb(f"s_nop 1\ns_branch {back_c}")
        self.ool(cgen)

    def colsum_gather(self, base):
        self.rs_gather("cs", base, par=(1, 0, 0))
        self.a(f"v_mov_b32 {vCS}, v{GA}")

    def x_head(self):
        a = self.a
        nt3 = 2; pw = 0
        self.zero_acc()
        if 'noq' in self.c.exp: self.stamp(5)
        a(f"v_add_u32 v{T2}, {L_WQ}, {vXALL}\ns_waitcnt lgkmcnt(0)\ns_barrier")
        self.stamp(1)
        if 'noq' in self.c.exp:
            a("s_barrier"); self.end(0)
        self.WQ = []
        self.lds_weights(self.WQ, WA, f"v{T2}", 0, 8)
        a(f"s_waitcnt vmcnt({4 + nt3})")
        self.stats_pre(); self.stats(32)
        a(f"v_lshlrev_b32 {vX}, 16, {vX1}\nv_and_b32 {vX1}, 0xffff0000, {vX1}\nv_sub_f32 v{GA}, {vX}, {vMU}\nv_sub_f32 v{GA+1}, {vX1}, {vMU}")
        a(f"v_cvt_pk_bf16_f32 {vPR}, v{GA}, v{GA+1}")
        self.tag(1)
        for kp in range(8): self.dots(self.WQ, kp, lane=kp)
        self.xspare = self.spare
        a(f"s_waitcnt vmcnt({nt3 + pw})\ns_setprio 0")
        self.stamp(2)

    def x_program(self, slow):
        a = self.a; c = self.c
        sc = " sc1" if slow else ""
        self.spare = self.xspare
        if slow:
            self.clear_all(sc)
            a("s_waitcnt vmcnt(0)")
            self.zero_acc()
            for kp in range(8): self.dots(self.WQ, kp, lane=kp)
        for j in range(8): a(f"v_bfi_b32 v{ACC+j}, {vMASK}, {sT}, v{ACC+j}")
        for t in range(2): self.publish(ACC + 4 * t, sB[1 + t], sc)
        a(f"s_add_u32 s3, {sE}, 1\ns_lshl_b32 s3, s3, 4\ns_add_u32 s32, s3, 16\ns_or_b32 s3, s3, {sXCC}\ns_add_u32 s24, s3, 16")
        def xword():
            a(f"v_mov_b32 v{TMP}, {'s24' if slow else 's3'}\ns_lshl_b32 s31, s29, 2\nv_mov_b32 v{TMP+1}, s31")
            a(f"s_mov_b64 exec, 1\nglobal_store_dword v{TMP+1}, v{TMP}, {sSM} offset:{XCC}{sc}\ns_mov_b64 exec, -1")
        if not slow: xword()
        self.stamp(3)
        def check0(off):
            a(f"s_waitcnt vmcnt({off})\nv_cmp_ne_u32 s[30:31], s3, v{PX}")
            if slow:
                a(f"v_cmp_ne_u32 vcc, s24, v{PX}\nv_and_b32 v{TMP+2}, -16, v{PX}\ns_and_b64 s[30:31], s[30:31], vcc\nv_cmp_ne_u32 vcc, s32, v{TMP+2}")
                a("s_cmp_eq_u64 s[30:31], 0\ns_cselect_b64 s[30:31], 0, vcc")
            self.tagged_sum(PM)
            a("s_or_b64 vcc, vcc, s[30:31]")
        loads = "".join(f"global_load_dword v{PM+i}, {vINP}, {sB[1][0]} offset:{sB[1][1] + 256*i} sc1\n" for i in range(8))
        loads += f"global_load_dword v{PX}, {vXC}, {sSM} offset:{XCC} sc1"
        if not slow:
            self.zero_acc()
            for kp in range(8): self.dots(self.WQ, kp, sONE)
            self.pack_acc(CSQ)
        if c.force_slow and not slow: a("s_branch L_Xslow")
        if slow:
            a("s_waitcnt vmcnt(0)")
            xword()
            self.poll("q0", loads, check0, (1, 0, 0))
        else:
            self.poll("q0", loads, check0, c.q0, bound=c.limit1, over=lambda fb, ov, top: fb(f"{ov}:\ns_branch L_Xslow"), pace=c.pace)
        GU = []
        self.allred(GA, TMP)
        a(f"v_mul_f32 v{GA}, v{GA}, {vRS}")
        self.stamp(4)
        for li in range(2):
            h = 5 * li
            B = lambda k: HB(h + k)
            st = (lambda i: self.stamp(i)) if li == c.stamp_layer else (lambda i: None)
            self.pack(GA)
            self.pair_store(sSM, AGQ[li], sc)
            if li == 0 or not c.clrq: self.clear_inbox(sB[1], sc)
            if li == 0: self.clear_inbox(sB[2], sc); self.publish(CSQ, sCQ, sc)
            st(5)
            def qbody(off):
                a(f"s_waitcnt vmcnt({off})\nv_max3_u32 v{TMP}, v{PX}, v{PX+1}, v{PX+2}\nv_max_u32 v{TMP}, v{TMP}, v{PX+3}\nv_cmp_eq_u32 vcc, -1, v{TMP}")
            ql = f"global_load_dwordx4 v[{PX}:{PX+3}], {vAQ}, {sSM} offset:{AGQ[li]} sc1"
            if li == 0:
                a(f"v_mov_b32 v{TMP+1}, {int(slow)}\nds_write_b32 {vZERO}, v{TMP+1} offset:{L_MODE}")
                self.poll("aq", ql, qbody, c.a0, pace=c.pace)
            else: self.poll("aq", ql, qbody, c.aq)
            a(f"ds_write_b128 {vXALL}, v[{PX}:{PX+3}] offset:{L_Q}\ns_waitcnt lgkmcnt(0)\ns_barrier")
            if li == 1 and "stop8" in c.exp: a("s_endpgm")
            if li == 1 and c.clrq: self.clear_inbox(sB[1], sc); a("s_waitcnt vmcnt(0)")
            if li == 0: self.prewrite(0)
            a("s_barrier")
            st(6)
            self.combine(li, B(2), 0, sc)
            if li == 1 and "stop9" in c.exp: a("s_endpgm")
            st(7)
            if li == 0:
                a(f"v_lshrrev_b32 v{T2}, 1, v0\nv_lshlrev_b32 v{T2}, 4, v{T2}\nv_and_b32 v{T2+1}, 1, v0\nv_lshl_add_u32 v{T2}, v{T2+1}, 9, v{T2}\nv_add_u32 v{T2}, {L_GU}, v{T2}")
                a(f"s_mov_b32 {sCN2}, {c.limit * c.outer * 4}")
                self.zero_acc()
                self.lds_wait(L_CN2, 4)
                st(9)
                self.lds_weights(GU, WB, f"v{T2}", 0, 8, lambda kp: self.dots(GU, kp, sONE))
                self.pack_acc(TMP); self.publish(TMP, sCG, sc, M56)
                self.colsum_gather(sCQ)
                st(13)
            for half in range(2):
                k = 2 * li + half
                last = k == 3
                self.zero_acc()
                self.tag(11 + k)
                a("s_barrier")
                if f"stop{2*k}" in c.exp: a("s_endpgm")
                if not last and not c.clrl: self.clear_inbox(B(2 + 2 * half), sc)
                if last and c.fown:
                    a(f"v_and_b32 v{T2}, 7, v0\nv_lshlrev_b32 v{T2}, 3, v{T2}\ns_mov_b64 s[24:25], 0xff\ns_lshl_b64 s[24:25], s[24:25], {8 * c.fing}")
                self.rs_gather("out", B(3 + 2 * half), 7 if half else 8, mid=f"s_cmp_eq_u32 s28, {c.fing}" if last and c.fown else None)
                gpub = f"{c.gexec}\nglobal_atomic_swap {vGPUB}, v{GA}, {sG[k]}\ns_mov_b64 exec, -1"
                a(f"v_bfi_b32 v{GA}, {vMASK}, {sT}, v{GA}")
                own = last and c.fown
                if own:
                    l = self.lab("lastpub")
                    a(f"s_cbranch_scc0 {l}")
                    self.ool(lambda fb: (fb(f"{l}:\n{gpub}"), self.end(0)))
                else: a(gpub)
                if not last and c.clrl: self.clear_inbox(B(2 + 2 * half), sc)
                if li == 0: self.clear_inbox(B(3 + 2 * half), sc)
                st(10 + 4 * half)
                fin = self.lab("fin")
                if k == 2:
                    l = self.lab("noep")
                    a(f"s_cmp_eq_u32 s2, 0\ns_cbranch_scc0 {l}\ns_add_u32 s30, {sE}, {NTAGS}\nv_mov_b32 v{TMP}, s30\ns_mov_b64 exec, 1\nglobal_store_dword {vZERO}, v{TMP}, {sWS} sc1\ns_mov_b64 exec, -1\n{l}:")
                if not slow and c.fclean:
                    if k == 2 and c.fclean & 1: self.clear_inbox(B(3), " sc1")
                    if last:
                        if not c.fclean & 1: self.clear_inbox(B(3), " sc1")
                        self.clear_inbox(B(4), " sc1"); self.clear_inbox(B(5), " sc1")
                if last and c.wb and not slow:
                    l = self.lab("nowb")
                    if c.wb & 1: a(f"s_cmp_eq_u32 s29, {c.wbc}\ns_cbranch_scc0 {l}")
                    if c.wb & 2: a(f"s_cmp_eq_u32 s28, 0\ns_cbranch_scc1 {l}")
                    a(f"buffer_wbl2 sc1\n{l}:")
                if last and "stop7" in c.exp: a("s_endpgm")
                if own: pass
                elif last and c.fing < 8: a(f"s_cmp_eq_u32 s28, {c.fing}\ns_cbranch_scc0 {fin}")
                elif last: a(f"s_and_b32 s30, s29, 7\ns_cmp_eq_u32 s28, s30\ns_cbranch_scc0 {fin}")
                depth, delay, gap, gap2 = c.gl if last else c.g
                top = self.lab("g")
                gl = f"global_atomic_or_x2 v[{PG}:{PG+1}], {vGIN}, v[76:77], {sG[k]} sc0"
                if own:
                    gl0 = gl; gl = f"s_mov_b64 exec, vcc\n{gl0}\ns_mov_b64 exec, -1"
                    a(f"s_not_b64 vcc, s[24:25]")
                    self.nops(c.fod)
                    a(f"{gl}\nds_bpermute_b32 v{T2+2}, v{T2}, v{GA}\nds_bpermute_b32 v{T2+3}, v{T2}, v{GA} offset:4\ns_mov_b32 {sCNT}, {c.limit * c.outer}")
                    a(f"s_waitcnt lgkmcnt(0)\ns_mov_b64 exec, s[24:25]\nv_mov_b64 v[{PG}:{PG+1}], v[{T2+2}:{T2+3}]\ns_mov_b64 exec, -1")
                else: a(f"s_mov_b32 {sCNT}, {c.limit * c.outer}\ns_mov_b64 vcc, -1")
                if k == 0:
                    a(f"ds_read_b32 v{TMP}, {vZERO} offset:{L_PAR}\ns_lshr_b32 s30, {sXCC}, 2\ns_waitcnt lgkmcnt(0)\nv_readfirstlane_b32 s31, v{TMP}")
                    a(f"s_cmp_gt_i32 s31, {c.gthr}\ns_cselect_b32 s31, 0, 1\ns_xor_b32 s30, s30, s31\ns_and_b32 s30, s30, 1\ns_lshl_b32 s30, s30, 13\nv_add_u32 {vGIN}, s30, {vGIN}")
                    if c.dbgpar: a(f"s_load_dwordx2 s[44:45], s[0:1], 80\ns_waitcnt lgkmcnt(0)\ns_cmp_eq_u32 s2, 4\ns_cbranch_scc0 {top}_np\nglobal_store_dword {vZERO}, v{TMP}, s[44:45]\n{top}_np:")
                    delay = 0
                self.nops(delay)
                if c.gform == 0:
                    for j in range(depth - 1):
                        a(gl); self.nops(gap)
                    a(f"{top}:\ns_mov_b64 exec, vcc\n{gl}\ns_mov_b64 exec, -1\ns_sub_u32 {sCNT}, {sCNT}, 1\ns_cbranch_scc1 L_exit")
                else:
                    for j in range(1 if own else 0, depth):
                        a(gl)
                        if j < depth - 1: self.nops(gap)
                    if own: gl = gl0
                    a(f"{top}_c:")
                    self.tail.append(f"{top}:\ns_mov_b64 exec, vcc\n{gl}\ns_mov_b64 exec, -1\ns_sub_u32 {sCNT}, {sCNT}, 1\ns_cbranch_scc0 {top}_c\ns_endpgm\n")
                a(f"""s_waitcnt vmcnt({depth - 1})
v_xor_b32 v{GA}, {sT}, v{PG}
v_xor_b32 v{GA+1}, {sT}, v{PG+1}
v_or_b32 v{TMP+1}, v{GA}, v{GA+1}
v_cmp_ne_u32_sdwa vcc, v{TMP+1}, 0 src0_sel:BYTE_0 src1_sel:DWORD
v_permlane32_swap_b32 v{GA}, v{GA+1}
v_add_f32 v{GA}, v{GA}, v{GA+1}
v_mov_b32 v{TMP}, v{GA}
s_cbranch_vccnz {top}
v_permlane16_swap_b32 v{GA}, v{TMP}
v_add_f32 v{GA}, v{GA}, v{TMP}
v_add_f32_dpp v{GA}, v{GA}, v{GA} row_ror:8 {DPP}
v_mov_b32 v{GA+1}, v{GA}
v_permlane32_swap_b32 v{GA}, v{GA+1}
v_add_f32 v{GA}, v{GA}, {vX}
v_add_f32 v{GA+1}, v{GA+1}, {vX1}
v_cvt_pk_bf16_f32 {vPR}, v{GA}, v{GA+1}""")
                pst = lambda base, off, s_: a(f"s_mov_b64 exec, 0xff\nglobal_store_dword {vPAIR8}, {vPR}, {base} offset:{off}{s_}\ns_mov_b64 exec, -1")
                if last:
                    if "noout" not in c.exp: pst(sOUT, 0, c.opol)
                    a(f"{fin}:")
                    self.end(0)
                    break
                if half == 0: st(11)
                elif c.stamp_layer == 1: self.stamp(13)
                pst(sSM, XALL[k], sc)
                if half == 0:
                    a("s_barrier")
                    if f"stop{2*k+1}" in c.exp: a("s_endpgm")
                    self.gemv(GU, B(4), sc, lanes=range(8), mask=M56)
                    a(f"v_lshlrev_b32 {vX}, 16, {vPR}\nv_and_b32 {vX1}, 0xffff0000, {vPR}")
                    st(12)
                else:
                    st2 = (lambda i: self.stamp(i)) if c.stamp_layer == 1 else (lambda i: None)
                    self.gemv(self.WQ, HB(6), sc, lanes=range(8), hook=(c.xh, self.xload(1)))
                    a(f"v_lshlrev_b32 {vX}, 16, {vPR}\nv_and_b32 {vX1}, 0xffff0000, {vPR}")
                    st2(2)
                    if "stop3" in c.exp: a("s_endpgm")
                    self.rs_gather("q", HB(6), ln=1, xafter=1)
                    a(f"v_fma_f32 v{GA}, v{GA}, {vRS}, {vNM}")
                    st2(4)

    def y_head(self):
        a = self.a; c = self.c
        a(f"L_Y:\nds_write_b64 {vZERO}, v[{TMP}:{TMP+1}] offset:{L_CNT}\nv_add_u32 v{T2}, {L_WD}, {vXALL}\ns_waitcnt lgkmcnt(0)\ns_barrier".replace("L_Y:", f"L_Y:\nv_mov_b64 v[{TMP}:{TMP+1}], 0"))
        self.stamp(1)
        if c.probe:
            a(f"s_lshl_b32 s30, s28, 14\ns_and_b32 s31, s29, 15\ns_lshl_b32 s31, s31, 8\ns_add_u32 s30, s30, s31\ns_lshr_b32 s31, s29, 4\ns_lshl_b32 s31, s31, 17\ns_add_u32 s30, s30, s31\ns_add_u32 s30, s30, {PROBE}\ns_add_u32 s16, s26, s30\ns_addc_u32 s17, s27, 0")
            a("s_load_dword s20, s[16:17], 64\ns_mov_b32 s8, 0\ns_waitcnt lgkmcnt(0)\ns_memtime s[18:19]\ns_waitcnt lgkmcnt(0)")
            for i, off in enumerate((8192, 128, 4096, 8192 + 128, 8192 + 4096, 4096 + 128, 12288+128, 0)[:2 * c.probe]):
                a(f"s_load_dword s20, s[16:17], {off}\ns_waitcnt lgkmcnt(0)\ns_memtime s[6:7]\ns_waitcnt lgkmcnt(0)\ns_sub_u32 s9, s6, s18\ns_mov_b32 s18, s6")
                a(f"{'s_sub_u32' if off & 8192 else 's_add_u32'} s8, s8, s9")
                if c.debug and i & 1: a(f"s_add_u32 s{70 + 2*(3, 4, 10, 11)[i >> 1]}, s70, s8\ns_add_u32 s{70 + 2*(3, 4, 10, 11)[i >> 1]}, s{70 + 2*(3, 4, 10, 11)[i >> 1]}, 50000")
        a(f"s_sub_u32 s9, 0, s8\ns_cmp_ge_u32 {sXCC}, 4\ns_cselect_b32 s8, s8, s9\ns_min_i32 s8, s8, 0x3fff\ns_max_i32 s8, s8, -0x3fff")
        a(f"v_mov_b32 v{TMP}, s8\nds_write_b32 {vZERO}, v{TMP} offset:{L_PAR}\ns_add_u32 s25, {sE}, 3\ns_and_b32 s25, s25, 0xffff\ns_lshl_b32 s24, s8, 16\ns_or_b32 s24, s24, s25")
        a(f"v_mov_b32 v{TMP}, s24\ns_lshl_b32 s30, s29, 2\nv_mov_b32 v{TMP+1}, s30\ns_mov_b64 exec, 1\nglobal_store_dword v{TMP+1}, v{TMP}, {sSM} offset:{PARR}\ns_mov_b64 exec, -1")
        a(f"s_mov_b32 {sCN2}, {c.limit * c.outer * 4}")
        self.spare = SPARE
        for grp in range(4):
            self.lds_wait(L_CNT, grp + 1)
            for k in range(4 * grp, 4 * grp + 4):
                a(f"global_load_dwordx4 v[{WA+4*k}:{WA+4*k+3}], {vWO}, {sWO}{c.nt}")
                if k < 15: a(f"v_add_u32 {vWO}, 8192, {vWO}")
        for x in c.help:
            a(f"""s_xor_b32 s30, s29, {x}
s_and_b32 s31, s30, 3
s_lshl_b32 s31, s31, 7
s_lshr_b32 s30, s30, 2
s_add_u32 s31, s31, s30
s_lshl_b32 s30, s28, 9
s_add_u32 s31, s31, s30
s_lshl_b32 s31, s31, 10
s_add_u32 s31, s31, 65536
v_lshrrev_b32 v{TMP}, 3, v0
v_lshlrev_b32 v{TMP}, 13, v{TMP}
v_and_b32 v{TMP+1}, 7, v0
v_lshl_add_u32 v{TMP}, v{TMP+1}, 7, v{TMP}
v_add_u32 v{TMP}, s31, v{TMP}
global_load_dword {vJ}, v{TMP}, {sWO}{c.hpol}""")
        self.stamp(2)
        a(f"s_barrier\nds_read_b32 v{TMP+1}, {vZERO} offset:{L_MODE}")
        if 'noq' in self.c.exp: a("s_waitcnt vmcnt(0)"); self.end(1)
        a(f"s_waitcnt lgkmcnt(0)\nv_readfirstlane_b32 s3, v{TMP+1}\ns_cmp_eq_u32 s3, 0\ns_cbranch_scc0 L_Yslow")

    def y_program(self, slow):
        a = self.a; c = self.c
        sc = " sc1" if slow else ""
        spare0 = self.spare
        WO = []; WD = []
        for li in range(2):
            h = 5 * li
            B = lambda k: HB(h + k)
            st = (lambda i: self.stamp(i)) if li == c.stamp_layer else (lambda i: None)
            if li: a("s_barrier")
            if li == 1 and "stop8" in c.exp: a("s_endpgm")
            a("s_barrier")
            st(6)
            self.combine(li, B(2), 1, sc)
            if li == 1 and "stop9" in c.exp: a("s_endpgm")
            st(7)
            if li == 0: a(f"global_load_dword v{PG}, {vXC}, {sSM} offset:{PARR} sc1")
            y, z, t, L = PL, GA, TMP, PM + 8
            loads = "".join(f"global_load_dwordx4 v[{L+4*i}:{L+4*i+3}], {vOSI}, {sSM} offset:{OSTAT[li]+128+16*i} sc1\n" for i in range(2))
            loads += self.rs_loads(B(2), PL)
            def shadow(nafter):
                a(f"v_add_u32 v{T2}, {L_WD}, {vXALL}\ns_mov_b32 {sCN2}, {c.limit * c.outer * 4}")
                self.lds_wait(L_CN2, 4)
                self.lds_weights(WD, WB, f"v{T2}", 0, 4)
                a(f"s_mov_b32 {sCN2}, {c.outer}")
                for kp in range(8):
                    a(f"s_waitcnt vmcnt({14 - 2*kp + 2 + len(c.help) + nafter})")
                    self.perm_pair(WO, WA, kp)
            onorm, ogen = self.lab("onorm"), self.lab("ogen")
            def obody(off):
                a(f"""s_waitcnt vmcnt({off + 4})
v_pk_add_f32 v[{z}:{z+1}], v[{y}:{y+1}], v[{y+2}:{y+3}]
v_pk_add_f32 v[{LA}:{LA+1}], v[{L}:{L+1}], v[{L+2}:{L+3}]
v_pk_add_f32 v[{LA+2}:{LA+3}], v[{L+4}:{L+5}], v[{L+6}:{L+7}]
v_pk_add_f32 v[{LA}:{LA+1}], v[{LA}:{LA+1}], v[{LA+2}:{LA+3}]
v_add_f32 v{LA}, v{LA}, v{LA+1}
s_waitcnt vmcnt({off})
v_pk_add_f32 v[{z+2}:{z+3}], v[{y+4}:{y+5}], v[{y+6}:{y+7}]
v_pk_add_f32 v[{z}:{z+1}], v[{z}:{z+1}], v[{z+2}:{z+3}]
v_add_f32 v{z}, v{z}, v{z+1}
v_cmp_u_f32 vcc, v{z}, v{LA}
v_or3_b32 v{t+2}, v{L}, v{L+1}, v{L+2}
v_permlane32_swap_b32 v{z}, v{LA}
v_add_f32 v{z}, v{z}, v{LA}
v_mov_b32 v{t}, v{z}""")
            def oover(fb, ov, top):
                fb(f"{ov}:\ns_sub_u32 {sCN2}, {sCN2}, 1\ns_cbranch_scc1 L_exit\ns_mov_b32 {sCNT}, {c.limit}\ns_waitcnt vmcnt(0)")
                self.umax(t, range(y, y + 8))
                fb(f"v_cmp_eq_u32 vcc, 0xffff0000, v{t}\ns_cbranch_vccnz {top}")
                self.umax(t, range(L, L + 8))
                fb(f"v_cmp_eq_u32 vcc, -1, v{t}\ns_cbranch_vccnz {top}\ns_branch {ogen}")
            self.zero_acc()
            a(f"s_mov_b32 {sCN2}, {c.outer}")
            self.poll("o", loads, obody, c.ro if li else (1, 0, 0), shadow if li == 0 else None, bound=c.limit, over=oover)
            a(f"""v_or3_b32 v{t+2}, v{t+2}, v{L+3}, v{L+4}
v_permlane16_swap_b32 v{z}, v{t}
v_add_f32 v{z}, v{z}, v{t}
v_mov_b32 v{LA}, v{z}
v_or3_b32 v{t+2}, v{t+2}, v{L+5}, v{L+6}
v_or_b32 v{t+2}, v{t+2}, v{L+7}
v_permlane32_swap_b32 v{z}, v{LA}
v_rcp_f32 v{LA}, v{LA}
v_cmp_gt_i32 vcc, 0, v{t+2}
v_mul_f32 v{z}, v{z}, v{LA}""")
            self.pack(GA)
            a(f"s_cbranch_vccnz {ogen}\n{onorm}:")
            def ogen_f(fb):
                mloop = self.lab("omloop")
                fb(f"{ogen}:\ns_waitcnt vmcnt(0)\ns_mov_b32 {sCNT}, {c.limit * c.outer}\n{mloop}:\ns_sub_u32 {sCNT}, {sCNT}, 1\ns_cbranch_scc1 L_exit")
                for i in range(2): fb(f"global_load_dwordx4 v[{PM+4*i}:{PM+4*i+3}], {vOSI}, {sSM} offset:{OSTAT[li]+16*i} sc1")
                fb("s_waitcnt vmcnt(0)")
                for i in range(8): fb(f"v_cmp_gt_i32 vcc, 0, v{L+i}\nv_cndmask_b32 v{T2+i}, 0, v{PM+i}, vcc")
                self.umax(t, range(T2, T2 + 8))
                fb(f"v_cmp_eq_u32 vcc, -1, v{t}\ns_cbranch_vccnz {mloop}")
                fb(f"v_max3_f32 v{t}, v{T2}, v{T2+1}, v{T2+2}\nv_max3_f32 v{t}, v{t}, v{T2+3}, v{T2+4}\nv_max3_f32 v{t}, v{t}, v{T2+5}, v{T2+6}\nv_max_f32 v{t}, v{t}, v{T2+7}")
                self.allred(t, t + 1, "v_max_f32")
                for i in range(8): fb(f"v_sub_f32 v{T2+i}, v{T2+i}, v{t}")
                for i in range(8): fb(f"v_exp_f32 v{T2+i}, v{T2+i}")
                fb(f"v_mul_f32 v{GA}, v{T2}, v{y}\nv_mul_f32_e64 v{LA}, v{T2}, |v{L}|")
                for i in range(1, 8): fb(f"v_fmac_f32 v{GA}, v{T2+i}, v{y+i}\nv_fma_f32 v{LA}, v{T2+i}, |v{L+i}|, v{LA}")
                self.allred(LA, t + 1); self.allred(GA, t + 2)
                fb(f"v_rcp_f32 v{LA}, v{LA}\nv_mul_f32 v{GA}, v{GA}, v{LA}")
                self.pack(GA)
                fb(f"s_nop 1\ns_branch {onorm}")
            self.ool(ogen_f)
            st(8)
            self.gemv(WO, B(3), sc)
            a("s_barrier")
            if f"stop{4*li}" in c.exp: a("s_endpgm")
            st(9)
            noffn = self.lab("noffn")
            if li == 0:
                a(f"v_and_b32 v{TMP+1}, 0xffff, v{PG}\nv_cmp_eq_u32 vcc, s25, v{TMP+1}\nv_ashrrev_i32 v{TMP}, 16, v{PG}\nv_cndmask_b32 v{TMP}, 0, v{TMP}, vcc")
                for r in (8, 4, 2, 1): a(f"v_add_u32_dpp v{TMP}, v{TMP}, v{TMP} row_ror:{r} {DPP}")
                a(f"v_mov_b32 v{TMP+1}, v{TMP}\nv_permlane16_swap_b32 v{TMP}, v{TMP+1}\nv_add_u32 v{TMP}, v{TMP}, v{TMP+1}\ns_ashr_i32 s30, s24, 16\nv_add_u32 v{TMP}, s30, v{TMP}\nds_write_b32 {vZERO}, v{TMP} offset:{L_PAR}")
                l = self.lab("nocg")
                a(f"s_cmp_lt_u32 s29, 28\ns_cbranch_scc0 {l}")
                self.nops(c.cgd)
                self.colsum_gather(sCG)
                a(f"{l}:")
            self.zero_acc()
            a(f"s_barrier")
            if f"stop{4*li+1}" in c.exp: a("s_endpgm")
            a(f"s_cmp_lt_u32 s29, 28\ns_cbranch_scc0 {noffn}")
            st(12)
            self.rs_gather("gu", B(4), ln=2 * li)
            st(5)
            a(f"v_fma_f32 v{GA}, v{GA}, {vRS}, {vNM}\nv_mul_f32_dpp v{GA}, v{GA}, v{GA} row_ror:8 {DPP}")
            self.pack(GA)
            self.gemv(WD, B(5), sc)
            a(f"{noffn}:")
            st(13)
            a("s_barrier")
            if f"stop{4*li+2}" in c.exp or (li == 0 and "stop3" in c.exp): a("s_endpgm")
        self.end(1)
        self.spare = spare0

    def build(self):
        a = self.a
        self.prologue()
        self.s_stream()
        self.c_pre()
        self.x_head()
        self.x_program(False); self.flush()
        self.y_head()
        self.y_program(False); self.flush()
        self.s_layers(); self.flush()
        a("L_fast_end:\nL_Yslow:")
        self.y_program(True); self.flush()
        a("L_Xslow:")
        self.x_program(True); self.flush()
        a("L_exit:\ns_endpgm")
        head = f"""; Fused decode step: 2 x (LayerNorm -> GQA sliding-window attention -> residual -> LayerNorm -> bilinear GLU -> residual)
; @launch grid=(256,1,1) block=(384,1,1) lds={self.c.ldsx or LDS_BYTES}
.amdgcn_target "amdgcn-amd-amdhsa--gfx950"
.text
.globl {KNAME}
.p2align 8
.type {KNAME},@function
{KNAME}:
"""
        tail = f"""
.section .rodata,"a"
.p2align 6
.amdhsa_kernel {KNAME}
  .amdhsa_next_free_vgpr 256
  .amdhsa_next_free_sgpr 102
  .amdhsa_accum_offset 256
  .amdhsa_group_segment_fixed_size 0
  .amdhsa_kernarg_size 96
  .amdhsa_user_sgpr_count 2
  .amdhsa_user_sgpr_kernarg_segment_ptr 1
  .amdhsa_system_sgpr_workgroup_id_x 1
  .amdhsa_float_denorm_mode_32 3
.end_amdhsa_kernel
"""
        return head + a.text() + tail


def make(**kw):
    c = Cfg()
    for k, v in kw.items(): setattr(c, k, v)
    return Gen(c).build()

if __name__ == "__main__":
    kw = {}
    for x in sys.argv[2:]:
        k, v = x.split("=", 1); kw[k] = eval(v)
    open(sys.argv[1], "w").write(make(**kw))
```

```python
import sys, struct
from asmlib import Asm

KNAME = "interleave_layers__sliding_block_cached__glu_gated_bilinear__decode_kernel"
def f2u(x): return struct.unpack("<I", struct.pack("<f", x))[0]

class Cfg:
    debug = False
    stamp_layer = 0
    nt = " nt"
    win = 4
    wins = [4]*14+[5]*8
    wo_at = 25
    limit = 64
    outer = 2000
    limit1 = 64
    force_slow = False
    rs = (3, 80, 60)
    ro = (3, 80, 60)
    g = (3, 80, 200, 0)
    q0 = (3, 200, 500)
    a0 = (3, 300, 500)
    b2x_first = 0
    cgd = 500
    xq = (60, 60, 2)
    xg = (340, 70, 3)
    xh = 7
    rpre = 0
    nfill = 2
    lnoff = 1
    aq = (3, 130, 55)
    prew = 2
    cs_sc = ''
    pace = 200
    touch = 1
    tpol = ' sc1'
    xpol = ''
    pfpol = ''
    exp = ''
    rot = 1
    pf0 = 0
    pf0pol = ' nt'
    pf = 6
    b0_late = 1
    fclean = 0
    ldsx = 0
    gform = 1
    clrl = 0
    clrq = 0
    dbgpar = 0
    fown = 1
    fod = 0
    probe = 2
    gthr = 0
    bpar = 0
    band = 0
    bsh = 13
    gpar = 1
    gand = 1
    gexec = 's_mov_b32 exec_hi, 0'
    sgemv = 1
    qkov = 1
    fing = 4
    opol = ''
    gl = (3, 150, 120, 0)
    help = ()
    hpol = ' nt'
    wb = 0
    wbc = 0
    dbgwg = 0
    dbgfrom = 0
    dbgfix = 0
    cs_late = 1
    tlb = 0
    xd = 200
    bound = 60.0

DPP = "row_mask:0xf bank_mask:0xf"
G_OFF = 0x10000; G_STRIDE = 0x10000
GB_OFF = 0x100000; GB_STRIDE = 0x30000
import os
NB = int(os.environ.get("NB", "2"))
IB = 2048 * (NB + 1)
sB = [("s[36:37]", -2048), ("s[36:37]", 0), ("s[36:37]", 2048)]
sR = sB[2] if NB == 2 else ("s[40:41]", 0)
SM = 0x28000 + 0x1000
AGQ = [-0x1000, -0xC00]; XALL = [-0x800, -0x400, 0x0]; OSTAT = [0x400, 0x800]; XCC = 0xC00; PARR = 0xD00
DBG_OFF = 0xa00000
NTAGS = 16
PROBE = 0x80000
L_O = 32768; L_ST = 40960; L_MODE = L_ST + 128; L_CNT = L_ST + 136; L_CN2 = L_ST + 140; L_PAR = L_ST + 144; L_Q = 41984; L_WQ = L_Q + 1024; L_GU = L_WQ + 16384; L_WD = L_GU + 16384
LDS_BYTES = L_WD + 8192
sX, sK, sV, sWQ, sWO, sWG, sWU, sWD, sOUT, sWS = ("s[4:5]", "s[6:7]", "s[8:9]", "s[10:11]", "s[12:13]",
    "s[16:17]", "s[18:19]", "s[20:21]", "s[22:23]", "s[26:27]")
sSM = "s[46:47]"
sG = ["s[48:49]", "s[50:51]", "s[52:53]", "s[54:55]"]
sE, sT, sCNT, sXCC, sLO, sHI, sONE, sCN2 = "s56", "s57", "s58", "s61", "s62", "s63", "s64", "s65"
sODD = "s[66:67]"; M56 = "s[14:15]"
vMASK, vIN, vPUB, vPUBO, vGIN, vGPUB, vPAIR, vXALL, vOSI, vOSP, vLDS, vLST = ["v%d" % i for i in range(1, 13)]
vX, vCS, vINX, vPR, vMU, vRS, vNM = "v13", "v14", "v15", "v16", "v17", "v18", "v19"
GA = 20; MA = 28; LA = 36; ACC = 40; TMP = 48; T2 = 64; NEG = 72
vZERO, vAQ, vCLR, vXC, vWO, vINP, vDN2, vJ = "v76", "v79", "v78", "v253", "v208", "v209", "v210", "v211"
vX1, vPAIR8 = "v252", "v254"
WA, WB, SPARE = 80, 144, 212
PL = 214; PM = 222; PX = 238; CSQ = 242; CSG = 246; PG = 250


def HB(hop): return sB[hop & 1] if NB == 2 else sB[[1, 2, 0][hop % 3]]


class Gen:
    def __init__(self, cfg):
        self.c = cfg; self.a = Asm(); self.tail = []; self.nlab = 0; self.spare = SPARE

    def lab(self, s):
        self.nlab += 1
        return f"L_{s}_{self.nlab}"

    def stamp(self, i):
        if self.c.debug: self.a(f"s_memtime s[{70+2*i}:{71+2*i}]")

    def end(self, slot):
        a = self.a
        if self.c.debug == 3:
            if slot == 0:
                l, l2 = self.lab("nodbg"), self.lab("spin")
                a(f"s_memtime s[100:101]\ns_waitcnt lgkmcnt(0)\ns_cmp_eq_u32 s2, {self.c.fing}\ns_cbranch_scc0 {l}\ns_sub_u32 s31, s{70+2*self.c.dbgwg}, s{70+2*self.c.dbgfrom}\ns_min_u32 s31, s31, 200000")
                if self.c.dbgfix: a(f"s_mov_b32 s31, {self.c.dbgfix}")
                a(f"{l2}:\ns_memtime s[98:99]\ns_waitcnt lgkmcnt(0)\ns_sub_u32 s30, s98, s100\ns_cmp_lt_u32 s30, s31\ns_cbranch_scc1 {l2}\n{l}:")
            a("s_endpgm"); return
        if self.c.debug == 2:
            if slot == 0:
                l = self.lab("nodbg")
                a(f"s_memtime s[100:101]\ns_load_dwordx2 s[24:25], s[0:1], 80\ns_waitcnt vmcnt(0) lgkmcnt(0)\ns_cmp_lt_u32 s2, 8\ns_cbranch_scc0 {l}\ns_mov_b64 exec, 1")
                a("s_lshl_b32 s30, s2, 2\nv_mov_b32 v20, s30\nv_mov_b32 v24, s68\nglobal_store_dword v20, v24, s[24:25]")
                a(f"s_cmp_eq_u32 s2, {self.c.dbgwg}\ns_cbranch_scc0 {l}")
                for j, i in enumerate((1, 4, 6, 10, 11, 14, 15)): a(f"s_sub_u32 s31, s{70+2*i}, s70\nv_mov_b32 v{24+j}, s31")
                a("v_mov_b32 v20, 0\nv_mov_b32 v31, 0\nglobal_store_dwordx4 v20, v[24:27], s[24:25] offset:32\nglobal_store_dwordx4 v20, v[28:31], s[24:25] offset:48")
                a(f"{l}:")
            a("s_endpgm"); return
        if self.c.debug:
            a("s_memtime s[100:101]\ns_waitcnt vmcnt(0) lgkmcnt(0)\ns_mov_b64 exec, -1")
            a(f"s_lshl_b32 s30, s2, 9\ns_add_u32 s30, s30, {DBG_OFF + slot*128}")
            a("v_mov_b32 v20, s30\nv_mov_b32 v24, s68")
            for i in range(1, 16): a(f"s_sub_u32 s31, s{70+2*i}, s70\nv_mov_b32 v{24+i}, s31")
            for i in range(4): a(f"global_store_dwordx4 v20, v[{24+4*i}:{27+4*i}], {sWS} offset:{16*i}")
        a("s_endpgm")

    def tag(self, k): self.a(f"s_add_u32 {sT}, {sE}, {k}\ns_and_b32 {sT}, {sT}, 0x3f\ns_or_b32 {sT}, {sT}, 0x40")

    def nops(self, cyc):
        if cyc >= 192:
            self.a(f"s_sleep {cyc // 64}"); return
        while cyc >= 4:
            k = min(cyc // 4, 16); self.a(f"s_nop {k-1}"); cyc -= 4 * k

    def ool(self, fn):
        fb = Asm(); sv, self.a = self.a, fb
        fn(fb)
        self.a = sv
        self.tail.append(fb.text())

    def flush(self):
        while self.tail: self.a(self.tail.pop(0))

    def poll(self, name, loads, body, par, shadow=None, bound=None, over=None, first=True, pace=0):
        a = self.a
        depth, delay, gap = par
        nl = loads.count("global_")
        top, ov = self.lab(name), self.lab(name + "_over")
        a(f"s_mov_b32 {sCNT}, {bound or self.c.limit * self.c.outer}")
        if first:
            self.nops(delay)
            for k in range(depth - 1):
                a(loads); self.nops(gap)
        if shadow:
            skip = self.lab(name + "_in")
            a(loads); shadow(depth * nl); a(f"s_branch {skip}\n{top}:\n{loads}\n{skip}:")
        else:
            a(f"{top}:\n{loads}")
        a(f"s_sub_u32 {sCNT}, {sCNT}, 1\ns_cbranch_scc1 {ov if over else 'L_exit'}")
        self.nops(pace)
        body((depth - 1) * nl)
        a(f"s_cbranch_vccnz {top}")
        if over: self.ool(lambda fb: over(fb, ov, top))

    def allred(self, r, t, op="v_add_f32"):
        self.a(f"""v_mov_b32 v{t}, v{r}
v_permlane32_swap_b32 v{r}, v{t}
{op} v{r}, v{r}, v{t}
v_mov_b32 v{t}, v{r}
v_permlane16_swap_b32 v{r}, v{t}
{op} v{r}, v{r}, v{t}""")

    def rs_loads(self, base, g, n=8):
        return "\n".join(f"global_load_short_d16_hi v{g+i}, {vIN}, {base[0]} offset:{base[1] + 256*i} sc1" for i in range(n))

    def umax(self, t, regs):
        regs = list(regs)
        self.a(f"v_max3_u32 v{t}, v{regs[0]}, v{regs[1]}, v{regs[2]}")
        for i in range(3, len(regs), 2): self.a(f"v_max3_u32 v{t}, v{t}, v{regs[i]}, v{regs[min(i+1, len(regs)-1)]}")

    def tagged_sum(self, src, n=8):
        a = self.a
        for i in range(n): a(f"v_xor_b32 v{MA+i}, {sT}, v{src+i}")
        a(f"v_or3_b32 v{TMP}, v{MA}, v{MA+1}, v{MA+2}\nv_or3_b32 v{TMP}, v{TMP}, v{MA+3}, v{MA+4}\nv_or3_b32 v{TMP}, v{TMP}, v{MA+5}, v{MA+6}\nv_or_b32 v{TMP}, v{TMP}, v{MA+7}")
        a(f"v_cmp_ne_u32_sdwa vcc, v{TMP}, 0 src0_sel:BYTE_0 src1_sel:DWORD")
        a(f"v_pk_add_f32 v[{GA}:{GA+1}], v[{MA}:{MA+1}], v[{MA+2}:{MA+3}]\nv_pk_add_f32 v[{GA+2}:{GA+3}], v[{MA+4}:{MA+5}], v[{MA+6}:{MA+7}]")
        a(f"v_pk_add_f32 v[{GA}:{GA+1}], v[{GA}:{GA+1}], v[{GA+2}:{GA+3}]\nv_add_f32 v{GA}, v{GA}, v{GA+1}")

    def xload(self, ln): return f"global_load_dwordx4 v[{PX}:{PX+3}], {vXALL}, {sSM} offset:{XALL[ln]} sc1"

    def rs_gather(self, name, base, n=8, post=None, par=None, ln=None, xafter=None, mid=None, side=None):
        z, t, y = GA, TMP, PL
        done = self.lab(name + "_done")
        def reduce(off, test):
            a = self.a
            a(f"s_waitcnt vmcnt({off + n - 4})\nv_pk_add_f32 v[{z}:{z+1}], v[{y}:{y+1}], v[{y+2}:{y+3}]\ns_waitcnt vmcnt({off})")
            if n == 8: a(f"v_pk_add_f32 v[{z+2}:{z+3}], v[{y+4}:{y+5}], v[{y+6}:{y+7}]\nv_pk_add_f32 v[{z}:{z+1}], v[{z}:{z+1}], v[{z+2}:{z+3}]")
            else: a(f"v_pk_add_f32 v[{z}:{z+1}], v[{z}:{z+1}], v[{y+4}:{y+5}]\nv_add_f32 v{z}, v{z}, v{y+6}")
            a(f"v_add_f32 v{z}, v{z}, v{z+1}\nv_mov_b32 v{t}, v{z}")
            if test: a(f"v_cmp_u_f32 vcc, v{z}, v{z}")
            a(f"v_permlane32_swap_b32 v{z}, v{t}\nv_add_f32 v{z}, v{z}, v{t}\nv_mov_b32 v{t}, v{z}")
        def over(fb, ov, top):
            fb(f"{ov}:\ns_sub_u32 {sCN2}, {sCN2}, 1\ns_cbranch_scc1 L_exit\ns_mov_b32 {sCNT}, {self.c.limit}\ns_waitcnt vmcnt(0)")
            self.umax(t, range(y, y + n))
            fb(f"v_cmp_eq_u32 vcc, 0xffff0000, v{t}\ns_cbranch_vccnz {top}")
            reduce(0, False)
            fb(f"s_branch {done}")
        loads = self.rs_loads(base, PL, n)
        a = self.a
        a(f"s_mov_b32 {sCN2}, {self.c.outer}")
        if ln is None:
            self.poll(name, loads, lambda off: reduce(off, True), par or self.c.rs, bound=self.c.limit, over=over)
        else:
            xl = self.xload(ln)
            xchk = f"v_max3_u32 v{TMP}, v{PX}, v{PX+1}, v{PX+2}\nv_max_u32 v{TMP}, v{TMP}, v{PX+3}\nv_cmp_eq_u32 vcc, -1, v{TMP}"
            xr, xok, top, ov = self.lab("xretry"), self.lab("xok"), self.lab(name), self.lab(name + "_over")
            delay, gap, K = self.c.xq if name == "q" else self.c.xg
            a(f"s_mov_b32 {sCNT}, {self.c.limit * self.c.outer}")
            self.stats_pre()
            self.nops(delay)
            for j in range(K):
                a(xl)
                if j < K - 1: self.nops(gap)
            if side: side(K + xafter + 1)
            pre = self.c.rpre
            if pre: self.nops(pre - 1); a(loads)
            cnts = [cn + (n if pre else 0) for cn in ([K + xafter] if xafter is not None else []) + list(range(K - 1, -1, -1))]
            for j, cn in enumerate(cnts):
                a(f"s_waitcnt vmcnt({cn})\n{xchk}")
                a(f"s_cbranch_vccz {xok}" if j < len(cnts) - 1 else f"s_cbranch_vccnz {xr}")
            a(f"{xok}:")
            self.tail.append(f"{xr}:\n{xl}\ns_nop 15\n{xr}_b:\n{xl}\ns_sub_u32 {sCNT}, {sCNT}, 1\ns_cbranch_scc1 L_exit\ns_waitcnt vmcnt(1)\n{xchk}\ns_cbranch_vccnz {xr}_b\ns_branch {xok}\n")
            if self.c.stamp_layer == 1 and ln >= 1:
                self.stamp(8 if ln == 1 else 3)
                if self.c.debug: a(f"s_sub_u32 s72, {self.c.limit * self.c.outer + 1000}, {sCNT}\ns_add_u32 s72, s72, s70")
            self.stats(PX, loads.split("\n") * self.c.nfill)
            a(f"s_mov_b32 {sCNT}, {self.c.limit}\nv_mul_f32 {vNM}, {vMU}, {vRS}\nv_mul_f32_e64 {vNM}, -{vNM}, {vCS}")
            if self.c.stamp_layer == 1 and ln >= 1: self.stamp(9 if ln == 1 else 4)
            a(f"{top}_c:")
            reduce(n * self.c.lnoff, True)
            a(f"s_cbranch_vccnz {top}")
            self.tail.append(f"{top}:\n{loads}\ns_sub_u32 {sCNT}, {sCNT}, 1\ns_cbranch_scc0 {top}_c\ns_branch {ov}\n")
            self.ool(lambda fb: over(fb, ov, top))
        a(f"{done}:")
        if mid: a(mid)
        a(f"v_permlane16_swap_b32 v{z}, v{t}\nv_add_f32 v{z}, v{z}, v{t}")

    def pack(self, r):
        self.a(f"v_mov_b32_dpp v{TMP}, v{r} quad_perm:[1,0,3,2] {DPP}\nv_cvt_pk_bf16_f32 {vPR}, v{r}, v{TMP}")

    def perm_pair(self, W, base, kp):
        W.append([])
        for u in range(4):
            lo = base + 8 * kp + u; hi = lo + 4; s = self.spare
            self.a(f"v_perm_b32 v{s}, v{hi}, v{lo}, {sLO}\nv_perm_b32 v{hi}, v{hi}, v{lo}, {sHI}")
            W[kp] += [s, hi]; self.spare = lo

    def zero_acc(self):
        for j in range(0, 8, 2): self.a(f"v_mov_b64 v[{ACC+j}:{ACC+j+1}], 0")

    def dots(self, W, kp, src=None, lane=None):
        for j in range(8):
            if src: self.a(f"v_dot2c_f32_bf16 v{ACC+j}, {src}, v{W[kp][j]}")
            else: self.a(f"v_dot2c_f32_bf16_dpp v{ACC+j}, {vPR}, v{W[kp][j]} row_newbcast:{2*kp if lane is None else lane} {DPP}")

    def gemv(self, W, base, sc, lanes=None, mask=None, hook=None, drain=False):
        a = self.a
        n = len(W)
        lane = lambda kp: 2 * kp if lanes is None else lanes[kp]
        if self.c.sgemv:
            rl = [f"v_readlane_b32 s{4+kp}, {vPR}, {lane(kp)}" for kp in range(n)]
            for _ in range(3): a(rl.pop(0))
            def d(kp, j):
                a(f"v_dot2c_f32_bf16 v{ACC+j}, s{4+kp}, v{W[kp][j]}")
                if rl and j == 1: a(rl.pop(0))
        else:
            d = lambda kp, j: a(f"v_dot2c_f32_bf16_dpp v{ACC+j}, {vPR}, v{W[kp][j]} row_newbcast:{lane(kp)} {DPP}")
        for kp in range(n):
            for j in range(8): d(kp, j)
            if hook and kp == hook[0]: a(hook[1])
        self.pack_acc(TMP)
        if drain: a("s_waitcnt vmcnt(0)")
        self.publish(TMP, base, sc, mask)

    def pack_acc(self, d):
        for j in range(4): self.a(f"v_cvt_pk_bf16_f32 v{d+j}, v{ACC+2*j}, v{ACC+2*j+1}")

    def publish(self, src, base, sc, mask=None):
        a = self.a
        if mask: a(f"s_mov_b64 exec, {mask}")
        a(f"global_store_dwordx4 {vPUB}, v[{src}:{src+3}], {base[0]} offset:{base[1]}{sc}")
        if mask: a("s_mov_b64 exec, -1")

    def clear_inbox(self, base, sc):
        self.a(f"global_store_dwordx4 {vINX}, v[{NEG}:{NEG+3}], {base[0]} offset:{base[1]}{sc}")

    def stats_pre(self):
        p, q = TMP + 4, TMP + 5
        self.a(f"v_mov_b64 v[{p}:{q}], 0\nv_mov_b32 v{q+1}, 0x{f2u(1/512.):08x}\nv_mov_b32 v{q+2}, 0x{f2u(1e-5):08x}")

    def stats(self, x, fill=()):
        a = self.a
        p, q = TMP + 4, TMP + 5
        fill = list(fill)
        def gap(n):
            for _ in range(n):
                if fill: a(fill.pop(0))
        for i in range(4): a(f"v_dot2c_f32_bf16 v{p}, {sONE}, v{x+i}\nv_dot2c_f32_bf16 v{q}, v{x+i}, v{x+i}")
        gap(3)
        a(f"v_permlane32_swap_b32 v{p}, v{q}\nv_add_f32 v{p}, v{p}, v{q}\nv_mov_b32 v{q}, v{p}")
        gap(2)
        a(f"v_permlane16_swap_b32 v{p}, v{q}\nv_add_f32 v{p}, v{p}, v{q}")
        for r in (8, 4, 2, 1):
            gap(2); a(f"v_add_f32_dpp v{p}, v{p}, v{p} row_ror:{r} {DPP}")
        gap(1)
        a(f"v_readlane_b32 s30, v{p}, 0\nv_readlane_b32 s31, v{p}, 32")
        gap(1)
        a(f"v_mul_f32 {vMU}, s30, v{q+1}\nv_fma_f32 {vRS}, s31, v{q+1}, v{q+2}")
        a(f"v_fma_f32 {vRS}, -{vMU}, {vMU}, {vRS}\nv_max_f32 {vRS}, {vRS}, v{q+2}\nv_rsq_f32 {vRS}, {vRS}")
        gap(len(fill))

    def pair_store(self, base, off, sc):
        self.a(f"s_mov_b64 exec, 0x5555\nglobal_store_dword {vPAIR}, {vPR}, {base} offset:{off}{sc}\ns_mov_b64 exec, -1")

    def lds_weights(self, W, base, vaddr, off, npair, use=None):
        a = self.a
        rd = lambda k: a(f"ds_read_b128 v[{base+4*k}:{base+4*k+3}], {vaddr} offset:{off+1024*k}")
        for k in range(min(8, 2 * npair)): rd(k)
        for kp in range(npair):
            if 2 * kp + 8 < 2 * npair:
                rd(2 * kp + 8); rd(2 * kp + 9); out = 8
            else: out = 2 * npair - 2 * kp - 2
            a(f"s_waitcnt lgkmcnt({out})")
            self.perm_pair(W, base, kp)
            if use: use(kp)

    def prologue(self):
        a = self.a; c = self.c
        if 'empty' in c.exp: a("s_endpgm")
        if c.debug: a("s_memtime s[70:71]\ns_memrealtime s[68:69]")
        a(f"""s_load_dwordx16 s[4:19], s[0:1], 0
s_load_dwordx8 s[20:27], s[0:1], 64
s_cmpk_ge_u32 s2, 0x100
s_cbranch_scc1 L_exit
v_lshrrev_b32 v1, 6, v0
v_and_b32 v0, 63, v0
s_lshr_b32 s29, s2, 3
v_readfirstlane_b32 s33, v1
s_and_b32 s28, s2, 7
s_lshl_b32 s60, s29, 4
v_lshlrev_b32 v15, 4, v0
s_cmp_ge_u32 s33, 4
s_cbranch_scc1 L_C0
s_lshl2_add_u32 s32, s33, s60
s_lshl3_add_u32 s30, s32, s28
s_lshl_b32 s30, s30, 10
v_add_u32 v1, s30, v15
s_lshl_b32 s36, s33, 12
s_add_u32 m0, s36, {L_WQ}
s_movk_i32 s3, 0x2000
s_waitcnt lgkmcnt(0)""")
        for i in range(4):
            a(f"global_load_lds_dwordx4 v1, {sWQ}{c.nt}")
            if i < 3: a("s_addk_i32 m0, 0x400\nv_add_u32 v1, s3, v1")
        a(f"""s_branch L_S1
L_C0:
s_cmp_eq_u32 s33, 4
s_cbranch_scc1 L_X0
s_getpc_b64 s[30:31]
s_mulk_i32 s29, {128 * c.pf}
v_lshl_add_u32 v2, v0, 7, s29
s_mov_b64 exec, {(1 << c.pf) - 1}
global_load_dword {vJ}, v2, s[30:31]{c.pfpol}
s_branch L_C
L_X0:
{self.pf0()}s_waitcnt lgkmcnt(0)
global_load_dwordx4 v[32:35], v15, {sX}{c.xpol}
s_branch L_C
L_early_end:""")

    def pf0(self):
        c = self.c
        if not c.pf0: return "s_setprio 3\n"
        return f"s_getpc_b64 s[30:31]\nv_lshlrev_b32 v2, 7, v0\ns_mov_b64 exec, {(1 << c.pf0) - 1 if c.pf0 <= 6 else hex((1 << c.pf0) - 1)}\nglobal_load_dword {vJ}, v2, s[30:31]{c.pf0pol}\ns_mov_b64 exec, -1\n"

    def consts(self):
        self.a("s_mov_b32 s62, 0x05040100\ns_mov_b32 s63, 0x07060302\ns_mov_b32 s64, 0x3f803f80")

    KF, VR, VF, Q, D, P, ON, O, OL, X, T = 16, 48, 80, 112, 128, 136, 140, 144, 176, 184, 192

    def s_stream(self):
        a = self.a; c = self.c
        KF, VR, VF, ON, T = self.KF, self.VR, self.VF, self.ON, self.T
        n = [4]; landed = [-1]
        wins = c.wins
        def signal(off):
            a(f"v_mov_b32 v{T}, 1\ns_mov_b64 s[38:39], exec\ns_mov_b64 exec, 1\nds_add_u32 v{T+12}, v{T} offset:{off}\ns_mov_b64 exec, s[38:39]")
        def throttle():
            w = wins[n[0] - 4]
            if n[0] - w > landed[0]:
                if landed[0] < 3 <= n[0] - w:
                    a(f"s_waitcnt vmcnt({n[0] - 4})")
                    if 'noq' in c.exp: self.stamp(14)
                    a("s_barrier"); self.stamp(1)
                    landed[0] = 3
                if n[0] - w > landed[0]: a(f"s_waitcnt vmcnt({w-1})"); landed[0] = n[0] - w
            if 'noq' in c.exp and n[0] in (4, 8, 12, 16, 20): self.stamp({4: 9, 8: 10, 12: 11, 16: 12, 20: 13}[n[0]])
            if n[0] == c.wo_at: signal(L_CNT)
            n[0] += 1
        a("""L_S1:
s_lshl_b32 s30, s28, 24
s_lshl_b32 s31, s29, 15
s_add_u32 s30, s30, s31
s_add_u32 s30, s30, 0xF00000
s_add_u32 s6, s6, s30
s_addc_u32 s7, s7, 0
s_lshl_b32 s40, s33, 13
s_mov_b32 m0, s40
v_and_b32 v6, 15, v0
v_lshrrev_b32 v7, 4, v0
v_xor_b32 v8, v6, v7
v_lshlrev_b32 v8, 4, v8
v_lshl_add_u32 v9, v7, 8, v8
v_add_u32 v9, s40, v9""")
        if c.rot: a("s_lshl_b32 s37, s29, 2\ns_and_b32 s31, s28, 3\ns_or_b32 s37, s37, s31\ns_lshl_b32 s37, s37, 8\nv_xor_b32 v9, s37, v9")
        else: a("s_mov_b32 s37, 0")
        for i in range(8):
            if i: a(f"s_addk_i32 m0, 0x400\nv_xor_b32 v1, {64*(i&3) + 1024*i}, v9")
            throttle()
            a(f"global_load_lds_dwordx4 {'v1' if i else 'v9'}, {sK}{c.nt}")
            if i == 3:
                a("s_add_u32 s8, s8, s30\ns_addc_u32 s9, s9, 0")
                self.consts()
                a("v_lshlrev_b32 v10, 4, v6\nv_lshl_add_u32 v10, v7, 10, v10\nv_add_u32 v10, s40, v10\nv_xor_b32 v10, s37, v10")
                a("v_lshl_add_u32 v11, v6, 8, v8\nv_add_u32 v11, s40, v11")
                for j in range(1, 4): a(f"v_xor_b32 v{11+j}, {64*j}, v11")
                a("v_lshrrev_b32 v2, 2, v6\nv_lshlrev_b32 v5, 4, v2\nv_lshlrev_b32 v2, 8, v2\nv_lshl_add_u32 v2, v7, 4, v2")
                a(f"s_lshl_b32 s31, s33, 2\ns_add_u32 s31, s31, {L_ST}\nv_add_u32 v5, s31, v5")
                a(f"v_lshlrev_b32 v3, 4, v7\nv_add_u32 v3, s31, v3")
                a(f"s_lshl_b32 s31, s33, 11\ns_add_u32 s31, s31, {L_O}\nv_lshlrev_b32 v4, 2, v0\nv_add_u32 v4, s31, v4")
            if i == 4:
                for k in range(4): a(f"v_mov_b32 v{ON+k}, {sONE}")
                cs = f2u(128**-0.5*1.4426950408889634)
                a(f"v_mov_b32 v{T+6}, 0x{cs:08x}\nv_mov_b32 v{T+7}, 0x{cs:08x}\nv_mov_b32 v{T+5}, 0x{f2u(c.bound):08x}\nv_mov_b32 v{T+12}, 0")
                a(f"v_add_u32 v2, {L_Q}, v2\nv_lshrrev_b32 v{T}, 2, v6")
                for j in range(4): a(f"v_add_u32 v{T+1}, {j}, v{T}\nv_and_b32 v{T+1}, 3, v{T+1}\nv_lshl_add_u32 v{T+8+j}, v{T+1}, 6, v2")
            if i == 5:
                a("""s_mul_i32 s30, s32, 3584
s_mul_i32 s31, s28, 448
s_add_u32 s30, s30, s31
v_and_b32 v184, 31, v0
v_lshl_add_u32 v184, v184, 4, s30
v_cmp_gt_u32 vcc, 32, v0
v_mov_b32 v186, s18
v_mov_b32 v187, s19
v_mov_b32 v188, s16
v_mov_b32 v189, s17
v_cndmask_b32 v186, v186, v188, vcc
v_cndmask_b32 v187, v187, v189, vcc
v_mov_b32 v185, 0
s_mov_b32 s14, 3584
s_mov_b32 s15, 0
v_lshl_add_u64 v[184:185], v[184:185], 0, v[186:187]
s_min_u32 s30, s29, 27
s_mul_i32 s31, s28, 224
s_lshl3_add_u32 s30, s30, s31
s_lshl1_add_u32 s30, s33, s30
s_lshl_b32 s30, s30, 10
v_add_u32 v190, s30, v15""")
        for i in range(8):
            if i: a(f"v_xor_b32 v1, {(i>>2)*4096+(i&3)*256}, v10")
            throttle()
            a(f"global_load_dwordx4 v[{VR+4*i}:{VR+4*i+3}], {'v1' if i else 'v10'}, {sV}{c.nt}")
        kread = [False]; vdone = [0]
        def work():
            if landed[0] >= 11 and not kread[0]:
                kread[0] = True
                for t in range(2):
                    for j in range(4): a(f"ds_read_b128 v[{KF+16*t+4*j}:{KF+16*t+4*j+3}], v{11+j} offset:{4096*t}")
            while vdone[0] < 4 and landed[0] >= 13 + 2 * vdone[0]:
                self.vperm(vdone[0]); vdone[0] += 1
        work()
        a(f"s_add_u32 m0, s36, {L_GU}")
        for i in range(4):
            throttle()
            a(f"s_mov_b32 exec_lo, 0x0fffffff\ns_mov_b32 exec_hi, 0x0fffffff\nglobal_load_lds_dwordx4 v[184:185], off{c.nt}\ns_mov_b64 exec, -1")
            if i < 3: a("s_addk_i32 m0, 0x400\nv_lshl_add_u64 v[184:185], v[184:185], 0, s[14:15]")
            else: a(f"s_lshl_b32 s31, s33, 11\ns_add_u32 m0, s31, {L_WD}")
            work()
        for i in range(2):
            throttle()
            a(f"global_load_lds_dwordx4 v190, {sWD} offset:{1024*i}{c.nt}")
            work()
        if c.wo_at >= 26: signal(L_CNT)
        assert kread[0]
        self.vdone = vdone[0]; self.signal = signal
        self.stamp(2)
        a("s_branch L_S2")

    def vperm(self, u):
        for up in range(4):
            for b in range(2):
                self.a(f"v_perm_b32 v{self.VF+4*(2*up+b)+u}, v{self.VR+4*(2*u+1)+up}, v{self.VR+4*(2*u)+up}, {sHI if b else sLO}")

    def s_layers(self):
        a = self.a; c = self.c
        KF, VR, VF, Q, D, P, ON, O, OL, X, T = self.KF, self.VR, self.VF, self.Q, self.D, self.P, self.ON, self.O, self.OL, self.X, self.T
        a("L_S2:")
        for li in range(2):
            if li and any(f"stop{i}" in c.exp for i in range(4)): a("s_endpgm")
            if li: a("s_barrier\n" * 3)
            a(f"v_mov_b32 v{T+4}, 0\ns_waitcnt lgkmcnt(0)\ns_barrier")
            self.stamp(3 + 6 * li)
            if li == 1 and "stop8" in c.exp: a("s_endpgm")
            if 'noq' in c.exp and li == 0:
                a("s_waitcnt vmcnt(0)"); self.stamp(4)
                l = self.lab("x"); a(f"s_cmp_eq_u32 s33, 0\ns_cbranch_scc1 {l}\ns_endpgm\n{l}:"); self.end(2)
            for j in range(4): a(f"ds_read_b128 v[{Q+4*j}:{Q+4*j+3}], v{T+8+j}")
            a(f"ds_write_b32 v5, v{T+4}")
            mf = lambda t, j: a(f"v_mfma_f32_16x16x32_bf16 v[{D+4*t}:{D+4*t+3}], v[{KF+16*t+4*j}:{KF+16*t+4*j+3}], v[{Q+4*j}:{Q+4*j+3}], " + (f"v[{D+4*t}:{D+4*t+3}]" if j else "0"))
            mul = lambda i: a(f"v_pk_mul_f32 v[{X+i}:{X+i+1}], v[{D+i}:{D+i+1}], v[{T+6}:{T+7}]")
            if c.qkov:
                for j in range(4):
                    a(f"s_waitcnt lgkmcnt({4 - j})"); mf(0, j)
                for j in range(4): mf(1, j)
                mul(0); mul(2)
                for i in range(4): a(f"v_exp_f32 v{D+i}, v{X+i}")
                mul(4); mul(6)
                for i in range(4, 8): a(f"v_exp_f32 v{D+i}, v{X+i}")
            else:
                for j in range(4):
                    a(f"s_waitcnt lgkmcnt({4 - j})"); mf(0, j); mf(1, j)
                self.stamp(5 + 6 * li)
                for i in range(0, 8, 2): mul(i)
                for i in range(8): a(f"v_exp_f32 v{D+i}, v{X+i}")
            for u in range(4): a(f"v_cvt_pk_bf16_f32 v{P+u}, v{D+2*u}, v{D+2*u+1}")
            self.stamp(6 + 6 * li)
            if li == 0:
                for u in range(self.vdone, 4):
                    a(f"s_waitcnt vmcnt({12 - 2*u})")
                    self.vperm(u)
                self.stamp(4)
            lfb, lback = self.lab("fallback"), self.lab("pv")
            a(f"{lback}:")
            for e in range(8):
                a(f"v_mfma_f32_16x16x32_bf16 v[{O+4*e}:{O+4*e+3}], v[{P}:{P+3}], v[{VF+4*e}:{VF+4*e+3}], 0")
                if e == 0: a(f"v_max3_f32 v{T}, v{X}, v{X+1}, v{X+2}\nv_max3_f32 v{T+1}, v{X+3}, v{X+4}, v{X+5}")
                if e == 1: a(f"v_max3_f32 v{T}, v{T}, v{X+6}, v{X+7}\nv_max_f32 v{T}, v{T}, v{T+1}")
                if e == 2: a(f"v_cmp_gt_f32 vcc, |v{T}|, v{T+5}")
                if e == 3: a(f"v_mfma_f32_16x16x32_bf16 v[{OL}:{OL+3}], v[{P}:{P+3}], v[{ON}:{ON+3}], 0\ns_cbranch_vccnz {lfb}")
                if e == 5: a(f"ds_write2st64_b32 v4, v{O}, v{O+4} offset0:0 offset1:1")
                if e == 7: a(f"ds_write2st64_b32 v4, v{O+8}, v{O+12} offset0:2 offset1:3\nds_write_b32 v3, v{OL} offset:64")
            for e in range(4, 8, 2): a(f"ds_write2st64_b32 v4, v{O+4*e}, v{O+4*e+4} offset0:{e} offset1:{e+1}")
            a("s_waitcnt lgkmcnt(0)")
            self.stamp(7 + 6 * li)
            a("s_barrier")
            if li == 0:
                a("s_waitcnt vmcnt(0)"); self.signal(L_CN2); a("s_waitcnt lgkmcnt(0)"); self.stamp(8)
            def fbk(fb):
                fb(f"{lfb}:\ns_nop 7")
                self.allred(T, T + 1, "v_max_f32")
                for i in range(8): fb(f"v_sub_f32 v{X+i}, v{X+i}, v{T}")
                for i in range(8): fb(f"v_exp_f32 v{D+i}, v{X+i}\nv_mov_b32 v{X+i}, 0")
                for u in range(4): fb(f"v_cvt_pk_bf16_f32 v{P+u}, v{D+2*u}, v{D+2*u+1}")
                fb(f"ds_write_b32 v5, v{T}\ns_nop 7\ns_branch {lback}")
            self.ool(fbk)
        if c.debug:
            l = self.lab("sdone")
            a(f"s_cmp_eq_u32 s33, 0\ns_cbranch_scc1 {l}\ns_endpgm\n{l}:")
        self.end(2)

    def clear_all(self, sc):
        a = self.a
        a(f"s_mov_b32 exec_hi, 0x00ffffff\nglobal_store_dword {vCLR}, v{NEG}, {sSM} offset:{AGQ[0]}{sc}\ns_mov_b64 exec, -1")
        for b in ((sB[0],) if NB == 2 else (sB[0], sR)): self.clear_inbox(b, sc)

    def c_pre(self):
        a = self.a; c = self.c
        a(f"""L_C:
s_mov_b64 exec, -1
s_lshr_b32 s29, s2, 3
s_waitcnt lgkmcnt(0)
s_load_dword {sE}, {sWS}, 0
s_mul_i32 s59, s28, {GB_STRIDE}
s_add_u32 s59, s59, {GB_OFF}
v_and_b32 v31, 7, v0
s_lshl_b32 s35, s29, 5
v_lshl_add_u32 {vPAIR8}, v31, 2, s35
v_lshlrev_b32 {vXALL}, 4, v0
s_lshr_b32 s30, s29, 1
s_mul_i32 s3, s30, {IB}
s_and_b32 s30, s29, 1
s_lshl_b32 s30, s30, 5
s_add_u32 s34, s3, s30
v_lshrrev_b32 v22, 1, v0
v_lshl_add_u32 {vINX}, v22, 6, s34
v_and_b32 v26, 1, v0
v_lshl_add_u32 {vINX}, v26, 4, {vINX}
v_mov_b64 v[{NEG}:{NEG+1}], -1
v_mov_b64 v[{NEG+2}:{NEG+3}], -1
s_and_b32 s31, s29, 3
s_lshl_b32 s31, s31, 5
s_lshr_b32 s32, s29, 2
s_lshl2_add_u32 s60, s32, s31
v_lshl_add_u32 v27, v31, 7, s60
v_cmp_gt_u32 vcc, 40, v0
v_lshrrev_b32 {vCLR}, 3, v0
v_lshlrev_b32 {vCLR}, 10, {vCLR}
v_cndmask_b32 v27, v27, {vPAIR8}, vcc
v_add_u32 {vCLR}, {vCLR}, v27
s_add_u32 s46, s26, s59
s_addc_u32 s47, s27, 0
s_add_u32 s36, s46, 2048
s_addc_u32 s37, s47, 0
s_add_u32 s40, s46, 6144
s_addc_u32 s41, s47, 0
s_add_u32 s46, s46, {SM}
s_addc_u32 s47, s47, 0
s_cmp_eq_u32 s33, 4
s_cbranch_scc0 L_Ypre
global_load_dword {vX1}, {vPAIR8}, {sX}{c.xpol}""")
        assert OSTAT[0] - AGQ[0] == 5 * 1024 and OSTAT[1] - OSTAT[0] == 1024
        self.clear_all("")
        a(f"s_mul_i32 s30, s30, {IB // 64}\ns_add_u32 s30, s30, s3\nv_lshl_add_u32 v29, v0, 7, s30\ns_mov_b64 exec, {hex((1 << (IB // 256)) - 1)}\nglobal_load_dword {vJ}, v29, s[36:37] offset:-2048{c.tpol}")
        a(f"s_lshl_b32 s30, s29, 8\nv_lshl_add_u32 v29, v0, 7, s30\ns_mov_b64 exec, 3\nglobal_load_dword {vJ}, v29, {sSM} offset:-4096{c.tpol}\ns_mov_b64 exec, -1")
        a(f"s_branch L_Cjoin\nL_Ypre:\nglobal_load_dword {vJ}, {vPAIR8}, {sOUT}")
        a("L_Cjoin:")
        self.consts()
        for k in range(4): a(f"s_add_u32 s{48+2*k}, s26, {G_OFF+G_STRIDE*k}\ns_addc_u32 s{49+2*k}, s27, 0")
        for i in range(0, 8, 2): a(f"v_mov_b64 v[{PL+i}:{PL+i+1}], 0")
        a(f"""s_getreg_b32 s61, hwreg(HW_REG_XCC_ID, 0, 4)
v_mov_b64 v[76:77], 0
v_and_b32 v20, 15, v0
v_lshrrev_b32 v21, 4, v0
v_lshrrev_b32 v23, 2, v20
v_and_b32 v24, 3, v0
v_lshrrev_b32 {vPAIR}, 1, v20
v_lshl_add_u32 {vPAIR}, {vPAIR}, 2, s35
v_lshl_add_u32 v22, v21, 6, s34
v_lshl_add_u32 {vIN}, v20, 1, v22
v_lshl_add_u32 {vINP}, v24, 2, v22
v_bfe_u32 v22, v0, 2, 1
v_lshl_add_u32 {vINP}, v22, 11, {vINP}
v_bfe_u32 v22, v0, 3, 1
v_lshl_add_u32 {vINP}, v22, 4, {vINP}
v_mov_b32 {vMASK}, 0xff
s_lshr_b32 s31, s29, 3
s_lshl_b32 s31, s31, 14
s_and_b32 s32, s29, 7
s_lshl_b32 s32, s32, 10
s_add_u32 s31, s31, s32
v_lshrrev_b32 {vGIN}, 3, v0
v_lshlrev_b32 {vGIN}, 7, {vGIN}
v_and_b32 v25, 7, v0
v_lshl_add_u32 {vGIN}, v25, 3, {vGIN}
v_add_u32 {vGIN}, s31, {vGIN}
s_lshl_b32 s32, s28, 7
s_add_u32 s31, s31, s32
v_lshl_add_u32 {vGPUB}, v20, 2, s31
v_and_b32 v26, 1, v21
v_lshl_add_u32 {vGPUB}, v26, 13, {vGPUB}
v_lshlrev_b32 {vAQ}, 2, v21
v_sub_u32 {vAQ}, v0, {vAQ}
v_and_b32 {vAQ}, 15, {vAQ}
v_lshl_add_u32 {vAQ}, v21, 4, {vAQ}
v_lshlrev_b32 {vAQ}, 4, {vAQ}
v_lshrrev_b32 v22, 2, v0
v_mul_u32_u24 v22, {IB}, v22
v_lshl_add_u32 v22, v24, 4, v22
s_lshl_b32 s32, s29, 6
v_add_u32 {vPUB}, s32, v22
s_sub_u32 s31, s33, 4
s_mul_i32 s31, s31, {8 * IB}
s_add_u32 s31, s31, s32
v_lshrrev_b32 v22, 3, v0
v_mul_u32_u24 v22, {IB}, v22
v_lshl_add_u32 v22, v31, 3, v22
v_add_u32 {vPUBO}, s31, v22
s_and_b32 s31, s29, 3
s_lshl_b32 s32, s31, 8
v_lshl_add_u32 {vOSI}, v21, 5, s32
s_lshl_b32 s31, s31, 5
s_lshr_b32 s32, s29, 2
s_lshl_b32 s32, s32, 2
s_add_u32 s31, s31, s32
v_and_b32 v26, 1, v0
v_and_b32 v27, 3, v23
v_lshlrev_b32 {vOSP}, 8, v27
v_lshl_add_u32 {vOSP}, v26, 7, {vOSP}
v_add_u32 {vOSP}, s31, {vOSP}
s_sub_u32 s31, s33, 4
s_lshl_b32 s31, s31, 10
s_add_u32 s31, s31, {L_O}
v_add_u32 {vLDS}, s31, {vXALL}
v_lshlrev_b32 {vLST}, 4, v27
v_add_u32 {vLST}, {L_ST}, {vLST}
s_mov_b32 s66, 0xaaaaaaaa
s_mov_b32 s67, 0xaaaaaaaa
s_mov_b32 s14, -1
s_mov_b32 s15, 0x00ffffff
s_and_b32 s31, s29, 3
s_lshl_b32 s31, s31, 7
s_lshr_b32 s32, s29, 2
s_add_u32 s31, s31, s32
s_lshl_b32 s32, s28, 9
s_add_u32 s31, s31, s32
s_lshl_b32 s31, s31, 10
v_add_u32 {vWO}, s31, {vXALL}
v_and_b32 {vXC}, 31, v0
v_lshlrev_b32 {vXC}, 2, {vXC}
s_cmp_eq_u32 s33, 4
s_cbranch_scc0 L_Y""")

    def lds_wait(self, off, n):
        l = self.lab("cnt")
        self.a(f"{l}:\nds_read_b32 v{TMP+1}, {vZERO} offset:{off}\ns_sub_u32 {sCN2}, {sCN2}, 1\ns_cbranch_scc1 L_exit\ns_waitcnt lgkmcnt(0)")
        self.a(f"v_cmp_gt_u32 vcc, {n}, v{TMP+1}\ns_cbranch_vccnz {l}")

    def prewrite(self, val):
        self.a(f"v_lshrrev_b32 v{TMP}, 5, v0\nv_lshlrev_b32 v{TMP}, 16, v{TMP}\nv_add_u32 v{TMP}, v{TMP}, {vGPUB}")
        self.a(f"global_atomic_swap v{TMP}, {vZERO}, {sG[0]}\nglobal_atomic_swap v{TMP}, {vZERO}, {sG[2]}")

    def combine(self, li, base, half, sc):
        a = self.a
        gen_c, back_c = self.lab("cgen"), self.lab("cback")
        a(f"ds_read_b128 v[{T2}:{T2+3}], {vLST}")
        if not half: a(f"ds_read_b128 v[{T2+4}:{T2+7}], {vLST} offset:64")
        for w in range(4): a(f"ds_read_b128 v[{TMP+4*w}:{TMP+4*w+3}], {vLDS} offset:{2048*w}")
        a(f"s_waitcnt lgkmcnt(4)\nv_or3_b32 v{GA+2}, v{T2}, v{T2+1}, v{T2+2}\nv_or_b32 v{GA+2}, v{GA+2}, v{T2+3}\nv_cmp_ne_u32 vcc, 0, v{GA+2}")
        lst = f"global_store_dword {vOSP}, v{GA}, {sSM} offset:{OSTAT[li]}{sc}\ns_mov_b64 exec, -1"
        if not half: a(f"v_pk_add_f32 v[{GA}:{GA+1}], v[{T2+4}:{T2+5}], v[{T2+6}:{T2+7}]\nv_add_f32 v{GA}, v{GA}, v{GA+1}")
        a(f"s_waitcnt lgkmcnt(2)\nv_pk_add_f32 v[{ACC}:{ACC+1}], v[{TMP}:{TMP+1}], v[{TMP+4}:{TMP+5}]\ns_cbranch_vccnz {gen_c}")
        if not half: a(f"s_mov_b64 exec, 0x2222\n{lst}")
        a(f"v_pk_add_f32 v[{ACC+2}:{ACC+3}], v[{TMP+2}:{TMP+3}], v[{TMP+6}:{TMP+7}]\ns_waitcnt lgkmcnt(1)")
        a(f"v_pk_add_f32 v[{ACC}:{ACC+1}], v[{ACC}:{ACC+1}], v[{TMP+8}:{TMP+9}]\nv_pk_add_f32 v[{ACC+2}:{ACC+3}], v[{ACC+2}:{ACC+3}], v[{TMP+10}:{TMP+11}]\ns_waitcnt lgkmcnt(0)")
        a(f"v_pk_add_f32 v[{ACC}:{ACC+1}], v[{ACC}:{ACC+1}], v[{TMP+12}:{TMP+13}]\nv_pk_add_f32 v[{ACC+2}:{ACC+3}], v[{ACC+2}:{ACC+3}], v[{TMP+14}:{TMP+15}]")
        a(f"{back_c}:\nv_cvt_pk_bf16_f32 v{ACC}, v{ACC}, v{ACC+1}\nv_cvt_pk_bf16_f32 v{ACC+1}, v{ACC+2}, v{ACC+3}\nglobal_store_dwordx2 {vPUBO}, v[{ACC}:{ACC+1}], {base[0]} offset:{base[1]}{sc}")
        def cgen(fb):
            fb(f"{gen_c}:\ns_waitcnt lgkmcnt(0)")
            fb(f"v_max3_f32 v{GA}, v{T2}, v{T2+1}, v{T2+2}\nv_max_f32 v{GA}, v{GA}, v{T2+3}")
            for w in range(4): fb(f"v_sub_f32 v{T2+w}, v{T2+w}, v{GA}")
            for w in range(4): fb(f"v_exp_f32 v{T2+w}, v{T2+w}")
            for w in range(4):
                for j in range(4):
                    fb(f"v_mul_f32 v{ACC+j}, v{T2}, v{TMP+j}" if w == 0 else f"v_fmac_f32 v{ACC+j}, v{T2+w}, v{TMP+4*w+j}")
            if not half:
                fb(f"v_mul_f32 v{GA+1}, v{T2}, v{T2+4}")
                for w in range(1, 4): fb(f"v_fmac_f32 v{GA+1}, v{T2+w}, v{T2+4+w}")
                fb(f"v_or_b32 v{GA+1}, 0x80000000, v{GA+1}\nv_cndmask_b32 v{GA}, v{GA}, v{GA+1}, {sODD}\ns_mov_b64 exec, 0x3333\n{lst}")
            fb(f"s_nop 1\ns_branch {back_c}")
        self.ool(cgen)

    def late_colsum(self, off):
        a = self.a
        chk, again = self.lab("lcs"), self.lab("lcs_again")
        a(f"s_waitcnt vmcnt({off})\n{chk}:")
        a(f"v_pk_add_f32 v[{GA}:{GA+1}], v[{PM}:{PM+1}], v[{PM+2}:{PM+3}]\nv_pk_add_f32 v[{GA+2}:{GA+3}], v[{PM+4}:{PM+5}], v[{PM+6}:{PM+7}]")
        self.umax(TMP, range(PM, PM + 8))
        a(f"v_cmp_eq_u32 vcc, 0xffff0000, v{TMP}\nv_pk_add_f32 v[{GA}:{GA+1}], v[{GA}:{GA+1}], v[{GA+2}:{GA+3}]\nv_add_f32 {vCS}, v{GA}, v{GA+1}\ns_cbranch_vccnz {again}")
        self.tail.append(f"{again}:\n{self.rs_loads(sR, PM)}\ns_waitcnt vmcnt(0)\ns_sub_u32 {sCNT}, {sCNT}, 1\ns_cbranch_scc0 {chk}\ns_endpgm\n")
        self.allred(14, TMP)

    def colsum_gather(self, base):
        self.rs_gather("cs", base, par=(1, 0, 0))
        self.a(f"v_mov_b32 {vCS}, v{GA}")

    def x_head(self):
        a = self.a
        nt3 = 2; pw = 0
        self.zero_acc()
        if 'noq' in self.c.exp: self.stamp(5)
        a(f"v_add_u32 v{T2}, {L_WQ}, {vXALL}\ns_waitcnt lgkmcnt(0)\ns_barrier")
        self.stamp(1)
        if 'noq' in self.c.exp:
            a("s_barrier"); self.end(0)
        self.WQ = []
        self.lds_weights(self.WQ, WA, f"v{T2}", 0, 8)
        a(f"s_waitcnt vmcnt({NB + nt3})")
        self.stats_pre(); self.stats(32)
        a(f"v_lshlrev_b32 {vX}, 16, {vX1}\nv_and_b32 {vX1}, 0xffff0000, {vX1}\nv_sub_f32 v{GA}, {vX}, {vMU}\nv_sub_f32 v{GA+1}, {vX1}, {vMU}")
        a(f"v_cvt_pk_bf16_f32 {vPR}, v{GA}, v{GA+1}")
        self.tag(1)
        for kp in range(8): self.dots(self.WQ, kp, lane=kp)
        self.xspare = self.spare
        a(f"s_waitcnt vmcnt({nt3 + pw})\ns_setprio 0")
        self.stamp(2)

    def x_program(self, slow):
        a = self.a; c = self.c
        sc = " sc1" if slow else ""
        self.spare = self.xspare
        if slow:
            self.clear_all(sc)
            a("s_waitcnt vmcnt(0)")
            self.zero_acc()
            for kp in range(8): self.dots(self.WQ, kp, lane=kp)
        for j in range(8): a(f"v_bfi_b32 v{ACC+j}, {vMASK}, {sT}, v{ACC+j}")
        for t in range(2): self.publish(ACC + 4 * t, sB[1 + t], sc)
        a(f"s_add_u32 s3, {sE}, 1\ns_lshl_b32 s3, s3, 4\ns_add_u32 s32, s3, 16\ns_or_b32 s3, s3, {sXCC}\ns_add_u32 s24, s3, 16")
        def xword():
            a(f"v_mov_b32 v{TMP}, {'s24' if slow else 's3'}\ns_lshl_b32 s31, s29, 2\nv_mov_b32 v{TMP+1}, s31")
            a(f"s_mov_b64 exec, 1\nglobal_store_dword v{TMP+1}, v{TMP}, {sSM} offset:{XCC}{sc}\ns_mov_b64 exec, -1")
        if not slow: xword()
        self.stamp(3)
        def check0(off):
            a(f"s_waitcnt vmcnt({off})\nv_cmp_ne_u32 s[30:31], s3, v{PX}")
            if slow:
                a(f"v_cmp_ne_u32 vcc, s24, v{PX}\nv_and_b32 v{TMP+2}, -16, v{PX}\ns_and_b64 s[30:31], s[30:31], vcc\nv_cmp_ne_u32 vcc, s32, v{TMP+2}")
                a("s_cmp_eq_u64 s[30:31], 0\ns_cselect_b64 s[30:31], 0, vcc")
            self.tagged_sum(PM)
            a("s_or_b64 vcc, vcc, s[30:31]")
        loads = "".join(f"global_load_dword v{PM+i}, {vINP}, {sB[1][0]} offset:{sB[1][1] + 256*i} sc1\n" for i in range(8))
        loads += f"global_load_dword v{PX}, {vXC}, {sSM} offset:{XCC} sc1"
        if not slow:
            self.zero_acc()
            for kp in range(8): self.dots(self.WQ, kp, sONE)
            self.pack_acc(CSQ)
        if c.force_slow and not slow: a("s_branch L_Xslow")
        if slow:
            a("s_waitcnt vmcnt(0)")
            xword()
            self.poll("q0", loads, check0, (1, 0, 0))
        else:
            self.poll("q0", loads, check0, c.q0, bound=c.limit1, over=lambda fb, ov, top: fb(f"{ov}:\ns_branch L_Xslow"), pace=c.pace)
        GU = []
        self.allred(GA, TMP)
        a(f"v_mul_f32 v{GA}, v{GA}, {vRS}")
        self.stamp(4)
        for li in range(2):
            h = 5 * li
            B = lambda k: HB(h + k)
            st = (lambda i: self.stamp(i)) if li == c.stamp_layer else (lambda i: None)
            self.pack(GA)
            self.pair_store(sSM, AGQ[li], sc)
            self.clear_inbox(HB(6) if li else sB[1], sc)
            if li == 0: self.clear_inbox(sB[2], sc)
            st(5)
            def qbody(off):
                a(f"s_waitcnt vmcnt({off})\nv_max3_u32 v{TMP}, v{PX}, v{PX+1}, v{PX+2}\nv_max_u32 v{TMP}, v{TMP}, v{PX+3}\nv_cmp_eq_u32 vcc, -1, v{TMP}")
            ql = f"global_load_dwordx4 v[{PX}:{PX+3}], {vAQ}, {sSM} offset:{AGQ[li]} sc1"
            if li == 0:
                a(f"v_mov_b32 v{TMP+1}, {int(slow)}\nds_write_b32 {vZERO}, v{TMP+1} offset:{L_MODE}")
                self.poll("aq", ql, qbody, c.a0, pace=c.pace)
            else: self.poll("aq", ql, qbody, c.aq)
            a(f"ds_write_b128 {vXALL}, v[{PX}:{PX+3}] offset:{L_Q}\ns_waitcnt lgkmcnt(0)\ns_barrier")
            if li == 1 and "stop8" in c.exp: a("s_endpgm")
            if li == 0:
                for i in range(0, 8, 2): a(f"v_mov_b64 v[{PM+i}:{PM+i+1}], 0")
            if li == 0: self.prewrite(0)
            a("s_barrier")
            st(6)
            self.combine(li, B(2), 0, sc)
            if li == 1 and "stop9" in c.exp: a("s_endpgm")
            st(7)
            if li == 0:
                a(f"v_lshrrev_b32 v{T2}, 1, v0\nv_lshlrev_b32 v{T2}, 4, v{T2}\nv_and_b32 v{T2+1}, 1, v0\nv_lshl_add_u32 v{T2}, v{T2+1}, 9, v{T2}\nv_add_u32 v{T2}, {L_GU}, v{T2}")
                a(f"s_mov_b32 {sCN2}, {c.limit * c.outer * 4}")
                self.zero_acc()
                self.lds_wait(L_CN2, 4)
                st(9)
                self.lds_weights(GU, WB, f"v{T2}", 0, 8, lambda kp: self.dots(GU, kp, sONE))
                self.pack_acc(CSG)
                if NB == 3: self.publish(CSG, sR, sc, M56)
                st(13)
            for half in range(2):
                k = 2 * li + half
                last = k == 3
                self.zero_acc()
                self.tag(11 + k)
                a("s_barrier")
                if f"stop{2*k}" in c.exp: a("s_endpgm")
                if k == 0 and NB == 2: self.publish(CSG, sR, sc, M56)
                if not last and NB == 3: self.clear_inbox(B(2 + 2 * half), sc)
                if last and c.fown:
                    a(f"v_and_b32 v{T2}, 7, v0\nv_lshlrev_b32 v{T2}, 3, v{T2}\ns_mov_b64 s[24:25], 0xff\ns_lshl_b64 s[24:25], s[24:25], {8 * c.fing}")
                self.rs_gather("out", B(3 + 2 * half), 7 if half else 8, mid=f"s_cmp_eq_u32 s28, {c.fing}" if last and c.fown else None)
                gpub = f"{c.gexec}\nglobal_atomic_swap {vGPUB}, v{GA}, {sG[k]}\ns_mov_b64 exec, -1"
                a(f"v_bfi_b32 v{GA}, {vMASK}, {sT}, v{GA}")
                own = last and c.fown
                if own:
                    l = self.lab("lastpub")
                    a(f"s_cbranch_scc0 {l}")
                    self.ool(lambda fb: (fb(f"{l}:\n{gpub}"), self.end(0)))
                else: a(gpub)
                if li == 0 or (k == 2 and NB == 2): self.clear_inbox(B(3 + 2 * half), sc)
                if k == 1: self.publish(CSQ, sR, sc)
                st(10 + 4 * half)
                fin = self.lab("fin")
                if k == 2:
                    l = self.lab("noep")
                    a(f"s_cmp_eq_u32 s2, 0\ns_cbranch_scc0 {l}\ns_add_u32 s30, {sE}, {NTAGS}\nv_mov_b32 v{TMP}, s30\ns_mov_b64 exec, 1\nglobal_store_dword {vZERO}, v{TMP}, {sWS} sc1\ns_mov_b64 exec, -1\n{l}:")
                if last and "stop7" in c.exp: a("s_endpgm")
                if own: pass
                elif last and c.fing < 8: a(f"s_cmp_eq_u32 s28, {c.fing}\ns_cbranch_scc0 {fin}")
                elif last: a(f"s_and_b32 s30, s29, 7\ns_cmp_eq_u32 s28, s30\ns_cbranch_scc0 {fin}")
                depth, delay, gap, gap2 = c.gl if last else c.g
                top = self.lab("g")
                gl = f"global_atomic_or_x2 v[{PG}:{PG+1}], {vGIN}, v[76:77], {sG[k]} sc0"
                if own:
                    gl0 = gl; gl = f"s_mov_b64 exec, vcc\n{gl0}\ns_mov_b64 exec, -1"
                    a(f"s_not_b64 vcc, s[24:25]")
                    self.nops(c.fod)
                    a(f"{gl}\nds_bpermute_b32 v{T2+2}, v{T2}, v{GA}\nds_bpermute_b32 v{T2+3}, v{T2}, v{GA} offset:4\ns_mov_b32 {sCNT}, {c.limit * c.outer}")
                    a(f"s_waitcnt lgkmcnt(0)\ns_mov_b64 exec, s[24:25]\nv_mov_b64 v[{PG}:{PG+1}], v[{T2+2}:{T2+3}]\ns_mov_b64 exec, -1")
                else: a(f"s_mov_b32 {sCNT}, {c.limit * c.outer}\ns_mov_b64 vcc, -1")
                if k == 0:
                    a(f"ds_read_b32 v{TMP}, {vZERO} offset:{L_PAR}\ns_lshr_b32 s30, {sXCC}, 2\ns_waitcnt lgkmcnt(0)\nv_readfirstlane_b32 s31, v{TMP}")
                    a(f"s_cmp_gt_i32 s31, {c.gthr}\ns_cselect_b32 s31, 0, 1\ns_xor_b32 s30, s30, s31\ns_and_b32 s30, s30, 1\ns_lshl_b32 s30, s30, 13\nv_add_u32 {vGIN}, s30, {vGIN}")
                    if c.dbgpar == 2:
                        a(f"s_cmp_eq_u32 s2, 4\ns_cbranch_scc0 {top}_nq\ns_load_dwordx2 s[44:45], s[0:1], 80\nv_lshlrev_b32 v{TMP+4}, 3, v0\ns_mov_b64 exec, 0xfff\nglobal_load_dwordx2 v[{TMP+6}:{TMP+7}], v{TMP+4}, s[0:1]\ns_getpc_b64 s[42:43]\ns_waitcnt vmcnt(0) lgkmcnt(0)")
                        a(f"v_alignbit_b32 v{TMP+6}, v{TMP+7}, v{TMP+6}, 20\nv_lshlrev_b32 v{TMP+4}, 2, v0\nglobal_store_dword v{TMP+4}, v{TMP+6}, s[44:45] offset:4\ns_lshr_b64 s[42:43], s[42:43], 12\nv_mov_b32 v{TMP+6}, s42\nv_mov_b32 v{TMP+7}, s0\nglobal_store_dwordx2 {vZERO}, v[{TMP+6}:{TMP+7}], s[44:45] offset:52\ns_mov_b64 exec, -1\n{top}_nq:")
                    if c.dbgpar: a(f"s_load_dwordx2 s[44:45], s[0:1], 80\ns_waitcnt lgkmcnt(0)\ns_cmp_eq_u32 s2, 4\ns_cbranch_scc0 {top}_np\nglobal_store_dword {vZERO}, v{TMP}, s[44:45]\n{top}_np:")
                    delay = 0
                self.nops(delay)
                if c.gform == 0:
                    for j in range(depth - 1):
                        a(gl); self.nops(gap)
                    a(f"{top}:\ns_mov_b64 exec, vcc\n{gl}\ns_mov_b64 exec, -1\ns_sub_u32 {sCNT}, {sCNT}, 1\ns_cbranch_scc1 L_exit")
                else:
                    for j in range(1 if own else 0, depth):
                        a(gl)
                        if j < depth - 1: self.nops(gap)
                    if own: gl = gl0
                    a(f"{top}_c:")
                    self.tail.append(f"{top}:\ns_mov_b64 exec, vcc\n{gl}\ns_mov_b64 exec, -1\ns_sub_u32 {sCNT}, {sCNT}, 1\ns_cbranch_scc0 {top}_c\ns_endpgm\n")
                a(f"""s_waitcnt vmcnt({depth - 1})
v_xor_b32 v{GA}, {sT}, v{PG}
v_xor_b32 v{GA+1}, {sT}, v{PG+1}
v_or_b32 v{TMP+1}, v{GA}, v{GA+1}
v_cmp_ne_u32_sdwa vcc, v{TMP+1}, 0 src0_sel:BYTE_0 src1_sel:DWORD
v_permlane32_swap_b32 v{GA}, v{GA+1}
v_add_f32 v{GA}, v{GA}, v{GA+1}
v_mov_b32 v{TMP}, v{GA}
s_cbranch_vccnz {top}
v_permlane16_swap_b32 v{GA}, v{TMP}
v_add_f32 v{GA}, v{GA}, v{TMP}
v_add_f32_dpp v{GA}, v{GA}, v{GA} row_ror:8 {DPP}
v_mov_b32 v{GA+1}, v{GA}
v_permlane32_swap_b32 v{GA}, v{GA+1}
v_add_f32 v{GA}, v{GA}, {vX}
v_add_f32 v{GA+1}, v{GA+1}, {vX1}
v_cvt_pk_bf16_f32 {vPR}, v{GA}, v{GA+1}""")
                pst = lambda base, off, s_: a(f"s_mov_b64 exec, 0xff\nglobal_store_dword {vPAIR8}, {vPR}, {base} offset:{off}{s_}\ns_mov_b64 exec, -1")
                if last:
                    if "noout" not in c.exp: pst(sOUT, 0, c.opol)
                    a(f"{fin}:")
                    self.end(0)
                    break
                if half == 0: st(11)
                elif c.stamp_layer == 1: self.stamp(13)
                pst(sSM, XALL[k], sc)
                if half == 0:
                    a("s_barrier")
                    if f"stop{2*k+1}" in c.exp: a("s_endpgm")
                    self.gemv(GU, B(4), sc, lanes=range(8), mask=M56)
                    a(f"v_lshlrev_b32 {vX}, 16, {vPR}\nv_and_b32 {vX1}, 0xffff0000, {vPR}")
                    st(12)
                else:
                    st2 = (lambda i: self.stamp(i)) if c.stamp_layer == 1 else (lambda i: None)
                    a(self.rs_loads(sR, PM))
                    self.gemv(self.WQ, HB(6), sc, lanes=range(8), hook=(c.xh, self.xload(1)))
                    a(f"v_lshlrev_b32 {vX}, 16, {vPR}\nv_and_b32 {vX1}, 0xffff0000, {vPR}")
                    st2(2)
                    if "stop3" in c.exp: a("s_endpgm")
                    self.rs_gather("q", HB(6), ln=1, xafter=1, side=self.late_colsum)
                    a(f"v_fma_f32 v{GA}, v{GA}, {vRS}, {vNM}")
                    st2(4)

    def y_head(self):
        a = self.a; c = self.c
        a(f"L_Y:\nds_write_b64 {vZERO}, v[{TMP}:{TMP+1}] offset:{L_CNT}\nv_add_u32 v{T2}, {L_WD}, {vXALL}\ns_waitcnt lgkmcnt(0)\ns_barrier".replace("L_Y:", f"L_Y:\nv_mov_b64 v[{TMP}:{TMP+1}], 0"))
        self.stamp(1)
        if c.probe:
            a(f"s_lshl_b32 s30, s28, 14\ns_and_b32 s31, s29, 15\ns_lshl_b32 s31, s31, 8\ns_add_u32 s30, s30, s31\ns_lshr_b32 s31, s29, 4\ns_lshl_b32 s31, s31, 17\ns_add_u32 s30, s30, s31\ns_add_u32 s30, s30, {PROBE}\ns_add_u32 s16, s26, s30\ns_addc_u32 s17, s27, 0")
            a("s_load_dword s20, s[16:17], 64\ns_mov_b32 s8, 0\ns_waitcnt lgkmcnt(0)\ns_memtime s[18:19]\ns_waitcnt lgkmcnt(0)")
            for i, off in enumerate((8192, 128, 4096, 8192 + 128, 8192 + 4096, 4096 + 128, 12288+128, 0)[:2 * c.probe]):
                a(f"s_load_dword s20, s[16:17], {off}\ns_waitcnt lgkmcnt(0)\ns_memtime s[6:7]\ns_waitcnt lgkmcnt(0)\ns_sub_u32 s9, s6, s18\ns_mov_b32 s18, s6")
                a(f"{'s_sub_u32' if off & 8192 else 's_add_u32'} s8, s8, s9")
                if c.debug and i & 1: a(f"s_add_u32 s{70 + 2*(3, 4, 10, 11)[i >> 1]}, s70, s8\ns_add_u32 s{70 + 2*(3, 4, 10, 11)[i >> 1]}, s{70 + 2*(3, 4, 10, 11)[i >> 1]}, 50000")
        a(f"s_sub_u32 s9, 0, s8\ns_cmp_ge_u32 {sXCC}, 4\ns_cselect_b32 s8, s8, s9\ns_min_i32 s8, s8, 0x3fff\ns_max_i32 s8, s8, -0x3fff")
        a(f"v_mov_b32 v{TMP}, s8\nds_write_b32 {vZERO}, v{TMP} offset:{L_PAR}\ns_add_u32 s25, {sE}, 3\ns_and_b32 s25, s25, 0xffff\ns_lshl_b32 s24, s8, 16\ns_or_b32 s24, s24, s25")
        a(f"v_mov_b32 v{TMP}, s24\ns_lshl_b32 s30, s29, 2\nv_mov_b32 v{TMP+1}, s30\ns_mov_b64 exec, 1\nglobal_store_dword v{TMP+1}, v{TMP}, {sSM} offset:{PARR}\ns_mov_b64 exec, -1")
        a(f"s_mov_b32 {sCN2}, {c.limit * c.outer * 4}")
        self.spare = SPARE
        for grp in range(4):
            self.lds_wait(L_CNT, grp + 1)
            for k in range(4 * grp, 4 * grp + 4):
                a(f"global_load_dwordx4 v[{WA+4*k}:{WA+4*k+3}], {vWO}, {sWO}{c.nt}")
                if k < 15: a(f"v_add_u32 {vWO}, 8192, {vWO}")
        for x in c.help:
            a(f"""s_xor_b32 s30, s29, {x}
s_and_b32 s31, s30, 3
s_lshl_b32 s31, s31, 7
s_lshr_b32 s30, s30, 2
s_add_u32 s31, s31, s30
s_lshl_b32 s30, s28, 9
s_add_u32 s31, s31, s30
s_lshl_b32 s31, s31, 10
s_add_u32 s31, s31, 65536
v_lshrrev_b32 v{TMP}, 3, v0
v_lshlrev_b32 v{TMP}, 13, v{TMP}
v_and_b32 v{TMP+1}, 7, v0
v_lshl_add_u32 v{TMP}, v{TMP+1}, 7, v{TMP}
v_add_u32 v{TMP}, s31, v{TMP}
global_load_dword {vJ}, v{TMP}, {sWO}{c.hpol}""")
        self.stamp(2)
        a(f"s_barrier\nds_read_b32 v{TMP+1}, {vZERO} offset:{L_MODE}")
        if 'noq' in self.c.exp: a("s_waitcnt vmcnt(0)"); self.end(1)
        a(f"s_waitcnt lgkmcnt(0)\nv_readfirstlane_b32 s3, v{TMP+1}\ns_cmp_eq_u32 s3, 0\ns_cbranch_scc0 L_Yslow")

    def y_program(self, slow):
        a = self.a; c = self.c
        sc = " sc1" if slow else ""
        spare0 = self.spare
        WO = []; WD = []
        for li in range(2):
            h = 5 * li
            B = lambda k: HB(h + k)
            st = (lambda i: self.stamp(i)) if li == c.stamp_layer else (lambda i: None)
            if li: a("s_barrier")
            if li == 1 and "stop8" in c.exp: a("s_endpgm")
            a("s_barrier")
            st(6)
            self.combine(li, B(2), 1, sc)
            if li == 1 and "stop9" in c.exp: a("s_endpgm")
            st(7)
            if li == 0: a(f"global_load_dword v{PG}, {vXC}, {sSM} offset:{PARR} sc1")
            y, z, t, L = PL, GA, TMP, PM + 8
            loads = "".join(f"global_load_dwordx4 v[{L+4*i}:{L+4*i+3}], {vOSI}, {sSM} offset:{OSTAT[li]+128+16*i} sc1\n" for i in range(2))
            loads += self.rs_loads(B(2), PL)
            def shadow(nafter):
                a(f"v_add_u32 v{T2}, {L_WD}, {vXALL}\ns_mov_b32 {sCN2}, {c.limit * c.outer * 4}")
                self.lds_wait(L_CN2, 4)
                self.lds_weights(WD, WB, f"v{T2}", 0, 4)
                a(f"s_mov_b32 {sCN2}, {c.outer}")
                for kp in range(8):
                    a(f"s_waitcnt vmcnt({14 - 2*kp + 2 + len(c.help) + nafter})")
                    self.perm_pair(WO, WA, kp)
            onorm, ogen = self.lab("onorm"), self.lab("ogen")
            def obody(off):
                a(f"""s_waitcnt vmcnt({off + 4})
v_pk_add_f32 v[{z}:{z+1}], v[{y}:{y+1}], v[{y+2}:{y+3}]
v_pk_add_f32 v[{LA}:{LA+1}], v[{L}:{L+1}], v[{L+2}:{L+3}]
v_pk_add_f32 v[{LA+2}:{LA+3}], v[{L+4}:{L+5}], v[{L+6}:{L+7}]
v_pk_add_f32 v[{LA}:{LA+1}], v[{LA}:{LA+1}], v[{LA+2}:{LA+3}]
v_add_f32 v{LA}, v{LA}, v{LA+1}
s_waitcnt vmcnt({off})
v_pk_add_f32 v[{z+2}:{z+3}], v[{y+4}:{y+5}], v[{y+6}:{y+7}]
v_pk_add_f32 v[{z}:{z+1}], v[{z}:{z+1}], v[{z+2}:{z+3}]
v_add_f32 v{z}, v{z}, v{z+1}
v_cmp_u_f32 vcc, v{z}, v{LA}
v_or3_b32 v{t+2}, v{L}, v{L+1}, v{L+2}
v_permlane32_swap_b32 v{z}, v{LA}
v_add_f32 v{z}, v{z}, v{LA}
v_mov_b32 v{t}, v{z}""")
            def oover(fb, ov, top):
                fb(f"{ov}:\ns_sub_u32 {sCN2}, {sCN2}, 1\ns_cbranch_scc1 L_exit\ns_mov_b32 {sCNT}, {c.limit}\ns_waitcnt vmcnt(0)")
                self.umax(t, range(y, y + 8))
                fb(f"v_cmp_eq_u32 vcc, 0xffff0000, v{t}\ns_cbranch_vccnz {top}")
                self.umax(t, range(L, L + 8))
                fb(f"v_cmp_eq_u32 vcc, -1, v{t}\ns_cbranch_vccnz {top}\ns_branch {ogen}")
            self.zero_acc()
            a(f"s_mov_b32 {sCN2}, {c.outer}")
            self.poll("o", loads, obody, c.ro if li else (1, 0, 0), shadow if li == 0 else None, bound=c.limit, over=oover)
            a(f"""v_or3_b32 v{t+2}, v{t+2}, v{L+3}, v{L+4}
v_permlane16_swap_b32 v{z}, v{t}
v_add_f32 v{z}, v{z}, v{t}
v_mov_b32 v{LA}, v{z}
v_or3_b32 v{t+2}, v{t+2}, v{L+5}, v{L+6}
v_or_b32 v{t+2}, v{t+2}, v{L+7}
v_permlane32_swap_b32 v{z}, v{LA}
v_rcp_f32 v{LA}, v{LA}
v_cmp_gt_i32 vcc, 0, v{t+2}
v_mul_f32 v{z}, v{z}, v{LA}""")
            self.pack(GA)
            a(f"s_cbranch_vccnz {ogen}\n{onorm}:")
            def ogen_f(fb):
                mloop = self.lab("omloop")
                fb(f"{ogen}:\ns_waitcnt vmcnt(0)\ns_mov_b32 {sCNT}, {c.limit * c.outer}\n{mloop}:\ns_sub_u32 {sCNT}, {sCNT}, 1\ns_cbranch_scc1 L_exit")
                for i in range(2): fb(f"global_load_dwordx4 v[{PM+4*i}:{PM+4*i+3}], {vOSI}, {sSM} offset:{OSTAT[li]+16*i} sc1")
                fb("s_waitcnt vmcnt(0)")
                for i in range(8): fb(f"v_cmp_gt_i32 vcc, 0, v{L+i}\nv_cndmask_b32 v{T2+i}, 0, v{PM+i}, vcc")
                self.umax(t, range(T2, T2 + 8))
                fb(f"v_cmp_eq_u32 vcc, -1, v{t}\ns_cbranch_vccnz {mloop}")
                fb(f"v_max3_f32 v{t}, v{T2}, v{T2+1}, v{T2+2}\nv_max3_f32 v{t}, v{t}, v{T2+3}, v{T2+4}\nv_max3_f32 v{t}, v{t}, v{T2+5}, v{T2+6}\nv_max_f32 v{t}, v{t}, v{T2+7}")
                self.allred(t, t + 1, "v_max_f32")
                for i in range(8): fb(f"v_sub_f32 v{T2+i}, v{T2+i}, v{t}")
                for i in range(8): fb(f"v_exp_f32 v{T2+i}, v{T2+i}")
                fb(f"v_mul_f32 v{GA}, v{T2}, v{y}\nv_mul_f32_e64 v{LA}, v{T2}, |v{L}|")
                for i in range(1, 8): fb(f"v_fmac_f32 v{GA}, v{T2+i}, v{y+i}\nv_fma_f32 v{LA}, v{T2+i}, |v{L+i}|, v{LA}")
                self.allred(LA, t + 1); self.allred(GA, t + 2)
                fb(f"v_rcp_f32 v{LA}, v{LA}\nv_mul_f32 v{GA}, v{GA}, v{LA}")
                self.pack(GA)
                fb(f"s_nop 1\ns_branch {onorm}")
            self.ool(ogen_f)
            st(8)
            if NB == 2: self.clear_inbox(B(2), sc)
            self.gemv(WO, B(3), sc, drain=NB == 2)
            a("s_barrier")
            if f"stop{4*li}" in c.exp: a("s_endpgm")
            st(9)
            noffn = self.lab("noffn")
            if li == 0:
                a(f"v_and_b32 v{TMP+1}, 0xffff, v{PG}\nv_cmp_eq_u32 vcc, s25, v{TMP+1}\nv_ashrrev_i32 v{TMP}, 16, v{PG}\nv_cndmask_b32 v{TMP}, 0, v{TMP}, vcc")
                for r in (8, 4, 2, 1): a(f"v_add_u32_dpp v{TMP}, v{TMP}, v{TMP} row_ror:{r} {DPP}")
                a(f"v_mov_b32 v{TMP+1}, v{TMP}\nv_permlane16_swap_b32 v{TMP}, v{TMP+1}\nv_add_u32 v{TMP}, v{TMP}, v{TMP+1}\ns_ashr_i32 s30, s24, 16\nv_add_u32 v{TMP}, s30, v{TMP}\nds_write_b32 {vZERO}, v{TMP} offset:{L_PAR}")
                l = self.lab("nocg")
                a(f"s_cmp_lt_u32 s29, 28\ns_cbranch_scc0 {l}")
                self.nops(c.cgd)
                self.colsum_gather(sR)
                self.clear_inbox(sR, sc)
                a(f"{l}:")
            self.zero_acc()
            a(f"s_barrier")
            if f"stop{4*li+1}" in c.exp: a("s_endpgm")
            a(f"s_cmp_lt_u32 s29, 28\ns_cbranch_scc0 {noffn}")
            st(12)
            self.rs_gather("gu", B(4), ln=2 * li)
            st(5)
            if NB == 2 and li == 0: self.clear_inbox(B(4), sc)
            a(f"v_fma_f32 v{GA}, v{GA}, {vRS}, {vNM}\nv_mul_f32_dpp v{GA}, v{GA}, v{GA} row_ror:8 {DPP}")
            self.pack(GA)
            self.gemv(WD, B(5), sc, drain=NB == 2 and li == 0)
            a(f"{noffn}:")
            st(13)
            a("s_barrier")
            if f"stop{4*li+2}" in c.exp or (li == 0 and "stop3" in c.exp): a("s_endpgm")
        self.end(1)
        self.spare = spare0

    def build(self):
        a = self.a
        self.prologue()
        self.s_stream()
        self.c_pre()
        self.x_head()
        self.x_program(False); self.flush()
        self.y_head()
        self.y_program(False); self.flush()
        self.s_layers(); self.flush()
        a("L_fast_end:\nL_Yslow:")
        self.y_program(True); self.flush()
        a("L_Xslow:")
        self.x_program(True); self.flush()
        a("L_exit:\ns_endpgm")
        head = f"""; Fused decode step: 2 x (LayerNorm -> GQA sliding-window attention -> residual -> LayerNorm -> bilinear GLU -> residual)
; @launch grid=(256,1,1) block=(384,1,1) lds={self.c.ldsx or LDS_BYTES}
.amdgcn_target "amdgcn-amd-amdhsa--gfx950"
.text
.globl {KNAME}
.p2align 8
.type {KNAME},@function
{KNAME}:
"""
        tail = f"""
.section .rodata,"a"
.p2align 6
.amdhsa_kernel {KNAME}
  .amdhsa_next_free_vgpr 256
  .amdhsa_next_free_sgpr 102
  .amdhsa_accum_offset 256
  .amdhsa_group_segment_fixed_size 0
  .amdhsa_kernarg_size 96
  .amdhsa_user_sgpr_count 2
  .amdhsa_user_sgpr_kernarg_segment_ptr 1
  .amdhsa_system_sgpr_workgroup_id_x 1
  .amdhsa_float_denorm_mode_32 3
.end_amdhsa_kernel
"""
        return head + a.text() + tail


def make(**kw):
    c = Cfg()
    for k, v in kw.items(): setattr(c, k, v)
    return Gen(c).build()

if __name__ == "__main__":
    kw = {}
    for x in sys.argv[2:]:
        k, v = x.split("=", 1); kw[k] = eval(v)
    open(sys.argv[1], "w").write(make(**kw))
```

```python
import sys, struct
from asmlib import Asm

KNAME = "interleave_layers__sliding_block_cached__glu_gated_bilinear__decode_kernel"
def f2u(x): return struct.unpack("<I", struct.pack("<f", x))[0]

class Cfg:
    debug = False
    stamp_layer = 0
    nt = " nt"
    win = 4
    wins = [4]*14+[5]*8
    wo_at = 25
    limit = 64
    outer = 2000
    limit1 = 64
    force_slow = False
    rs = (3, 80, 60)
    ro = (3, 80, 60)
    g = (4, 80, 220, 0)
    q0 = (3, 200, 500)
    a0 = (3, 300, 500)
    b2x_first = 0
    cgd = 500
    xq = (60, 60, 2)
    xg = (340, 70, 3)
    xh = 7
    rpre = 0
    nfill = 2
    lnoff = 1
    aq = (3, 130, 55)
    prew = 2
    cs_sc = ''
    pace = 200
    touch = 1
    tpol = ' sc1'
    xpol = ''
    pfpol = ''
    exp = ''
    rot = 1
    pf0 = 0
    pf0pol = ' nt'
    pf = 6
    b0_late = 1
    fclean = 0
    ldsx = 0
    gform = 1
    clrl = 0
    clrq = 0
    dbgpar = 0
    fown = 1
    fod = 0
    probe = 1
    gthr = 0
    pclip = 1000
    bpar = 0
    band = 0
    bsh = 13
    gpar = 1
    gand = 1
    gexec = 's_mov_b32 exec_hi, 0'
    sgemv = 1
    qkov = 1
    fing = 4
    opol = ''
    gl = (3, 150, 120, 0)
    help = ()
    hpol = ' nt'
    wb = 0
    wbc = 0
    dbgwg = 0
    dbgfrom = 0
    dbgfix = 0
    cs_late = 1
    tlb = 0
    xd = 200
    bound = 60.0

DPP = "row_mask:0xf bank_mask:0xf"
G_OFF = 0x10000; G_STRIDE = 0x10000
GB_OFF = 0x100000; GB_STRIDE = 0x30000
import os
NB = int(os.environ.get("NB", "2"))
IB = 2048 * (NB + 1)
sB = [("s[36:37]", -2048), ("s[36:37]", 0), ("s[36:37]", 2048)]
sR = sB[2] if NB == 2 else ("s[40:41]", 0)
SM = 0x28000 + 0x1000
AGQ = [-0x1000, -0xC00]; XALL = [-0x800, -0x400, 0x0]; OSTAT = [0x400, 0x800]; XCC = 0xC00; PARR = 0xD00
DBG_OFF = 0xa00000
NTAGS = 16
PROBE = 0x80000
L_O = 32768; L_ST = 40960; L_MODE = L_ST + 128; L_CNT = L_ST + 136; L_CN2 = L_ST + 140; L_PAR = L_ST + 144; L_Q = 41984; L_WQ = L_Q + 1024; L_GU = L_WQ + 16384; L_WD = L_GU + 16384
LDS_BYTES = L_WD + 8192
sX, sK, sV, sWQ, sWO, sWG, sWU, sWD, sOUT, sWS = ("s[4:5]", "s[6:7]", "s[8:9]", "s[10:11]", "s[12:13]",
    "s[16:17]", "s[18:19]", "s[20:21]", "s[22:23]", "s[26:27]")
sSM = "s[46:47]"
sG = ["s[48:49]", "s[50:51]", "s[52:53]", "s[54:55]"]
sE, sT, sCNT, sXCC, sLO, sHI, sONE, sCN2 = "s56", "s57", "s58", "s61", "s62", "s63", "s64", "s65"
sODD = "s[66:67]"; M56 = "s[14:15]"
vMASK, vIN, vPUB, vPUBO, vGIN, vGPUB, vPAIR, vXALL, vOSI, vOSP, vLDS, vLST = ["v%d" % i for i in range(1, 13)]
vX, vCS, vINX, vPR, vMU, vRS, vNM = "v13", "v14", "v15", "v16", "v17", "v18", "v19"
GA = 20; MA = 28; LA = 36; ACC = 40; TMP = 48; T2 = 64; NEG = 72
vZERO, vAQ, vCLR, vXC, vWO, vINP, vDN2, vJ = "v76", "v79", "v78", "v253", "v208", "v209", "v210", "v211"
vX1, vPAIR8 = "v252", "v254"
WA, WB, SPARE = 80, 144, 212
PL = 214; PM = 222; PX = 238; CSQ = 242; CSG = 246; PG = 250


def HB(hop): return sB[hop & 1] if NB == 2 else sB[[1, 2, 0][hop % 3]]


class Gen:
    def __init__(self, cfg):
        self.c = cfg; self.a = Asm(); self.tail = []; self.nlab = 0; self.spare = SPARE

    def lab(self, s):
        self.nlab += 1
        return f"L_{s}_{self.nlab}"

    def stamp(self, i):
        if self.c.debug: self.a(f"s_memtime s[{70+2*i}:{71+2*i}]")

    def end(self, slot):
        a = self.a
        if self.c.debug == 3:
            if slot == 0:
                l, l2 = self.lab("nodbg"), self.lab("spin")
                a(f"s_memtime s[100:101]\ns_waitcnt lgkmcnt(0)\ns_cmp_eq_u32 s2, {self.c.fing}\ns_cbranch_scc0 {l}\ns_sub_u32 s31, s{70+2*self.c.dbgwg}, s{70+2*self.c.dbgfrom}\ns_min_u32 s31, s31, 200000")
                if self.c.dbgfix: a(f"s_mov_b32 s31, {self.c.dbgfix}")
                a(f"{l2}:\ns_memtime s[98:99]\ns_waitcnt lgkmcnt(0)\ns_sub_u32 s30, s98, s100\ns_cmp_lt_u32 s30, s31\ns_cbranch_scc1 {l2}\n{l}:")
            a("s_endpgm"); return
        if self.c.debug == 2:
            if slot == 0:
                l = self.lab("nodbg")
                a(f"s_memtime s[100:101]\ns_load_dwordx2 s[24:25], s[0:1], 80\ns_waitcnt vmcnt(0) lgkmcnt(0)\ns_cmp_lt_u32 s2, 8\ns_cbranch_scc0 {l}\ns_mov_b64 exec, 1")
                a("s_lshl_b32 s30, s2, 2\nv_mov_b32 v20, s30\nv_mov_b32 v24, s68\nglobal_store_dword v20, v24, s[24:25]")
                a(f"s_cmp_eq_u32 s2, {self.c.dbgwg}\ns_cbranch_scc0 {l}")
                for j, i in enumerate((1, 4, 6, 10, 11, 14, 15)): a(f"s_sub_u32 s31, s{70+2*i}, s70\nv_mov_b32 v{24+j}, s31")
                a("v_mov_b32 v20, 0\nv_mov_b32 v31, 0\nglobal_store_dwordx4 v20, v[24:27], s[24:25] offset:32\nglobal_store_dwordx4 v20, v[28:31], s[24:25] offset:48")
                a(f"{l}:")
            a("s_endpgm"); return
        if self.c.debug:
            a("s_memtime s[100:101]\ns_waitcnt vmcnt(0) lgkmcnt(0)\ns_mov_b64 exec, -1")
            a(f"s_lshl_b32 s30, s2, 9\ns_add_u32 s30, s30, {DBG_OFF + slot*128}")
            a("v_mov_b32 v20, s30\nv_mov_b32 v24, s68")
            for i in range(1, 16): a(f"s_sub_u32 s31, s{70+2*i}, s70\nv_mov_b32 v{24+i}, s31")
            for i in range(4): a(f"global_store_dwordx4 v20, v[{24+4*i}:{27+4*i}], {sWS} offset:{16*i}")
        a("s_endpgm")

    def tag(self, k): self.a(f"s_add_u32 {sT}, {sE}, {k}\ns_and_b32 {sT}, {sT}, 0x3f\ns_or_b32 {sT}, {sT}, 0x40")

    def nops(self, cyc):
        if cyc >= 192:
            self.a(f"s_sleep {cyc // 64}"); return
        while cyc >= 4:
            k = min(cyc // 4, 16); self.a(f"s_nop {k-1}"); cyc -= 4 * k

    def ool(self, fn):
        fb = Asm(); sv, self.a = self.a, fb
        fn(fb)
        self.a = sv
        self.tail.append(fb.text())

    def flush(self):
        while self.tail: self.a(self.tail.pop(0))

    def poll(self, name, loads, body, par, shadow=None, bound=None, over=None, first=True, pace=0):
        a = self.a
        depth, delay, gap = par
        nl = loads.count("global_")
        top, ov = self.lab(name), self.lab(name + "_over")
        a(f"s_mov_b32 {sCNT}, {bound or self.c.limit * self.c.outer}")
        if first:
            self.nops(delay)
            for k in range(depth - 1):
                a(loads); self.nops(gap)
        if shadow:
            skip = self.lab(name + "_in")
            a(loads); shadow(depth * nl); a(f"s_branch {skip}\n{top}:\n{loads}\n{skip}:")
        else:
            a(f"{top}:\n{loads}")
        a(f"s_sub_u32 {sCNT}, {sCNT}, 1\ns_cbranch_scc1 {ov if over else 'L_exit'}")
        self.nops(pace)
        body((depth - 1) * nl)
        a(f"s_cbranch_vccnz {top}")
        if over: self.ool(lambda fb: over(fb, ov, top))

    def allred(self, r, t, op="v_add_f32"):
        self.a(f"""v_mov_b32 v{t}, v{r}
v_permlane32_swap_b32 v{r}, v{t}
{op} v{r}, v{r}, v{t}
v_mov_b32 v{t}, v{r}
v_permlane16_swap_b32 v{r}, v{t}
{op} v{r}, v{r}, v{t}""")

    def rs_loads(self, base, g, n=8):
        return "\n".join(f"global_load_short_d16_hi v{g+i}, {vIN}, {base[0]} offset:{base[1] + 256*i} sc1" for i in range(n))

    def umax(self, t, regs):
        regs = list(regs)
        self.a(f"v_max3_u32 v{t}, v{regs[0]}, v{regs[1]}, v{regs[2]}")
        for i in range(3, len(regs), 2): self.a(f"v_max3_u32 v{t}, v{t}, v{regs[i]}, v{regs[min(i+1, len(regs)-1)]}")

    def tagged_sum(self, src, n=8):
        a = self.a
        for i in range(n): a(f"v_xor_b32 v{MA+i}, {sT}, v{src+i}")
        a(f"v_or3_b32 v{TMP}, v{MA}, v{MA+1}, v{MA+2}\nv_or3_b32 v{TMP}, v{TMP}, v{MA+3}, v{MA+4}\nv_or3_b32 v{TMP}, v{TMP}, v{MA+5}, v{MA+6}\nv_or_b32 v{TMP}, v{TMP}, v{MA+7}")
        a(f"v_cmp_ne_u32_sdwa vcc, v{TMP}, 0 src0_sel:BYTE_0 src1_sel:DWORD")
        a(f"v_pk_add_f32 v[{GA}:{GA+1}], v[{MA}:{MA+1}], v[{MA+2}:{MA+3}]\nv_pk_add_f32 v[{GA+2}:{GA+3}], v[{MA+4}:{MA+5}], v[{MA+6}:{MA+7}]")
        a(f"v_pk_add_f32 v[{GA}:{GA+1}], v[{GA}:{GA+1}], v[{GA+2}:{GA+3}]\nv_add_f32 v{GA}, v{GA}, v{GA+1}")

    def xload(self, ln): return f"global_load_dwordx4 v[{PX}:{PX+3}], {vXALL}, {sSM} offset:{XALL[ln]} sc1"

    def rs_gather(self, name, base, n=8, post=None, par=None, ln=None, xafter=None, mid=None, side=None):
        z, t, y = GA, TMP, PL
        done = self.lab(name + "_done")
        def reduce(off, test):
            a = self.a
            a(f"s_waitcnt vmcnt({off + n - 4})\nv_pk_add_f32 v[{z}:{z+1}], v[{y}:{y+1}], v[{y+2}:{y+3}]\ns_waitcnt vmcnt({off})")
            if n == 8: a(f"v_pk_add_f32 v[{z+2}:{z+3}], v[{y+4}:{y+5}], v[{y+6}:{y+7}]\nv_pk_add_f32 v[{z}:{z+1}], v[{z}:{z+1}], v[{z+2}:{z+3}]")
            else: a(f"v_pk_add_f32 v[{z}:{z+1}], v[{z}:{z+1}], v[{y+4}:{y+5}]\nv_add_f32 v{z}, v{z}, v{y+6}")
            a(f"v_add_f32 v{z}, v{z}, v{z+1}\nv_mov_b32 v{t}, v{z}")
            if test: a(f"v_cmp_u_f32 vcc, v{z}, v{z}")
            a(f"v_permlane32_swap_b32 v{z}, v{t}\nv_add_f32 v{z}, v{z}, v{t}\nv_mov_b32 v{t}, v{z}")
        def over(fb, ov, top):
            fb(f"{ov}:\ns_sub_u32 {sCN2}, {sCN2}, 1\ns_cbranch_scc1 L_exit\ns_mov_b32 {sCNT}, {self.c.limit}\ns_waitcnt vmcnt(0)")
            self.umax(t, range(y, y + n))
            fb(f"v_cmp_eq_u32 vcc, 0xffff0000, v{t}\ns_cbranch_vccnz {top}")
            reduce(0, False)
            fb(f"s_branch {done}")
        loads = self.rs_loads(base, PL, n)
        a = self.a
        a(f"s_mov_b32 {sCN2}, {self.c.outer}")
        if ln is None:
            self.poll(name, loads, lambda off: reduce(off, True), par or self.c.rs, bound=self.c.limit, over=over)
        else:
            xl = self.xload(ln)
            xchk = f"v_max3_u32 v{TMP}, v{PX}, v{PX+1}, v{PX+2}\nv_max_u32 v{TMP}, v{TMP}, v{PX+3}\nv_cmp_eq_u32 vcc, -1, v{TMP}"
            xr, xok, top, ov = self.lab("xretry"), self.lab("xok"), self.lab(name), self.lab(name + "_over")
            delay, gap, K = self.c.xq if name == "q" else self.c.xg
            a(f"s_mov_b32 {sCNT}, {self.c.limit * self.c.outer}")
            self.stats_pre()
            self.nops(delay)
            for j in range(K):
                a(xl)
                if j < K - 1: self.nops(gap)
            if side: side(K + xafter + 1)
            pre = self.c.rpre
            if pre: self.nops(pre - 1); a(loads)
            cnts = [cn + (n if pre else 0) for cn in ([K + xafter] if xafter is not None else []) + list(range(K - 1, -1, -1))]
            for j, cn in enumerate(cnts):
                a(f"s_waitcnt vmcnt({cn})\n{xchk}")
                a(f"s_cbranch_vccz {xok}" if j < len(cnts) - 1 else f"s_cbranch_vccnz {xr}")
            a(f"{xok}:")
            self.tail.append(f"{xr}:\n{xl}\ns_nop 15\n{xr}_b:\n{xl}\ns_sub_u32 {sCNT}, {sCNT}, 1\ns_cbranch_scc1 L_exit\ns_waitcnt vmcnt(1)\n{xchk}\ns_cbranch_vccnz {xr}_b\ns_branch {xok}\n")
            if self.c.stamp_layer == 1 and ln >= 1:
                self.stamp(8 if ln == 1 else 3)
                if self.c.debug: a(f"s_sub_u32 s72, {self.c.limit * self.c.outer + 1000}, {sCNT}\ns_add_u32 s72, s72, s70")
            self.stats(PX, loads.split("\n") * self.c.nfill)
            a(f"s_mov_b32 {sCNT}, {self.c.limit}\nv_mul_f32 {vNM}, {vMU}, {vRS}\nv_mul_f32_e64 {vNM}, -{vNM}, {vCS}")
            if self.c.stamp_layer == 1 and ln >= 1: self.stamp(9 if ln == 1 else 4)
            a(f"{top}_c:")
            reduce(n * self.c.lnoff, True)
            a(f"s_cbranch_vccnz {top}")
            self.tail.append(f"{top}:\n{loads}\ns_sub_u32 {sCNT}, {sCNT}, 1\ns_cbranch_scc0 {top}_c\ns_branch {ov}\n")
            self.ool(lambda fb: over(fb, ov, top))
        a(f"{done}:")
        if mid: a(mid)
        a(f"v_permlane16_swap_b32 v{z}, v{t}\nv_add_f32 v{z}, v{z}, v{t}")

    def pack(self, r):
        self.a(f"v_mov_b32_dpp v{TMP}, v{r} quad_perm:[1,0,3,2] {DPP}\nv_cvt_pk_bf16_f32 {vPR}, v{r}, v{TMP}")

    def perm_pair(self, W, base, kp):
        W.append([])
        for u in range(4):
            lo = base + 8 * kp + u; hi = lo + 4; s = self.spare
            self.a(f"v_perm_b32 v{s}, v{hi}, v{lo}, {sLO}\nv_perm_b32 v{hi}, v{hi}, v{lo}, {sHI}")
            W[kp] += [s, hi]; self.spare = lo

    def zero_acc(self):
        for j in range(0, 8, 2): self.a(f"v_mov_b64 v[{ACC+j}:{ACC+j+1}], 0")

    def dots(self, W, kp, src=None, lane=None):
        for j in range(8):
            if src: self.a(f"v_dot2c_f32_bf16 v{ACC+j}, {src}, v{W[kp][j]}")
            else: self.a(f"v_dot2c_f32_bf16_dpp v{ACC+j}, {vPR}, v{W[kp][j]} row_newbcast:{2*kp if lane is None else lane} {DPP}")

    def gemv(self, W, base, sc, lanes=None, mask=None, hook=None, drain=False):
        a = self.a
        n = len(W)
        lane = lambda kp: 2 * kp if lanes is None else lanes[kp]
        if self.c.sgemv:
            rl = [f"v_readlane_b32 s{4+kp}, {vPR}, {lane(kp)}" for kp in range(n)]
            for _ in range(3): a(rl.pop(0))
            def d(kp, j):
                a(f"v_dot2c_f32_bf16 v{ACC+j}, s{4+kp}, v{W[kp][j]}")
                if rl and j == 1: a(rl.pop(0))
        else:
            d = lambda kp, j: a(f"v_dot2c_f32_bf16_dpp v{ACC+j}, {vPR}, v{W[kp][j]} row_newbcast:{lane(kp)} {DPP}")
        for kp in range(n):
            for j in range(8): d(kp, j)
            if hook and kp == hook[0]: a(hook[1])
        self.pack_acc(TMP)
        if drain: a("s_waitcnt vmcnt(0)")
        self.publish(TMP, base, sc, mask)

    def pack_acc(self, d):
        for j in range(4): self.a(f"v_cvt_pk_bf16_f32 v{d+j}, v{ACC+2*j}, v{ACC+2*j+1}")

    def publish(self, src, base, sc, mask=None):
        a = self.a
        if mask: a(f"s_mov_b64 exec, {mask}")
        a(f"global_store_dwordx4 {vPUB}, v[{src}:{src+3}], {base[0]} offset:{base[1]}{sc}")
        if mask: a("s_mov_b64 exec, -1")

    def clear_inbox(self, base, sc):
        self.a(f"global_store_dwordx4 {vINX}, v[{NEG}:{NEG+3}], {base[0]} offset:{base[1]}{sc}")

    def stats_pre(self):
        p, q = TMP + 4, TMP + 5
        self.a(f"v_mov_b64 v[{p}:{q}], 0\nv_mov_b32 v{q+1}, 0x{f2u(1/512.):08x}\nv_mov_b32 v{q+2}, 0x{f2u(1e-5):08x}")

    def stats(self, x, fill=()):
        a = self.a
        p, q = TMP + 4, TMP + 5
        fill = list(fill)
        def gap(n):
            for _ in range(n):
                if fill: a(fill.pop(0))
        for i in range(4): a(f"v_dot2c_f32_bf16 v{p}, {sONE}, v{x+i}\nv_dot2c_f32_bf16 v{q}, v{x+i}, v{x+i}")
        gap(3)
        a(f"v_permlane32_swap_b32 v{p}, v{q}\nv_add_f32 v{p}, v{p}, v{q}\nv_mov_b32 v{q}, v{p}")
        gap(2)
        a(f"v_permlane16_swap_b32 v{p}, v{q}\nv_add_f32 v{p}, v{p}, v{q}")
        for r in (8, 4, 2, 1):
            gap(2); a(f"v_add_f32_dpp v{p}, v{p}, v{p} row_ror:{r} {DPP}")
        gap(1)
        a(f"v_readlane_b32 s30, v{p}, 0\nv_readlane_b32 s31, v{p}, 32")
        gap(1)
        a(f"v_mul_f32 {vMU}, s30, v{q+1}\nv_fma_f32 {vRS}, s31, v{q+1}, v{q+2}")
        a(f"v_fma_f32 {vRS}, -{vMU}, {vMU}, {vRS}\nv_max_f32 {vRS}, {vRS}, v{q+2}\nv_rsq_f32 {vRS}, {vRS}")
        gap(len(fill))

    def pair_store(self, base, off, sc):
        self.a(f"s_mov_b64 exec, 0x5555\nglobal_store_dword {vPAIR}, {vPR}, {base} offset:{off}{sc}\ns_mov_b64 exec, -1")

    def lds_weights(self, W, base, vaddr, off, npair, use=None):
        a = self.a
        rd = lambda k: a(f"ds_read_b128 v[{base+4*k}:{base+4*k+3}], {vaddr} offset:{off+1024*k}")
        for k in range(min(8, 2 * npair)): rd(k)
        for kp in range(npair):
            if 2 * kp + 8 < 2 * npair:
                rd(2 * kp + 8); rd(2 * kp + 9); out = 8
            else: out = 2 * npair - 2 * kp - 2
            a(f"s_waitcnt lgkmcnt({out})")
            self.perm_pair(W, base, kp)
            if use: use(kp)

    def prologue(self):
        a = self.a; c = self.c
        if 'empty' in c.exp: a("s_endpgm")
        if c.debug: a("s_memtime s[70:71]\ns_memrealtime s[68:69]")
        a(f"""s_load_dwordx16 s[4:19], s[0:1], 0
s_load_dwordx8 s[20:27], s[0:1], 64
s_cmpk_ge_u32 s2, 0x100
s_cbranch_scc1 L_exit
v_lshrrev_b32 v1, 6, v0
v_and_b32 v0, 63, v0
s_lshr_b32 s29, s2, 3
v_readfirstlane_b32 s33, v1
s_and_b32 s28, s2, 7
s_lshl_b32 s60, s29, 4
v_lshlrev_b32 v15, 4, v0
s_cmp_ge_u32 s33, 4
s_cbranch_scc1 L_C0
s_lshl2_add_u32 s32, s33, s60
s_lshl3_add_u32 s30, s32, s28
s_lshl_b32 s30, s30, 10
v_add_u32 v1, s30, v15
s_lshl_b32 s36, s33, 12
s_add_u32 m0, s36, {L_WQ}
s_movk_i32 s3, 0x2000
s_waitcnt lgkmcnt(0)""")
        for i in range(4):
            a(f"global_load_lds_dwordx4 v1, {sWQ}{c.nt}")
            if i < 3: a("s_addk_i32 m0, 0x400\nv_add_u32 v1, s3, v1")
        a(f"""s_branch L_S1
L_C0:
s_cmp_eq_u32 s33, 4
s_cbranch_scc1 L_X0
s_getpc_b64 s[30:31]
s_mulk_i32 s29, {128 * c.pf}
v_lshl_add_u32 v2, v0, 7, s29
s_mov_b64 exec, {(1 << c.pf) - 1}
global_load_dword {vJ}, v2, s[30:31]{c.pfpol}
s_branch L_C
L_X0:
{self.pf0()}s_waitcnt lgkmcnt(0)
global_load_dwordx4 v[32:35], v15, {sX}{c.xpol}
s_branch L_C
L_early_end:""")

    def pf0(self):
        c = self.c
        if not c.pf0: return "s_setprio 3\n"
        return f"s_getpc_b64 s[30:31]\nv_lshlrev_b32 v2, 7, v0\ns_mov_b64 exec, {(1 << c.pf0) - 1 if c.pf0 <= 6 else hex((1 << c.pf0) - 1)}\nglobal_load_dword {vJ}, v2, s[30:31]{c.pf0pol}\ns_mov_b64 exec, -1\n"

    def consts(self):
        self.a("s_mov_b32 s62, 0x05040100\ns_mov_b32 s63, 0x07060302\ns_mov_b32 s64, 0x3f803f80")

    KF, VR, VF, Q, D, P, ON, O, OL, X, T = 16, 48, 80, 112, 128, 136, 140, 144, 176, 184, 192

    def s_stream(self):
        a = self.a; c = self.c
        KF, VR, VF, ON, T = self.KF, self.VR, self.VF, self.ON, self.T
        n = [4]; landed = [-1]
        wins = c.wins
        def signal(off):
            a(f"v_mov_b32 v{T}, 1\ns_mov_b64 s[38:39], exec\ns_mov_b64 exec, 1\nds_add_u32 v{T+12}, v{T} offset:{off}\ns_mov_b64 exec, s[38:39]")
        def throttle():
            w = wins[n[0] - 4]
            if n[0] - w > landed[0]:
                if landed[0] < 3 <= n[0] - w:
                    a(f"s_waitcnt vmcnt({n[0] - 4})")
                    if 'noq' in c.exp: self.stamp(14)
                    a("s_barrier"); self.stamp(1)
                    landed[0] = 3
                if n[0] - w > landed[0]: a(f"s_waitcnt vmcnt({w-1})"); landed[0] = n[0] - w
            if 'noq' in c.exp and n[0] in (4, 8, 12, 16, 20): self.stamp({4: 9, 8: 10, 12: 11, 16: 12, 20: 13}[n[0]])
            if n[0] == c.wo_at: signal(L_CNT)
            n[0] += 1
        a("""L_S1:
s_lshl_b32 s30, s28, 24
s_lshl_b32 s31, s29, 15
s_add_u32 s30, s30, s31
s_add_u32 s30, s30, 0xF00000
s_add_u32 s6, s6, s30
s_addc_u32 s7, s7, 0
s_lshl_b32 s40, s33, 13
s_mov_b32 m0, s40
v_and_b32 v6, 15, v0
v_lshrrev_b32 v7, 4, v0
v_xor_b32 v8, v6, v7
v_lshlrev_b32 v8, 4, v8
v_lshl_add_u32 v9, v7, 8, v8
v_add_u32 v9, s40, v9""")
        if c.rot: a("s_lshl_b32 s37, s29, 2\ns_and_b32 s31, s28, 3\ns_or_b32 s37, s37, s31\ns_lshl_b32 s37, s37, 8\nv_xor_b32 v9, s37, v9")
        else: a("s_mov_b32 s37, 0")
        for i in range(8):
            if i: a(f"s_addk_i32 m0, 0x400\nv_xor_b32 v1, {64*(i&3) + 1024*i}, v9")
            throttle()
            a(f"global_load_lds_dwordx4 {'v1' if i else 'v9'}, {sK}{c.nt}")
            if i == 3:
                a("s_add_u32 s8, s8, s30\ns_addc_u32 s9, s9, 0")
                self.consts()
                a("v_lshlrev_b32 v10, 4, v6\nv_lshl_add_u32 v10, v7, 10, v10\nv_add_u32 v10, s40, v10\nv_xor_b32 v10, s37, v10")
                a("v_lshl_add_u32 v11, v6, 8, v8\nv_add_u32 v11, s40, v11")
                for j in range(1, 4): a(f"v_xor_b32 v{11+j}, {64*j}, v11")
                a("v_lshrrev_b32 v2, 2, v6\nv_lshlrev_b32 v5, 4, v2\nv_lshlrev_b32 v2, 8, v2\nv_lshl_add_u32 v2, v7, 4, v2")
                a(f"s_lshl_b32 s31, s33, 2\ns_add_u32 s31, s31, {L_ST}\nv_add_u32 v5, s31, v5")
                a(f"v_lshlrev_b32 v3, 4, v7\nv_add_u32 v3, s31, v3")
                a(f"s_lshl_b32 s31, s33, 11\ns_add_u32 s31, s31, {L_O}\nv_lshlrev_b32 v4, 2, v0\nv_add_u32 v4, s31, v4")
            if i == 4:
                for k in range(4): a(f"v_mov_b32 v{ON+k}, {sONE}")
                cs = f2u(128**-0.5*1.4426950408889634)
                a(f"v_mov_b32 v{T+6}, 0x{cs:08x}\nv_mov_b32 v{T+7}, 0x{cs:08x}\nv_mov_b32 v{T+5}, 0x{f2u(c.bound):08x}\nv_mov_b32 v{T+12}, 0")
                a(f"v_add_u32 v2, {L_Q}, v2\nv_lshrrev_b32 v{T}, 2, v6")
                for j in range(4): a(f"v_add_u32 v{T+1}, {j}, v{T}\nv_and_b32 v{T+1}, 3, v{T+1}\nv_lshl_add_u32 v{T+8+j}, v{T+1}, 6, v2")
            if i == 5:
                a("""s_mul_i32 s30, s32, 3584
s_mul_i32 s31, s28, 448
s_add_u32 s30, s30, s31
v_and_b32 v184, 31, v0
v_lshl_add_u32 v184, v184, 4, s30
v_cmp_gt_u32 vcc, 32, v0
v_mov_b32 v186, s18
v_mov_b32 v187, s19
v_mov_b32 v188, s16
v_mov_b32 v189, s17
v_cndmask_b32 v186, v186, v188, vcc
v_cndmask_b32 v187, v187, v189, vcc
v_mov_b32 v185, 0
s_mov_b32 s14, 3584
s_mov_b32 s15, 0
v_lshl_add_u64 v[184:185], v[184:185], 0, v[186:187]
s_min_u32 s30, s29, 27
s_mul_i32 s31, s28, 224
s_lshl3_add_u32 s30, s30, s31
s_lshl1_add_u32 s30, s33, s30
s_lshl_b32 s30, s30, 10
v_add_u32 v190, s30, v15""")
        for i in range(8):
            if i: a(f"v_xor_b32 v1, {(i>>2)*4096+(i&3)*256}, v10")
            throttle()
            a(f"global_load_dwordx4 v[{VR+4*i}:{VR+4*i+3}], {'v1' if i else 'v10'}, {sV}{c.nt}")
        kread = [False]; vdone = [0]
        def work():
            if landed[0] >= 11 and not kread[0]:
                kread[0] = True
                for t in range(2):
                    for j in range(4): a(f"ds_read_b128 v[{KF+16*t+4*j}:{KF+16*t+4*j+3}], v{11+j} offset:{4096*t}")
            while vdone[0] < 4 and landed[0] >= 13 + 2 * vdone[0]:
                self.vperm(vdone[0]); vdone[0] += 1
        work()
        a(f"s_add_u32 m0, s36, {L_GU}")
        for i in range(4):
            throttle()
            a(f"s_mov_b32 exec_lo, 0x0fffffff\ns_mov_b32 exec_hi, 0x0fffffff\nglobal_load_lds_dwordx4 v[184:185], off{c.nt}\ns_mov_b64 exec, -1")
            if i < 3: a("s_addk_i32 m0, 0x400\nv_lshl_add_u64 v[184:185], v[184:185], 0, s[14:15]")
            else: a(f"s_lshl_b32 s31, s33, 11\ns_add_u32 m0, s31, {L_WD}")
            work()
        for i in range(2):
            throttle()
            a(f"global_load_lds_dwordx4 v190, {sWD} offset:{1024*i}{c.nt}")
            work()
        if c.wo_at >= 26: signal(L_CNT)
        assert kread[0]
        self.vdone = vdone[0]; self.signal = signal
        self.stamp(2)
        a("s_branch L_S2")

    def vperm(self, u):
        for up in range(4):
            for b in range(2):
                self.a(f"v_perm_b32 v{self.VF+4*(2*up+b)+u}, v{self.VR+4*(2*u+1)+up}, v{self.VR+4*(2*u)+up}, {sHI if b else sLO}")

    def s_layers(self):
        a = self.a; c = self.c
        KF, VR, VF, Q, D, P, ON, O, OL, X, T = self.KF, self.VR, self.VF, self.Q, self.D, self.P, self.ON, self.O, self.OL, self.X, self.T
        a("L_S2:")
        for li in range(2):
            if li and any(f"stop{i}" in c.exp for i in range(4)): a("s_endpgm")
            if li: a("s_barrier\n" * 3)
            a(f"v_mov_b32 v{T+4}, 0\ns_waitcnt lgkmcnt(0)\ns_barrier")
            self.stamp(3 + 6 * li)
            if li == 1 and "stop8" in c.exp: a("s_endpgm")
            if 'noq' in c.exp and li == 0:
                a("s_waitcnt vmcnt(0)"); self.stamp(4)
                l = self.lab("x"); a(f"s_cmp_eq_u32 s33, 0\ns_cbranch_scc1 {l}\ns_endpgm\n{l}:"); self.end(2)
            for j in range(4): a(f"ds_read_b128 v[{Q+4*j}:{Q+4*j+3}], v{T+8+j}")
            a(f"ds_write_b32 v5, v{T+4}")
            mf = lambda t, j: a(f"v_mfma_f32_16x16x32_bf16 v[{D+4*t}:{D+4*t+3}], v[{KF+16*t+4*j}:{KF+16*t+4*j+3}], v[{Q+4*j}:{Q+4*j+3}], " + (f"v[{D+4*t}:{D+4*t+3}]" if j else "0"))
            mul = lambda i: a(f"v_pk_mul_f32 v[{X+i}:{X+i+1}], v[{D+i}:{D+i+1}], v[{T+6}:{T+7}]")
            if c.qkov:
                for j in range(4):
                    a(f"s_waitcnt lgkmcnt({4 - j})"); mf(0, j)
                for j in range(4): mf(1, j)
                mul(0); mul(2)
                for i in range(4): a(f"v_exp_f32 v{D+i}, v{X+i}")
                mul(4); mul(6)
                for i in range(4, 8): a(f"v_exp_f32 v{D+i}, v{X+i}")
            else:
                for j in range(4):
                    a(f"s_waitcnt lgkmcnt({4 - j})"); mf(0, j); mf(1, j)
                self.stamp(5 + 6 * li)
                for i in range(0, 8, 2): mul(i)
                for i in range(8): a(f"v_exp_f32 v{D+i}, v{X+i}")
            for u in range(4): a(f"v_cvt_pk_bf16_f32 v{P+u}, v{D+2*u}, v{D+2*u+1}")
            self.stamp(6 + 6 * li)
            if li == 0:
                for u in range(self.vdone, 4):
                    a(f"s_waitcnt vmcnt({12 - 2*u})")
                    self.vperm(u)
                self.stamp(4)
            lfb, lback = self.lab("fallback"), self.lab("pv")
            a(f"{lback}:")
            for e in range(8):
                a(f"v_mfma_f32_16x16x32_bf16 v[{O+4*e}:{O+4*e+3}], v[{P}:{P+3}], v[{VF+4*e}:{VF+4*e+3}], 0")
                if e == 0: a(f"v_max3_f32 v{T}, v{X}, v{X+1}, v{X+2}\nv_max3_f32 v{T+1}, v{X+3}, v{X+4}, v{X+5}")
                if e == 1: a(f"v_max3_f32 v{T}, v{T}, v{X+6}, v{X+7}\nv_max_f32 v{T}, v{T}, v{T+1}")
                if e == 2: a(f"v_cmp_gt_f32 vcc, |v{T}|, v{T+5}")
                if e == 3: a(f"v_mfma_f32_16x16x32_bf16 v[{OL}:{OL+3}], v[{P}:{P+3}], v[{ON}:{ON+3}], 0\ns_cbranch_vccnz {lfb}")
                if e == 5: a(f"ds_write2st64_b32 v4, v{O}, v{O+4} offset0:0 offset1:1")
                if e == 7: a(f"ds_write2st64_b32 v4, v{O+8}, v{O+12} offset0:2 offset1:3\nds_write_b32 v3, v{OL} offset:64")
            for e in range(4, 8, 2): a(f"ds_write2st64_b32 v4, v{O+4*e}, v{O+4*e+4} offset0:{e} offset1:{e+1}")
            a("s_waitcnt lgkmcnt(0)")
            self.stamp(7 + 6 * li)
            a("s_barrier")
            if li == 0:
                a("s_waitcnt vmcnt(0)"); self.signal(L_CN2); a("s_waitcnt lgkmcnt(0)"); self.stamp(8)
            def fbk(fb):
                fb(f"{lfb}:\ns_nop 7")
                self.allred(T, T + 1, "v_max_f32")
                for i in range(8): fb(f"v_sub_f32 v{X+i}, v{X+i}, v{T}")
                for i in range(8): fb(f"v_exp_f32 v{D+i}, v{X+i}\nv_mov_b32 v{X+i}, 0")
                for u in range(4): fb(f"v_cvt_pk_bf16_f32 v{P+u}, v{D+2*u}, v{D+2*u+1}")
                fb(f"ds_write_b32 v5, v{T}\ns_nop 7\ns_branch {lback}")
            self.ool(fbk)
        if c.debug:
            l = self.lab("sdone")
            a(f"s_cmp_eq_u32 s33, 0\ns_cbranch_scc1 {l}\ns_endpgm\n{l}:")
        self.end(2)

    def clear_all(self, sc):
        a = self.a
        a(f"s_mov_b32 exec_hi, 0x00ffffff\nglobal_store_dword {vCLR}, v{NEG}, {sSM} offset:{AGQ[0]}{sc}\ns_mov_b64 exec, -1")
        for b in ((sB[0],) if NB == 2 else (sB[0], sR)): self.clear_inbox(b, sc)

    def c_pre(self):
        a = self.a; c = self.c
        a(f"""L_C:
s_mov_b64 exec, -1
s_lshr_b32 s29, s2, 3
s_waitcnt lgkmcnt(0)
s_load_dword {sE}, {sWS}, 0
s_mul_i32 s59, s28, {GB_STRIDE}
s_add_u32 s59, s59, {GB_OFF}
v_and_b32 v31, 7, v0
s_lshl_b32 s35, s29, 5
v_lshl_add_u32 {vPAIR8}, v31, 2, s35
v_lshlrev_b32 {vXALL}, 4, v0
s_lshr_b32 s30, s29, 1
s_mul_i32 s3, s30, {IB}
s_and_b32 s30, s29, 1
s_lshl_b32 s30, s30, 5
s_add_u32 s34, s3, s30
v_lshrrev_b32 v22, 1, v0
v_lshl_add_u32 {vINX}, v22, 6, s34
v_and_b32 v26, 1, v0
v_lshl_add_u32 {vINX}, v26, 4, {vINX}
v_mov_b64 v[{NEG}:{NEG+1}], -1
v_mov_b64 v[{NEG+2}:{NEG+3}], -1
s_and_b32 s31, s29, 3
s_lshl_b32 s31, s31, 5
s_lshr_b32 s32, s29, 2
s_lshl2_add_u32 s60, s32, s31
v_lshl_add_u32 v27, v31, 7, s60
v_cmp_gt_u32 vcc, 40, v0
v_lshrrev_b32 {vCLR}, 3, v0
v_lshlrev_b32 {vCLR}, 10, {vCLR}
v_cndmask_b32 v27, v27, {vPAIR8}, vcc
v_add_u32 {vCLR}, {vCLR}, v27
s_add_u32 s46, s26, s59
s_addc_u32 s47, s27, 0
s_add_u32 s36, s46, 2048
s_addc_u32 s37, s47, 0
s_add_u32 s40, s46, 6144
s_addc_u32 s41, s47, 0
s_add_u32 s46, s46, {SM}
s_addc_u32 s47, s47, 0
s_cmp_eq_u32 s33, 4
s_cbranch_scc0 L_Ypre
global_load_dword {vX1}, {vPAIR8}, {sX}{c.xpol}""")
        assert OSTAT[0] - AGQ[0] == 5 * 1024 and OSTAT[1] - OSTAT[0] == 1024
        self.clear_all("")
        a(f"s_mul_i32 s30, s30, {IB // 64}\ns_add_u32 s30, s30, s3\nv_lshl_add_u32 v29, v0, 7, s30\ns_mov_b64 exec, {hex((1 << (IB // 256)) - 1)}\nglobal_load_dword {vJ}, v29, s[36:37] offset:-2048{c.tpol}")
        a(f"s_lshl_b32 s30, s29, 8\nv_lshl_add_u32 v29, v0, 7, s30\ns_mov_b64 exec, 3\nglobal_load_dword {vJ}, v29, {sSM} offset:-4096{c.tpol}\ns_mov_b64 exec, -1")
        a(f"s_branch L_Cjoin\nL_Ypre:\nglobal_load_dword {vJ}, {vPAIR8}, {sOUT}")
        a("L_Cjoin:")
        self.consts()
        for k in range(4): a(f"s_add_u32 s{48+2*k}, s26, {G_OFF+G_STRIDE*k}\ns_addc_u32 s{49+2*k}, s27, 0")
        for i in range(0, 8, 2): a(f"v_mov_b64 v[{PL+i}:{PL+i+1}], 0")
        a(f"""s_getreg_b32 s61, hwreg(HW_REG_XCC_ID, 0, 4)
v_mov_b64 v[76:77], 0
v_and_b32 v20, 15, v0
v_lshrrev_b32 v21, 4, v0
v_lshrrev_b32 v23, 2, v20
v_and_b32 v24, 3, v0
v_lshrrev_b32 {vPAIR}, 1, v20
v_lshl_add_u32 {vPAIR}, {vPAIR}, 2, s35
v_lshl_add_u32 v22, v21, 6, s34
v_lshl_add_u32 {vIN}, v20, 1, v22
v_lshl_add_u32 {vINP}, v24, 2, v22
v_bfe_u32 v22, v0, 2, 1
v_lshl_add_u32 {vINP}, v22, 11, {vINP}
v_bfe_u32 v22, v0, 3, 1
v_lshl_add_u32 {vINP}, v22, 4, {vINP}
v_mov_b32 {vMASK}, 0xff
s_lshr_b32 s31, s29, 3
s_lshl_b32 s31, s31, 14
s_and_b32 s32, s29, 7
s_lshl_b32 s32, s32, 10
s_add_u32 s31, s31, s32
v_lshrrev_b32 {vGIN}, 3, v0
v_lshlrev_b32 {vGIN}, 7, {vGIN}
v_and_b32 v25, 7, v0
v_lshl_add_u32 {vGIN}, v25, 3, {vGIN}
v_add_u32 {vGIN}, s31, {vGIN}
s_lshl_b32 s32, s28, 7
s_add_u32 s31, s31, s32
v_lshl_add_u32 {vGPUB}, v20, 2, s31
v_and_b32 v26, 1, v21
v_lshl_add_u32 {vGPUB}, v26, 13, {vGPUB}
v_lshlrev_b32 {vAQ}, 2, v21
v_sub_u32 {vAQ}, v0, {vAQ}
v_and_b32 {vAQ}, 15, {vAQ}
v_lshl_add_u32 {vAQ}, v21, 4, {vAQ}
v_lshlrev_b32 {vAQ}, 4, {vAQ}
v_lshrrev_b32 v22, 2, v0
v_mul_u32_u24 v22, {IB}, v22
v_lshl_add_u32 v22, v24, 4, v22
s_lshl_b32 s32, s29, 6
v_add_u32 {vPUB}, s32, v22
s_sub_u32 s31, s33, 4
s_mul_i32 s31, s31, {8 * IB}
s_add_u32 s31, s31, s32
v_lshrrev_b32 v22, 3, v0
v_mul_u32_u24 v22, {IB}, v22
v_lshl_add_u32 v22, v31, 3, v22
v_add_u32 {vPUBO}, s31, v22
s_and_b32 s31, s29, 3
s_lshl_b32 s32, s31, 8
v_lshl_add_u32 {vOSI}, v21, 5, s32
s_lshl_b32 s31, s31, 5
s_lshr_b32 s32, s29, 2
s_lshl_b32 s32, s32, 2
s_add_u32 s31, s31, s32
v_and_b32 v26, 1, v0
v_and_b32 v27, 3, v23
v_lshlrev_b32 {vOSP}, 8, v27
v_lshl_add_u32 {vOSP}, v26, 7, {vOSP}
v_add_u32 {vOSP}, s31, {vOSP}
s_sub_u32 s31, s33, 4
s_lshl_b32 s31, s31, 10
s_add_u32 s31, s31, {L_O}
v_add_u32 {vLDS}, s31, {vXALL}
v_lshlrev_b32 {vLST}, 4, v27
v_add_u32 {vLST}, {L_ST}, {vLST}
s_mov_b32 s66, 0xaaaaaaaa
s_mov_b32 s67, 0xaaaaaaaa
s_mov_b32 s14, -1
s_mov_b32 s15, 0x00ffffff
s_and_b32 s31, s29, 3
s_lshl_b32 s31, s31, 7
s_lshr_b32 s32, s29, 2
s_add_u32 s31, s31, s32
s_lshl_b32 s32, s28, 9
s_add_u32 s31, s31, s32
s_lshl_b32 s31, s31, 10
v_add_u32 {vWO}, s31, {vXALL}
v_and_b32 {vXC}, 31, v0
v_lshlrev_b32 {vXC}, 2, {vXC}
s_cmp_eq_u32 s33, 4
s_cbranch_scc0 L_Y""")

    def lds_wait(self, off, n):
        l = self.lab("cnt")
        self.a(f"{l}:\nds_read_b32 v{TMP+1}, {vZERO} offset:{off}\ns_sub_u32 {sCN2}, {sCN2}, 1\ns_cbranch_scc1 L_exit\ns_waitcnt lgkmcnt(0)")
        self.a(f"v_cmp_gt_u32 vcc, {n}, v{TMP+1}\ns_cbranch_vccnz {l}")

    def prewrite(self, val):
        self.a(f"v_lshrrev_b32 v{TMP}, 5, v0\nv_lshlrev_b32 v{TMP}, 16, v{TMP}\nv_add_u32 v{TMP}, v{TMP}, {vGPUB}")
        self.a(f"global_atomic_swap v{TMP}, {vZERO}, {sG[0]}\nglobal_atomic_swap v{TMP}, {vZERO}, {sG[2]}")

    def combine(self, li, base, half, sc):
        a = self.a
        gen_c, back_c = self.lab("cgen"), self.lab("cback")
        a(f"ds_read_b128 v[{T2}:{T2+3}], {vLST}")
        if not half: a(f"ds_read_b128 v[{T2+4}:{T2+7}], {vLST} offset:64")
        for w in range(4): a(f"ds_read_b128 v[{TMP+4*w}:{TMP+4*w+3}], {vLDS} offset:{2048*w}")
        a(f"s_waitcnt lgkmcnt(4)\nv_or3_b32 v{GA+2}, v{T2}, v{T2+1}, v{T2+2}\nv_or_b32 v{GA+2}, v{GA+2}, v{T2+3}\nv_cmp_ne_u32 vcc, 0, v{GA+2}")
        lst = f"global_store_dword {vOSP}, v{GA}, {sSM} offset:{OSTAT[li]}{sc}\ns_mov_b64 exec, -1"
        if not half: a(f"v_pk_add_f32 v[{GA}:{GA+1}], v[{T2+4}:{T2+5}], v[{T2+6}:{T2+7}]\nv_add_f32 v{GA}, v{GA}, v{GA+1}")
        a(f"s_waitcnt lgkmcnt(2)\nv_pk_add_f32 v[{ACC}:{ACC+1}], v[{TMP}:{TMP+1}], v[{TMP+4}:{TMP+5}]\ns_cbranch_vccnz {gen_c}")
        if not half: a(f"s_mov_b64 exec, 0x2222\n{lst}")
        a(f"v_pk_add_f32 v[{ACC+2}:{ACC+3}], v[{TMP+2}:{TMP+3}], v[{TMP+6}:{TMP+7}]\ns_waitcnt lgkmcnt(1)")
        a(f"v_pk_add_f32 v[{ACC}:{ACC+1}], v[{ACC}:{ACC+1}], v[{TMP+8}:{TMP+9}]\nv_pk_add_f32 v[{ACC+2}:{ACC+3}], v[{ACC+2}:{ACC+3}], v[{TMP+10}:{TMP+11}]\ns_waitcnt lgkmcnt(0)")
        a(f"v_pk_add_f32 v[{ACC}:{ACC+1}], v[{ACC}:{ACC+1}], v[{TMP+12}:{TMP+13}]\nv_pk_add_f32 v[{ACC+2}:{ACC+3}], v[{ACC+2}:{ACC+3}], v[{TMP+14}:{TMP+15}]")
        a(f"{back_c}:\nv_cvt_pk_bf16_f32 v{ACC}, v{ACC}, v{ACC+1}\nv_cvt_pk_bf16_f32 v{ACC+1}, v{ACC+2}, v{ACC+3}\nglobal_store_dwordx2 {vPUBO}, v[{ACC}:{ACC+1}], {base[0]} offset:{base[1]}{sc}")
        def cgen(fb):
            fb(f"{gen_c}:\ns_waitcnt lgkmcnt(0)")
            fb(f"v_max3_f32 v{GA}, v{T2}, v{T2+1}, v{T2+2}\nv_max_f32 v{GA}, v{GA}, v{T2+3}")
            for w in range(4): fb(f"v_sub_f32 v{T2+w}, v{T2+w}, v{GA}")
            for w in range(4): fb(f"v_exp_f32 v{T2+w}, v{T2+w}")
            for w in range(4):
                for j in range(4):
                    fb(f"v_mul_f32 v{ACC+j}, v{T2}, v{TMP+j}" if w == 0 else f"v_fmac_f32 v{ACC+j}, v{T2+w}, v{TMP+4*w+j}")
            if not half:
                fb(f"v_mul_f32 v{GA+1}, v{T2}, v{T2+4}")
                for w in range(1, 4): fb(f"v_fmac_f32 v{GA+1}, v{T2+w}, v{T2+4+w}")
                fb(f"v_or_b32 v{GA+1}, 0x80000000, v{GA+1}\nv_cndmask_b32 v{GA}, v{GA}, v{GA+1}, {sODD}\ns_mov_b64 exec, 0x3333\n{lst}")
            fb(f"s_nop 1\ns_branch {back_c}")
        self.ool(cgen)

    def late_colsum(self, off):
        a = self.a
        chk, again = self.lab("lcs"), self.lab("lcs_again")
        a(f"s_waitcnt vmcnt({off})\n{chk}:")
        a(f"v_pk_add_f32 v[{GA}:{GA+1}], v[{PM}:{PM+1}], v[{PM+2}:{PM+3}]\nv_pk_add_f32 v[{GA+2}:{GA+3}], v[{PM+4}:{PM+5}], v[{PM+6}:{PM+7}]")
        self.umax(TMP, range(PM, PM + 8))
        a(f"v_cmp_eq_u32 vcc, 0xffff0000, v{TMP}\nv_pk_add_f32 v[{GA}:{GA+1}], v[{GA}:{GA+1}], v[{GA+2}:{GA+3}]\nv_add_f32 {vCS}, v{GA}, v{GA+1}\ns_cbranch_vccnz {again}")
        self.tail.append(f"{again}:\n{self.rs_loads(sR, PM)}\ns_waitcnt vmcnt(0)\ns_sub_u32 {sCNT}, {sCNT}, 1\ns_cbranch_scc0 {chk}\ns_endpgm\n")
        self.allred(14, TMP)

    def colsum_gather(self, base):
        self.rs_gather("cs", base, par=(1, 0, 0))
        self.a(f"v_mov_b32 {vCS}, v{GA}")

    def x_head(self):
        a = self.a
        nt3 = 2; pw = 0
        self.zero_acc()
        if 'noq' in self.c.exp: self.stamp(5)
        a(f"v_add_u32 v{T2}, {L_WQ}, {vXALL}\ns_waitcnt lgkmcnt(0)\ns_barrier")
        self.stamp(1)
        if 'noq' in self.c.exp:
            a("s_barrier"); self.end(0)
        self.WQ = []
        self.lds_weights(self.WQ, WA, f"v{T2}", 0, 8)
        a(f"s_waitcnt vmcnt({NB + nt3})")
        self.stats_pre(); self.stats(32)
        a(f"v_lshlrev_b32 {vX}, 16, {vX1}\nv_and_b32 {vX1}, 0xffff0000, {vX1}\nv_sub_f32 v{GA}, {vX}, {vMU}\nv_sub_f32 v{GA+1}, {vX1}, {vMU}")
        a(f"v_cvt_pk_bf16_f32 {vPR}, v{GA}, v{GA+1}")
        self.tag(1)
        for kp in range(8): self.dots(self.WQ, kp, lane=kp)
        self.xspare = self.spare
        a(f"s_waitcnt vmcnt({nt3 + pw})\ns_setprio 0")
        self.stamp(2)

    def x_program(self, slow):
        a = self.a; c = self.c
        sc = " sc1" if slow else ""
        self.spare = self.xspare
        if slow:
            self.clear_all(sc)
            a("s_waitcnt vmcnt(0)")
            self.zero_acc()
            for kp in range(8): self.dots(self.WQ, kp, lane=kp)
        for j in range(8): a(f"v_bfi_b32 v{ACC+j}, {vMASK}, {sT}, v{ACC+j}")
        for t in range(2): self.publish(ACC + 4 * t, sB[1 + t], sc)
        a(f"s_add_u32 s3, {sE}, 1\ns_lshl_b32 s3, s3, 4\ns_add_u32 s32, s3, 16\ns_or_b32 s3, s3, {sXCC}\ns_add_u32 s24, s3, 16")
        def xword():
            a(f"v_mov_b32 v{TMP}, {'s24' if slow else 's3'}\ns_lshl_b32 s31, s29, 2\nv_mov_b32 v{TMP+1}, s31")
            a(f"s_mov_b64 exec, 1\nglobal_store_dword v{TMP+1}, v{TMP}, {sSM} offset:{XCC}{sc}\ns_mov_b64 exec, -1")
        if not slow: xword()
        self.stamp(3)
        def check0(off):
            if c.debug and 'q0dbg' in c.exp and not slow:
                l = self.lab("d"); a(f"s_waitcnt vmcnt({off})\ns_cmp_eq_u32 {sCNT}, {c.limit1 - 1}\ns_cbranch_scc0 {l}"); self.stamp(8); a(f"{l}:")
                l = self.lab("d"); a(f"s_cmp_eq_u32 {sCNT}, {c.limit1 - 2}\ns_cbranch_scc0 {l}"); self.stamp(9); a(f"{l}:")
                l = self.lab("d"); a(f"s_cmp_eq_u32 {sCNT}, {c.limit1 - 3}\ns_cbranch_scc0 {l}"); self.stamp(13); a(f"{l}:")
            a(f"s_waitcnt vmcnt({off})\nv_cmp_ne_u32 s[30:31], s3, v{PX}")
            if slow:
                a(f"v_cmp_ne_u32 vcc, s24, v{PX}\nv_and_b32 v{TMP+2}, -16, v{PX}\ns_and_b64 s[30:31], s[30:31], vcc\nv_cmp_ne_u32 vcc, s32, v{TMP+2}")
                a("s_cmp_eq_u64 s[30:31], 0\ns_cselect_b64 s[30:31], 0, vcc")
            self.tagged_sum(PM)
            a("s_or_b64 vcc, vcc, s[30:31]")
        loads = "".join(f"global_load_dword v{PM+i}, {vINP}, {sB[1][0]} offset:{sB[1][1] + 256*i} sc1\n" for i in range(8))
        loads += f"global_load_dword v{PX}, {vXC}, {sSM} offset:{XCC} sc1"
        if not slow:
            self.zero_acc()
            for kp in range(8): self.dots(self.WQ, kp, sONE)
            self.pack_acc(CSQ)
        if c.force_slow and not slow: a("s_branch L_Xslow")
        if slow:
            a("s_waitcnt vmcnt(0)")
            xword()
            self.poll("q0", loads, check0, (1, 0, 0))
        else:
            if 'fakeq' in c.exp: pass
            else: self.poll("q0", loads, check0, c.q0, bound=c.limit1, over=lambda fb, ov, top: fb(f"{ov}:\ns_branch L_Xslow"), pace=c.pace)
        GU = []
        self.allred(GA, TMP)
        a(f"v_mul_f32 v{GA}, v{GA}, {vRS}")
        self.stamp(4)
        for li in range(2):
            h = 5 * li
            B = lambda k: HB(h + k)
            st = (lambda i: self.stamp(i)) if li == c.stamp_layer else (lambda i: None)
            self.pack(GA)
            self.pair_store(sSM, AGQ[li], sc)
            self.clear_inbox(HB(6) if li else sB[1], sc)
            if li == 0: self.clear_inbox(sB[2], sc)
            st(5)
            def qbody(off):
                a(f"s_waitcnt vmcnt({off})\nv_max3_u32 v{TMP}, v{PX}, v{PX+1}, v{PX+2}\nv_max_u32 v{TMP}, v{TMP}, v{PX+3}\nv_cmp_eq_u32 vcc, -1, v{TMP}")
            ql = f"global_load_dwordx4 v[{PX}:{PX+3}], {vAQ}, {sSM} offset:{AGQ[li]} sc1"
            if li == 0:
                a(f"v_mov_b32 v{TMP+1}, {int(slow)}\nds_write_b32 {vZERO}, v{TMP+1} offset:{L_MODE}")
                if 'fakeq' in c.exp or 'fakea' in c.exp: a(f"v_mov_b64 v[{PX}:{PX+1}], 0\nv_mov_b64 v[{PX+2}:{PX+3}], 0")
                else: self.poll("aq", ql, qbody, c.a0, pace=c.pace)
            else: self.poll("aq", ql, qbody, c.aq)
            a(f"ds_write_b128 {vXALL}, v[{PX}:{PX+3}] offset:{L_Q}\ns_waitcnt lgkmcnt(0)\ns_barrier")
            if li == 1 and "stop8" in c.exp: a("s_endpgm")
            if li == 0:
                for i in range(0, 8, 2): a(f"v_mov_b64 v[{PM+i}:{PM+i+1}], 0")
            if li == 0: self.prewrite(0)
            a("s_barrier")
            st(6)
            self.combine(li, B(2), 0, sc)
            if li == 1 and "stop9" in c.exp: a("s_endpgm")
            st(7)
            if li == 0:
                a(f"v_lshrrev_b32 v{T2}, 1, v0\nv_lshlrev_b32 v{T2}, 4, v{T2}\nv_and_b32 v{T2+1}, 1, v0\nv_lshl_add_u32 v{T2}, v{T2+1}, 9, v{T2}\nv_add_u32 v{T2}, {L_GU}, v{T2}")
                a(f"s_mov_b32 {sCN2}, {c.limit * c.outer * 4}")
                self.zero_acc()
                self.lds_wait(L_CN2, 4)
                if 'q0dbg' not in c.exp: st(9)
                self.lds_weights(GU, WB, f"v{T2}", 0, 8, lambda kp: self.dots(GU, kp, sONE))
                self.pack_acc(CSG)
                if NB == 3: self.publish(CSG, sR, sc, M56)
                if 'q0dbg' not in c.exp: st(13)
            for half in range(2):
                k = 2 * li + half
                last = k == 3
                self.zero_acc()
                self.tag(11 + k)
                a("s_barrier")
                if f"stop{2*k}" in c.exp: a("s_endpgm")
                if k == 0 and NB == 2: self.publish(CSG, sR, sc, M56)
                if not last and NB == 3: self.clear_inbox(B(2 + 2 * half), sc)
                if last and c.fown:
                    a(f"v_and_b32 v{T2}, 7, v0\nv_lshlrev_b32 v{T2}, 3, v{T2}\ns_mov_b64 s[24:25], 0xff\ns_lshl_b64 s[24:25], s[24:25], {8 * c.fing}")
                self.rs_gather("out", B(3 + 2 * half), 7 if half else 8, mid=f"s_cmp_eq_u32 s28, {c.fing}" if last and c.fown else None)
                gpub = f"{c.gexec}\nglobal_atomic_swap {vGPUB}, v{GA}, {sG[k]}\ns_mov_b64 exec, -1"
                a(f"v_bfi_b32 v{GA}, {vMASK}, {sT}, v{GA}")
                own = last and c.fown
                if own:
                    l = self.lab("lastpub")
                    a(f"s_cbranch_scc0 {l}")
                    self.ool(lambda fb: (fb(f"{l}:\n{gpub}"), self.end(0)))
                else: a(gpub)
                if li == 0 or (k == 2 and NB == 2): self.clear_inbox(B(3 + 2 * half), sc)
                if k == 1: self.publish(CSQ, sR, sc)
                st(10 + 4 * half)
                fin = self.lab("fin")
                if k == 2:
                    l = self.lab("noep")
                    a(f"s_cmp_eq_u32 s2, 0\ns_cbranch_scc0 {l}\ns_add_u32 s30, {sE}, {NTAGS}\nv_mov_b32 v{TMP}, s30\ns_mov_b64 exec, 1\nglobal_store_dword {vZERO}, v{TMP}, {sWS} sc1\ns_mov_b64 exec, -1\n{l}:")
                if last and "stop7" in c.exp: a("s_endpgm")
                if own: pass
                elif last and c.fing < 8: a(f"s_cmp_eq_u32 s28, {c.fing}\ns_cbranch_scc0 {fin}")
                elif last: a(f"s_and_b32 s30, s29, 7\ns_cmp_eq_u32 s28, s30\ns_cbranch_scc0 {fin}")
                depth, delay, gap, gap2 = c.gl if last else c.g
                top = self.lab("g")
                gl = f"global_atomic_or_x2 v[{PG}:{PG+1}], {vGIN}, v[76:77], {sG[k]} sc0"
                if own:
                    gl0 = gl; gl = f"s_mov_b64 exec, vcc\n{gl0}\ns_mov_b64 exec, -1"
                    a(f"s_not_b64 vcc, s[24:25]")
                    self.nops(c.fod)
                    a(f"{gl}\nds_bpermute_b32 v{T2+2}, v{T2}, v{GA}\nds_bpermute_b32 v{T2+3}, v{T2}, v{GA} offset:4\ns_mov_b32 {sCNT}, {c.limit * c.outer}")
                    a(f"s_waitcnt lgkmcnt(0)\ns_mov_b64 exec, s[24:25]\nv_mov_b64 v[{PG}:{PG+1}], v[{T2+2}:{T2+3}]\ns_mov_b64 exec, -1")
                else: a(f"s_mov_b32 {sCNT}, {c.limit * c.outer}\ns_mov_b64 vcc, -1")
                if k == 0:
                    a(f"ds_read_b32 v{TMP}, {vZERO} offset:{L_PAR}\ns_lshr_b32 s30, {sXCC}, 2\ns_waitcnt lgkmcnt(0)\nv_readfirstlane_b32 s31, v{TMP}")
                    a(f"s_cmp_gt_i32 s31, {c.gthr}\ns_cselect_b32 s31, 0, 1\ns_xor_b32 s30, s30, s31\ns_and_b32 s30, s30, 1\ns_lshl_b32 s30, s30, 13\nv_add_u32 {vGIN}, s30, {vGIN}")
                    if c.dbgpar == 2:
                        a(f"s_cmp_eq_u32 s2, 4\ns_cbranch_scc0 {top}_nq\ns_load_dwordx2 s[44:45], s[0:1], 80\nv_lshlrev_b32 v{TMP+4}, 3, v0\ns_mov_b64 exec, 0xfff\nglobal_load_dwordx2 v[{TMP+6}:{TMP+7}], v{TMP+4}, s[0:1]\ns_getpc_b64 s[42:43]\ns_waitcnt vmcnt(0) lgkmcnt(0)")
                        a(f"v_alignbit_b32 v{TMP+6}, v{TMP+7}, v{TMP+6}, 20\nv_lshlrev_b32 v{TMP+4}, 2, v0\nglobal_store_dword v{TMP+4}, v{TMP+6}, s[44:45] offset:4\ns_lshr_b64 s[42:43], s[42:43], 12\nv_mov_b32 v{TMP+6}, s42\nv_mov_b32 v{TMP+7}, s0\nglobal_store_dwordx2 {vZERO}, v[{TMP+6}:{TMP+7}], s[44:45] offset:52\ns_mov_b64 exec, -1\n{top}_nq:")
                    if c.dbgpar: a(f"s_load_dwordx2 s[44:45], s[0:1], 80\ns_waitcnt lgkmcnt(0)\ns_cmp_eq_u32 s2, 4\ns_cbranch_scc0 {top}_np\nglobal_store_dword {vZERO}, v{TMP}, s[44:45]\n{top}_np:")
                    delay = 0
                self.nops(delay)
                if c.gform == 0:
                    for j in range(depth - 1):
                        a(gl); self.nops(gap)
                    a(f"{top}:\ns_mov_b64 exec, vcc\n{gl}\ns_mov_b64 exec, -1\ns_sub_u32 {sCNT}, {sCNT}, 1\ns_cbranch_scc1 L_exit")
                else:
                    for j in range(1 if own else 0, depth):
                        a(gl)
                        if j < depth - 1: self.nops(gap)
                    if own: gl = gl0
                    a(f"{top}_c:")
                    self.tail.append(f"{top}:\ns_mov_b64 exec, vcc\n{gl}\ns_mov_b64 exec, -1\ns_sub_u32 {sCNT}, {sCNT}, 1\ns_cbranch_scc0 {top}_c\ns_endpgm\n")
                a(f"""s_waitcnt vmcnt({depth - 1})
v_xor_b32 v{GA}, {sT}, v{PG}
v_xor_b32 v{GA+1}, {sT}, v{PG+1}
v_or_b32 v{TMP+1}, v{GA}, v{GA+1}
v_cmp_ne_u32_sdwa vcc, v{TMP+1}, 0 src0_sel:BYTE_0 src1_sel:DWORD
v_permlane32_swap_b32 v{GA}, v{GA+1}
v_add_f32 v{GA}, v{GA}, v{GA+1}
v_mov_b32 v{TMP}, v{GA}
s_cbranch_vccnz {top}
v_permlane16_swap_b32 v{GA}, v{TMP}
v_add_f32 v{GA}, v{GA}, v{TMP}
v_add_f32_dpp v{GA}, v{GA}, v{GA} row_ror:8 {DPP}
v_mov_b32 v{GA+1}, v{GA}
v_permlane32_swap_b32 v{GA}, v{GA+1}
v_add_f32 v{GA}, v{GA}, {vX}
v_add_f32 v{GA+1}, v{GA+1}, {vX1}
v_cvt_pk_bf16_f32 {vPR}, v{GA}, v{GA+1}""")
                pst = lambda base, off, s_: a(f"s_mov_b64 exec, 0xff\nglobal_store_dword {vPAIR8}, {vPR}, {base} offset:{off}{s_}\ns_mov_b64 exec, -1")
                if last:
                    if "noout" not in c.exp: pst(sOUT, 0, c.opol)
                    a(f"{fin}:")
                    self.end(0)
                    break
                if half == 0: st(11)
                elif c.stamp_layer == 1: self.stamp(13)
                pst(sSM, XALL[k], sc)
                if half == 0:
                    a("s_barrier")
                    if f"stop{2*k+1}" in c.exp: a("s_endpgm")
                    self.gemv(GU, B(4), sc, lanes=range(8), mask=M56)
                    a(f"v_lshlrev_b32 {vX}, 16, {vPR}\nv_and_b32 {vX1}, 0xffff0000, {vPR}")
                    st(12)
                else:
                    st2 = (lambda i: self.stamp(i)) if c.stamp_layer == 1 else (lambda i: None)
                    a(self.rs_loads(sR, PM))
                    self.gemv(self.WQ, HB(6), sc, lanes=range(8), hook=(c.xh, self.xload(1)))
                    a(f"v_lshlrev_b32 {vX}, 16, {vPR}\nv_and_b32 {vX1}, 0xffff0000, {vPR}")
                    st2(2)
                    if "stop3" in c.exp: a("s_endpgm")
                    self.rs_gather("q", HB(6), ln=1, xafter=1, side=self.late_colsum)
                    a(f"v_fma_f32 v{GA}, v{GA}, {vRS}, {vNM}")
                    st2(4)

    def y_head(self):
        a = self.a; c = self.c
        a(f"L_Y:\nds_write_b64 {vZERO}, v[{TMP}:{TMP+1}] offset:{L_CNT}\nv_add_u32 v{T2}, {L_WD}, {vXALL}\ns_waitcnt lgkmcnt(0)\ns_barrier".replace("L_Y:", f"L_Y:\nv_mov_b64 v[{TMP}:{TMP+1}], 0"))
        self.stamp(1)
        a("s_mov_b32 s8, 0")
        if c.probe:
            a(f"s_lshl_b32 s30, s28, 14\ns_and_b32 s31, s29, 15\ns_lshl_b32 s31, s31, 8\ns_add_u32 s30, s30, s31\ns_lshr_b32 s31, s29, 4\ns_lshl_b32 s31, s31, 17\ns_add_u32 s30, s30, s31\ns_add_u32 s30, s30, {PROBE}\ns_add_u32 s16, s26, s30\ns_addc_u32 s17, s27, 0")
            a(f"s_and_b32 s21, s29, 1\ns_lshl_b32 s10, s21, 13\ns_xor_b32 s11, s10, 0x2000")
            if c.probe > 1: a("s_load_dword s20, s[16:17], 64\ns_waitcnt lgkmcnt(0)")
            a("""s_add_u32 s10, s10, 128
s_add_u32 s11, s11, 128
s_memtime s[18:19]
s_waitcnt lgkmcnt(0)
s_load_dword s20, s[16:17], s10
s_waitcnt lgkmcnt(0)
s_memtime s[6:7]
s_waitcnt lgkmcnt(0)
s_load_dword s20, s[16:17], s11
s_waitcnt lgkmcnt(0)
s_memtime s[8:9]
s_waitcnt lgkmcnt(0)
s_sub_u32 s8, s8, s6
s_sub_u32 s6, s6, s18
s_sub_u32 s8, s6, s8
s_sub_u32 s9, 0, s8
s_cmp_eq_u32 s21, 0
s_cselect_b32 s8, s8, s9""")
        self.stamp(14)
        a(f"s_sub_u32 s9, 0, s8\ns_cmp_ge_u32 {sXCC}, 4\ns_cselect_b32 s8, s8, s9\ns_min_i32 s8, s8, {c.pclip}\ns_max_i32 s8, s8, -{c.pclip}")
        a(f"v_mov_b32 v{TMP}, s8\nds_write_b32 {vZERO}, v{TMP} offset:{L_PAR}\ns_add_u32 s25, {sE}, 3\ns_and_b32 s25, s25, 0xffff\ns_lshl_b32 s24, s8, 16\ns_or_b32 s24, s24, s25")
        a(f"v_mov_b32 v{TMP}, s24\ns_lshl_b32 s30, s29, 2\nv_mov_b32 v{TMP+1}, s30\ns_mov_b64 exec, 1\nglobal_store_dword v{TMP+1}, v{TMP}, {sSM} offset:{PARR}\ns_mov_b64 exec, -1")
        a(f"s_mov_b32 {sCN2}, {c.limit * c.outer * 4}")
        self.spare = SPARE
        for grp in range(4):
            self.lds_wait(L_CNT, grp + 1)
            for k in range(4 * grp, 4 * grp + 4):
                a(f"global_load_dwordx4 v[{WA+4*k}:{WA+4*k+3}], {vWO}, {sWO}{c.nt}")
                if k < 15: a(f"v_add_u32 {vWO}, 8192, {vWO}")
        for x in c.help:
            a(f"""s_xor_b32 s30, s29, {x}
s_and_b32 s31, s30, 3
s_lshl_b32 s31, s31, 7
s_lshr_b32 s30, s30, 2
s_add_u32 s31, s31, s30
s_lshl_b32 s30, s28, 9
s_add_u32 s31, s31, s30
s_lshl_b32 s31, s31, 10
s_add_u32 s31, s31, 65536
v_lshrrev_b32 v{TMP}, 3, v0
v_lshlrev_b32 v{TMP}, 13, v{TMP}
v_and_b32 v{TMP+1}, 7, v0
v_lshl_add_u32 v{TMP}, v{TMP+1}, 7, v{TMP}
v_add_u32 v{TMP}, s31, v{TMP}
global_load_dword {vJ}, v{TMP}, {sWO}{c.hpol}""")
        self.stamp(2)
        a(f"s_barrier\nds_read_b32 v{TMP+1}, {vZERO} offset:{L_MODE}")
        if 'noq' in self.c.exp: a("s_waitcnt vmcnt(0)"); self.end(1)
        a(f"s_waitcnt lgkmcnt(0)\nv_readfirstlane_b32 s3, v{TMP+1}\ns_cmp_eq_u32 s3, 0\ns_cbranch_scc0 L_Yslow")

    def y_program(self, slow):
        a = self.a; c = self.c
        sc = " sc1" if slow else ""
        spare0 = self.spare
        WO = []; WD = []
        for li in range(2):
            h = 5 * li
            B = lambda k: HB(h + k)
            st = (lambda i: self.stamp(i)) if li == c.stamp_layer else (lambda i: None)
            if li: a("s_barrier")
            if li == 1 and "stop8" in c.exp: a("s_endpgm")
            a("s_barrier")
            st(6)
            self.combine(li, B(2), 1, sc)
            if li == 1 and "stop9" in c.exp: a("s_endpgm")
            st(7)
            if li == 0: a(f"global_load_dword v{PG}, {vXC}, {sSM} offset:{PARR} sc1")
            y, z, t, L = PL, GA, TMP, PM + 8
            loads = "".join(f"global_load_dwordx4 v[{L+4*i}:{L+4*i+3}], {vOSI}, {sSM} offset:{OSTAT[li]+128+16*i} sc1\n" for i in range(2))
            loads += self.rs_loads(B(2), PL)
            def shadow(nafter):
                a(f"v_add_u32 v{T2}, {L_WD}, {vXALL}\ns_mov_b32 {sCN2}, {c.limit * c.outer * 4}")
                self.lds_wait(L_CN2, 4)
                self.lds_weights(WD, WB, f"v{T2}", 0, 4)
                a(f"s_mov_b32 {sCN2}, {c.outer}")
                for kp in range(8):
                    a(f"s_waitcnt vmcnt({14 - 2*kp + 2 + len(c.help) + nafter})")
                    self.perm_pair(WO, WA, kp)
            onorm, ogen = self.lab("onorm"), self.lab("ogen")
            def obody(off):
                a(f"""s_waitcnt vmcnt({off + 4})
v_pk_add_f32 v[{z}:{z+1}], v[{y}:{y+1}], v[{y+2}:{y+3}]
v_pk_add_f32 v[{LA}:{LA+1}], v[{L}:{L+1}], v[{L+2}:{L+3}]
v_pk_add_f32 v[{LA+2}:{LA+3}], v[{L+4}:{L+5}], v[{L+6}:{L+7}]
v_pk_add_f32 v[{LA}:{LA+1}], v[{LA}:{LA+1}], v[{LA+2}:{LA+3}]
v_add_f32 v{LA}, v{LA}, v{LA+1}
s_waitcnt vmcnt({off})
v_pk_add_f32 v[{z+2}:{z+3}], v[{y+4}:{y+5}], v[{y+6}:{y+7}]
v_pk_add_f32 v[{z}:{z+1}], v[{z}:{z+1}], v[{z+2}:{z+3}]
v_add_f32 v{z}, v{z}, v{z+1}
v_cmp_u_f32 vcc, v{z}, v{LA}
v_or3_b32 v{t+2}, v{L}, v{L+1}, v{L+2}
v_permlane32_swap_b32 v{z}, v{LA}
v_add_f32 v{z}, v{z}, v{LA}
v_mov_b32 v{t}, v{z}""")
            def oover(fb, ov, top):
                fb(f"{ov}:\ns_sub_u32 {sCN2}, {sCN2}, 1\ns_cbranch_scc1 L_exit\ns_mov_b32 {sCNT}, {c.limit}\ns_waitcnt vmcnt(0)")
                self.umax(t, range(y, y + 8))
                fb(f"v_cmp_eq_u32 vcc, 0xffff0000, v{t}\ns_cbranch_vccnz {top}")
                self.umax(t, range(L, L + 8))
                fb(f"v_cmp_eq_u32 vcc, -1, v{t}\ns_cbranch_vccnz {top}\ns_branch {ogen}")
            self.zero_acc()
            a(f"s_mov_b32 {sCN2}, {c.outer}")
            self.poll("o", loads, obody, c.ro if li else (1, 0, 0), shadow if li == 0 else None, bound=c.limit, over=oover)
            a(f"""v_or3_b32 v{t+2}, v{t+2}, v{L+3}, v{L+4}
v_permlane16_swap_b32 v{z}, v{t}
v_add_f32 v{z}, v{z}, v{t}
v_mov_b32 v{LA}, v{z}
v_or3_b32 v{t+2}, v{t+2}, v{L+5}, v{L+6}
v_or_b32 v{t+2}, v{t+2}, v{L+7}
v_permlane32_swap_b32 v{z}, v{LA}
v_rcp_f32 v{LA}, v{LA}
v_cmp_gt_i32 vcc, 0, v{t+2}
v_mul_f32 v{z}, v{z}, v{LA}""")
            self.pack(GA)
            a(f"s_cbranch_vccnz {ogen}\n{onorm}:")
            def ogen_f(fb):
                mloop = self.lab("omloop")
                fb(f"{ogen}:\ns_waitcnt vmcnt(0)\ns_mov_b32 {sCNT}, {c.limit * c.outer}\n{mloop}:\ns_sub_u32 {sCNT}, {sCNT}, 1\ns_cbranch_scc1 L_exit")
                for i in range(2): fb(f"global_load_dwordx4 v[{PM+4*i}:{PM+4*i+3}], {vOSI}, {sSM} offset:{OSTAT[li]+16*i} sc1")
                fb("s_waitcnt vmcnt(0)")
                for i in range(8): fb(f"v_cmp_gt_i32 vcc, 0, v{L+i}\nv_cndmask_b32 v{T2+i}, 0, v{PM+i}, vcc")
                self.umax(t, range(T2, T2 + 8))
                fb(f"v_cmp_eq_u32 vcc, -1, v{t}\ns_cbranch_vccnz {mloop}")
                fb(f"v_max3_f32 v{t}, v{T2}, v{T2+1}, v{T2+2}\nv_max3_f32 v{t}, v{t}, v{T2+3}, v{T2+4}\nv_max3_f32 v{t}, v{t}, v{T2+5}, v{T2+6}\nv_max_f32 v{t}, v{t}, v{T2+7}")
                self.allred(t, t + 1, "v_max_f32")
                for i in range(8): fb(f"v_sub_f32 v{T2+i}, v{T2+i}, v{t}")
                for i in range(8): fb(f"v_exp_f32 v{T2+i}, v{T2+i}")
                fb(f"v_mul_f32 v{GA}, v{T2}, v{y}\nv_mul_f32_e64 v{LA}, v{T2}, |v{L}|")
                for i in range(1, 8): fb(f"v_fmac_f32 v{GA}, v{T2+i}, v{y+i}\nv_fma_f32 v{LA}, v{T2+i}, |v{L+i}|, v{LA}")
                self.allred(LA, t + 1); self.allred(GA, t + 2)
                fb(f"v_rcp_f32 v{LA}, v{LA}\nv_mul_f32 v{GA}, v{GA}, v{LA}")
                self.pack(GA)
                fb(f"s_nop 1\ns_branch {onorm}")
            self.ool(ogen_f)
            st(8)
            if NB == 2: self.clear_inbox(B(2), sc)
            self.gemv(WO, B(3), sc, drain=NB == 2)
            a("s_barrier")
            if f"stop{4*li}" in c.exp: a("s_endpgm")
            st(9)
            noffn = self.lab("noffn")
            if li == 0:
                a(f"v_and_b32 v{TMP+1}, 0xffff, v{PG}\nv_cmp_eq_u32 vcc, s25, v{TMP+1}\nv_ashrrev_i32 v{TMP}, 16, v{PG}\nv_cndmask_b32 v{TMP}, 0, v{TMP}, vcc")
                for r in (8, 4, 2, 1): a(f"v_add_u32_dpp v{TMP}, v{TMP}, v{TMP} row_ror:{r} {DPP}")
                a(f"v_mov_b32 v{TMP+1}, v{TMP}\nv_permlane16_swap_b32 v{TMP}, v{TMP+1}\nv_add_u32 v{TMP}, v{TMP}, v{TMP+1}\ns_ashr_i32 s30, s24, 16\nv_add_u32 v{TMP}, s30, v{TMP}\nds_write_b32 {vZERO}, v{TMP} offset:{L_PAR}")
                l = self.lab("nocg")
                a(f"s_cmp_lt_u32 s29, 28\ns_cbranch_scc0 {l}")
                self.nops(c.cgd)
                self.colsum_gather(sR)
                self.clear_inbox(sR, sc)
                a(f"{l}:")
            self.zero_acc()
            a(f"s_barrier")
            if f"stop{4*li+1}" in c.exp: a("s_endpgm")
            a(f"s_cmp_lt_u32 s29, 28\ns_cbranch_scc0 {noffn}")
            st(12)
            self.rs_gather("gu", B(4), ln=2 * li)
            st(5)
            if NB == 2 and li == 0: self.clear_inbox(B(4), sc)
            a(f"v_fma_f32 v{GA}, v{GA}, {vRS}, {vNM}\nv_mul_f32_dpp v{GA}, v{GA}, v{GA} row_ror:8 {DPP}")
            self.pack(GA)
            self.gemv(WD, B(5), sc, drain=NB == 2 and li == 0)
            a(f"{noffn}:")
            st(13)
            a("s_barrier")
            if f"stop{4*li+2}" in c.exp or (li == 0 and "stop3" in c.exp): a("s_endpgm")
        self.end(1)
        self.spare = spare0

    def build(self):
        a = self.a
        self.prologue()
        self.s_stream()
        self.c_pre()
        self.x_head()
        self.x_program(False); self.flush()
        self.y_head()
        self.y_program(False); self.flush()
        self.s_layers(); self.flush()
        a("L_fast_end:\nL_Yslow:")
        self.y_program(True); self.flush()
        a("L_Xslow:")
        self.x_program(True); self.flush()
        a("L_exit:\ns_endpgm")
        head = f"""; Fused decode step: 2 x (LayerNorm -> GQA sliding-window attention -> residual -> LayerNorm -> bilinear GLU -> residual)
; @launch grid=(256,1,1) block=(384,1,1) lds={self.c.ldsx or LDS_BYTES}
.amdgcn_target "amdgcn-amd-amdhsa--gfx950"
.text
.globl {KNAME}
.p2align 8
.type {KNAME},@function
{KNAME}:
"""
        tail = f"""
.section .rodata,"a"
.p2align 6
.amdhsa_kernel {KNAME}
  .amdhsa_next_free_vgpr 256
  .amdhsa_next_free_sgpr 102
  .amdhsa_accum_offset 256
  .amdhsa_group_segment_fixed_size 0
  .amdhsa_kernarg_size 96
  .amdhsa_user_sgpr_count 2
  .amdhsa_user_sgpr_kernarg_segment_ptr 1
  .amdhsa_system_sgpr_workgroup_id_x 1
  .amdhsa_float_denorm_mode_32 3
.end_amdhsa_kernel
"""
        return head + a.text() + tail


def make(**kw):
    c = Cfg()
    for k, v in kw.items(): setattr(c, k, v)
    return Gen(c).build()

if __name__ == "__main__":
    kw = {}
    for x in sys.argv[2:]:
        k, v = x.split("=", 1); kw[k] = eval(v)
    open(sys.argv[1], "w").write(make(**kw))
```

```python
import re

TRANS = ("v_exp_f32", "v_log_f32", "v_rcp_f32", "v_rsq_f32", "v_sqrt_f32", "v_sin_f32", "v_cos_f32")

def _regs(tok):
    tok = tok.strip()
    neg = tok.lstrip("-")
    if neg.startswith("abs(") or neg.startswith("|"):
        neg = neg.replace("abs(", "").replace(")", "").replace("|", "")
    m = re.fullmatch(r"([vs])(\d+)", neg)
    if m: return [(m.group(1), int(m.group(2)))]
    m = re.fullmatch(r"([vs])\[(\d+):(\d+)\]", neg)
    if m: return [(m.group(1), i) for i in range(int(m.group(2)), int(m.group(3)) + 1)]
    if neg == "vcc": return [("s", "vcc")]
    if neg == "exec": return [("s", "exec")]
    if neg == "m0": return [("s", "m0")]
    return []

class I:
    def __init__(self, text):
        self.text = text
        t = text.split(";")[0].strip()
        self.label = t.endswith(":")
        self.directive = t.startswith(".")
        self.op = ""
        self.w = set(); self.r = set()
        self.kind = "none"
        if self.label or self.directive or not t: return
        parts = t.split(None, 1)
        op = self.op = parts[0]
        rest = parts[1] if len(parts) > 1 else ""
        toks = [x.strip() for x in re.split(r",\s*(?![^\[]*\])", rest)] if rest else []
        if toks:
            last = toks[-1].split()
            toks[-1] = last[0] if last else ""
            self.mods = " ".join(last[1:])
        else:
            self.mods = ""
        self.toks = toks
        R = lambda ts: set(x for tk in ts for x in _regs(tk))
        self.dpp = "_dpp" in op
        self.sdwa = "_sdwa" in op
        if op.startswith("v_mfma"):
            self.kind = "mfma"; self.w = R(toks[:1]); self.r = R(toks[1:]); self.srcc = R(toks[3:4]); self.ab = R(toks[1:3])
            self.passes = 8 if "32x32" in op else (2 if "4x4x4" in op else 4)
        elif op.startswith("v_"):
            self.kind = "valu"
            if op.startswith("v_cmp"):
                self.w = R(toks[:1]); self.r = R(toks[1:])
            elif op.startswith("v_permlane"):
                self.w = R(toks[:2]); self.r = R(toks[:2])
            elif op.startswith(("v_readlane", "v_readfirstlane")):
                self.w = R(toks[:1]); self.r = R(toks[1:])
            elif op.startswith(("v_add_co", "v_addc_co", "v_sub_co")):
                self.w = R(toks[:2]); self.r = R(toks[2:])
            else:
                self.w = R(toks[:1]); self.r = R(toks[1:])
                if op.startswith(("v_fmac", "v_dot2c", "v_writelane")) or "UNUSED_PRESERVE" in self.mods or (self.dpp):
                    self.r |= self.w
                if op.startswith("v_cndmask") and len(toks) == 3: self.r.add(("s", "vcc"))
            self.dppsrc = R(toks[1:2]) if self.dpp else set()
            self.trans = any(op.startswith(x) for x in TRANS)
            self.dot = op.startswith("v_dot")
        elif op.startswith(("global_", "buffer_")):
            self.kind = "vmem"
            if "load" in op and "lds" not in op:
                self.w = R(toks[:1]); self.r = R(toks[1:])
            else:
                self.r = R(toks)
            self.lds = "lds" in op or " lds" in (" " + self.mods)
            self.widestore = "store" in op and ("x4" in op or "x3" in op)
            self.sdata = R(toks[1:2]) if op.startswith("global_store") else set()
        elif op.startswith("ds_"):
            self.kind = "ds"
            if op.startswith(("ds_read", "ds_bpermute", "ds_swizzle", "ds_permute")):
                self.w = R(toks[:1]); self.r = R(toks[1:])
            else:
                self.r = R(toks)
        elif op.startswith("s_"):
            self.kind = "salu"
            if op == "s_nop":
                self.nop = int(toks[0], 0) + 1
            elif op.startswith(("s_cmp", "s_cbranch", "s_branch", "s_waitcnt", "s_barrier", "s_endpgm", "s_sleep", "s_setprio")):
                self.r = R(toks)
            else:
                self.w = R(toks[:1]); self.r = R(toks[1:])
    def states(self):
        if self.label or self.directive or not self.op: return 0
        if self.op == "s_nop": return self.nop
        return 1

def V(s): return set(x for x in s if x[0] == "v")
def S(s): return set(x for x in s if x[0] == "s")

def need(p, c):
    n = 0
    pv = V(p.w); ps = S(p.w)
    if p.kind == "valu":
        if c.kind == "valu":
            if c.dpp and (pv & c.dppsrc): n = max(n, 2)
            if c.op.startswith("v_permlane") and (pv & c.r): n = max(n, 2)
            if c.op.startswith(("v_readlane", "v_readfirstlane")) and (pv & c.r): n = max(n, 1)
            if p.trans and not c.trans and (pv & c.r): n = max(n, 1)
            if p.trans and c.trans and (pv & c.r): n = max(n, 1)
            if ps & c.r: n = max(n, 4 if c.op.startswith(("v_readlane", "v_writelane")) and False else 2)
            if (p.sdwa and "dst_sel" in p.mods and "dst_sel:DWORD" not in p.mods) and (pv & (c.r | c.w)): n = max(n, 1)
            if p.dot and (pv & (c.r | c.w)):
                same = c.op.replace("_dpp", "").replace("_e32", "") == p.op.replace("_dpp", "").replace("_e32", "")
                if same:
                    srcab = set(x for tk in c.toks[1:3] for x in _regs(tk))
                    if pv & srcab: n = max(n, 3)
                else: n = max(n, 3)
        if c.kind == "mfma" and (pv & c.r): n = max(n, 2)
        if c.kind in ("vmem", "ds"):
            if ps & c.r: n = max(n, 5)
            if p.dot and (pv & c.r): n = max(n, 3)
            if p.trans and (pv & c.r): n = max(n, 1)
        if c.kind == "salu" and (ps & c.r): n = max(n, 1 if ("s", "vcc") in (ps & c.r) and c.op.startswith("s_cbranch") else 2)
    if p.kind == "mfma":
        t = {2: (5, 4, 1), 4: (8, 6, 3), 8: (12, 10, 7)}[p.passes]
        if c.kind == "mfma":
            if pv & c.ab: n = max(n, t[0])
            if pv & c.srcc and not (pv == c.srcc and c.passes == p.passes): n = max(n, t[1])
            if pv & c.srcc and pv == c.srcc and p.passes == 2: n = max(n, 2)
            if pv & c.w and not (pv & c.srcc): n = max(n, t[0])
        elif c.kind in ("valu", "vmem", "ds"):
            if pv & (c.r | c.w): n = max(n, t[0])
            if c.kind == "valu" and (p.srcc & c.w): n = max(n, t[2])
    if p.kind == "vmem" and p.widestore and c.kind in ("valu", "mfma") and (p.sdata & c.w): n = max(n, 2)
    if p.kind == "vmem" and p.widestore and c.kind in ("vmem", "ds") and (p.sdata & c.w): n = max(n, 1)
    if p.kind == "salu" and ("s", "m0") in p.w and c.kind == "vmem" and c.lds: n = max(n, 1)
    return n

class Asm:
    def __init__(self):
        self.ins = []
        self.npad = 0
    def __call__(self, text):
        for line in text.split("\n"):
            line = line.strip()
            if not line: continue
            if line.startswith(";"):
                self.ins.append(I(line)); continue
            self.add(line)
    def add(self, line):
        c = I(line)
        if c.op:
            dist = 0; pad = 0
            for p in reversed(self.ins):
                if dist >= 20: break
                if p.op:
                    k = need(p, c) - dist
                    if k > pad: pad = k
                dist += p.states()
            if pad > 0:
                self.ins.append(I(f"s_nop {pad-1}")); self.npad += pad
        self.ins.append(c)
    def text(self):
        return "\n".join(("" if (i.label or i.directive or i.text.startswith(";")) else "  ") + i.text for i in self.ins) + "\n"
```
